```python
import torch

def _softmax(x, axis=-1):
    return torch.softmax(x, dim=axis)
def _gelu(x):
    return torch.nn.functional.gelu(x, approximate="tanh")
def _silu(x):
    return torch.nn.functional.silu(x)
def _sigmoid(x):
    return torch.sigmoid(x)
def _layernorm(x, axis=-1, eps=1e-5):
    m = x.mean(dim=axis, keepdim=True)
    v = x.var(dim=axis, keepdim=True, unbiased=False)
    return (x - m) / torch.sqrt(v + eps)
def _scatter_add(tgt, idx, src, axis=0):
    return tgt.clone().index_add_(axis, idx, src)
def _segment_sum(src, seg, n):
    out = torch.zeros((n,) + src.shape[1:], dtype=src.dtype)
    return out.index_add_(0, seg, src)
def _pad(x, pw):
    flat = tuple(v for pair in reversed(pw) for v in pair)
    return torch.nn.functional.pad(x, flat)

kernel_name = 'gated_mix__mha_block__glu_gated_reglu__prompt'

def setup_inputs():

    _w = (lambda a: (lambda t: t.to(torch.bfloat16) if t.is_floating_point() else t)(torch.as_tensor(a)))
    def _A_setup():
        B, S, D, H = 1, 2048, 512, 32
        return {
            "x": _w((lambda *s: torch.randn(*s, dtype=torch.bfloat16) * 0.05)(B, S, D)),
            "wqkv": _w((lambda *s: torch.randn(*s, dtype=torch.bfloat16) * 0.8)(D, 3 * D)),
            "wo": _w((lambda *s: torch.randn(*s, dtype=torch.bfloat16) * 0.05)(D, D)),
        }
    _A_in = _A_setup()

    def _B_setup():
        B, S, D, F = 1, 2048, 512, 1792
        return {
            "x": _w((lambda *s: torch.randn(*s, dtype=torch.bfloat16) * 0.05)(B, S, D)),
            "W_gate": _w((lambda *s: torch.randn(*s, dtype=torch.bfloat16) * 1.6)(D, F) * (2.0 / D) ** 0.5),
            "W_up": _w((lambda *s: torch.randn(*s, dtype=torch.bfloat16) * 1.6)(D, F) * (2.0 / D) ** 0.5),
            "W_down": _w((lambda *s: torch.randn(*s, dtype=torch.bfloat16) * 1.6)(F, D) * (1.0 / F) ** 0.5),
        }
    _B_in = _B_setup()

    return {
        "A_x": _A_in["x"],
        "A_wqkv": _A_in["wqkv"],
        "A_wo": _A_in["wo"],
        "B_x": _B_in["x"],
        "B_W_gate": _B_in["W_gate"],
        "B_W_up": _B_in["W_up"],
        "B_W_down": _B_in["W_down"],
        "gate_w": _w((lambda *s: torch.randn(*s, dtype=torch.bfloat16) * 0.05)(512) * 16.0),
    }

def reference(A_x, A_wqkv, A_wo, B_x, B_W_gate, B_W_up, B_W_down, gate_w):
    def _A_ref(x, wqkv, wo):
        B, S, D = x.shape
        H = 32
        Dh = D // H
        qkv = (lambda x, *d: x.permute(*d))((x @ wqkv).reshape(B, S, 3, H, Dh), 2, 0, 3, 1, 4)
        q, k, v = qkv[0], qkv[1], qkv[2]
        scores = torch.einsum("bhqd,bhkd->bhqk", q, k) * (Dh ** -0.5)
        p = _softmax(scores, axis=-1)
        o = torch.einsum("bhqk,bhkd->bhqd", p, v)
        return (lambda x, *d: x.permute(*d))(o, 0, 2, 1, 3).reshape(B, S, D) @ wo

    def _B_ref(x, W_gate, W_up, W_down):
        gate = torch.einsum("bsd,df->bsf", x, W_gate)
        up = torch.einsum("bsd,df->bsf", x, W_up)
        gate = gate * (lambda x, dt: x.to(dt))(gate > 0, gate.dtype)
        h = gate * up
        return torch.einsum("bsf,fd->bsd", h, W_down)

    x = A_x
    g = _sigmoid((x * gate_w).sum(-1, keepdims=True))
    a = _A_ref(x, A_wqkv, A_wo)
    b = _B_ref(x, B_W_gate, B_W_up, B_W_down)
    return g * a + (1 - g) * b
```

```python
import re

TRANS = ("v_exp_f32", "v_log_f32", "v_rcp_f32", "v_rsq_f32", "v_sqrt_f32", "v_sin_f32", "v_cos_f32",
         "v_rcp_iflag_f32")
BRANCH = ("s_branch", "s_cbranch_scc0", "s_cbranch_scc1", "s_cbranch_vccz", "s_cbranch_vccnz",
          "s_cbranch_execz", "s_cbranch_execnz")

_reg_re = re.compile(r"^(-|\|)?(abs\()?([vsa])(\d+)\)?\|?$")
_rng_re = re.compile(r"^([vsa])\[(\d+):(\d+)\]$")


def regs_of(tok):
    tok = tok.strip()
    if tok.startswith("-"):
        tok = tok[1:]
    if tok.startswith("abs(") and tok.endswith(")"):
        tok = tok[4:-1]
    if tok.startswith("|") and tok.endswith("|"):
        tok = tok[1:-1]
    m = _rng_re.match(tok)
    if m:
        return {(m.group(1), i) for i in range(int(m.group(2)), int(m.group(3)) + 1)}
    m = re.match(r"^([vsa])(\d+)$", tok)
    if m:
        return {(m.group(1), int(m.group(2)))}
    if tok == "vcc":
        return {("s", "vcc_lo"), ("s", "vcc_hi")}
    if tok in ("vcc_lo", "vcc_hi"):
        return {("s", tok)}
    if tok == "exec":
        return {("s", "exec_lo"), ("s", "exec_hi")}
    if tok in ("exec_lo", "exec_hi"):
        return {("s", tok)}
    if tok == "m0":
        return {("s", "m0")}
    return set()


class Ins:
    __slots__ = ("text", "mn", "ops", "mods", "kind", "wr", "rd", "c_rd", "ab_rd", "passes", "is_dpp",
                 "target", "comment", "store_data", "sgpr_rd_vmem", "lds_dma")

    def __init__(self, text):
        self.comment = ""
        if ";" in text:
            text, self.comment = text.split(";", 1)
        text = text.strip()
        self.text = text
        parts = text.split(None, 1)
        self.mn = parts[0]
        rest = parts[1] if len(parts) > 1 else ""
        ops = [o.strip() for o in rest.split(",")] if rest else []
        mods = ""
        if ops:
            last = ops[-1].split(None, 1)
            if len(last) > 1:
                ops[-1] = last[0]
                mods = last[1]
        self.ops, self.mods = ops, mods
        self.wr, self.rd = set(), set()
        self.c_rd, self.ab_rd = set(), set()
        self.passes = 0
        self.is_dpp = False
        self.target = None
        self.store_data = set()
        self.lds_dma = False
        self.classify()

    def classify(self):
        mn, ops, mods = self.mn, self.ops, self.mods
        R = regs_of
        allr = lambda lst: set().union(*[R(o) for o in lst]) if lst else set()
        if mn.startswith("v_mfma") or mn.startswith("v_smfmac"):
            self.kind = "mfma"
            self.wr = R(ops[0])
            self.ab_rd = R(ops[1]) | R(ops[2])
            self.c_rd = R(ops[3])
            self.rd = self.ab_rd | self.c_rd
            self.passes = 8 if "32x32x16" in mn else 4 if "16x16x32" in mn else 16
        elif mn.startswith("v_"):
            self.kind = "valu"
            base = mn.replace("_e32", "").replace("_e64", "").replace("_dpp", "").replace("_sdwa", "")
            self.is_dpp = ("row_" in mods or "quad_perm" in mods or "wave_" in mods or "row_bcast" in mods)
            if base.startswith("v_cmp"):
                self.wr = R(ops[0]); self.rd = allr(ops[1:])
            elif base in ("v_readfirstlane_b32", "v_readlane_b32"):
                self.wr = R(ops[0]); self.rd = allr(ops[1:])
            elif base.startswith("v_permlane") and "swap" in base:
                self.wr = R(ops[0]) | R(ops[1]); self.rd = set(self.wr)
            elif base in ("v_add_co_u32", "v_sub_co_u32", "v_subrev_co_u32"):
                self.wr = R(ops[0]) | R(ops[1]); self.rd = allr(ops[2:])
            elif base in ("v_addc_co_u32", "v_subb_co_u32"):
                self.wr = R(ops[0]) | R(ops[1]); self.rd = allr(ops[2:])
            elif base.startswith("v_fmac") or base.startswith("v_dot2c") or base == "v_writelane_b32":
                self.wr = R(ops[0]); self.rd = allr(ops)
            elif base == "v_nop":
                pass
            else:
                self.wr = R(ops[0]); self.rd = allr(ops[1:])
                if self.is_dpp:
                    self.rd |= R(ops[0])
            if base == "v_cndmask_b32" and len(ops) == 3:
                self.rd |= R("vcc")
            self.rd |= R("exec")
        elif mn.startswith("ds_"):
            self.kind = "ds"
            if mn.startswith("ds_read") or mn.startswith("ds_bpermute") or mn.startswith("ds_permute") or "_rtn" in mn \
                    or mn.startswith("ds_swizzle"):
                self.wr = R(ops[0]); self.rd = allr(ops[1:])
            else:
                self.rd = allr(ops)
        elif mn.startswith("buffer_") or mn.startswith("global_"):
            self.kind = "vmem"
            toks = mods.split()
            is_lds = ("lds" in toks) or mn.startswith("global_load_lds")
            self.lds_dma = is_lds
            if mn in ("buffer_wbl2", "buffer_inv"):
                pass
            elif is_lds:
                self.rd = allr(ops) | R("m0")
            elif "load" in mn:
                self.wr = R(ops[0]); self.rd = allr(ops[1:])
            elif "atomic" in mn:
                self.rd = allr(ops)
                if "sc0" in toks:
                    self.wr = R(ops[0]) if mn.startswith("buffer_") else R(ops[0])
            else:
                self.rd = allr(ops)
                data = ops[0] if mn.startswith("buffer_") else ops[1]
                if "x4" in mn or "x3" in mn:
                    self.store_data = R(data)
        elif mn.startswith("s_"):
            self.kind = "salu"
            if mn in BRANCH:
                self.kind = "branch"
                self.target = ops[0]
            elif mn in ("s_waitcnt", "s_barrier", "s_nop", "s_endpgm", "s_setprio", "s_sleep"):
                self.kind = "misc"
            elif mn.startswith("s_cmp") or mn.startswith("s_bitcmp"):
                self.rd = allr(ops)
            elif mn.startswith("s_load") or mn.startswith("s_memtime") or mn.startswith("s_memrealtime"):
                self.kind = "smem"
                self.wr = R(ops[0]); self.rd = allr(ops[1:])
            elif mn in ("s_setpc_b64",):
                self.kind = "jump"
                self.rd = allr(ops)
            elif "saveexec" in mn:
                self.wr = R(ops[0]) | R("exec"); self.rd = allr(ops[1:]) | R("exec")
            else:
                self.wr = R(ops[0]); self.rd = allr(ops[1:])
        else:
            raise ValueError("unknown instruction: " + self.text)

    def states(self):
        if self.mn == "s_nop":
            return int(self.ops[0], 0) + 1
        return 1

    def is_trans(self):
        return self.mn.replace("_e32", "").replace("_e64", "") in TRANS


def vg(rs):
    return {r for r in rs if r[0] in "va"}


def sg(rs):
    return {r for r in rs if r[0] == "s" and not str(r[1]).startswith("exec")}


MFMA_RAW = {2: 5, 4: 8, 8: 12, 16: 20}
MFMA_C_OVERLAP = {2: 4, 4: 6, 8: 10, 16: 18}
MFMA_C_WAR = {2: 1, 4: 3, 8: 7, 16: 15}


def required(p, c):
    need = 0
    if p.kind == "valu":
        pw = vg(p.wr)
        if pw:
            if c.kind == "mfma" and pw & vg(c.rd):
                need = max(need, 2)
            if c.kind == "valu":
                base = c.mn.replace("_e32", "").replace("_e64", "")
                if (base.startswith("v_readlane") or base.startswith("v_readfirstlane")) and pw & vg(c.rd):
                    need = max(need, 1)
                if c.is_dpp and pw & vg(c.rd):
                    need = max(need, 2)
                if base.startswith("v_permlane") and pw & vg(c.rd):
                    need = max(need, 2)
                if p.is_trans() and not c.is_trans() and pw & vg(c.rd):
                    need = max(need, 1)
            if p.is_trans() and c.kind in ("ds", "vmem") and pw & vg(c.rd):
                need = max(need, 1)
        ps = sg(p.wr)
        if ps:
            if c.kind == "vmem" and ps & sg(c.rd):
                need = max(need, 5)
            if c.kind == "valu" and ps & sg(c.rd):
                base = c.mn
                need = max(need, 4 if ("readlane" in base or "writelane" in base) else 2)
            if c.kind in ("salu", "branch", "smem", "jump") and (ps & sg(c.rd)):
                need = max(need, 1)
            if c.kind == "branch" and c.mn in ("s_cbranch_vccz", "s_cbranch_vccnz") and ("s", "vcc_lo") in ps:
                need = max(need, 5)
    if p.kind == "mfma":
        d = vg(p.wr)
        if c.kind == "mfma":
            if d & vg(c.ab_rd):
                need = max(need, MFMA_RAW[p.passes])
            oc = d & vg(c.c_rd)
            if oc:
                if not (vg(c.c_rd) == d and c.passes == p.passes):
                    need = max(need, MFMA_C_OVERLAP[p.passes])
            elif d & vg(c.wr):
                need = max(need, MFMA_C_OVERLAP[p.passes])
        elif c.kind in ("valu", "ds", "vmem"):
            if d & (vg(c.rd) | vg(c.wr)):
                need = max(need, MFMA_RAW[p.passes])
        if c.kind == "valu" and vg(p.c_rd) & vg(c.wr):
            need = max(need, MFMA_C_WAR[p.passes])
    if p.kind == "vmem" and p.store_data:
        if c.kind == "valu" and p.store_data & vg(c.wr):
            need = max(need, 2)
        elif c.kind in ("ds", "vmem", "mfma") and p.store_data & vg(c.wr):
            need = max(need, 1)
    if p.kind == "salu" and ("s", "m0") in p.wr:
        if c.kind == "vmem" and c.lds_dma:
            need = max(need, 1)
    return need


MAXDIST = 21


class Prog:
    def __init__(self):
        self.items = []

    def __call__(self, text):
        for line in text.split("\n"):
            line = line.strip()
            if not line:
                continue
            if line.startswith(";"):
                self.items.append(("raw", line))
            elif line.endswith(":"):
                self.items.append(("label", line[:-1]))
            elif line.startswith("."):
                self.items.append(("raw", line))
            else:
                self.items.append(Ins(line))

    def label(self, name):
        self.items.append(("label", name))

    def comment(self, text):
        self.items.append(("raw", "; " + text))

    def fix_hazards(self, verbose=False):
        inserted = 0
        for _ in range(10000):
            v = self._find_violation()
            if v is None:
                break
            idx, deficit, p, c = v
            if verbose:
                print(f"hazard: [{p.text}] -> [{c.text}] pad {deficit}")
            while deficit > 0:
                n = min(deficit, 16)
                self.items.insert(idx, Ins(f"s_nop {n-1}"))
                deficit -= n
                inserted += 1
        else:
            raise RuntimeError("hazard pass did not converge")
        return inserted

    def _find_violation(self):
        items = self.items
        labels = {it[1]: i for i, it in enumerate(items) if isinstance(it, tuple) and it[0] == "label"}
        start = getattr(self, "_resume", 0)
        for i in range(start, len(items)):
            p = items[i]
            if not isinstance(p, Ins) or p.kind in ("misc", "branch", "smem", "jump"):
                continue
            if p.kind == "salu" and ("s", "m0") not in p.wr:
                continue
            if p.kind == "ds":
                continue
            if p.kind == "vmem" and not p.store_data:
                continue
            stack = [(i + 1, 0)]
            seen = {}
            while stack:
                j, dist = stack.pop()
                while j < len(items) and dist < MAXDIST:
                    if seen.get(j, 99) <= dist:
                        break
                    seen[j] = dist
                    it = items[j]
                    if not isinstance(it, Ins):
                        j += 1
                        continue
                    need = required(p, it)
                    if need > dist:
                        self._resume = max(0, i - 30)
                        return j, need - dist, p, it
                    if it.mn == "s_endpgm" or it.kind == "jump":
                        break
                    dist += it.states()
                    if it.kind == "branch":
                        if it.target in labels:
                            stack.append((labels[it.target], dist))
                        if it.mn == "s_branch":
                            break
                    j += 1
        self._resume = 0
        return None

    def text(self):
        out = []
        for it in self.items:
            if isinstance(it, Ins):
                out.append("    " + it.text + ((" ;" + it.comment) if it.comment else ""))
            elif it[0] == "label":
                out.append(it[1] + ":")
            else:
                out.append(it[1])
        return "\n".join(out) + "\n"

    def count(self):
        return sum(isinstance(it, Ins) for it in self.items)


class VMQ:
    def __init__(self):
        self.alts = [[]]

    def push(self, tag, n=1):
        for a in self.alts:
            a.extend([tag] * n)

    def wait_n(self, tags):
        if isinstance(tags, str):
            tags = (tags,)
        best = None
        for a in self.alts:
            last = max((i for i, t in enumerate(a) if t in tags), default=-1)
            n = len(a) - 1 - last if last >= 0 else None
            if n is not None:
                best = n if best is None else min(best, n)
        return best

    def retire(self, n):
        for k, a in enumerate(self.alts):
            if len(a) > n:
                self.alts[k] = a[len(a) - n:] if n > 0 else []

    def wait(self, prog, tags):
        n = self.wait_n(tags)
        if n is None:
            return
        n = min(n, 63)
        prog(f"s_waitcnt vmcnt({n})")
        self.retire(n)

    def fork(self):
        import copy
        return copy.deepcopy(self)

    @staticmethod
    def join(qs):
        q = VMQ()
        q.alts = [list(a) for x in qs for a in x.alts]
        return q
```

```python
import sys, os
sys.path.insert(0, os.path.dirname(os.path.abspath(__file__)))
from asmlib import Prog, VMQ

NAME = "gated_mix__mha_block__glu_gated_reglu__prompt"

WS_CNT = 0x0
WS_NRMQ = 0x4000
WS_NRMK = 0x6000
WS_LG = 0x10000
WS_QF = 0x100000
WS_KF = 0x300000
WS_VF = 0x500000
WS_OF = 0x700000
WS_HF = 0x900000
WS_SIZE = 0x1000000
OOB = 0x7FFF0000
F1, F2, F3 = 0, 16, 32

CSCALE = 0.25 * 1.4426950408889634
import struct
def f2u(x): return struct.unpack("<I", struct.pack("<f", x))[0]

sX, sWQKV, sWO, sWG, sWU, sWD, sGW, sOUT, sDBG, sWS = 4, 6, 8, 12, 14, 16, 18, 20, 22, 24
SRD_X, SRD_WS, SRD_W2, SRD_DBG, SRD_T = 28, 32, 36, 40, 44
sW, sRB, sC, sRT, sCH, sTILE, sXCD, sSLOT = 48, 49, 50, 51, 52, 53, 54, 55
sT0, sT1, sT2, sT3, sT4, sT5 = 56, 57, 58, 59, 60, 61
sADV = 62
sH, sQC = 63, 64
sCS = 65
sPOLL = 66
sKOFF = 67
sHFB = 68
sT6, sT7 = 26, 27
sA0, sA1, sA2, sA3 = 56, 57, 58, 59
sI, sMODE, sT32, sRT64, sCB, sKQ, sTR = 60, 61, 62, 67, 68, 10, 11

def srd(p, dst, ptr, size):
    p(f"s_mov_b32 s{dst}, s{ptr}")
    p(f"s_mov_b32 s{dst+1}, s{ptr+1}")
    p(f"s_mov_b32 s{dst+2}, {size:#x}")
    p(f"s_mov_b32 s{dst+3}, 0x20000")

def S4(r): return f"s[{r}:{r+3}]"
def V4(r): return f"v[{r}:{r+3}]"
def V2(r): return f"v[{r}:{r+1}]"
def V16(r): return f"v[{r}:{r+15}]"

def mfma(p, d, a, b, c):
    cs = "0" if c is None else V16(c)
    p(f"v_mfma_f32_32x32x16_bf16 {V16(d)}, {V4(a)}, {V4(b)}, {cs}")

_uid = [0]
def uid():
    _uid[0] += 1
    return _uid[0]

def poll(p, q, vflag, vaddr, srd_reg, target, what):
    n = uid()
    p(f"v_readfirstlane_b32 s{sT0}, v{vflag}")
    p(f"s_cmp_ge_u32 s{sT0}, {target}")
    p(f"s_cbranch_scc1 L_ok{n}")
    p(f"s_mov_b32 s{sPOLL}, 0")
    p(f"L_poll{n}:")
    p(f"buffer_load_dword v{vflag}, v{vaddr}, {S4(srd_reg)}, 0 offen sc1")
    p("s_waitcnt vmcnt(0)")
    p(f"v_readfirstlane_b32 s{sT0}, v{vflag}")
    p(f"s_add_u32 s{sPOLL}, s{sPOLL}, 1")
    p(f"s_cmp_ge_u32 s{sPOLL}, 0x80000")
    p(f"s_cbranch_scc1 L_ok{n}")
    p(f"s_cmp_lt_u32 s{sT0}, {target}")
    p(f"s_cbranch_scc1 L_poll{n}")
    p(f"L_ok{n}:")


class Gen:
    def __init__(self, stop_after=None, opts=None):
        self.p = Prog()
        self.q = VMQ()
        self.stop_after = stop_after
        self.o = opts or {}

    def stamp(self, name):
        if self.o.get("stamps"):
            i = self.o["stampmap"].get(name)
            if i is not None:
                self.p(f"s_memtime s[{72+2*i}:{73+2*i}]")

    def dump_stamps(self):
        if not self.o.get("stamps"):
            return
        p = self.p
        p("s_memrealtime s[70:71]")
        p("s_waitcnt lgkmcnt(0)")
        p(f"s_lshl_b32 s{sT0}, s2, 3")
        p(f"s_add_u32 s{sT0}, s{sT0}, s{sW}")
        p(f"s_lshl_b32 s{sT0}, s{sT0}, 6")
        p(f"s_add_u32 s{sT0}, s{sT0}, 0x80000")
        for i in range(12):
            p(f"v_mov_b32 v{16+i}, s{72+2*i}")
        p("v_mov_b32 v28, s69")
        p("v_mov_b32 v29, s70")
        p("v_mov_b32 v30, 0")
        p("v_mov_b32 v31, 0")
        p("v_mov_b32 v32, 0")
        p("s_mov_b64 exec, 1")
        for i in range(4):
            p(f"buffer_store_dwordx4 {V4(16+4*i)}, v32, {S4(SRD_WS)}, s{sT0} offen offset:{16*i}")
        p("s_mov_b64 exec, -1")

    def prologue(self):
        p = self.p
        p("s_cmp_ge_u32 s2, 256")
        p("s_cbranch_scc1 L_end")
        p(f"s_load_dwordx4 s[4:7], s[0:1], 0")
        p(f"s_load_dwordx2 s[8:9], s[0:1], 16")
        p(f"s_load_dwordx4 s[12:15], s[0:1], 32")
        p(f"s_load_dwordx4 s[16:19], s[0:1], 48")
        p(f"s_load_dwordx4 s[20:23], s[0:1], 64")
        p(f"s_load_dwordx2 s[24:25], s[0:1], 80")
        p("v_lshrrev_b32 v1, 6, v0")
        p("v_and_b32 v2, 63, v0            ; v2 = lane")
        p(f"v_readfirstlane_b32 s{sW}, v1")
        p(f"s_and_b32 s{sXCD}, s2, 7")
        p(f"s_lshr_b32 s{sSLOT}, s2, 3")
        p(f"s_and_b32 s{sT0}, s{sXCD}, 1")
        p(f"s_lshl_b32 s{sT0}, s{sT0}, 3")
        p(f"s_and_b32 s{sT1}, s{sSLOT}, 7")
        p(f"s_add_u32 s{sRB}, s{sT0}, s{sT1}")
        p(f"s_lshr_b32 s{sT0}, s{sXCD}, 1")
        p(f"s_lshl_b32 s{sT0}, s{sT0}, 2")
        p(f"s_lshr_b32 s{sT1}, s{sSLOT}, 3")
        p(f"s_add_u32 s{sC}, s{sT0}, s{sT1}")
        p(f"s_and_b32 s{sRT}, s{sW}, 3")
        p(f"s_lshr_b32 s{sCH}, s{sW}, 2")
        p(f"s_lshl_b32 s{sT0}, s{sRB}, 2")
        p(f"s_add_u32 s{sTILE}, s{sT0}, s{sRT}")
        p(f"s_lshl_b32 s{sT0}, s{sXCD}, 2")
        p(f"s_and_b32 s{sT1}, s{sSLOT}, 3")
        p(f"s_add_u32 s{sH}, s{sT0}, s{sT1}           ; attention head")
        p(f"s_lshr_b32 s{sQC}, s{sSLOT}, 2           ; attention q chunk")
        p(f"s_mov_b32 s{sCS}, {f2u(CSCALE):#x}")
        if self.o.get("stamps"):
            p("s_memrealtime s[70:71]")
        p("s_waitcnt lgkmcnt(0)")
        if self.o.get("stamps"):
            p("s_mov_b32 s69, s70")
            for i in range(12):
                p(f"s_mov_b32 s{72+2*i}, 0")
        self.stamp("start")
        srd(p, SRD_X, sX, 2048 * 1024)
        srd(p, SRD_WS, sWS, WS_SIZE)
        srd(p, SRD_DBG, sDBG, 256)

    vLANE = 2
    vXD = (3, 4)
    vW1 = (6, 8)
    vW2 = (10, 11, 12)
    vL16 = 13
    vT0B, vT1B, vW2B = 14, 15, 5
    WB = (16, 28)
    vXR = (40, 41, 42, 43)
    vFLAG, vFADDR, vONE, vDBGA = 44, 45, 46, 47
    TMP = 48
    ACC = 64
    TMP2 = 112
    X = 128

    def p1_setup(self):
        p, q = self.p, self.q
        L = self.vLANE
        t0, t1, t2, t3 = 48, 49, 50, 51
        p(f"v_lshlrev_b32 v{self.vL16}, 4, v{L}")
        srd(p, SRD_T, sGW, 1024)
        p(f"s_lshl_b32 s{sT0}, s{sC}, 1")
        p(f"s_add_u32 s{sT0}, s{sT0}, s{sCH}")
        p(f"s_lshl_b32 s{sT1}, s{sT0}, 5            ; *32 bytes")
        p(f"v_lshrrev_b32 v{t0}, 5, v{L}             ; hh")
        p(f"v_lshlrev_b32 v{t0}, 4, v{t0}            ; hh*16")
        p(f"v_add_u32 v{t0}, s{sT1}, v{t0}")
        p(f"v_and_b32 v{t1}, 31, v{L}")
        p(f"s_lshl_b32 s{sT2}, s{sTILE}, 5")
        p(f"v_add_u32 v{t1}, s{sT2}, v{t1}           ; row")
        p(f"v_lshl_add_u32 v{t2}, v{t1}, 10, v{t0}")
        p(f"buffer_load_dwordx4 {V4(112)}, v{t0}, {S4(SRD_T)}, 0 offen")
        p(f"buffer_load_dwordx4 {V4(116)}, v{t2}, {S4(SRD_X)}, 0 offen")
        q.push("lgld", 2)
        p(f"s_lshl_b32 s{sT1}, s{sT0}, 13")
        p(f"s_add_u32 s{sT1}, s{sT1}, {WS_LG:#x}")
        p(f"v_lshl_add_u32 v{120}, v{t1}, 2, s{sT1}")
        p(f"v_mov_b32 v{t3}, {OOB:#x}")
        p(f"v_cmp_gt_u32 vcc, 32, v{L}")
        p(f"v_cndmask_b32 v120, v{t3}, v120, vcc")
        for e in range(2):
            r = self.vXD[e]
            p(f"v_lshrrev_b32 v{t0}, 4, v{L}")
            if e:
                p(f"v_add_u32 v{t0}, 4, v{t0}")
            p(f"v_and_b32 v{t1}, 7, v{L}")
            p(f"v_xor_b32 v{t0}, v{t0}, v{t1}          ; piece")
            p(f"v_lshlrev_b32 v{t0}, 4, v{t0}")
            p(f"v_lshrrev_b32 v{t1}, 3, v{L}")
            p(f"s_lshl_b32 s{sT0}, s{sRB}, 7")
            p(f"s_lshl_b32 s{sT1}, s{sW}, 4")
            p(f"s_add_u32 s{sT0}, s{sT0}, s{sT1}")
            if e:
                p(f"s_add_u32 s{sT0}, s{sT0}, 8")
            p(f"v_add_u32 v{t1}, s{sT0}, v{t1}         ; row")
            p(f"v_lshl_add_u32 v{r}, v{t1}, 10, v{t0}")
        p(f"s_lshr_b32 s{sT0}, s{sW}, 1             ; image")
        p(f"s_movk_i32 s{sT1}, 3072")
        p(f"s_cmp_eq_u32 s{sT0}, 3")
        p(f"s_cselect_b32 s{sT1}, 3584, s{sT1}        ; stride")
        p(f"s_cselect_b32 s{sT6}, s{sWG}, s{sWQKV}   ; base A")
        p(f"s_cselect_b32 s{sT7}, s{sWG+1}, s{sWQKV+1}")
        p(f"s_cselect_b32 s{sT4}, s{sWU}, s{sWQKV}   ; base B")
        p(f"s_cselect_b32 s{sT5}, s{sWU+1}, s{sWQKV+1}")
        p(f"s_cselect_b32 s{sT3}, 1, 3")
        p(f"s_mul_i32 s{sADV}, s{sT1}, 64")
        p(f"s_mul_i32 s{sT2}, s{sC}, 224")
        p(f"s_add_u32 s{sT2}, s{sT2}, 192")
        p(f"s_lshl_b32 s{sKOFF}, s{sC}, 6")
        p(f"s_lshl_b32 s{sPOLL}, s{sT0}, 10")
        p(f"s_add_u32 s{sKOFF}, s{sKOFF}, s{sPOLL}")
        p(f"s_cmp_eq_u32 s{sT0}, 3")
        p(f"s_cselect_b32 s{sT2}, s{sT2}, s{sKOFF}")
        p(f"s_cmp_eq_u32 s{sT0}, 1")
        p(f"s_cselect_b32 s{sKOFF}, 2, 0")
        p(f"v_and_b32 v{t0}, 3, v{L}                 ; p'")
        p(f"v_xor_b32 v{t1}, s{sKOFF}, v{t0}")
        p(f"v_and_b32 v{t1}, s{sT3}, v{t1}")
        p(f"v_lshlrev_b32 v{t1}, 4, v{t1}")
        p(f"v_add_u32 v{t1}, s{sT2}, v{t1}")
        p(f"v_lshrrev_b32 v{t2}, 2, v{L}")
        p(f"s_and_b32 s{sKOFF}, s{sW}, 1")
        p(f"s_lshl_b32 s{sKOFF}, s{sKOFF}, 5")
        p(f"v_add_u32 v{t2}, s{sKOFF}, v{t2}          ; k row")
        p(f"v_mul_lo_u32 v{t2}, v{t2}, s{sT1}")
        p(f"v_add_u32 v{t1}, v{t1}, v{t2}")
        a0, a1 = self.vW1
        p(f"v_cmp_gt_u32 vcc, 2, v{t0}")
        p(f"v_mov_b32 v{a0}, s{sT4}")
        p(f"v_mov_b32 v{t2}, s{sT6}")
        p(f"v_cndmask_b32 v{a0}, v{a0}, v{t2}, vcc")
        p(f"v_mov_b32 v{a0+1}, s{sT5}")
        p(f"v_mov_b32 v{t2}, s{sT7}")
        p(f"v_cndmask_b32 v{a0+1}, v{a0+1}, v{t2}, vcc")
        p(f"v_add_co_u32 v{a0}, vcc, v{a0}, v{t1}")
        p(f"v_addc_co_u32 v{a0+1}, vcc, 0, v{a0+1}, vcc")
        p(f"s_lshl_b32 s{sT1}, s{sT1}, 4             ; 16 rows")
        p(f"v_add_co_u32 v{a1}, vcc, s{sT1}, v{a0}")
        p(f"v_addc_co_u32 v{a1+1}, vcc, 0, v{a0+1}, vcc")
        self.stamp("predma")
        for g in range(4):
            self.p1_dma(g)
        self.stamp("dma0")
        p("s_add_u32 s%d, s2, s%d" % (sT0, sW))
        p(f"s_cmp_lg_u32 s{sT0}, 0")
        p("s_cbranch_scc1 L_noinit")
        p(f"v_lshlrev_b32 v{t0}, 8, v{L}")
        p(f"v_mov_b32 v{t1}, 0")
        p(f"buffer_store_dword v{t1}, v{t0}, {S4(SRD_WS)}, 0 offen sc1")
        p("s_waitcnt vmcnt(0)")
        p(f"v_mov_b32 v{t1}, 1")
        p(f"v_mov_b32 v{t0}, {OOB:#x}")
        p(f"v_cmp_eq_u32 vcc, 0, v{L}")
        p(f"v_cndmask_b32 v{t0}, v{t0}, 0, vcc")
        p(f"buffer_store_dword v{t1}, v{t0}, {S4(SRD_DBG)}, 0 offen sc1")
        p("L_noinit:")
        p(f"s_cmp_lt_u32 s{sW}, 4")
        p(f"s_cselect_b32 s{SRD_W2}, s{sWG}, s{sWU}")
        p(f"s_cselect_b32 s{SRD_W2+1}, s{sWG+1}, s{sWU+1}")
        p(f"s_mov_b32 s{SRD_W2+2}, {512*3584:#x}")
        p(f"s_mov_b32 s{SRD_W2+3}, 0x20000")
        p(f"s_and_b32 s{sT0}, s{sW}, 3")
        p(f"s_lshl_b32 s{sT0}, s{sT0}, 4             ; 16*wq")
        p(f"s_mul_i32 s{sT1}, s{sC}, 224")
        p(f"s_mov_b32 s{sT2}, 43691")
        p(f"s_mov_b32 s{sT3}, 3584")
        for e in range(3):
            r = self.vW2[e]
            p(f"v_add_u32 v{t0}, {64*e}, v{L}           ; j")
            p(f"v_mul_u32_u24 v{t1}, s{sT2}, v{t0}")
            p(f"v_lshrrev_b32 v{t1}, 19, v{t1}          ; j/12")
            p(f"v_mul_u32_u24 v{t2}, 12, v{t1}")
            p(f"v_sub_u32 v{t2}, v{t0}, v{t2}           ; j%12")
            p(f"v_add_u32 v{t1}, s{sT0}, v{t1}")
            p(f"v_mul_lo_u32 v{t1}, v{t1}, s{sT3}")
            p(f"v_lshl_add_u32 v{t1}, v{t2}, 4, v{t1}")
            p(f"v_add_u32 v{r}, s{sT1}, v{t1}")
        rowl, sig, grp = 52, 53, 54
        p(f"v_lshrrev_b32 v{t0}, 5, v{L}")
        p(f"v_lshlrev_b32 v{t0}, 3, v{t0}")
        p(f"v_bfe_u32 v{t1}, v{L}, 2, 2")
        p(f"v_add_u32 v{rowl}, v{t0}, v{t1}")
        p(f"v_and_b32 v{t0}, 1, v{L}")
        p(f"v_lshlrev_b32 v{t0}, 4, v{t0}            ; (g&1)*16")
        p(f"v_bfe_u32 v{t1}, v{L}, 1, 1")
        p(f"v_lshl_add_u32 v{sig}, v{t1}, 3, v{t0}    ; 8*sigma")
        p(f"v_bfe_u32 v{grp}, v{L}, 4, 1")
        p(f"s_lshl_b32 s{sT0}, s{sCH}, 5")
        p(f"s_add_u32 s{sT1}, s{sT0}, 16384")
        p(f"s_sub_u32 s{sT2}, {20480+32}, s{sT0}")
        p(f"s_sub_u32 s{sT2}, s{sT2}, s{sT1}         ; grp1 - grp0")
        p(f"v_mul_lo_u32 v{t0}, v{grp}, s{sT2}")
        p(f"v_lshl_add_u32 v{t1}, v{rowl}, 6, v{sig}")
        p(f"v_add3_u32 v{self.vT0B}, v{t0}, v{t1}, s{sT1}")
        p(f"s_lshl_b32 s{sT0}, s{sCH}, 12")
        p(f"s_add_u32 s{sT0}, s{sT0}, 24576")
        p(f"v_lshlrev_b32 v{t0}, 5, v{grp}")
        p(f"v_add3_u32 v{self.vT1B}, v{t0}, v{t1}, s{sT0}")
        p(f"s_mul_i32 s{sT0}, s{sCH}, 96")
        p(f"v_mul_u32_u24 v{t0}, 12320, v{grp}")
        p(f"v_mul_u32_u24 v{t1}, 192, v{rowl}")
        p(f"v_add3_u32 v{t0}, v{t0}, v{t1}, v{sig}")
        p(f"v_add_u32 v{self.vW2B}, s{sT0}, v{t0}")
        p(f"v_and_b32 v{t0}, 31, v{L}")
        p(f"s_lshl_b32 s{sT0}, s{sRT}, 5")
        p(f"v_add_u32 v{t1}, s{sT0}, v{t0}")
        p(f"v_lshlrev_b32 v{t1}, 7, v{t1}            ; row*128")
        p(f"v_bfe_u32 v{t0}, v{L}, 1, 3")
        p(f"v_lshrrev_b32 v{t2}, 5, v{L}")
        p(f"v_xor_b32 v{t0}, v{t0}, v{t2}            ; hh ^ f")
        p(f"v_lshl_add_u32 v{t1}, v{t0}, 4, v{t1}")
        for s in range(4):
            p(f"v_xor_b32 v{self.vXR[s]}, {32*s}, v{t1}")
        p(f"v_mov_b32 v{self.vONE}, 1")
        p(f"v_mov_b32 v{self.vDBGA}, 0")
        self.ldsbase = 0

    def slot(self, g):
        return 32768 * (g % 5)

    def p1_dma(self, g):
        p, q = self.p, self.q
        sl = self.slot(g)
        if g < 8:
            p(f"s_lshl_b32 s{sT0}, s{sW}, 11")
            p(f"s_add_u32 m0, s{sT0}, {sl}")
            p(f"s_mov_b32 s{sT1}, {128*g}")
            p(f"buffer_load_dwordx4 v{self.vXD[0]}, {S4(SRD_X)}, s{sT1} offen lds")
            p(f"s_add_u32 m0, s{sT0}, {sl+1024}")
            p(f"s_nop 0")
            p(f"buffer_load_dwordx4 v{self.vXD[1]}, {S4(SRD_X)}, s{sT1} offen lds")
            p(f"s_add_u32 m0, s{sT0}, {sl+16384}")
            a0, a1 = self.vW1
            p(f"s_nop 0")
            p(f"global_load_lds_dwordx4 {V2(a0)}, off")
            p(f"s_add_u32 m0, s{sT0}, {sl+16384+1024}")
            p(f"s_nop 0")
            p(f"global_load_lds_dwordx4 {V2(a1)}, off")
            if g < 7:
                for a in (a0, a1):
                    p(f"v_add_co_u32 v{a}, vcc, s{sADV}, v{a}")
                    p(f"v_addc_co_u32 v{a+1}, vcc, 0, v{a+1}, vcc")
            q.push(f"st{g}", 4)
        elif g < 16:
            gp = g - 8
            p(f"s_and_b32 s{sT0}, s{sW}, 3")
            p(f"s_mul_i32 s{sT0}, s{sT0}, 3072")
            p(f"s_cmp_ge_u32 s{sW}, 4")
            p(f"s_cselect_b32 s{sT1}, 12320, 0")
            p(f"s_add_u32 s{sT0}, s{sT0}, s{sT1}")
            p(f"s_mov_b32 s{sT1}, {229376*gp}")
            for e in range(3):
                p(f"s_add_u32 m0, s{sT0}, {sl+1024*e}")
                p(f"s_nop 0")
                p(f"buffer_load_dwordx4 v{self.vW2[e]}, {S4(SRD_W2)}, s{sT1} offen lds")
            q.push(f"st{g}", 3)
        else:
            j = g - 16
            assert sl == 32768 * (1 + j)
            src = (WS_KF if j < 2 else WS_VF) + 32768 * (j & 1)
            p(f"s_lshl_b32 s{sT0}, s{sW}, 12")
            p(f"s_lshl_b32 s{sT1}, s{sH}, 16")
            p(f"s_add_u32 s{sT1}, s{sT1}, s{sT0}")
            p(f"s_add_u32 m0, s{sT0}, {sl}")
            p(f"s_add_u32 s{sT2}, s{sT1}, {src:#x}")
            for e in range(4):
                o = f" offset:{1024*e}" if e else ""
                p(f"buffer_load_dwordx4 v{self.vL16}, {S4(SRD_WS)}, s{sT2} offen{o} sc1 lds")
            q.push(f"st{g}", 4)

    def rebase(self, regs, g):
        p = self.p
        sl = self.slot(g)
        want = (sl // 65536) * 65536
        if want != self.ldsbase:
            d = want - self.ldsbase
            for r in regs:
                if d > 0:
                    p(f"v_add_u32 v{r}, {d:#x}, v{r}")
                else:
                    p(f"v_subrev_u32 v{r}, {-d:#x}, v{r}")
            self.ldsbase = want
        return sl - want

    def p1_reads(self, ps, s, ch):
        p = self.p
        g = (s >> 2) + (0 if ps == 1 else 8)
        sp = s & 3
        wb = self.WB[s & 1]
        if ps == 1:
            regs = list(self.vXR) + [self.vT0B, self.vT1B, self.vW2B]
        else:
            regs = [self.vW2B]
        off = self.rebase(regs, g)
        n = 0
        if ps == 1:
            p(f"ds_read_b128 {V4(self.X + 4*s)}, v{self.vXR[sp]} offset:{off}")
            n += 1
            for t, base in enumerate((self.vT0B, self.vT1B)):
                for j in range(2):
                    p(f"ds_read_b64_tr_b16 {V2(wb + 4*t + 2*j)}, v{base} offset:{off + (16*sp + 4*j)*64}")
                    n += 1
        else:
            for t in range(3):
                for j in range(2):
                    p(f"ds_read_b64_tr_b16 {V2(wb + 4*t + 2*j)}, v{self.vW2B} offset:{off + (16*sp + 4*j)*192 + 32*t}")
                    n += 1
        return n

    def p1_midstage(self, g):
        p, q = self.p, self.q
        tags = [f"st{g+1}"] if g + 1 < 16 else []
        if g == 9:
            tags += ["e1st", "lgst", "dbg"]
        if g == 12:
            tags += ["f1"]
        self.stamp(f"pre{g}")
        if tags:
            q.wait(p, tags)
        if g == 12:
            poll(p, q, self.vFLAG, self.vFADDR, SRD_WS, 16, "F1")
        self.stamp(f"wait{g}")
        p("s_barrier")
        self.stamp(f"bar{g}")
        if g == 9:
            poll(p, q, self.vFLAG, self.vDBGA, SRD_DBG, 1, "init")
            p(f"s_lshl_b32 s{sT0}, s{sC}, 8")
            p(f"v_mov_b32 v{self.vFADDR}, {OOB:#x}")
            p(f"v_mov_b32 v{self.TMP}, s{sT0}")
            p(f"v_cmp_eq_u32 vcc, 0, v0")
            p(f"v_cndmask_b32 v{self.vFADDR}, v{self.vFADDR}, v{self.TMP}, vcc")
            p(f"buffer_atomic_add v{self.vONE}, v{self.vFADDR}, {S4(SRD_WS)}, 0 offen sc1")
            q.push("f1add")
        if g == 8:
            p(f"buffer_load_dword v{self.vFLAG}, v{self.vDBGA}, {S4(SRD_DBG)}, 0 offen sc1")
            q.push("dbg")
        if g == 10:
            T = self.TMP
            for i in range(4):
                p(f"v_mov_b32 v{T+i}, 0x3f803f80")
            p(f"v_lshlrev_b32 v{T+4}, 3, v0")
            p(f"v_add_u32 v{T+4}, 28672, v{T+4}")
            p(f"ds_write_b64 v{T+4}, {V2(T)}")
            p(f"v_mov_b32 v{T+5}, 28640")
            p(f"v_mov_b32 v{T+6}, 0")
            p(f"ds_write_b32 v{T+5}, v{T+6}")
            self.extra_lgkm = 2
        if g == 11:
            p(f"s_lshr_b32 s{sT0}, s{sH}, 1")
            p(f"s_lshl_b32 s{sT0}, s{sT0}, 8")
            p(f"v_mov_b32 v{self.vFADDR}, s{sT0}")
            p(f"buffer_load_dword v{self.vFLAG}, v{self.vFADDR}, {S4(SRD_WS)}, 0 offen sc1")
            q.push("f1")
        if g + 4 < 20 and not (g + 4 >= 16 and self.stop_after == "p1") and not self.o.get("nodma"):
            self.p1_dma(g + 4)

    def p1_pass(self, ps, ch):
        p, q = self.p, self.q
        nt = 2 if ps == 1 else 3
        acc = [self.ACC + 16*t for t in range(nt)]
        for s in range(32):
            g = (s >> 2) + (0 if ps == 1 else 8)
            if (s & 3) == 2:
                self.p1_midstage(g)
            nxt = None
            if s < 31:
                nxt = (ps, s + 1)
            elif ps == 1:
                nxt = (2, 0)
            if self.o.get("nocompute"):
                continue
            nr = self.p1_reads(nxt[0], nxt[1], ch) if nxt else 0
            p(f"s_waitcnt lgkmcnt({nr})")
            self.extra_lgkm = 0
            wb = self.WB[s & 1]
            xs = self.X + 4*s
            for t in range(nt):
                c = None if s == 0 else acc[t]
                if ps == 1 and t == 1 and ch == 0:
                    mfma(p, acc[t], xs, wb + 4*t, c)
                else:
                    mfma(p, acc[t], wb + 4*t, xs, c)

    def store_ws(self, vdata, voff, soff_reg, tag, offset=0):
        o = f" offset:{offset}" if offset else ""
        self.p(f"buffer_store_dwordx4 {V4(vdata)}, v{voff}, {S4(SRD_WS)}, s{soff_reg} offen{o} sc1")
        self.q.push(tag)

    def relu_mul_store(self, a, tmp, u_expr_const, tag):
        p = self.p
        for r in range(8):
            p(f"v_max_f32 v{a+r}, 0, v{a+r}")
        for r in range(8):
            p(f"v_mul_f32 v{a+r}, v{a+r}, v{a+8+r}")
        for i in range(4):
            p(f"v_cvt_pk_bf16_f32 v{tmp+i}, v{a+2*i}, v{a+2*i+1}")
        p(f"s_add_u32 s{sT1}, s{sHFB}, {u_expr_const}")
        self.store_ws(tmp, self.vL16, sT1, tag)

    def p1_epi1(self, ch):
        p, q = self.p, self.q
        A, B = self.ACC, self.ACC + 16
        T = self.TMP
        L = self.vLANE
        p(f"s_lshl_b32 s{sT0}, s{sC}, 1")
        p(f"s_add_u32 s{sT0}, s{sT0}, {ch}            ; head")
        p(f"s_lshl_b32 s{sT1}, s{sT0}, 6")
        p(f"s_add_u32 s{sT1}, s{sT1}, s{sTILE}        ; h*64+tile")
        p(f"s_lshl_b32 s{sT2}, s{sT1}, 10")
        p(f"s_add_u32 s{sT3}, s{sT2}, {WS_QF:#x}")
        p(f"s_add_u32 s{sT4}, s{sT2}, {WS_KF:#x}")
        p(f"s_lshl_b32 s{sT5}, s{sT1}, 2")
        for r in range(8):
            p(f"v_mul_f32 v{A+r}, s{sCS}, v{A+r}")
        n0, n1 = T + 8, T + 9
        p(f"v_mul_f32 v{n0}, v{A}, v{A}")
        p(f"v_mul_f32 v{n1}, v{A+8}, v{A+8}")
        for r in range(1, 8):
            p(f"v_fmac_f32 v{n0}, v{A+r}, v{A+r}")
            p(f"v_fmac_f32 v{n1}, v{A+8+r}, v{A+8+r}")
        for i in range(4):
            p(f"v_cvt_pk_bf16_f32 v{T+i}, v{A+2*i}, v{A+2*i+1}")
        for i in range(4):
            p(f"v_cvt_pk_bf16_f32 v{T+4+i}, v{A+8+2*i}, v{A+8+2*i+1}")
        self.store_ws(T, self.vL16, sT3, "e1st")
        self.store_ws(T + 4, self.vL16, sT4, "e1st")
        p(f"v_permlane32_swap_b32 v{n0}, v{n1}")
        p(f"v_add_f32 v{n0}, v{n0}, v{n1}")
        for sh in (1, 2, 4, 8):
            p(f"v_max_f32_dpp v{n0}, v{n0}, v{n0} row_shr:{sh} row_mask:0xf bank_mask:0xf")
        p(f"v_max_f32_dpp v{n0}, v{n0}, v{n0} row_bcast:15 row_mask:0xa bank_mask:0xf")
        a = T + 10
        p(f"s_add_u32 s{sT6}, s{sT5}, {WS_NRMQ:#x}")
        p(f"s_add_u32 s{sT7}, s{sT5}, {WS_NRMK:#x}")
        p(f"v_mov_b32 v{a}, {OOB:#x}")
        p(f"v_mov_b32 v{a+1}, s{sT6}")
        p(f"v_cmp_eq_u32 vcc, 31, v{L}")
        p(f"v_cndmask_b32 v{a}, v{a}, v{a+1}, vcc")
        p(f"v_mov_b32 v{a+1}, s{sT7}")
        p(f"v_cmp_eq_u32 vcc, 63, v{L}")
        p(f"v_cndmask_b32 v{a}, v{a}, v{a+1}, vcc")
        p(f"buffer_store_dword v{n0}, v{a}, {S4(SRD_WS)}, 0 offen sc1")
        q.push("e1st")
        p(f"s_mul_i32 s{sHFB}, s{sTILE}, 112")
        p(f"s_mul_i32 s{sT6}, s{sC}, 7")
        p(f"s_add_u32 s{sHFB}, s{sHFB}, s{sT6}")
        p(f"s_lshl_b32 s{sHFB}, s{sHFB}, 10")
        p(f"s_add_u32 s{sHFB}, s{sHFB}, {WS_HF:#x}")
        if ch == 0:
            V = self.TMP2
            for i in range(8):
                p(f"v_cvt_pk_bf16_f32 v{V+i}, v{B+2*i}, v{B+2*i+1}")
            p(f"v_bfe_u32 v{a}, v{L}, 4, 1")
            p(f"v_lshlrev_b32 v{a}, 16, v{a}")
            p(f"v_lshrrev_b32 v{a+1}, 5, v{L}")
            p(f"v_lshl_add_u32 v{a}, v{a+1}, 8, v{a}")
            p(f"v_and_b32 v{a+1}, 15, v{L}")
            p(f"v_lshl_add_u32 v{a}, v{a+1}, 4, v{a}")
            p(f"s_lshl_b32 s{sT0}, s{sC}, 17")
            p(f"s_lshl_b32 s{sT1}, s{sTILE}, 10")
            p(f"s_add_u32 s{sT0}, s{sT0}, s{sT1}")
            p(f"s_add_u32 s{sT0}, s{sT0}, {WS_VF:#x}")
            self.store_ws(V, a, sT0, "e1st")
            self.store_ws(V + 4, a, sT0, "e1st", offset=512)
        else:
            self.relu_mul_store(B, self.TMP2, 6 * 1024, "e1h")

    def p1_epi2(self):
        p = self.p
        p(f"s_mul_i32 s{sT0}, s{sCH}, 3072")
        p(f"s_add_u32 s{sHFB}, s{sHFB}, s{sT0}")
        for t in range(3):
            self.relu_mul_store(self.ACC + 16*t, self.TMP + 4*t, t * 1024, "e2st")

    def p1(self):
        p, q = self.p, self.q
        self.p1_setup()
        self.stamp("setup")
        q.wait(p, ["st0", "lgld"])
        p("s_barrier")
        self.stamp("st0")
        self.p1_reads(1, 0, 0)
        mfma(p, 96, 112, 116, None)
        p(f"buffer_store_dword v96, v120, {S4(SRD_WS)}, 0 offen sc1")
        q.push("lgst")
        q0 = q.fork()
        base0 = self.ldsbase
        p(f"s_cmp_eq_u32 s{sCH}, 0")
        p("s_cbranch_scc0 L_p1_ch1")
        self.p1_pass(1, 0)
        self.stamp("pass1")
        self.p1_epi1(0)
        qa, basea = self.q, self.ldsbase
        p("s_branch L_p1_join")
        p("L_p1_ch1:")
        self.q = q0
        self.ldsbase = base0
        self.p1_pass(1, 1)
        self.stamp("pass1")
        self.p1_epi1(1)
        assert basea == self.ldsbase
        p("L_p1_join:")
        self.q = VMQ.join([qa, self.q])
        self.stamp("epi1")
        self.p1_pass(2, None)
        self.stamp("pass2")
        self.p1_epi2()
        self.stamp("epi2")


    aQ, aK, aV, aS, aP, aO = 4, (8, 12), (16, 24), (32, 48), (64, 72), 80
    avK, avV, avVinc, avL16 = 96, 97, 98, 3
    avT = 100
    HFR = 128
    LGR = 240

    def att_setup(self):
        p, q = self.p, self.q
        L, T = self.vLANE, self.avT
        p(f"v_lshlrev_b32 v{self.avL16}, 4, v{L}")
        p(f"s_lshl_b32 s{sA0}, s{sQC}, 3")
        p(f"s_add_u32 s{sA0}, s{sA0}, s{sW}          ; q tile")
        p(f"s_lshl_b32 s{sA1}, s{sH}, 6")
        p(f"s_add_u32 s{sA1}, s{sA1}, s{sA0}         ; h*64+tile")
        p(f"s_lshl_b32 s{sA2}, s{sA1}, 10")
        p(f"s_add_u32 s{sA2}, s{sA2}, {WS_QF:#x}")
        p(f"buffer_load_dwordx4 {V4(self.aQ)}, v{self.avL16}, {S4(SRD_WS)}, s{sA2} offen sc1")
        p(f"s_lshl_b32 s{sA2}, s{sH}, 8")
        p(f"s_add_u32 s{sA2}, s{sA2}, {WS_NRMK:#x}")
        p(f"v_lshlrev_b32 v{T}, 2, v{L}")
        p(f"buffer_load_dword v{T+1}, v{T}, {S4(SRD_WS)}, s{sA2} offen sc1")
        p(f"s_lshl_b32 s{sA2}, s{sA1}, 2")
        p(f"s_add_u32 s{sA2}, s{sA2}, {WS_NRMQ:#x}")
        p(f"v_mov_b32 v{T+3}, 0")
        p(f"buffer_load_dword v{T+2}, v{T+3}, {S4(SRD_WS)}, s{sA2} offen sc1")
        q.push("aq", 3)
        p(f"v_add_u32 v{self.avK}, 32768, v{self.avL16}")
        p(f"v_and_b32 v{T+4}, 31, v{L}               ; m")
        p(f"v_lshrrev_b32 v{T+5}, 5, v{L}")
        p(f"v_lshlrev_b32 v{T+5}, 8, v{T+5}")
        p(f"v_and_b32 v{T+6}, 15, v{L}")
        p(f"v_lshl_add_u32 v{T+5}, v{T+6}, 4, v{T+5}")
        p(f"v_add_u32 v{T+5}, 98304, v{T+5}")
        p(f"v_subrev_u32 v{T+6}, 20, v{T+4}")
        p(f"v_mov_b32 v{T+7}, 28672")
        p(f"v_mov_b32 v{T+8}, {28672+64}")
        p(f"v_cmp_gt_u32 vcc, 8, v{T+6}")
        p(f"v_cndmask_b32 v{T+7}, v{T+7}, v{T+8}, vcc")
        p(f"v_cmp_gt_u32 vcc, 16, v{T+4}")
        p(f"v_cndmask_b32 v{self.avV}, v{T+7}, v{T+5}, vcc")
        p(f"v_mov_b32 v{T+7}, 0")
        p(f"v_mov_b32 v{T+8}, 4096")
        p(f"v_cndmask_b32 v{self.avVinc}, v{T+7}, v{T+8}, vcc")
        for r in list(range(self.aO, self.aO + 16)) + list(range(self.aP[1], self.aP[1] + 8)) + list(range(self.aV[1], self.aV[1] + 8)):
            p(f"v_mov_b32 v{r}, 0")
        p(f"s_lshl_b32 s{sRT64}, s{sXCD}, 2")
        p(f"s_and_b32 s{sA0}, s{sSLOT}, 3")
        p(f"s_add_u32 s{sRT64}, s{sRT64}, s{sA0}")
        p(f"s_lshr_b32 s{sCB}, s{sSLOT}, 2")
        p(f"s_lshr_b32 s{sKQ}, s{sW}, 1")
        p(f"s_and_b32 s{sTR}, s{sW}, 1")
        p(f"s_lshl_b32 s{sT32}, s{sRT64}, 1")
        p(f"s_add_u32 s{sT32}, s{sT32}, s{sTR}")
        q.wait(p, ["st16", "st17", "st18", "st19", "aq"])
        p("s_barrier")
        self.stamp("kv")
        for sh in (1, 2, 4, 8):
            p(f"v_max_f32_dpp v{T+1}, v{T+1}, v{T+1} row_shr:{sh} row_mask:0xf bank_mask:0xf")
        p(f"v_max_f32_dpp v{T+1}, v{T+1}, v{T+1} row_bcast:15 row_mask:0xa bank_mask:0xf")
        p(f"v_max_f32_dpp v{T+1}, v{T+1}, v{T+1} row_bcast:31 row_mask:0xc bank_mask:0xf")
        p(f"v_readlane_b32 s{sA0}, v{T+1}, 63")
        p(f"v_mul_f32 v{T+2}, s{sA0}, v{T+2}")
        p(f"v_mov_b32 v{T+3}, {f2u(3600.0):#x}")
        p(f"v_cmp_le_f32 vcc, v{T+2}, v{T+3}")
        p(f"s_cmp_eq_u64 vcc, exec")
        p(f"s_cselect_b32 s{sMODE}, 0, 1")
        if self.o.get("force_slow"):
            p(f"s_mov_b32 s{sMODE}, 1")
        p(f"s_mov_b32 s{sI}, 0")

    def att_tile(self, tb):
        p = self.p
        Sc, Sn = self.aS[tb & 1], self.aS[(tb + 1) & 1]
        Kn, Kl = self.aK[(tb + 1) & 1], self.aK[tb & 1]
        Vc, Vp = self.aV[tb & 1], self.aV[(tb + 1) & 1]
        Pc, Pp = self.aP[tb & 1], self.aP[(tb + 1) & 1]
        O, Q = self.aO, self.aQ
        ex = lambda i: p(f"v_exp_f32 v{Sc+i}, v{Sc+i}")
        cv = lambda i: p(f"v_cvt_pk_bf16_f32 v{Pc+i}, v{Sc+2*i}, v{Sc+2*i+1}")
        p("s_waitcnt lgkmcnt(0)")
        mfma(p, Sn, Kn, Q, None)
        p(f"ds_read_b128 {V4(Kl)}, v{self.avK} offset:{1024*(tb+2)}")
        ex(0); ex(1); ex(2); cv(0); ex(3)
        mfma(p, O, Vp, Pp, O)
        ex(4); cv(1); ex(5); ex(6); cv(2); ex(7); ex(8); cv(3); ex(9)
        mfma(p, O, Vp + 4, Pp + 4, O)
        p(f"ds_read_b128 {V4(Vc)}, v{self.avV} offset:{1024*tb}")
        p(f"ds_read_b128 {V4(Vc+4)}, v{self.avV} offset:{1024*tb+512}")
        ex(10); cv(4); ex(11); ex(12); cv(5); ex(13); ex(14); cv(6); ex(15)
        if tb == 3:
            p(f"v_add_u32 v{self.avK}, 4096, v{self.avK}")
            p(f"v_add_u32 v{self.avV}, v{self.avVinc}, v{self.avV}")
        else:
            p("s_nop 0")
        cv(7)

    def att_boundary(self, seg):
        p, q = self.p, self.q
        T = self.avT
        L = self.vLANE
        if seg == 1:
            p("s_waitcnt vmcnt(0)")
            n = uid()
            p("s_mov_b64 exec, 1")
            p(f"v_mov_b32 v{T}, 28640")
            p(f"v_mov_b32 v{T+1}, 1")
            p(f"ds_add_rtn_u32 v{T+2}, v{T}, v{T+1}")
            p("s_waitcnt lgkmcnt(0)")
            p(f"v_readfirstlane_b32 s{sA0}, v{T+2}")
            p(f"s_cmp_eq_u32 s{sA0}, 7")
            p(f"s_cbranch_scc0 L_nof2_{n}")
            p(f"s_add_u32 s{sA0}, s{sRB}, {F2}")
            p(f"s_lshl_b32 s{sA0}, s{sA0}, 8")
            p(f"v_mov_b32 v{T}, s{sA0}")
            p(f"buffer_atomic_add v{T+1}, v{T}, {S4(SRD_WS)}, 0 offen sc1")
            p(f"L_nof2_{n}:")
            p("s_mov_b64 exec, -1")
            if self.o.get("warm", 1):
                srd(p, SRD_T, sWD, 1792 * 1024)
                p(f"s_mul_i32 s{sA0}, s{sSLOT}, 57344")
                p(f"s_mul_i32 s{sA1}, s{sW}, 7168")
                p(f"s_add_u32 s{sA0}, s{sA0}, s{sA1}")
                p(f"v_lshlrev_b32 v{T}, 6, v{L}")
                p(f"buffer_load_dword v{T+3}, v{T}, {S4(SRD_T)}, s{sA0} offen")
                p(f"s_add_u32 s{sA0}, s{sA0}, 3072")
                p(f"buffer_load_dword v{T+4}, v{T}, {S4(SRD_T)}, s{sA0} offen")
                srd(p, SRD_T, sWO, 512 * 1024)
                p(f"s_lshl_b32 s{sA0}, s{sSLOT}, 14")
                p(f"s_lshl_b32 s{sA1}, s{sW}, 11")
                p(f"s_add_u32 s{sA0}, s{sA0}, s{sA1}")
                p(f"v_and_b32 v{T+6}, 31, v{L}")
                p(f"v_lshlrev_b32 v{T+6}, 6, v{T+6}")
                p(f"buffer_load_dword v{T+5}, v{T+6}, {S4(SRD_T)}, s{sA0} offen")
        if seg == 2:
            p(f"s_lshr_b32 s{sA0}, s{sRT64}, 1")
            p(f"s_add_u32 s{sA0}, s{sA0}, {F2}")
            p(f"s_lshl_b32 s{sA0}, s{sA0}, 8")
            p(f"v_mov_b32 v{T}, s{sA0}")
            p(f"buffer_load_dword v{T+1}, v{T}, {S4(SRD_WS)}, 0 offen sc1")
            p("s_waitcnt vmcnt(0)")
            poll(p, q, T + 1, T, SRD_WS, 16, "F2")
        if seg in (2, 3):
            p(f"s_mul_i32 s{sA0}, s{sT32}, 112")
            p(f"s_mul_i32 s{sA1}, s{sKQ}, 28")
            p(f"s_add_u32 s{sA0}, s{sA0}, s{sA1}")
            p(f"s_lshl_b32 s{sA0}, s{sA0}, 10")
            p(f"s_add_u32 s{sA0}, s{sA0}, {WS_HF + (14*1024 if seg == 3 else 0):#x}")
            for j in range(14):
                jj = j + (14 if seg == 3 else 0)
                o = f" offset:{1024*(j&3)}" if j & 3 else ""
                p(f"buffer_load_dwordx4 {V4(self.HFR + 4*jj)}, v{self.avL16}, {S4(SRD_WS)}, s{sA0} offen{o} sc1")
                if (j & 3) == 3:
                    p(f"s_add_u32 s{sA0}, s{sA0}, 4096")
        if seg == 3:
            p(f"v_lshrrev_b32 v{T}, 5, v{L}")
            p(f"v_lshlrev_b32 v{T}, 17, v{T}")
            p(f"v_and_b32 v{T+1}, 31, v{L}")
            p(f"v_lshl_add_u32 v{T}, v{T+1}, 2, v{T}")
            p(f"s_lshl_b32 s{sA0}, s{sT32}, 7")
            p(f"s_add_u32 s{sA0}, s{sA0}, {WS_LG:#x}")
            for i in range(16):
                p(f"buffer_load_dword v{self.LGR+i}, v{T}, {S4(SRD_WS)}, s{sA0} offen sc1")
                if i < 15:
                    p(f"s_add_u32 s{sA0}, s{sA0}, 8192")

    def att_slow_tile(self):
        p = self.p
        S, P, O, K, V, Q = self.aS[0], self.aP[0], self.aO, self.aK[0], self.aV[0], self.aQ
        T = self.avT
        m_old, m_new, al = T + 8, T + 9, T + 10
        p(f"ds_read_b128 {V4(K)}, v{self.avK}")
        p(f"ds_read_b128 {V4(V)}, v{self.avV}")
        p(f"ds_read_b128 {V4(V+4)}, v{self.avV} offset:512")
        p("s_waitcnt lgkmcnt(0)")
        mfma(p, S, K, Q, None)
        p(f"v_max3_f32 v{m_new}, v{S}, v{S+1}, v{S+2}")
        for r in range(3, 15, 2):
            p(f"v_max3_f32 v{m_new}, v{m_new}, v{S+r}, v{S+r+1}")
        p(f"v_max_f32 v{m_new}, v{m_new}, v{S+15}")
        p(f"v_mov_b32 v{al}, v{m_new}")
        p(f"v_permlane32_swap_b32 v{m_new}, v{al}")
        p(f"v_max3_f32 v{m_new}, v{m_new}, v{al}, v{m_old}")
        p(f"v_sub_f32 v{al}, v{m_old}, v{m_new}")
        p(f"v_exp_f32 v{al}, v{al}")
        p(f"v_mov_b32 v{m_old}, v{m_new}")
        for r in range(16):
            p(f"v_sub_f32 v{S+r}, v{S+r}, v{m_new}")
        for r in range(16):
            p(f"v_exp_f32 v{S+r}, v{S+r}")
        for r in range(16):
            p(f"v_mul_f32 v{O+r}, v{al}, v{O+r}")
        for i in range(8):
            p(f"v_cvt_pk_bf16_f32 v{P+i}, v{S+2*i}, v{S+2*i+1}")
        mfma(p, O, V, P, O)
        mfma(p, O, V + 4, P + 4, O)
        p(f"v_add_u32 v{self.avK}, 1024, v{self.avK}")
        p(f"v_lshrrev_b32 v{al}, 2, v{self.avVinc}")
        p(f"v_add_u32 v{self.avV}, v{al}, v{self.avV}")

    def attention(self):
        p, q = self.p, self.q
        self.att_setup()
        p(f"s_cmp_eq_u32 s{sMODE}, 0")
        p("s_cbranch_scc0 L_att_slow0")
        p(f"ds_read_b128 {V4(self.aK[0])}, v{self.avK}")
        p(f"ds_read_b128 {V4(self.aK[1])}, v{self.avK} offset:1024")
        p("s_waitcnt lgkmcnt(1)")
        mfma(p, self.aS[0], self.aK[0], self.aQ, None)
        p("s_nop 9")
        p(".p2align 6")
        p("L_att_loop:")
        for tb in range(4):
            self.att_tile(tb)
        p(f"s_add_u32 s{sI}, s{sI}, 1")
        p(f"s_and_b32 s{sA0}, s{sI}, 3")
        p("s_cbranch_scc1 L_att_loop")
        p("L_att_disp:")
        p(f"s_cmp_eq_u32 s{sI}, 16")
        p("s_cbranch_scc1 L_att_done")
        for seg in (1, 2, 3):
            if seg < 3:
                p(f"s_cmp_eq_u32 s{sI}, {4*seg}")
                p(f"s_cbranch_scc0 L_att_seg{seg+1}")
            self.stamp(f"seg{seg}")
            self.att_boundary(seg)
            p(f"s_branch L_att_back")
            if seg < 3:
                p(f"L_att_seg{seg+1}:")
        p("L_att_back:")
        p(f"s_cmp_eq_u32 s{sMODE}, 0")
        p("s_cbranch_scc1 L_att_loop")
        p("s_branch L_att_slow")
        self.slow_prog_pending = True
        p("L_att_done:")
        p(f"s_cmp_eq_u32 s{sMODE}, 0")
        p("s_cbranch_scc0 L_att_fin")
        p("s_waitcnt lgkmcnt(0)")
        mfma(p, self.aO, self.aV[1], self.aP[1], self.aO)
        mfma(p, self.aO, self.aV[1] + 4, self.aP[1] + 4, self.aO)
        p("L_att_fin:")
        self.stamp("att")
        O, T = self.aO, self.avT
        p(f"v_rcp_f32 v{T}, v{O+8}")
        for r in range(8):
            p(f"v_mul_f32 v{O+r}, v{T}, v{O+r}")
        for i in range(4):
            p(f"v_cvt_pk_bf16_f32 v{T+4+i}, v{O+2*i}, v{O+2*i+1}")
        p(f"s_lshl_b32 s{sA0}, s{sQC}, 3")
        p(f"s_add_u32 s{sA0}, s{sA0}, s{sW}")
        p(f"s_lshl_b32 s{sA0}, s{sA0}, 5")
        p(f"s_add_u32 s{sA0}, s{sA0}, s{sH}")
        p(f"s_lshl_b32 s{sA0}, s{sA0}, 10")
        p(f"s_add_u32 s{sA0}, s{sA0}, {WS_OF:#x}")
        p(f"buffer_store_dwordx4 {V4(T+4)}, v{self.avL16}, {S4(SRD_WS)}, s{sA0} offen sc1")
        self.q = VMQ()
        self.q.push("ost")

    def att_slow_code(self):
        p = self.p
        T = self.avT
        p("L_att_slow0:")
        p(f"v_mov_b32 v{T+8}, 0xff800000")
        p("L_att_slow:")
        p(f"s_mov_b32 s{sA3}, 0")
        p("L_att_slow_loop:")
        self.att_slow_tile()
        p(f"s_add_u32 s{sA3}, s{sA3}, 1")
        p(f"s_cmp_lt_u32 s{sA3}, 16")
        p("s_cbranch_scc1 L_att_slow_loop")
        p(f"s_add_u32 s{sI}, s{sI}, 4")
        p("s_branch L_att_disp")


    pWB = (16, 24)
    pB, pA = 32, 64
    pvD = 4
    pvR = (6, 7, 8, 9)
    pG = 10
    pOF = 128
    pT = 100

    def p3_dma(self, g):
        p, q = self.p, self.q
        sl = self.slot(g)
        p(f"s_lshl_b32 s{sA0}, s{sW}, 12")
        if g < 7:
            srd_r, v, row0 = SRD_W2, self.pvD, 64 * g
        else:
            srd_r, v, row0 = SRD_X, self.pvD + 1, 64 * (g - 7)
        for e in range(4):
            p(f"s_add_u32 m0, s{sA0}, {sl + 1024*e}")
            p(f"s_mov_b32 s{sA1}, {(row0 + 8*e) * 1024}")
            p(f"buffer_load_dwordx4 v{v}, {S4(srd_r)}, s{sA1} offen lds")
        q.push(f"p3s{g}", 4)

    def p3_reads(self, t):
        p = self.p
        g, sp = t >> 2, t & 3
        sl = self.slot(g)
        hi = 1 if sl >= 65536 else 0
        off = sl - 65536 * hi
        if sl >= 131072:
            hi, off = 2, sl - 131072
        wb = self.pWB[t & 1]
        for ct in range(2):
            base = self.pvR[ct] if hi == 0 else self.pvR[2 + ct] if hi == 1 else self.pT + 8 + ct
            for j in range(2):
                p(f"ds_read_b64_tr_b16 {V2(wb + 4*ct + 2*j)}, v{base} offset:{off + (16*sp + 4*j) * 128}")
        return 4

    def p3(self):
        p, q = self.p, self.q
        L, T = self.vLANE, self.pT
        p("s_barrier")
        srd(p, SRD_W2, sWD, 1792 * 1024)
        srd(p, SRD_X, sWO, 512 * 1024)
        p(f"v_bfe_u32 v{T}, v{L}, 4, 1")
        p(f"v_lshlrev_b32 v{T}, 2, v{T}")
        p(f"v_and_b32 v{T+1}, 7, v{L}")
        p(f"v_xor_b32 v{T}, v{T}, v{T+1}")
        p(f"v_lshlrev_b32 v{T}, 4, v{T}")
        p(f"s_lshl_b32 s{sA0}, s{sCB}, 7")
        p(f"v_add_u32 v{T}, s{sA0}, v{T}")
        p(f"v_lshrrev_b32 v{T+1}, 3, v{L}")
        p(f"s_lshl_b32 s{sA1}, s{sTR}, 5")
        p(f"v_add_u32 v{T+1}, s{sA1}, v{T+1}          ; 32*(w&1) + (l>>3)")
        p(f"s_mul_i32 s{sA0}, s{sKQ}, 448")
        p(f"v_add_u32 v{T+2}, s{sA0}, v{T+1}")
        p(f"v_lshl_add_u32 v{self.pvD}, v{T+2}, 10, v{T}")
        p(f"s_lshl_b32 s{sA0}, s{sKQ}, 7")
        p(f"v_add_u32 v{T+2}, s{sA0}, v{T+1}")
        p(f"v_lshl_add_u32 v{self.pvD+1}, v{T+2}, 10, v{T}")
        for g in range(4):
            self.p3_dma(g)
        q.wait(p, "ost")
        p("s_barrier")
        p(f"s_add_u32 s{sA0}, s{sQC}, {F3}")
        p(f"s_lshl_b32 s{sA0}, s{sA0}, 8")
        p(f"v_mov_b32 v{T}, {OOB:#x}")
        p(f"v_mov_b32 v{T+1}, s{sA0}")
        p(f"v_cmp_eq_u32 vcc, 0, v0")
        p(f"v_cndmask_b32 v{T}, v{T}, v{T+1}, vcc")
        p(f"v_mov_b32 v{T+1}, 1")
        p(f"buffer_atomic_add v{T+1}, v{T}, {S4(SRD_WS)}, 0 offen sc1")
        q.push("f3add")
        self.stamp("f3")
        p(f"v_lshrrev_b32 v{T}, 5, v{L}")
        p(f"v_lshlrev_b32 v{T}, 3, v{T}")
        p(f"v_bfe_u32 v{T+1}, v{L}, 2, 2")
        p(f"v_add_u32 v{T}, v{T}, v{T+1}             ; row")
        p(f"v_lshlrev_b32 v{T}, 7, v{T}              ; *128")
        p(f"v_and_b32 v{T+1}, 1, v{L}")
        p(f"v_lshlrev_b32 v{T+1}, 2, v{T+1}")
        p(f"v_bfe_u32 v{T+2}, v{L}, 4, 1")
        p(f"v_lshl_add_u32 v{T+1}, v{T+2}, 1, v{T+1}")
        p(f"v_bfe_u32 v{T+2}, v{L}, 1, 1")
        p(f"v_add_u32 v{T+1}, v{T+1}, v{T+2}          ; cg")
        p(f"v_lshl_add_u32 v{T}, v{T+1}, 3, v{T}")
        p(f"s_lshl_b32 s{sA0}, s{sKQ}, 13")
        p(f"v_add_u32 v{T}, s{sA0}, v{T}")
        p(f"v_bfe_u32 v{T+2}, v{L}, 3, 1")
        p(f"v_lshlrev_b32 v{T+2}, 6, v{T+2}           ; 64*b")
        p(f"v_add_u32 v{self.pvR[0]}, v{T}, v{T+2}     ; ct0: 64*b")
        p(f"v_xor_b32 v{T+2}, 64, v{T+2}")
        p(f"v_add_u32 v{self.pvR[1]}, v{T}, v{T+2}     ; ct1: 64*(1-b)")
        for ct in range(2):
            p(f"v_add_u32 v{self.pvR[2+ct]}, 0x10000, v{self.pvR[ct]}")
            p(f"v_add_u32 v{T+8+ct}, 0x20000, v{self.pvR[ct]}")
        G = self.pG
        lg = self.LGR
        for i in range(1, 16):
            p(f"v_add_f32 v{lg}, v{lg}, v{lg+i}")
        p(f"v_mov_b32 v{lg+1}, v{lg}")
        p(f"v_permlane32_swap_b32 v{lg}, v{lg+1}")
        p(f"v_add_f32 v{lg}, v{lg}, v{lg+1}")
        p(f"v_mul_f32 v{lg}, {f2u(-1.4426950408889634):#x}, v{lg}")
        p(f"v_exp_f32 v{lg}, v{lg}")
        p(f"v_add_f32 v{lg}, 1.0, v{lg}")
        p(f"v_rcp_f32 v{G}, v{lg}")
        p(f"s_add_u32 s{sA0}, s{sXCD}, {F3}")
        p(f"s_lshl_b32 s{sA0}, s{sA0}, 8")
        p(f"v_mov_b32 v{T+7}, s{sA0}")
        q.wait(p, "p3s0")
        p("s_barrier")
        self.stamp("p3st0")
        self.p3_reads(0)
        for t in range(36):
            g = t >> 2
            if (t & 3) == 2:
                tags = [f"p3s{g+1}"] if g + 1 < 9 else []
                if g == 4:
                    tags.append("f3ld")
                if g == 6:
                    tags.append("ofr")
                if tags:
                    q.wait(p, tags)
                if g == 4:
                    poll(p, q, T + 6, T + 7, SRD_WS, 32, "F3")
                p("s_barrier")
                if g == 3:
                    p(f"buffer_load_dword v{T+6}, v{T+7}, {S4(SRD_WS)}, 0 offen sc1")
                    q.push("f3ld")
                if g == 4:
                    p(f"s_lshl_b32 s{sA0}, s{sT32}, 5")
                    p(f"s_lshl_b32 s{sA1}, s{sKQ}, 3")
                    p(f"s_add_u32 s{sA0}, s{sA0}, s{sA1}")
                    p(f"s_lshl_b32 s{sA0}, s{sA0}, 10")
                    p(f"s_add_u32 s{sA0}, s{sA0}, {WS_OF:#x}")
                    for j in range(8):
                        o = f" offset:{1024*(j&3)}" if j & 3 else ""
                        p(f"buffer_load_dwordx4 {V4(self.pOF + 4*j)}, v{self.avL16}, {S4(SRD_WS)}, s{sA0} offen{o} sc1")
                        if j == 3:
                            p(f"s_add_u32 s{sA0}, s{sA0}, 4096")
                    q.push("ofr", 8)
                if g + 4 < 9:
                    self.p3_dma(g + 4)
            nr = self.p3_reads(t + 1) if t < 35 else 0
            p(f"s_waitcnt lgkmcnt({nr})")
            wb = self.pWB[t & 1]
            if t < 28:
                acc, bfr, first = self.pB, self.HFR + 4*t, t == 0
            else:
                acc, bfr, first = self.pA, self.pOF + 4*(t - 28), t == 28
            for ct in range(2):
                mfma(p, acc + 16*ct, wb + 4*ct, bfr, None if first else acc + 16*ct)
            if t == 27:
                self.stamp("p3a")
        self.stamp("p3b")
        p(f"v_sub_f32 v{G+1}, 1.0, v{G}")
        B, A = self.pB, self.pA
        for r in range(32):
            p(f"v_mul_f32 v{B+r}, v{G+1}, v{B+r}")
        for r in range(32):
            p(f"v_fmac_f32 v{B+r}, v{G}, v{A+r}")
        p(f"v_and_b32 v{T}, 31, v{L}                 ; n")
        p(f"v_and_b32 v{T+1}, 15, v{L}")
        p(f"v_lshrrev_b32 v{T+2}, 5, v{L}")
        p(f"v_lshlrev_b32 v{T+2}, 2, v{T+2}           ; 4hi")
        p(f"v_xor_b32 v{T+1}, v{T+1}, v{T+2}          ; (n&15) ^ 4hi")
        p(f"v_lshlrev_b32 v{T+1}, 4, v{T+1}")
        p(f"v_lshl_add_u32 v{T}, v{T}, 8, v{T+1}")
        p(f"s_lshl_b32 s{sA0}, s{sW}, 13")
        p(f"v_add_u32 v{T}, s{sA0}, v{T}")
        for ct in range(2):
            for qq in range(4):
                c = 8*ct + qq
                p(f"v_xor_b32 v{T+1}, {16*c}, v{T}")
                p(f"ds_write_b128 v{T+1}, {V4(B + 16*ct + 4*qq)}")
        p("s_waitcnt lgkmcnt(0)")
        p("s_barrier")
        p(f"v_lshrrev_b32 v{T}, 3, v{L}")
        p(f"s_lshl_b32 s{sA0}, s{sKQ}, 3")
        p(f"v_add_u32 v{T}, s{sA0}, v{T}             ; rho")
        p(f"v_and_b32 v{T+1}, 7, v{L}")
        p(f"v_lshlrev_b32 v{T+1}, 1, v{T+1}           ; 2*(l&7)")
        p(f"v_and_b32 v{T+2}, 15, v{T}")
        p(f"v_xor_b32 v{T+1}, v{T+1}, v{T+2}")
        p(f"v_lshlrev_b32 v{T+1}, 4, v{T+1}")
        p(f"v_lshl_add_u32 v{T+1}, v{T}, 8, v{T+1}")
        p(f"s_lshl_b32 s{sA0}, s{sTR}, 13")
        p(f"v_add_u32 v{T+1}, s{sA0}, v{T+1}")
        p(f"v_xor_b32 v{T+2}, 16, v{T+1}              ; e=1")
        R = 16
        for k in range(4):
            p(f"ds_read_b128 {V4(R + 8*k)}, v{T+1} offset:{16384*k}")
            p(f"ds_read_b128 {V4(R + 8*k + 4)}, v{T+2} offset:{16384*k}")
        srd(p, SRD_T, sOUT, 2048 * 1024)
        p(f"s_lshl_b32 s{sA0}, s{sT32}, 5")
        p(f"v_add_u32 v{T}, s{sA0}, v{T}")
        p(f"v_and_b32 v{T+3}, 7, v{L}")
        p(f"v_lshlrev_b32 v{T+3}, 4, v{T+3}")
        p(f"v_lshl_add_u32 v{T}, v{T}, 10, v{T+3}")
        p(f"s_lshl_b32 s{sA0}, s{sCB}, 7")
        p(f"v_add_u32 v{T}, s{sA0}, v{T}")
        p("s_waitcnt lgkmcnt(0)")
        for r in range(8):
            p(f"v_add_f32 v{R+r}, v{R+r}, v{R+8+r}")
            p(f"v_add_f32 v{R+16+r}, v{R+16+r}, v{R+24+r}")
        for r in range(8):
            p(f"v_add_f32 v{R+r}, v{R+r}, v{R+16+r}")
        for i in range(4):
            p(f"v_cvt_pk_bf16_f32 v{R+8+i}, v{R+2*i}, v{R+2*i+1}")
        p(f"buffer_store_dwordx4 {V4(R+8)}, v{T}, {S4(SRD_T)}, 0 offen")

    def finish(self):
        p = self.p
        p("s_waitcnt vmcnt(0)")
        self.stamp("end")
        self.dump_stamps()
        p("s_waitcnt vmcnt(0)")
        p("L_end:")
        p("s_endpgm")

    def build(self):
        self.prologue()
        self.p1()
        if self.stop_after != "p1":
            self.attention()
            if self.stop_after != "att":
                self.p3()
        self.finish()
        if self.stop_after != "p1":
            self.att_slow_code()
        n = self.p.fix_hazards()
        return self.p.text(), n


HEADER = """; Kernarg layout (88 bytes): A_x, A_wqkv, A_wo, B_x, B_W_gate, B_W_up, B_W_down, gate_w, out, debug, ws
; @launch grid=(256,1,1) block=(512,1,1) lds=163840
.amdgcn_target "amdgcn-amd-amdhsa--gfx950"
.text
.globl {name}_kernel
.p2align 8
.type {name}_kernel,@function
{name}_kernel:
"""
FOOTER = """.section .rodata,"a"
.p2align 6
.amdhsa_kernel {name}_kernel
  .amdhsa_next_free_vgpr 256
  .amdhsa_next_free_sgpr 96
  .amdhsa_accum_offset 256
  .amdhsa_group_segment_fixed_size 0
  .amdhsa_kernarg_size 88
  .amdhsa_user_sgpr_count 2
  .amdhsa_user_sgpr_kernarg_segment_ptr 1
  .amdhsa_system_sgpr_workgroup_id_x 1
  .amdhsa_float_denorm_mode_32 3
.end_amdhsa_kernel
"""

def generate(stop_after=None, opts=None):
    g = Gen(stop_after, opts)
    body, n = g.build()
    return HEADER.format(name=NAME) + body + FOOTER.format(name=NAME), n, g.p.count()

if __name__ == "__main__":
    import argparse
    ap = argparse.ArgumentParser()
    ap.add_argument("--stop", default=None)
    ap.add_argument("-o", default="cdna_kernels/" + NAME + ".s")
    ap.add_argument("--opt", action="append", default=[])
    ap.add_argument("--stamps", default="")
    a = ap.parse_args()
    opts = {}
    for o in a.opt:
        k, _, v = o.partition("=")
        opts[k] = int(v) if v else 1
    names = a.stamps.split(",") if a.stamps else []
    if names:
        opts["stamps"] = 1
        opts["stampmap"] = {"start": 0, "end": 11}
        for i, nm in enumerate(names):
            opts["stampmap"][nm] = i + 1
    txt, n, cnt = generate(a.stop, opts)
    open(a.o, "w").write(txt)
    print(f"wrote {a.o}: {cnt} instructions, {n} nop pads")
```

```python
import re

TRANS = ("v_exp_f32", "v_log_f32", "v_rcp_f32", "v_rsq_f32", "v_sqrt_f32", "v_sin_f32", "v_cos_f32",
         "v_rcp_iflag_f32")
BRANCH = ("s_branch", "s_cbranch_scc0", "s_cbranch_scc1", "s_cbranch_vccz", "s_cbranch_vccnz",
          "s_cbranch_execz", "s_cbranch_execnz")

_reg_re = re.compile(r"^(-|\|)?(abs\()?([vsa])(\d+)\)?\|?$")
_rng_re = re.compile(r"^([vsa])\[(\d+):(\d+)\]$")


def regs_of(tok):
    tok = tok.strip()
    if tok.startswith("-"):
        tok = tok[1:]
    if tok.startswith("abs(") and tok.endswith(")"):
        tok = tok[4:-1]
    if tok.startswith("|") and tok.endswith("|"):
        tok = tok[1:-1]
    m = _rng_re.match(tok)
    if m:
        return {(m.group(1), i) for i in range(int(m.group(2)), int(m.group(3)) + 1)}
    m = re.match(r"^([vsa])(\d+)$", tok)
    if m:
        return {(m.group(1), int(m.group(2)))}
    if tok == "vcc":
        return {("s", "vcc_lo"), ("s", "vcc_hi")}
    if tok in ("vcc_lo", "vcc_hi"):
        return {("s", tok)}
    if tok == "exec":
        return {("s", "exec_lo"), ("s", "exec_hi")}
    if tok in ("exec_lo", "exec_hi"):
        return {("s", tok)}
    if tok == "m0":
        return {("s", "m0")}
    return set()


class Ins:
    __slots__ = ("text", "mn", "ops", "mods", "kind", "wr", "rd", "c_rd", "ab_rd", "passes", "is_dpp",
                 "target", "comment", "store_data", "sgpr_rd_vmem", "lds_dma")

    def __init__(self, text):
        self.comment = ""
        if ";" in text:
            text, self.comment = text.split(";", 1)
        text = text.strip()
        self.text = text
        parts = text.split(None, 1)
        self.mn = parts[0]
        rest = parts[1] if len(parts) > 1 else ""
        ops = [o.strip() for o in rest.split(",")] if rest else []
        mods = ""
        if ops:
            last = ops[-1].split(None, 1)
            if len(last) > 1:
                ops[-1] = last[0]
                mods = last[1]
        self.ops, self.mods = ops, mods
        self.wr, self.rd = set(), set()
        self.c_rd, self.ab_rd = set(), set()
        self.passes = 0
        self.is_dpp = False
        self.target = None
        self.store_data = set()
        self.lds_dma = False
        self.classify()

    def classify(self):
        mn, ops, mods = self.mn, self.ops, self.mods
        R = regs_of
        allr = lambda lst: set().union(*[R(o) for o in lst]) if lst else set()
        if mn.startswith("v_mfma") or mn.startswith("v_smfmac"):
            self.kind = "mfma"
            self.wr = R(ops[0])
            self.ab_rd = R(ops[1]) | R(ops[2])
            self.c_rd = R(ops[3])
            self.rd = self.ab_rd | self.c_rd
            self.passes = 8 if "32x32x16" in mn else 4 if "16x16x32" in mn else 16
        elif mn.startswith("v_"):
            self.kind = "valu"
            base = mn.replace("_e32", "").replace("_e64", "").replace("_dpp", "").replace("_sdwa", "")
            self.is_dpp = ("row_" in mods or "quad_perm" in mods or "wave_" in mods or "row_bcast" in mods)
            if base.startswith("v_cmp"):
                self.wr = R(ops[0]); self.rd = allr(ops[1:])
            elif base in ("v_readfirstlane_b32", "v_readlane_b32"):
                self.wr = R(ops[0]); self.rd = allr(ops[1:])
            elif base.startswith("v_permlane") and "swap" in base:
                self.wr = R(ops[0]) | R(ops[1]); self.rd = set(self.wr)
            elif base in ("v_add_co_u32", "v_sub_co_u32", "v_subrev_co_u32"):
                self.wr = R(ops[0]) | R(ops[1]); self.rd = allr(ops[2:])
            elif base in ("v_addc_co_u32", "v_subb_co_u32"):
                self.wr = R(ops[0]) | R(ops[1]); self.rd = allr(ops[2:])
            elif base.startswith("v_fmac") or base.startswith("v_dot2c") or base == "v_writelane_b32":
                self.wr = R(ops[0]); self.rd = allr(ops)
            elif base == "v_nop":
                pass
            else:
                self.wr = R(ops[0]); self.rd = allr(ops[1:])
                if self.is_dpp:
                    self.rd |= R(ops[0])
            if base == "v_cndmask_b32" and len(ops) == 3:
                self.rd |= R("vcc")
            self.rd |= R("exec")
        elif mn.startswith("ds_"):
            self.kind = "ds"
            if mn.startswith("ds_read") or mn.startswith("ds_bpermute") or mn.startswith("ds_permute") or "_rtn" in mn \
                    or mn.startswith("ds_swizzle"):
                self.wr = R(ops[0]); self.rd = allr(ops[1:])
            else:
                self.rd = allr(ops)
        elif mn.startswith("buffer_") or mn.startswith("global_"):
            self.kind = "vmem"
            toks = mods.split()
            is_lds = ("lds" in toks) or mn.startswith("global_load_lds")
            self.lds_dma = is_lds
            if mn in ("buffer_wbl2", "buffer_inv"):
                pass
            elif is_lds:
                self.rd = allr(ops) | R("m0")
            elif "load" in mn:
                self.wr = R(ops[0]); self.rd = allr(ops[1:])
            elif "atomic" in mn:
                self.rd = allr(ops)
                if "sc0" in toks:
                    self.wr = R(ops[0]) if mn.startswith("buffer_") else R(ops[0])
            else:
                self.rd = allr(ops)
                data = ops[0] if mn.startswith("buffer_") else ops[1]
                if "x4" in mn or "x3" in mn:
                    self.store_data = R(data)
        elif mn.startswith("s_"):
            self.kind = "salu"
            if mn in BRANCH:
                self.kind = "branch"
                self.target = ops[0]
            elif mn in ("s_waitcnt", "s_barrier", "s_nop", "s_endpgm", "s_setprio", "s_sleep", "s_set_gpr_idx_off"):
                self.kind = "misc"
            elif mn == "s_set_gpr_idx_on":
                self.wr = R("m0"); self.rd = allr(ops)
            elif mn.startswith("s_cmp") or mn.startswith("s_bitcmp"):
                self.rd = allr(ops)
            elif mn.startswith("s_load") or mn.startswith("s_memtime") or mn.startswith("s_memrealtime"):
                self.kind = "smem"
                self.wr = R(ops[0]); self.rd = allr(ops[1:])
            elif mn in ("s_setpc_b64",):
                self.kind = "jump"
                self.rd = allr(ops)
            elif "saveexec" in mn:
                self.wr = R(ops[0]) | R("exec"); self.rd = allr(ops[1:]) | R("exec")
            else:
                self.wr = R(ops[0]); self.rd = allr(ops[1:])
        else:
            raise ValueError("unknown instruction: " + self.text)

    def states(self):
        if self.mn == "s_nop":
            return int(self.ops[0], 0) + 1
        return 1

    def is_trans(self):
        return self.mn.replace("_e32", "").replace("_e64", "") in TRANS


def vg(rs):
    return {r for r in rs if r[0] in "va"}


def sg(rs):
    return {r for r in rs if r[0] == "s" and not str(r[1]).startswith("exec")}


MFMA_RAW = {2: 5, 4: 8, 8: 12, 16: 20}
MFMA_C_OVERLAP = {2: 4, 4: 6, 8: 10, 16: 18}
MFMA_C_WAR = {2: 1, 4: 3, 8: 7, 16: 15}


def required(p, c):
    need = 0
    if p.kind == "valu":
        pw = vg(p.wr)
        if pw:
            if c.kind == "mfma" and pw & vg(c.rd):
                need = max(need, 2)
            if c.kind == "valu":
                base = c.mn.replace("_e32", "").replace("_e64", "")
                if (base.startswith("v_readlane") or base.startswith("v_readfirstlane")) and pw & vg(c.rd):
                    need = max(need, 1)
                if c.is_dpp and pw & vg(c.rd):
                    need = max(need, 2)
                if base.startswith("v_permlane") and pw & vg(c.rd):
                    need = max(need, 2)
                if p.is_trans() and not c.is_trans() and pw & vg(c.rd):
                    need = max(need, 1)
            if p.is_trans() and c.kind in ("ds", "vmem") and pw & vg(c.rd):
                need = max(need, 1)
        ps = sg(p.wr)
        if ps:
            if c.kind == "vmem" and ps & sg(c.rd):
                need = max(need, 5)
            if c.kind == "valu" and ps & sg(c.rd):
                base = c.mn
                need = max(need, 4 if ("readlane" in base or "writelane" in base) else 2)
            if c.kind in ("salu", "branch", "smem", "jump") and (ps & sg(c.rd)):
                need = max(need, 1)
            if c.kind == "branch" and c.mn in ("s_cbranch_vccz", "s_cbranch_vccnz") and ("s", "vcc_lo") in ps:
                need = max(need, 5)
    if p.kind == "mfma":
        d = vg(p.wr)
        if c.kind == "mfma":
            if d & vg(c.ab_rd):
                need = max(need, MFMA_RAW[p.passes])
            oc = d & vg(c.c_rd)
            if oc:
                if not (vg(c.c_rd) == d and c.passes == p.passes):
                    need = max(need, MFMA_C_OVERLAP[p.passes])
            elif d & vg(c.wr):
                need = max(need, MFMA_C_OVERLAP[p.passes])
        elif c.kind in ("valu", "ds", "vmem"):
            if d & (vg(c.rd) | vg(c.wr)):
                need = max(need, MFMA_RAW[p.passes])
        if c.kind == "valu" and vg(p.c_rd) & vg(c.wr):
            need = max(need, MFMA_C_WAR[p.passes])
    if p.kind == "vmem" and p.store_data:
        if c.kind == "valu" and p.store_data & vg(c.wr):
            need = max(need, 2)
        elif c.kind in ("ds", "vmem", "mfma") and p.store_data & vg(c.wr):
            need = max(need, 1)
    if p.kind == "salu" and ("s", "m0") in p.wr:
        if c.kind == "vmem" and c.lds_dma:
            need = max(need, 1)
    return need


MAXDIST = 21


class Prog:
    def __init__(self):
        self.items = []

    def __call__(self, text):
        for line in text.split("\n"):
            line = line.strip()
            if not line:
                continue
            if line.startswith(";"):
                self.items.append(("raw", line))
            elif line.endswith(":"):
                self.items.append(("label", line[:-1]))
            elif line.startswith("."):
                self.items.append(("raw", line))
            else:
                self.items.append(Ins(line))

    def label(self, name):
        self.items.append(("label", name))

    def comment(self, text):
        self.items.append(("raw", "; " + text))

    def fix_hazards(self, verbose=False):
        inserted = 0
        for _ in range(10000):
            v = self._find_violation()
            if v is None:
                break
            idx, deficit, p, c = v
            if verbose:
                print(f"hazard: [{p.text}] -> [{c.text}] pad {deficit}")
            while deficit > 0:
                n = min(deficit, 16)
                self.items.insert(idx, Ins(f"s_nop {n-1}"))
                deficit -= n
                inserted += 1
        else:
            raise RuntimeError("hazard pass did not converge")
        return inserted

    def _find_violation(self):
        items = self.items
        labels = {it[1]: i for i, it in enumerate(items) if isinstance(it, tuple) and it[0] == "label"}
        start = getattr(self, "_resume", 0)
        for i in range(start, len(items)):
            p = items[i]
            if not isinstance(p, Ins) or p.kind in ("misc", "branch", "smem", "jump"):
                continue
            if p.kind == "salu" and ("s", "m0") not in p.wr:
                continue
            if p.kind == "ds":
                continue
            if p.kind == "vmem" and not p.store_data:
                continue
            stack = [(i + 1, 0)]
            seen = {}
            while stack:
                j, dist = stack.pop()
                while j < len(items) and dist < MAXDIST:
                    if seen.get(j, 99) <= dist:
                        break
                    seen[j] = dist
                    it = items[j]
                    if not isinstance(it, Ins):
                        j += 1
                        continue
                    need = required(p, it)
                    if need > dist:
                        self._resume = max(0, i - 30)
                        return j, need - dist, p, it
                    if it.mn == "s_endpgm" or it.kind == "jump":
                        break
                    dist += it.states()
                    if it.kind == "branch":
                        if it.target in labels:
                            stack.append((labels[it.target], dist))
                        if it.mn == "s_branch":
                            break
                    j += 1
        self._resume = 0
        return None

    def text(self):
        out = []
        for it in self.items:
            if isinstance(it, Ins):
                out.append("    " + it.text + ((" ;" + it.comment) if it.comment else ""))
            elif it[0] == "label":
                out.append(it[1] + ":")
            else:
                out.append(it[1])
        return "\n".join(out) + "\n"

    def count(self):
        return sum(isinstance(it, Ins) for it in self.items)


class VMQ:
    def __init__(self):
        self.alts = [[]]

    def push(self, tag, n=1):
        for a in self.alts:
            a.extend([tag] * n)

    def wait_n(self, tags):
        if isinstance(tags, str):
            tags = (tags,)
        best = None
        for a in self.alts:
            last = max((i for i, t in enumerate(a) if t in tags), default=-1)
            n = len(a) - 1 - last if last >= 0 else None
            if n is not None:
                best = n if best is None else min(best, n)
        return best

    def retire(self, n):
        for k, a in enumerate(self.alts):
            if len(a) > n:
                self.alts[k] = a[len(a) - n:] if n > 0 else []

    def wait(self, prog, tags):
        n = self.wait_n(tags)
        if n is None:
            return
        n = min(n, 63)
        prog(f"s_waitcnt vmcnt({n})")
        self.retire(n)

    def fork(self):
        import copy
        return copy.deepcopy(self)

    @staticmethod
    def join(qs):
        q = VMQ()
        q.alts = [list(a) for x in qs for a in x.alts]
        return q
```

```python
import sys, os
sys.path.insert(0, os.path.dirname(os.path.abspath(__file__)))
from asmlib import Prog, VMQ

NAME = "gated_mix__mha_block__glu_gated_reglu__prompt"

WS_CNT = 0x0
WS_NRMQ = 0x4000
WS_NRMK = 0x6000
WS_LG = 0x10000
WS_QF = 0x100000
WS_KF = 0x300000
WS_VF = 0x500000
WS_OF = 0x700000
WS_HF = 0x900000
WS_SIZE = 0x1000000
OOB = 0x7FFF0000
F1, F2, F3 = 0, 16, 32

CSCALE = 0.25 * 1.4426950408889634
import struct
def f2u(x): return struct.unpack("<I", struct.pack("<f", x))[0]

sX, sWQKV, sWO, sWG, sWU, sWD, sGW, sOUT, sDBG, sWS = 4, 6, 8, 12, 14, 16, 18, 20, 22, 24
SRD_X, SRD_WS, SRD_G, SRD_DBG, SRD_T, SRD_W1, SRD_U = 28, 32, 36, 40, 44, 96, 4
SRD_W2 = SRD_G
sD1, sD2, sM0K, sM0X, sD0, sM0P, sCB2 = 0, 1, 3, 10, 11, 26, 27
sW, sRB, sAB, sRT, sCH, sTILE, sXCD, sSLOT = 48, 49, 50, 51, 52, 53, 54, 55
sT0, sT1, sT2, sT3, sT4, sT5 = 56, 57, 58, 59, 60, 61
sADV = 62
sH, sQC = 63, 64
sCS = 65
sPOLL = 66
sTYP = 67
sHFB = 68
sW1OFF, sKVB = 100, 101
sQB, sLGO, sHB1 = 18, 19, 22
sA0, sA1, sA2, sA3 = 56, 57, 58, 59
sI, sMODE, sT32, sRT64, sCB, sKQ, sTR = 60, 61, 62, 67, 68, 10, 11

def srd(p, dst, ptr, size):
    p(f"s_mov_b32 s{dst}, s{ptr}")
    p(f"s_mov_b32 s{dst+1}, s{ptr+1}")
    p(f"s_mov_b32 s{dst+2}, {size:#x}")
    p(f"s_mov_b32 s{dst+3}, 0x20000")

def S4(r): return f"s[{r}:{r+3}]"
def V4(r): return f"v[{r}:{r+3}]"
def V2(r): return f"v[{r}:{r+1}]"
def V16(r): return f"v[{r}:{r+15}]"

def mfma(p, d, a, b, c):
    cs = "0" if c is None else V16(c)
    p(f"v_mfma_f32_32x32x16_bf16 {V16(d)}, {V4(a)}, {V4(b)}, {cs}")

_uid = [0]
def uid():
    _uid[0] += 1
    return _uid[0]

def poll(p, q, vflag, vaddr, srd_reg, target, what):
    n = uid()
    p(f"v_readfirstlane_b32 s{sT0}, v{vflag}")
    p(f"s_cmp_ge_u32 s{sT0}, {target}")
    p(f"s_cbranch_scc1 L_ok{n}")
    p(f"s_mov_b32 s{sPOLL}, 0")
    p(f"L_poll{n}:")
    p(f"buffer_load_dword v{vflag}, v{vaddr}, {S4(srd_reg)}, 0 offen sc1")
    p("s_waitcnt vmcnt(0)")
    p(f"v_readfirstlane_b32 s{sT0}, v{vflag}")
    p(f"s_add_u32 s{sPOLL}, s{sPOLL}, 1")
    p(f"s_cmp_ge_u32 s{sPOLL}, 0x80000")
    p(f"s_cbranch_scc1 L_ok{n}")
    p(f"s_cmp_lt_u32 s{sT0}, {target}")
    p(f"s_cbranch_scc1 L_poll{n}")
    p(f"L_ok{n}:")


class Gen:
    def __init__(self, stop_after=None, opts=None):
        self.p = Prog()
        self.q = VMQ()
        self.stop_after = stop_after
        self.o = opts or {}

    def stamp(self, name):
        if self.o.get("stamps"):
            i = self.o["stampmap"].get(name)
            if i is not None:
                ins = "s_memrealtime" if self.o.get("rt") else "s_memtime"
                self.p(f"{ins} s[{72+2*i}:{73+2*i}] ; stamp {name}")

    def dump_stamps(self):
        if not self.o.get("stamps"):
            return
        p = self.p
        p("s_memrealtime s[70:71]")
        p("s_waitcnt lgkmcnt(0)")
        p(f"s_lshl_b32 s{sT0}, s2, 3")
        p(f"s_add_u32 s{sT0}, s{sT0}, s{sW}")
        p(f"s_lshl_b32 s{sT0}, s{sT0}, 6")
        p(f"s_add_u32 s{sT0}, s{sT0}, 0x80000")
        for i in range(12):
            p(f"v_mov_b32 v{16+i}, s{72+2*i}")
        p("v_mov_b32 v28, s69")
        p("v_mov_b32 v29, s70")
        p("v_mov_b32 v30, 0")
        p("v_mov_b32 v31, 0")
        p("v_mov_b32 v32, 0")
        p("s_mov_b64 exec, 1")
        for i in range(4):
            p(f"buffer_store_dwordx4 {V4(16+4*i)}, v32, {S4(SRD_WS)}, s{sT0} offen offset:{16*i}")
        p("s_mov_b64 exec, -1")

    def prologue(self):
        p = self.p
        p("s_cmp_ge_u32 s2, 256")
        p("s_cbranch_scc1 L_end")
        p(f"s_load_dwordx4 s[4:7], s[0:1], 0")
        p(f"s_load_dwordx2 s[8:9], s[0:1], 16")
        p(f"s_load_dwordx4 s[12:15], s[0:1], 32")
        p(f"s_load_dwordx4 s[16:19], s[0:1], 48")
        p(f"s_load_dwordx4 s[20:23], s[0:1], 64")
        p(f"s_load_dwordx2 s[24:25], s[0:1], 80")
        p("v_lshrrev_b32 v1, 6, v0")
        p("v_and_b32 v2, 63, v0            ; v2 = lane")
        p(f"v_readfirstlane_b32 s{sW}, v1")
        p(f"s_and_b32 s{sXCD}, s2, 7")
        p(f"s_lshr_b32 s{sSLOT}, s2, 3")
        p(f"s_and_b32 s{sT0}, s{sXCD}, 1")
        p(f"s_lshl_b32 s{sT0}, s{sT0}, 3")
        p(f"s_and_b32 s{sT1}, s{sSLOT}, 7")
        p(f"s_add_u32 s{sRB}, s{sT0}, s{sT1}")
        p(f"s_lshr_b32 s{sTYP}, s{sSLOT}, 4")
        p(f"s_and_b32 s{sT0}, s{sXCD}, 6              ; 2*(xcd>>1)")
        p(f"s_bfe_u32 s{sT1}, s{sSLOT}, 0x10003       ; (slot>>3)&1")
        p(f"s_add_u32 s{sAB}, s{sT0}, s{sT1}          ; a / b = 0..7")
        p(f"s_and_b32 s{sRT}, s{sW}, 3")
        p(f"s_lshr_b32 s{sCH}, s{sW}, 2")
        p(f"s_lshl_b32 s{sT0}, s{sRB}, 2")
        p(f"s_add_u32 s{sTILE}, s{sT0}, s{sRT}")
        p(f"s_lshl_b32 s{sT0}, s{sXCD}, 2")
        p(f"s_and_b32 s{sT1}, s{sSLOT}, 3")
        p(f"s_add_u32 s{sH}, s{sT0}, s{sT1}           ; attention head")
        p(f"s_lshr_b32 s{sQC}, s{sSLOT}, 2           ; attention q chunk")
        p(f"s_mov_b32 s{sCS}, {f2u(CSCALE):#x}")
        if self.o.get("twice"):
            p("s_waitcnt lgkmcnt(0)")
            p("s_mov_b32 s0, 0")
            p("s_waitcnt lgkmcnt(0)")
            p("L_restart:")
        self.p1_setup_early()
        if self.o.get("stamps"):
            p("s_memrealtime s[70:71]")
        p("s_waitcnt lgkmcnt(0)")
        if self.o.get("stamps"):
            p("s_mov_b32 s69, s70")
            for i in range(12):
                p(f"s_mov_b32 s{72+2*i}, 0")
        self.stamp("start")
        srd(p, SRD_X, sX, 2048 * 1024)
        self.p1_setup_srd()

    vLANE = 2
    vXD = (3, 4)
    vW1 = (5, 6, 7)
    vW2 = (8, 9)
    vB = (10, 11, 12)
    vL16 = 13
    vP = (14, 15)
    WB = (16, 28)
    vXR = (40, 41, 42, 43)
    vFLAG, vFADDR, vONE, vDBGA = 44, 45, 46, 47
    TMP = 48
    ACC = 64
    TMP2 = 112
    X = 128
    SLOT1 = 40960
    AREA2 = {8: 0, 9: 16384, 10: 40960, 11: 57344, 12: 98304, 13: 81920, 14: 131072, 15: 147456}
    KVAREA = {16: 32768, 17: 98304, 18: 65536, 19: 131072}
    ONES = 0

    def area(self, g):
        if g < 8:
            return self.SLOT1 * (g % 4)
        if g < 16:
            return self.AREA2[g]
        return self.KVAREA[g]

    def window(self, g):
        if g < 8:
            return 81920 if (g % 4) >= 2 else 0
        return 131072 if self.AREA2[g] >= 131072 else 81920 if self.AREA2[g] >= 81920 else 0

    def p1_setup_early(self):
        p = self.p
        L = self.vLANE
        t0, t1, t2, t3 = 48, 49, 50, 51
        p(f"v_lshlrev_b32 v{self.vL16}, 4, v{L}")
        p(f"s_lshl_b32 s{sT0}, s{sRB}, 7")
        p(f"s_lshl_b32 s{sT1}, s{sW}, 4")
        p(f"s_add_u32 s{sT0}, s{sT0}, s{sT1}")
        p(f"v_lshrrev_b32 v{t1}, 3, v{L}             ; l>>3")
        p(f"v_add_u32 v{t2}, s{sT0}, v{t1}           ; row (e=0)")
        p(f"v_lshrrev_b32 v{t0}, 4, v{L}")
        p(f"v_and_b32 v{t3}, 7, v{L}                 ; l&7")
        p(f"v_xor_b32 v{t0}, v{t0}, v{t3}            ; piece (e=0)")
        p(f"v_lshlrev_b32 v{t0}, 4, v{t0}")
        p(f"v_lshl_add_u32 v{self.vXD[0]}, v{t2}, 10, v{t0}")
        p(f"v_xor_b32 v{t0}, 64, v{self.vXD[0]}        ; piece ^ 4")
        p(f"v_add_u32 v{self.vXD[1]}, 8192, v{t0}      ; +8 rows")
        p(f"v_bfe_u32 v{t0}, v{L}, 4, 1")
        p(f"v_lshlrev_b32 v{t0}, 2, v{t0}")
        p(f"v_xor_b32 v{t3}, v{t3}, v{t0}")
        p(f"v_lshlrev_b32 v{t3}, 4, v{t3}")
        p(f"s_lshl_b32 s{sT0}, s{sW}, 3")
        p(f"v_add_u32 v{t1}, s{sT0}, v{t1}           ; 8w + (l>>3)")
        p(f"s_mul_i32 s{sT0}, s{sAB}, 320")
        p(f"s_add_u32 s{sT0}, s{sT0}, 1024")
        p(f"s_and_b32 s{sT1}, s{sAB}, 1")
        p(f"s_mul_i32 s{sT2}, s{sT1}, 192")
        p(f"s_add_u32 s{sCB2}, s{sT0}, s{sT2}")
        p(f"s_xor_b32 s{sT1}, s{sT1}, 1")
        p(f"s_lshl_b32 s{sT1}, s{sT1}, 7")
        p(f"s_add_u32 s{sT4}, s{sT0}, s{sT1}")
        p(f"s_lshl_b32 s{sT0}, s{sAB}, 7")
        p(f"s_cmp_eq_u32 s{sTYP}, 0")
        p(f"s_cselect_b32 s{sCB2}, s{sT0}, s{sCB2}")
        p(f"v_mul_u32_u24 v{t0}, 3584, v{t1}")
        p(f"v_add3_u32 v{self.vW2[0]}, v{t0}, v{t3}, s{sCB2}")
        p(f"v_xor_b32 v{t2}, 32, v{t3}")
        p(f"v_add3_u32 v{self.vW2[1]}, v{t0}, v{t2}, s{sCB2}")
        p(f"s_cbranch_scc0 L_setupB")
        p(f"v_mul_u32_u24 v{t0}, 3072, v{t1}")
        p(f"v_add3_u32 v{self.vW1[0]}, v{t0}, v{t3}, s{sT0}")
        p(f"v_add3_u32 v{t2}, v{t0}, v{t2}, s{sT0}")
        p(f"v_add_u32 v{self.vW1[1]}, 1024, v{t2}")
        p(f"v_add_u32 v{self.vW1[2]}, 2048, v{self.vW1[0]}")
        p(f"s_lshl_b32 s{sD0}, s{sW}, 10")
        p(f"s_add_u32 s{sD0}, s{sD0}, 16384")
        p(f"s_movk_i32 s{sT5}, 8192")
        p(f"s_mov_b32 s{sADV}, {64*3072}")
        p("s_branch L_setupJ")
        p("L_setupB:")
        p(f"s_and_b32 s{sT0}, s{sW}, 3")
        p(f"s_lshl_b32 s{sT1}, s{sT0}, 4             ; 16*wq")
        p(f"s_mov_b32 s{sT2}, 43691")
        p(f"s_lshl_b32 s{sT3}, s{sCH}, 1")
        for e in range(3):
            r = self.vW1[e]
            p(f"v_add_u32 v{t0}, {64*e}, v{L}           ; j")
            p(f"v_mul_u32_u24 v{t1}, s{sT2}, v{t0}")
            p(f"v_lshrrev_b32 v{t1}, 19, v{t1}          ; j/12")
            p(f"v_mul_u32_u24 v{t2}, 12, v{t1}")
            p(f"v_sub_u32 v{t2}, v{t0}, v{t2}           ; j%12")
            p(f"v_xor_b32 v{t2}, s{sT3}, v{t2}")
            p(f"v_add_u32 v{t1}, s{sT1}, v{t1}")
            p(f"v_mul_u32_u24 v{t1}, 3584, v{t1}")
            p(f"v_lshl_add_u32 v{t1}, v{t2}, 4, v{t1}")
            p(f"v_add_u32 v{r}, s{sT4}, v{t1}")
        p(f"s_mul_i32 s{sD0}, s{sT0}, 3072")
        p(f"s_mul_i32 s{sT1}, s{sCH}, 12288")
        p(f"s_add_u32 s{sD0}, s{sD0}, s{sT1}")
        p(f"s_add_u32 s{sD0}, s{sD0}, 16384")
        p(f"s_movk_i32 s{sT5}, 1024")
        p(f"s_mov_b32 s{sADV}, {64*3584}")
        p(f"s_lshr_b32 s{sHFB}, s{sT4}, 5")
        p("L_setupJ:")
        p(f"s_lshl_b32 s{sM0X}, s{sW}, 11")
        p(f"s_lshl_b32 s{sM0K}, s{sW}, 12")
        p(f"s_lshl_b32 s{sM0P}, s{sW}, 10")
        p(f"s_mov_b32 s{sW1OFF}, 0")

    def p1_setup_srd(self):
        p = self.p
        p(f"s_add_u32 s{sD1}, s{sD0}, s{sT5}")
        p(f"s_add_u32 s{sD2}, s{sD1}, s{sT5}")
        p(f"s_cmp_eq_u32 s{sCH}, 0")
        p(f"s_cselect_b32 s{SRD_W1}, s{sWG}, s{sWU}")
        p(f"s_cselect_b32 s{SRD_W1+1}, s{sWG+1}, s{sWU+1}")
        p(f"s_mov_b32 s{SRD_W1+2}, {512*3584:#x}")
        p(f"s_cmp_eq_u32 s{sTYP}, 0")
        p(f"s_cselect_b32 s{SRD_W1}, s{sWQKV}, s{SRD_W1}")
        p(f"s_cselect_b32 s{SRD_W1+1}, s{sWQKV+1}, s{SRD_W1+1}")
        p(f"s_cselect_b32 s{SRD_W1+2}, {512*3072:#x}, s{SRD_W1+2}")
        p(f"s_mov_b32 s{SRD_W1+3}, 0x20000")

    def p1_setup_late(self):
        p, q = self.p, self.q
        L = self.vLANE
        t0, t1, t2, t3 = 48, 49, 50, 51
        srd(p, SRD_G, sWG, 512 * 3584)
        srd(p, SRD_U, sWU, 512 * 3584)
        srd(p, SRD_T, sGW, 1024)
        p(f"s_lshl_b32 s{sT0}, s{sTYP}, 3")
        p(f"s_add_u32 s{sT0}, s{sT0}, s{sAB}")
        p(f"s_lshl_b32 s{sT0}, s{sT0}, 1")
        p(f"s_add_u32 s{sT0}, s{sT0}, s{sCH}")
        p(f"s_lshl_b32 s{sT1}, s{sT0}, 5            ; *32 bytes")
        p(f"v_lshrrev_b32 v{t0}, 5, v{L}             ; hh")
        p(f"v_lshlrev_b32 v{t0}, 4, v{t0}            ; hh*16")
        p(f"v_add_u32 v{t0}, s{sT1}, v{t0}")
        p(f"buffer_load_dwordx4 {V4(112)}, v{t0}, {S4(SRD_T)}, 0 offen")
        q.push("lgld")
        rowl, sig, grp = 52, 53, 54
        p(f"v_lshrrev_b32 v{t0}, 5, v{L}")
        p(f"v_lshlrev_b32 v{t0}, 3, v{t0}")
        p(f"v_bfe_u32 v{t1}, v{L}, 2, 2")
        p(f"v_add_u32 v{rowl}, v{t0}, v{t1}")
        p(f"v_and_b32 v{t0}, 1, v{L}")
        p(f"v_lshlrev_b32 v{t0}, 4, v{t0}            ; (g&1)*16")
        p(f"v_bfe_u32 v{t1}, v{L}, 1, 1")
        p(f"v_lshl_add_u32 v{sig}, v{t1}, 3, v{t0}    ; 8*sigma")
        p(f"v_bfe_u32 v{grp}, v{L}, 4, 1")
        p(f"v_bfe_u32 v{t0}, v{L}, 3, 1")
        p(f"v_xor_b32 v{t0}, s{sCH}, v{t0}")
        p(f"v_lshlrev_b32 v{t0}, 6, v{t0}")
        p(f"v_lshl_add_u32 v{t0}, v{rowl}, 7, v{t0}")
        p(f"v_add_u32 v{t0}, v{t0}, v{sig}            ; c128")
        p(f"v_mul_u32_u24 v{t1}, {8192+32}, v{grp}")
        p(f"v_add_u32 v{self.vP[0]}, v{t0}, v{t1}")
        p(f"v_xor_b32 v{self.vP[1]}, 32, v{self.vP[0]}")
        p(f"s_cmp_eq_u32 s{sTYP}, 0")
        p(f"s_cbranch_scc0 L_lateB")
        p(f"v_add_u32 v{self.vB[0]}, 16384, v{self.vP[0]}")
        p(f"v_add_u32 v{self.vB[1]}, 16384, v{self.vP[1]}")
        p(f"v_lshl_add_u32 v{t1}, v{grp}, 5, v{t0}")
        p(f"v_add_u32 v{self.vB[2]}, 32768, v{t1}")
        p("s_branch L_lateJ")
        p("L_lateB:")
        p(f"s_mul_i32 s{sT0}, s{sCH}, 96")
        p(f"s_add_u32 s{sT0}, s{sT0}, 16384")
        p(f"v_mul_u32_u24 v{t1}, 192, v{rowl}")
        p(f"v_add3_u32 v{t1}, v{t1}, v{sig}, s{sT0}")
        p(f"s_lshl_b32 s{sT1}, s{sCH}, 6")
        p(f"s_sub_u32 s{sT1}, {12288+32}, s{sT1}")
        p(f"s_sub_u32 s{sT2}, {2*12288}, s{sT1}")
        p(f"v_mul_u32_u24 v{t2}, s{sT1}, v{grp}")
        p(f"v_add_u32 v{self.vB[0]}, v{t1}, v{t2}")
        p(f"v_mul_u32_u24 v{t2}, s{sT2}, v{grp}")
        p(f"v_add_u32 v{self.vB[1]}, v{t1}, v{t2}")
        p(f"v_mov_b32 v{self.vB[2]}, v{self.vB[0]}")
        p("L_lateJ:")
        p(f"v_and_b32 v{t0}, 31, v{L}")
        p(f"s_lshl_b32 s{sT0}, s{sRT}, 5")
        p(f"v_add_u32 v{t1}, s{sT0}, v{t0}")
        p(f"v_lshlrev_b32 v{t1}, 7, v{t1}            ; row*128")
        p(f"v_bfe_u32 v{t0}, v{L}, 1, 3")
        p(f"v_lshrrev_b32 v{t2}, 5, v{L}")
        p(f"v_xor_b32 v{t0}, v{t0}, v{t2}            ; hh ^ f")
        p(f"v_lshl_add_u32 v{t1}, v{t0}, 4, v{t1}")
        for k in range(4):
            p(f"v_xor_b32 v{self.vXR[k]}, {32*k}, v{t1}")
        p(f"v_mov_b32 v{self.vONE}, 1")
        p(f"v_mov_b32 v{self.vDBGA}, 0")
        self.win1 = 0
        self.win2 = 0

    def counter_zero(self):
        p = self.p
        L = self.vLANE
        t0, t1 = 48, 49
        p("s_add_u32 s%d, s2, s%d" % (sT0, sW))
        p(f"s_cmp_eq_u32 s{sT0}, 0")
        p(f"s_cselect_b32 s{sT0}, 0, {OOB:#x}")
        p(f"v_lshlrev_b32 v{t0}, 8, v{L}")
        p(f"v_add_u32 v{t0}, s{sT0}, v{t0}")
        p(f"v_mov_b32 v{t1}, 0")
        p(f"buffer_store_dword v{t1}, v{t0}, {S4(SRD_WS)}, 0 offen sc1")
        self.q.push("cz")

    def counter_flag(self):
        p = self.p
        t0, t1 = 48, 49
        p(f"s_cmp_eq_u32 s2, 0")
        p(f"s_cselect_b32 s{sT0}, 0, {OOB:#x}")
        p(f"v_mov_b32 v{t0}, {OOB:#x}")
        p(f"v_mov_b32 v{t1}, s{sT0}")
        p(f"v_cmp_eq_u32 vcc, 0, v0")
        p(f"v_cndmask_b32 v{t0}, v{t0}, v{t1}, vcc")
        p(f"v_mov_b32 v{t1}, 1")
        p(f"buffer_store_dword v{t1}, v{t0}, {S4(SRD_DBG)}, 0 offen sc1")
        self.q.push("cf")

    def p1_piece(self, g, e):
        p, q = self.p, self.q
        ar = self.area(g)
        if g < 8:
            if e < 2:
                p(f"s_add_u32 m0, s{sM0X}, {ar + 1024*e}")
                p(f"s_movk_i32 s{sT1}, {128*g}")
                p(f"buffer_load_dwordx4 v{self.vXD[e]}, {S4(SRD_X)}, s{sT1} offen lds")
            else:
                d = (sD0, sD1, sD2)[e - 2]
                p(f"s_add_u32 m0, s{d}, {ar}")
                if e == 2 and g > 0:
                    p(f"s_add_u32 s{sW1OFF}, s{sW1OFF}, s{sADV}")
                else:
                    p("s_nop 0")
                p(f"buffer_load_dwordx4 v{self.vW1[e-2]}, {S4(SRD_W1)}, s{sW1OFF} offen lds")
        elif g < 16:
            p(f"s_add_u32 m0, s{sM0P}, {ar + 8192*e}")
            p(f"s_mov_b32 s{sT1}, {229376*(g-8)}")
            p(f"buffer_load_dwordx4 v{self.vW2[e]}, {S4(SRD_G if e == 0 else SRD_U)}, s{sT1} offen lds")
        else:
            j = g - 16
            src = (WS_KF if (j & 1) == 0 else WS_VF) + 32768 * (j >> 1) + 1024 * e
            p(f"s_add_u32 m0, s{sM0K}, {ar + 1024*e}")
            p(f"s_add_u32 s{sT1}, s{sKVB}, {src:#x}")
            p(f"buffer_load_dwordx4 v{self.vL16}, {S4(SRD_WS)}, s{sT1} offen sc1 lds")
        q.push(f"st{g}")

    def earliest(self, g):
        if g >= 8:
            return {8: 22, 9: 22, 10: 26, 11: 26, 12: 30, 13: 30, 14: 36, 15: 36}[g]
        return 4 * (g - 3) + 2

    def npieces(self, g):
        return 5 if g < 8 else 2 if g < 16 else 4

    def emit_pieces(self, step, maxn):
        n = 0
        while self.pending and n < maxn:
            g, e = self.pending[0]
            if g == "aq":
                if step < 58:
                    break
                self.pending.pop(0)
                if self.stop_after != "p1":
                    self.att_loads()
                continue
            if 4 <= g < 16 and step < self.earliest(g):
                break
            if g >= 16 and step < 58:
                break
            if g >= 16 and self.stop_after == "p1":
                self.pending.pop(0)
                continue
            self.pending.pop(0)
            self.p1_piece(g, e)
            n += 1

    def rebase(self, regs, cur, want):
        if want != cur:
            d = want - cur
            for r in regs:
                if d > 0:
                    self.p(f"v_add_u32 v{r}, {d:#x}, v{r}")
                else:
                    self.p(f"v_subrev_u32 v{r}, {-d:#x}, v{r}")
        return want

    def p1_reads(self, ps, s, typ, part=None):
        p = self.p
        g = (s >> 2) + (0 if ps == 1 else 8)
        sp = s & 3
        wb = self.WB[s & 1]
        n = 0
        nt = 3 if ps == 1 else 2
        parts = range(nt) if part is None else [part]
        for t in parts:
            if t >= nt:
                continue
            if ps == 1:
                if t == 0:
                    self.win1 = self.rebase(list(self.vXR) + list(self.vB), self.win1, self.window(g))
                off = self.area(g) - self.win1
                if t == 0:
                    p(f"ds_read_b128 {V4(self.X + 4*s)}, v{self.vXR[sp]} offset:{off}")
                    n += 1
                for j in range(2):
                    if typ == 0:
                        p(f"ds_read_b64_tr_b16 {V2(wb + 4*t + 2*j)}, v{self.vB[t]} offset:{off + (16*sp + 4*j)*128}")
                    else:
                        p(f"ds_read_b64_tr_b16 {V2(wb + 4*t + 2*j)}, v{self.vB[t]} offset:{off + (16*sp + 4*j)*192 + 32*t}")
                    n += 1
            else:
                if t == 0:
                    self.win2 = self.rebase(list(self.vP), self.win2, self.window(g))
                off = self.area(g) - self.win2
                for j in range(2):
                    p(f"ds_read_b64_tr_b16 {V2(wb + 4*t + 2*j)}, v{self.vP[t]} offset:{off + (16*sp + 4*j)*128}")
                    n += 1
        return n

    def p1_midstage(self, g):
        p, q = self.p, self.q
        T = 116
        tags = [f"st{g+1}"] if g + 1 < 16 else []
        if g == 1:
            tags += ["cz"]
        if g == 10:
            tags += ["e1st", "dbg"]
        if g == 14:
            tags += ["f1"]
        self.stamp(f"pre{g}")
        if tags:
            q.wait(p, tags)
        if g == 14:
            poll(p, q, self.vFLAG, self.vFADDR, SRD_WS, 16, "F1")
        self.stamp(f"wait{g}")
        p("s_barrier")
        self.stamp(f"bar{g}")
        if g == 1:
            self.counter_flag()
        if g == 10:
            poll(p, q, self.vFLAG, self.vDBGA, SRD_DBG, 1, "init")
            if self.cur_typ == 0:
                p(f"s_lshl_b32 s{sT0}, s{sAB}, 8")
                p(f"v_mov_b32 v{self.vFADDR}, {OOB:#x}")
                p(f"v_mov_b32 v{T}, s{sT0}")
                p(f"v_cmp_eq_u32 vcc, 0, v0")
                p(f"v_cndmask_b32 v{self.vFADDR}, v{self.vFADDR}, v{T}, vcc")
                p(f"buffer_atomic_add v{self.vONE}, v{self.vFADDR}, {S4(SRD_WS)}, 0 offen sc1")
                q.push("f1add")
        if g == 8:
            p(f"buffer_load_dword v{self.vFLAG}, v{self.vDBGA}, {S4(SRD_DBG)}, 0 offen sc1")
            q.push("dbg")
        if g == 13:
            for i in range(2):
                p(f"v_mov_b32 v{T+i}, 0x3f803f80")
            p(f"v_lshlrev_b32 v{T+2}, 3, v0")
            p(f"ds_write_b64 v{T+2}, {V2(T)} offset:{self.ONES}")
            self.lg_issue("ones", 1)
            p(f"s_lshr_b32 s{sT0}, s{sH}, 2")
            p(f"s_lshl_b32 s{sT0}, s{sT0}, 8")
            p(f"v_mov_b32 v{self.vFADDR}, s{sT0}")
            p(f"buffer_load_dword v{self.vFLAG}, v{self.vFADDR}, {S4(SRD_WS)}, 0 offen sc1")
            q.push("f1")
            p(f"s_lshl_b32 s{sKVB}, s{sH}, 16")
            p(f"s_add_u32 s{sKVB}, s{sKVB}, s{sM0K}")
        if g == 14 and not self.o.get("nodma"):
            self.emit_pieces(58, 8)

    def lg_issue(self, tag, n):
        self.lgq += [tag] * n

    def lg_wait(self, tag):
        last = max((i for i, t in enumerate(self.lgq) if t == tag), default=-1)
        if last < 0:
            return
        n = len(self.lgq) - 1 - last
        self.p(f"s_waitcnt lgkmcnt({min(n, 15)})")
        self.lgq = self.lgq[last + 1:]

    def p1_pass(self, ps, typ):
        p, q = self.p, self.q
        nt = 3 if ps == 1 else 2
        acc = [self.ACC + 16*t for t in range(nt)]
        comp = not self.o.get("nocompute")
        for s in range(32):
            gs = s + (0 if ps == 1 else 32)
            g = gs >> 2
            if (s & 3) == 2:
                self.p1_midstage(g)
            nxt = None
            if s < 31:
                nxt = (ps, s + 1)
            elif ps == 1:
                nxt = (2, 0)
            wb = self.WB[s & 1]
            xs = self.X + 4*s
            for t in range(nt):
                c = None if s == 0 else acc[t]
                if comp:
                    self.lg_wait((ps, s, t))
                    if ps == 1 and t == 2 and typ == 0:
                        mfma(p, acc[t], xs, wb + 4*t, c)
                    else:
                        mfma(p, acc[t], wb + 4*t, xs, c)
                    if nxt:
                        n = self.p1_reads(nxt[0], nxt[1], typ, t)
                        self.lg_issue((nxt[0], nxt[1], t), n)
                if not self.o.get("nodma"):
                    if t == 0:
                        self.emit_pieces(gs, 1)
                    elif t == 1 and (ps == 1 or gs >= 58 or gs < 46):
                        self.emit_pieces(gs, 1)
                if ps == 2 and (s, t) in self.deferred:
                    self.deferred.pop((s, t))()

    def p1_first_reads(self, typ):
        self.lgq = []
        for t in range(3):
            n = self.p1_reads(1, 0, typ, t)
            self.lg_issue((1, 0, t), n)

    def store_ws(self, vdata, voff, soff_reg, tag, offset=0):
        o = f" offset:{offset}" if offset else ""
        self.p(f"buffer_store_dwordx4 {V4(vdata)}, v{voff}, {S4(SRD_WS)}, s{soff_reg} offen{o} sc1")
        self.q.push(tag)

    def relu_mul_store(self, a, tmp, unit, tag):
        p = self.p
        for r in range(8):
            p(f"v_max_f32 v{a+r}, 0, v{a+r}")
        for r in range(8):
            p(f"v_mul_f32 v{a+r}, v{a+r}, v{a+8+r}")
        for i in range(4):
            p(f"v_cvt_pk_bf16_f32 v{tmp+i}, v{a+2*i}, v{a+2*i+1}")
        p(f"s_add_u32 s{sT1}, s{sHFB}, {unit * 1024}")
        self.store_ws(tmp, self.vL16, sT1, tag)

    def hf_base(self, unit_reg_expr_lines):
        p = self.p
        for l in unit_reg_expr_lines:
            p(l)
        p(f"s_mul_i32 s{sT1}, s{sTILE}, 112")
        p(f"s_add_u32 s{sHFB}, s{sT0}, s{sT1}")
        p(f"s_lshl_b32 s{sHFB}, s{sHFB}, 10")
        p(f"s_add_u32 s{sHFB}, s{sHFB}, {WS_HF:#x}")

    def p1_logit(self, step):
        p, q = self.p, self.q
        L = self.vLANE
        p(f"s_lshl_b32 s{sT0}, s{sTYP}, 3")
        p(f"s_add_u32 s{sT0}, s{sT0}, s{sAB}")
        p(f"s_lshl_b32 s{sT0}, s{sT0}, 1")
        p(f"s_add_u32 s{sT0}, s{sT0}, s{sCH}          ; sL")
        p(f"s_lshl_b32 s{sT1}, s{sT0}, 2")
        p(f"s_set_gpr_idx_on s{sT1}, 0x1")
        for i in range(4):
            p(f"v_mov_b32 v{116+i}, v{self.X+i}")
        p("s_set_gpr_idx_off")
        q.wait(p, "lgld")
        mfma(p, 64, 112, 116, None)
        p(f"s_lshl_b32 s{sT1}, s{sT0}, 13")
        p(f"s_add_u32 s{sT1}, s{sT1}, {WS_LG:#x}")
        p(f"s_lshl_b32 s{sT2}, s{sTILE}, 7")
        p(f"s_add_u32 s{sLGO}, s{sT1}, s{sT2}")
        p(f"v_lshlrev_b32 v43, 2, v{L}")
        p(f"v_mov_b32 v42, {OOB:#x}")
        p(f"v_cmp_gt_u32 vcc, 32, v{L}")
        p(f"v_cndmask_b32 v43, v42, v43, vcc")
        p(f"v_mov_b32 v42, v64")
        def f():
            p(f"buffer_store_dword v42, v43, {S4(SRD_WS)}, s{sLGO} offen sc1")
            self.q.push("lgst")
        self.deferred[step] = f

    def p1_epi1(self, typ):
        p, q = self.p, self.q
        L = self.vLANE
        self.deferred = {}
        def dstore(step, vdata, voff, const, tag, base, offset=0):
            def f():
                p(f"s_add_u32 s{sT1}, s{base}, {const:#x}")
                self.store_ws(vdata, voff, sT1, tag, offset)
            if step is None:
                self.late_stores.append(f)
            else:
                self.deferred[step] = f
        self.late_stores = []
        if typ == 0:
            A = (self.ACC, self.ACC + 16)
            B = self.ACC + 32
            T = self.TMP
            V = 120
            p(f"s_lshl_b32 s{sT0}, s{sAB}, 2")
            p(f"s_lshl_b32 s{sT1}, s{sCH}, 1")
            p(f"s_add_u32 s{sT0}, s{sT0}, s{sT1}          ; head")
            p(f"s_lshl_b32 s{sT1}, s{sT0}, 6")
            p(f"s_add_u32 s{sT1}, s{sT1}, s{sTILE}        ; h*64+tile")
            p(f"s_lshl_b32 s{sQB}, s{sT1}, 10")
            p(f"s_lshl_b32 s{sT5}, s{sT1}, 2")
            p(f"s_mov_b32 s{sT0}, s{sCS}")
            p(f"s_mov_b32 s{sT1}, s{sCS}")
            for t in range(2):
                for i in range(4):
                    p(f"v_pk_mul_f32 {V2(A[t]+2*i)}, {V2(A[t]+2*i)}, s[{sT0}:{sT1}]")
            for t in range(2):
                for i in range(4):
                    p(f"v_cvt_pk_bf16_f32 v{T+8*t+4+i}, v{A[t]+8+2*i}, v{A[t]+8+2*i+1}")
            for i in range(8):
                p(f"v_cvt_pk_bf16_f32 v{V+i}, v{B+2*i}, v{B+2*i+1}")
            for t in range(2):
                for i in range(4):
                    p(f"v_cvt_pk_bf16_f32 v{T+8*t+i}, v{A[t]+2*i}, v{A[t]+2*i+1}")
            a = 40
            p(f"v_bfe_u32 v{a}, v{L}, 4, 1")
            p(f"v_lshlrev_b32 v{a}, 16, v{a}")
            p(f"v_lshrrev_b32 v{a+1}, 5, v{L}")
            p(f"v_lshl_add_u32 v{a}, v{a+1}, 8, v{a}")
            p(f"v_and_b32 v{a+1}, 15, v{L}")
            p(f"v_lshl_add_u32 v{a}, v{a+1}, 4, v{a}")
            dstore((0, 0), T + 4, self.vL16, WS_KF, "e1st", sQB)
            dstore((0, 1), T + 12, self.vL16, WS_KF + 65536, "e1st", sQB)
            dstore((1, 0), V, a, WS_VF, "e1st", sQB)
            dstore((1, 1), V + 4, a, WS_VF, "e1st", sQB, 512)
            dstore((2, 0), T, self.vL16, WS_QF, "e1st", sQB)
            dstore((2, 1), T + 8, self.vL16, WS_QF + 65536, "e1st", sQB)
            N = B
            for t in range(2):
                for h in range(2):
                    r = N + 4*t + 2*h
                    src = A[t] + 8*h
                    p(f"v_pk_mul_f32 {V2(r)}, {V2(src)}, {V2(src)}")
            for i in range(1, 4):
                for t in range(2):
                    for h in range(2):
                        r = N + 4*t + 2*h
                        src = A[t] + 8*h + 2*i
                        p(f"v_pk_fma_f32 {V2(r)}, {V2(src)}, {V2(src)}, {V2(r)}")
            for t in range(2):
                for h in range(2):
                    r = N + 4*t + 2*h
                    p(f"v_add_f32 v{r}, v{r}, v{r+1}")
            for t in range(2):
                p(f"v_permlane32_swap_b32 v{N+4*t}, v{N+4*t+2}")
            for t in range(2):
                p(f"v_add_f32 v{N+4*t}, v{N+4*t}, v{N+4*t+2}")
            na = 104
            p(f"s_add_u32 s{sT0}, s{sT5}, {WS_NRMQ:#x}")
            p(f"s_add_u32 s{sT1}, s{sT5}, {WS_NRMK:#x}")
            p(f"v_mov_b32 v{na}, {OOB:#x}")
            p(f"v_mov_b32 v{na+1}, s{sT0}")
            p(f"v_cmp_eq_u32 vcc, 31, v{L}")
            for sh in (1, 2):
                for t in range(2):
                    p(f"v_max_f32_dpp v{N+4*t}, v{N+4*t}, v{N+4*t} row_shr:{sh} row_mask:0xf bank_mask:0xf")
                if sh == 1:
                    p(f"v_cndmask_b32 v{na}, v{na}, v{na+1}, vcc")
                    p(f"v_mov_b32 v{na+1}, s{sT1}")
                else:
                    p(f"v_cmp_eq_u32 vcc, 63, v{L}")
            for sh in (4, 8):
                for t in range(2):
                    p(f"v_max_f32_dpp v{N+4*t}, v{N+4*t}, v{N+4*t} row_shr:{sh} row_mask:0xf bank_mask:0xf")
                if sh == 4:
                    p(f"v_cndmask_b32 v{na}, v{na}, v{na+1}, vcc")
            for t in range(2):
                p(f"v_max_f32_dpp v{N+4*t}, v{N+4*t}, v{N+4*t} row_bcast:15 row_mask:0xa bank_mask:0xf")
            def nstore(t):
                def f():
                    o = " offset:256" if t else ""
                    p(f"buffer_store_dword v{N+4*t}, v{na}, {S4(SRD_WS)}, 0 offen{o} sc1")
                    q = self.q
                    q.push("e1st")
                return f
            self.deferred[(3, 0)] = nstore(0)
            self.deferred[(3, 1)] = nstore(1)
            lgstep = (12, 1)
        else:
            p(f"s_mul_i32 s{sT0}, s{sCH}, 3")
            p(f"s_add_u32 s{sT0}, s{sT0}, s{sHFB}")
            p(f"s_mul_i32 s{sT1}, s{sTILE}, 112")
            p(f"s_add_u32 s{sHB1}, s{sT0}, s{sT1}")
            p(f"s_lshl_b32 s{sHB1}, s{sHB1}, 10")
            for t in range(3):
                a0 = self.ACC + 16*t
                for r in range(8):
                    p(f"v_max_f32 v{a0+r}, 0, v{a0+r}")
                for r in range(8):
                    p(f"v_mul_f32 v{a0+r}, v{a0+r}, v{a0+8+r}")
                for i in range(4):
                    p(f"v_cvt_pk_bf16_f32 v{self.TMP+4*t+i}, v{a0+2*i}, v{a0+2*i+1}")
            lgstep = (12, 1)
        self.stamp("e1b")
        self.p1_logit(lgstep)

    def p1_epi2(self, typ):
        p = self.p
        p(f"s_lshr_b32 s{sT2}, s{sCB2}, 5")
        p(f"s_lshl_b32 s{sT0}, s{sCH}, 1")
        p(f"s_add_u32 s{sT0}, s{sT0}, s{sT2}")
        p(f"s_mul_i32 s{sT1}, s{sTILE}, 112")
        p(f"s_add_u32 s{sHFB}, s{sT0}, s{sT1}")
        p(f"s_lshl_b32 s{sQB}, s{sHFB}, 10")
        for t in range(2):
            a0 = self.ACC + 16*t
            for r in range(8):
                p(f"v_max_f32 v{a0+r}, 0, v{a0+r}")
            for r in range(8):
                p(f"v_mul_f32 v{a0+r}, v{a0+r}, v{a0+8+r}")
            for i in range(4):
                p(f"v_cvt_pk_bf16_f32 v{128+4*t+i}, v{a0+2*i}, v{a0+2*i+1}")
        if typ == 1:
            for i in range(12):
                p(f"v_mov_b32 v{136+i}, v{self.TMP+i}")

    def late_h_stores(self):
        p = self.p
        for t in range(2):
            p(f"s_add_u32 s{sT1}, s{sQB}, {WS_HF + 1024*t:#x}")
            self.store_ws(128 + 4*t, self.avL16, sT1, "hst")
        n = uid()
        p(f"s_cmp_eq_u32 s{sA3}, 0")
        p(f"s_cbranch_scc1 L_noh_{n}")
        for t in range(3):
            p(f"s_add_u32 s{sT1}, s{sHB1}, {WS_HF + 1024*t:#x}")
            self.store_ws(136 + 4*t, self.avL16, sT1, "hst")
        p(f"L_noh_{n}:")

    def p1(self):
        p, q = self.p, self.q
        self.stamp("predma")
        for g in range(2):
            for e in range(5):
                self.p1_piece(g, e)
        self.stamp("dma0")
        self.pending = [(g, e) for g in list(range(2, 16)) for e in range(self.npieces(g))]
        self.pending += [(16, e) for e in range(4)] + [("aq", 0)] + [(17, e) for e in range(4)] + [(18, e) for e in range(4)]
        srd(p, SRD_WS, sWS, WS_SIZE)
        srd(p, SRD_DBG, sDBG, 256)
        self.p1_setup_late()
        self.counter_zero()
        self.stamp("setup")
        q.wait(p, ["st0"])
        p("s_barrier")
        self.stamp("st0")
        p(f"s_cmp_eq_u32 s{sTYP}, 0")
        p("s_cbranch_scc0 L_p1_B")
        q0, w0, pend0 = q.fork(), (self.win1, self.win2), list(self.pending)
        ends = []
        for typ in range(2):
            if typ == 1:
                p("L_p1_B:")
                self.q = q0
                self.win1, self.win2 = w0
                self.pending = pend0
            self.cur_typ = typ
            self.p1_first_reads(typ)
            self.p1_pass(1, typ)
            self.stamp("pass1")
            self.p1_epi1(typ)
            self.stamp("epi1")
            self.p1_pass(2, typ)
            assert not self.deferred
            self.stamp("pass2")
            if not self.o.get("nodma"):
                self.emit_pieces(99, 99)
            self.p1_epi2(typ)
            self.stamp("epi2")
            ends.append(self.q)
            if typ == 0:
                p("s_branch L_p1_join")
        p("L_p1_join:")
        self.q = VMQ.join(ends)

    aQ, aK, aV, aS, aP, aO = 4, (8, 12), (16, 24), (32, 48), (64, 72), 80
    avK, avV, avVinc, avL16 = 96, 97, 98, 3
    avT = 100
    HFR = 128
    LGR = 240

    def att_loads(self):
        p, q = self.p, self.q
        L, T = self.vLANE, self.avT
        p(f"s_lshl_b32 s{sA0}, s{sQC}, 3")
        p(f"s_add_u32 s{sA0}, s{sA0}, s{sW}          ; q tile")
        p(f"s_lshl_b32 s{sA1}, s{sH}, 6")
        p(f"s_add_u32 s{sA1}, s{sA1}, s{sA0}         ; h*64+tile")
        p(f"s_lshl_b32 s{sA2}, s{sA1}, 10")
        p(f"s_add_u32 s{sA2}, s{sA2}, {WS_QF:#x}")
        p(f"buffer_load_dwordx4 {V4(self.aQ)}, v{self.vL16}, {S4(SRD_WS)}, s{sA2} offen sc1")
        p(f"s_lshl_b32 s{sA2}, s{sH}, 8")
        p(f"s_add_u32 s{sA2}, s{sA2}, {WS_NRMK:#x}")
        p(f"v_lshlrev_b32 v{T}, 2, v{L}")
        p(f"buffer_load_dword v{T+1}, v{T}, {S4(SRD_WS)}, s{sA2} offen sc1")
        p(f"s_lshl_b32 s{sA2}, s{sA1}, 2")
        p(f"s_add_u32 s{sA2}, s{sA2}, {WS_NRMQ:#x}")
        p(f"v_mov_b32 v{T+3}, 0")
        p(f"buffer_load_dword v{T+2}, v{T+3}, {S4(SRD_WS)}, s{sA2} offen sc1")
        q.push("aq", 3)

    def att_setup(self):
        p, q = self.p, self.q
        L, T = self.vLANE, self.avT
        p(f"v_lshlrev_b32 v{self.avL16}, 4, v{L}")
        p(f"v_add_u32 v{self.avK}, 32768, v{self.avL16}")
        p(f"v_and_b32 v{T+4}, 31, v{L}               ; m")
        p(f"v_lshrrev_b32 v{T+5}, 5, v{L}")
        p(f"v_lshlrev_b32 v{T+5}, 8, v{T+5}")
        p(f"v_and_b32 v{T+6}, 15, v{L}")
        p(f"v_lshl_add_u32 v{T+5}, v{T+6}, 4, v{T+5}")
        p(f"v_add_u32 v{T+5}, 98304, v{T+5}")
        p(f"v_subrev_u32 v{T+6}, 20, v{T+4}")
        p(f"v_mov_b32 v{T+7}, {self.ONES}")
        p(f"v_mov_b32 v{T+8}, {self.ONES+64}")
        p(f"v_cmp_gt_u32 vcc, 8, v{T+6}")
        p(f"v_cndmask_b32 v{T+7}, v{T+7}, v{T+8}, vcc")
        p(f"v_cmp_gt_u32 vcc, 16, v{T+4}")
        p(f"v_cndmask_b32 v{self.avV}, v{T+7}, v{T+5}, vcc")
        p(f"v_mov_b32 v{T+7}, 0")
        p(f"v_mov_b32 v{T+8}, 4096")
        p(f"v_cndmask_b32 v{self.avVinc}, v{T+7}, v{T+8}, vcc")
        for r in list(range(self.aO, self.aO + 16)) + list(range(self.aP[1], self.aP[1] + 8)) + list(range(self.aV[1], self.aV[1] + 8)):
            p(f"v_mov_b32 v{r}, 0")
        self.P3COORD = True
        p(f"s_mov_b32 s{sA3}, s{sTYP}")
        p(f"s_lshl_b32 s{sRT64}, s{sXCD}, 2")
        p(f"s_and_b32 s{sA0}, s{sSLOT}, 3")
        p(f"s_add_u32 s{sRT64}, s{sRT64}, s{sA0}")
        p(f"s_lshr_b32 s{sCB}, s{sSLOT}, 2")
        p(f"s_lshr_b32 s{sKQ}, s{sW}, 1")
        p(f"s_and_b32 s{sTR}, s{sW}, 1")
        p(f"s_lshl_b32 s{sT32}, s{sRT64}, 1")
        p(f"s_add_u32 s{sT32}, s{sT32}, s{sTR}")
        q.wait(p, ["st16", "st17", "aq"])
        p("s_barrier")
        self.stamp("kv")
        for e in range(4):
            self.p1_piece(19, e)
        self.late_h_stores()
        for sh in (1, 2, 4, 8):
            p(f"v_max_f32_dpp v{T+1}, v{T+1}, v{T+1} row_shr:{sh} row_mask:0xf bank_mask:0xf")
        p(f"v_max_f32_dpp v{T+1}, v{T+1}, v{T+1} row_bcast:15 row_mask:0xa bank_mask:0xf")
        p(f"v_max_f32_dpp v{T+1}, v{T+1}, v{T+1} row_bcast:31 row_mask:0xc bank_mask:0xf")
        p(f"v_readlane_b32 s{sA0}, v{T+1}, 63")
        p(f"v_mul_f32 v{T+2}, s{sA0}, v{T+2}")
        p(f"v_mov_b32 v{T+3}, {f2u(3600.0):#x}")
        p(f"v_cmp_le_f32 vcc, v{T+2}, v{T+3}")
        p(f"s_cmp_eq_u64 vcc, exec")
        p(f"s_cselect_b32 s{sMODE}, 0, 1")
        if self.o.get("force_slow"):
            p(f"s_mov_b32 s{sMODE}, 1")
        p(f"s_mov_b32 s{sI}, 0")

    def att_tile(self, tb):
        p = self.p
        Sc, Sn = self.aS[tb & 1], self.aS[(tb + 1) & 1]
        Kn, Kl = self.aK[(tb + 1) & 1], self.aK[tb & 1]
        Vc, Vp = self.aV[tb & 1], self.aV[(tb + 1) & 1]
        Pc, Pp = self.aP[tb & 1], self.aP[(tb + 1) & 1]
        O, Q = self.aO, self.aQ
        ex = lambda i: p(f"v_exp_f32 v{Sc+i}, v{Sc+i}")
        cv = lambda i: p(f"v_cvt_pk_bf16_f32 v{Pc+i}, v{Sc+2*i}, v{Sc+2*i+1}")
        p("s_waitcnt lgkmcnt(0)")
        mfma(p, Sn, Kn, Q, None)
        p(f"ds_read_b128 {V4(Kl)}, v{self.avK} offset:{1024*(tb+2)}")
        p(f"ds_read_b128 {V4(Vc)}, v{self.avV} offset:{1024*tb}")
        p(f"ds_read_b128 {V4(Vc+4)}, v{self.avV} offset:{1024*tb+512}")
        ex(0); ex(1); ex(2); cv(0); ex(3)
        mfma(p, O, Vp, Pp, O)
        ex(4); cv(1); ex(5); ex(6); cv(2); ex(7); ex(8); cv(3); ex(9)
        mfma(p, O, Vp + 4, Pp + 4, O)
        ex(10); cv(4); ex(11); ex(12); cv(5); ex(13); ex(14); cv(6); ex(15)
        if tb == 3:
            p(f"v_add_u32 v{self.avK}, 4096, v{self.avK}")
            p(f"v_add_u32 v{self.avV}, v{self.avVinc}, v{self.avV}")
        else:
            p("s_nop 0")
        cv(7)

    def att_boundary(self, seg):
        p, q = self.p, self.q
        T = self.avT
        L = self.vLANE
        if seg == 1:
            p("s_waitcnt vmcnt(0)")
            p("s_barrier")
            p(f"s_add_u32 s{sA0}, s{sRB}, {F2}")
            p(f"s_lshl_b32 s{sA0}, s{sA0}, 8")
            p(f"v_mov_b32 v{T+4}, {OOB:#x}")
            p(f"v_mov_b32 v{T+5}, s{sA0}")
            p(f"v_cmp_eq_u32 vcc, 0, v0")
            p(f"v_cndmask_b32 v{T+4}, v{T+4}, v{T+5}, vcc")
            p(f"v_mov_b32 v{T+5}, 1")
            p(f"buffer_atomic_add v{T+5}, v{T+4}, {S4(SRD_WS)}, 0 offen sc1")
            if self.o.get("warm", 1):
                srd(p, SRD_T, sWD, 1792 * 1024)
                p(f"s_mul_i32 s{sA0}, s{sSLOT}, 57344")
                p(f"s_mul_i32 s{sA1}, s{sW}, 7168")
                p(f"s_add_u32 s{sA0}, s{sA0}, s{sA1}")
                p(f"v_lshlrev_b32 v{T}, 6, v{L}")
                p(f"buffer_load_dword v{T+3}, v{T}, {S4(SRD_T)}, s{sA0} offen")
                p(f"s_add_u32 s{sA0}, s{sA0}, 3072")
                p(f"buffer_load_dword v{T+4}, v{T}, {S4(SRD_T)}, s{sA0} offen")
                srd(p, SRD_T, sWO, 512 * 1024)
                p(f"s_lshl_b32 s{sA0}, s{sSLOT}, 14")
                p(f"s_lshl_b32 s{sA1}, s{sW}, 11")
                p(f"s_add_u32 s{sA0}, s{sA0}, s{sA1}")
                p(f"v_and_b32 v{T+6}, 31, v{L}")
                p(f"v_lshlrev_b32 v{T+6}, 6, v{T+6}")
                p(f"buffer_load_dword v{T+5}, v{T+6}, {S4(SRD_T)}, s{sA0} offen")
        if seg == 2:
            p(f"s_lshr_b32 s{sA0}, s{sRT64}, 1")
            p(f"s_add_u32 s{sA0}, s{sA0}, {F2}")
            p(f"s_lshl_b32 s{sA0}, s{sA0}, 8")
            p(f"v_mov_b32 v{T}, s{sA0}")
            p(f"buffer_load_dword v{T+1}, v{T}, {S4(SRD_WS)}, 0 offen sc1")
            p("s_waitcnt vmcnt(0)")
            poll(p, q, T + 1, T, SRD_WS, 16, "F2")
            p("s_waitcnt lgkmcnt(0)")
            p("s_barrier")
            self.p3_setup_dma()
            for g in range(2):
                for e in range(4):
                    self.p3_piece(g, e)
        if seg in (2, 3):
            p(f"s_mul_i32 s{sA0}, s{sT32}, 112")
            p(f"s_mul_i32 s{sA1}, s{sKQ}, 28")
            p(f"s_add_u32 s{sA0}, s{sA0}, s{sA1}")
            p(f"s_lshl_b32 s{sA0}, s{sA0}, 10")
            p(f"s_add_u32 s{sA0}, s{sA0}, {WS_HF + (14*1024 if seg == 3 else 0):#x}")
            for j in range(14):
                jj = j + (14 if seg == 3 else 0)
                o = f" offset:{1024*(j&3)}" if j & 3 else ""
                p(f"buffer_load_dwordx4 {V4(self.HFR + 4*jj)}, v{self.avL16}, {S4(SRD_WS)}, s{sA0} offen{o} sc1")
                if (j & 3) == 3:
                    p(f"s_add_u32 s{sA0}, s{sA0}, 4096")
        if seg == 3:
            p(f"v_lshrrev_b32 v{T}, 5, v{L}")
            p(f"v_lshlrev_b32 v{T}, 17, v{T}")
            p(f"v_and_b32 v{T+1}, 31, v{L}")
            p(f"v_lshl_add_u32 v{T}, v{T+1}, 2, v{T}")
            p(f"s_lshl_b32 s{sA0}, s{sT32}, 7")
            p(f"s_add_u32 s{sA0}, s{sA0}, {WS_LG:#x}")
            for i in range(16):
                p(f"buffer_load_dword v{self.LGR+i}, v{T}, {S4(SRD_WS)}, s{sA0} offen sc1")
                if i < 15:
                    p(f"s_add_u32 s{sA0}, s{sA0}, 8192")

    def att_slow_tile(self):
        p = self.p
        S, P, O, K, V, Q = self.aS[0], self.aP[0], self.aO, self.aK[0], self.aV[0], self.aQ
        T = self.avT
        m_old, m_new, al = T + 8, T + 9, T + 10
        p(f"ds_read_b128 {V4(K)}, v{self.avK}")
        p(f"ds_read_b128 {V4(V)}, v{self.avV}")
        p(f"ds_read_b128 {V4(V+4)}, v{self.avV} offset:512")
        p("s_waitcnt lgkmcnt(0)")
        mfma(p, S, K, Q, None)
        p(f"v_max3_f32 v{m_new}, v{S}, v{S+1}, v{S+2}")
        for r in range(3, 15, 2):
            p(f"v_max3_f32 v{m_new}, v{m_new}, v{S+r}, v{S+r+1}")
        p(f"v_max_f32 v{m_new}, v{m_new}, v{S+15}")
        p(f"v_mov_b32 v{al}, v{m_new}")
        p(f"v_permlane32_swap_b32 v{m_new}, v{al}")
        p(f"v_max3_f32 v{m_new}, v{m_new}, v{al}, v{m_old}")
        p(f"v_sub_f32 v{al}, v{m_old}, v{m_new}")
        p(f"v_exp_f32 v{al}, v{al}")
        p(f"v_mov_b32 v{m_old}, v{m_new}")
        for r in range(16):
            p(f"v_sub_f32 v{S+r}, v{S+r}, v{m_new}")
        for r in range(16):
            p(f"v_exp_f32 v{S+r}, v{S+r}")
        for r in range(16):
            p(f"v_mul_f32 v{O+r}, v{al}, v{O+r}")
        for i in range(8):
            p(f"v_cvt_pk_bf16_f32 v{P+i}, v{S+2*i}, v{S+2*i+1}")
        mfma(p, O, V, P, O)
        mfma(p, O, V + 4, P + 4, O)
        p(f"v_add_u32 v{self.avK}, 1024, v{self.avK}")
        p(f"v_lshrrev_b32 v{al}, 2, v{self.avVinc}")
        p(f"v_add_u32 v{self.avV}, v{al}, v{self.avV}")

    def attention(self):
        p, q = self.p, self.q
        self.att_setup()
        p(f"s_cmp_eq_u32 s{sMODE}, 0")
        p("s_cbranch_scc0 L_att_slow0")
        p(f"ds_read_b128 {V4(self.aK[0])}, v{self.avK}")
        p(f"ds_read_b128 {V4(self.aK[1])}, v{self.avK} offset:1024")
        p("s_waitcnt lgkmcnt(1)")
        mfma(p, self.aS[0], self.aK[0], self.aQ, None)
        if self.o.get("prio", 1):
            p("s_setprio 3")
        p("s_nop 9")
        p(".p2align 6")
        p("L_att_loop:")
        for tb in range(4):
            self.att_tile(tb)
        p(f"s_add_u32 s{sI}, s{sI}, 1")
        p(f"s_and_b32 s{sA0}, s{sI}, 3")
        p("s_cbranch_scc1 L_att_loop")
        p("L_att_disp:")
        p(f"s_cmp_eq_u32 s{sI}, 16")
        p("s_cbranch_scc1 L_att_done")
        for seg in (1, 2, 3):
            if seg < 3:
                p(f"s_cmp_eq_u32 s{sI}, {4*seg}")
                p(f"s_cbranch_scc0 L_att_seg{seg+1}")
            self.stamp(f"seg{seg}")
            if self.o.get("prio", 1):
                p(f"s_setprio {3 - seg}")
            if not self.o.get("noseg"):
                self.att_boundary(seg)
            self.stamp(f"seg{seg}e")
            p(f"s_branch L_att_back")
            if seg < 3:
                p(f"L_att_seg{seg+1}:")
        p("L_att_back:")
        p(f"s_cmp_eq_u32 s{sMODE}, 0")
        p("s_cbranch_scc1 L_att_loop")
        p("s_branch L_att_slow")
        self.slow_prog_pending = True
        p("L_att_done:")
        p(f"s_cmp_eq_u32 s{sMODE}, 0")
        p("s_cbranch_scc0 L_att_fin")
        p("s_waitcnt lgkmcnt(0)")
        mfma(p, self.aO, self.aV[1], self.aP[1], self.aO)
        mfma(p, self.aO, self.aV[1] + 4, self.aP[1] + 4, self.aO)
        p("L_att_fin:")
        self.stamp("att")
        O, T = self.aO, self.avT
        p(f"v_rcp_f32 v{T}, v{O+8}")
        for r in range(8):
            p(f"v_mul_f32 v{O+r}, v{T}, v{O+r}")
        for i in range(4):
            p(f"v_cvt_pk_bf16_f32 v{T+4+i}, v{O+2*i}, v{O+2*i+1}")
        p(f"s_lshl_b32 s{sA0}, s{sQC}, 3")
        p(f"s_add_u32 s{sA0}, s{sA0}, s{sW}")
        p(f"s_lshl_b32 s{sA0}, s{sA0}, 5")
        p(f"s_add_u32 s{sA0}, s{sA0}, s{sH}")
        p(f"s_lshl_b32 s{sA0}, s{sA0}, 10")
        p(f"s_add_u32 s{sA0}, s{sA0}, {WS_OF:#x}")
        p(f"buffer_store_dwordx4 {V4(T+4)}, v{self.avL16}, {S4(SRD_WS)}, s{sA0} offen sc1")
        self.q = VMQ()
        self.q.push("ost")

    def att_slow_code(self):
        p = self.p
        T = self.avT
        p("L_att_slow0:")
        p(f"v_mov_b32 v{T+8}, 0xff800000")
        p("L_att_slow:")
        p(f"s_mov_b32 s{sA3}, 0")
        p("L_att_slow_loop:")
        self.att_slow_tile()
        p(f"s_add_u32 s{sA3}, s{sA3}, 1")
        p(f"s_cmp_lt_u32 s{sA3}, 16")
        p("s_cbranch_scc1 L_att_slow_loop")
        p(f"s_add_u32 s{sI}, s{sI}, 4")
        p("s_branch L_att_disp")


    pWB = (16, 24)
    pB, pA = 32, 64
    pvD = 112
    pvR = (6, 7, 8, 9)
    pG = 10
    pOF = 128
    pT = 100

    P3SLOT = (1, 3, 0, 2, 4, 1, 3, 0, 2)

    def p3_slot(self, g):
        return 32768 * self.P3SLOT[g]

    def p3_setup_dma(self):
        p = self.p
        L, T = self.vLANE, self.avT
        srd(p, SRD_W2, sWD, 1792 * 1024)
        srd(p, SRD_X, sWO, 512 * 1024)
        p(f"v_bfe_u32 v{T}, v{L}, 4, 1")
        p(f"v_lshlrev_b32 v{T}, 2, v{T}")
        p(f"v_and_b32 v{T+1}, 7, v{L}")
        p(f"v_xor_b32 v{T}, v{T}, v{T+1}")
        p(f"v_lshlrev_b32 v{T}, 4, v{T}")
        p(f"s_lshl_b32 s{sA0}, s{sCB}, 7")
        p(f"v_add_u32 v{T}, s{sA0}, v{T}")
        p(f"v_lshrrev_b32 v{T+1}, 3, v{L}")
        p(f"s_lshl_b32 s{sA1}, s{sTR}, 5")
        p(f"v_add_u32 v{T+1}, s{sA1}, v{T+1}          ; 32*(w&1) + (l>>3)")
        p(f"s_mul_i32 s{sA0}, s{sKQ}, 448")
        p(f"v_add_u32 v{T+2}, s{sA0}, v{T+1}")
        p(f"v_lshl_add_u32 v{self.pvD}, v{T+2}, 10, v{T}")
        p(f"s_lshl_b32 s{sA0}, s{sKQ}, 7")
        p(f"v_add_u32 v{T+2}, s{sA0}, v{T+1}")
        p(f"v_lshl_add_u32 v{self.pvD+1}, v{T+2}, 10, v{T}")

    def p3_piece(self, g, e):
        p, q = self.p, self.q
        sl = self.p3_slot(g)
        if g < 7:
            srd_r, v, row0 = SRD_W2, self.pvD, 64 * g
        else:
            srd_r, v, row0 = SRD_X, self.pvD + 1, 64 * (g - 7)
        p(f"s_add_u32 m0, s{sM0K}, {sl + 1024*e}")
        p(f"s_mov_b32 s{sA1}, {(row0 + 8*e) * 1024}")
        p(f"buffer_load_dwordx4 v{v}, {S4(srd_r)}, s{sA1} offen lds")
        q.push(f"p3s{g}")

    def p3_emit(self, t, maxn):
        n = 0
        while self.pending3 and n < maxn:
            g, e = self.pending3[0]
            if g >= 5 and t < 4 * (g - 4) + 2:
                break
            self.pending3.pop(0)
            self.p3_piece(g, e)
            n += 1

    def p3_reads(self, t, cts=(0, 1)):
        p = self.p
        g, sp = t >> 2, t & 3
        sl = self.p3_slot(g)
        hi = 1 if sl >= 65536 else 0
        off = sl - 65536 * hi
        if sl >= 131072:
            hi, off = 2, sl - 131072
        wb = self.pWB[t & 1]
        for ct in cts:
            base = self.pvR[ct] if hi == 0 else self.pvR[2 + ct] if hi == 1 else self.pT + 8 + ct
            for j in range(2):
                p(f"ds_read_b64_tr_b16 {V2(wb + 4*ct + 2*j)}, v{base} offset:{off + (16*sp + 4*j) * 128}")
        return 2 * len(cts)

    def p3(self):
        p, q = self.p, self.q
        L, T = self.vLANE, self.pT
        p("s_waitcnt vmcnt(1)")
        p("s_barrier")
        self.pending3 = [(g, e) for g in range(2, 9) for e in range(4)]
        self.p3_emit(0, 4)
        p(f"v_lshrrev_b32 v{T}, 5, v{L}")
        p(f"v_lshlrev_b32 v{T}, 3, v{T}")
        p(f"v_bfe_u32 v{T+1}, v{L}, 2, 2")
        p(f"v_add_u32 v{T}, v{T}, v{T+1}             ; row")
        p(f"v_lshlrev_b32 v{T}, 7, v{T}              ; *128")
        p(f"v_and_b32 v{T+1}, 1, v{L}")
        p(f"v_lshlrev_b32 v{T+1}, 2, v{T+1}")
        p(f"v_bfe_u32 v{T+2}, v{L}, 4, 1")
        p(f"v_lshl_add_u32 v{T+1}, v{T+2}, 1, v{T+1}")
        p(f"v_bfe_u32 v{T+2}, v{L}, 1, 1")
        p(f"v_add_u32 v{T+1}, v{T+1}, v{T+2}          ; cg")
        p(f"v_lshl_add_u32 v{T}, v{T+1}, 3, v{T}")
        p(f"s_lshl_b32 s{sA0}, s{sKQ}, 13")
        p(f"v_add_u32 v{T}, s{sA0}, v{T}")
        p(f"v_bfe_u32 v{T+2}, v{L}, 3, 1")
        p(f"v_lshlrev_b32 v{T+2}, 6, v{T+2}           ; 64*b")
        p(f"v_add_u32 v{self.pvR[0]}, v{T}, v{T+2}     ; ct0: 64*b")
        p(f"v_xor_b32 v{T+2}, 64, v{T+2}")
        p(f"v_add_u32 v{self.pvR[1]}, v{T}, v{T+2}     ; ct1: 64*(1-b)")
        for ct in range(2):
            p(f"v_add_u32 v{self.pvR[2+ct]}, 0x10000, v{self.pvR[ct]}")
            p(f"v_add_u32 v{T+8+ct}, 0x20000, v{self.pvR[ct]}")
        G = self.pG
        lg = self.LGR
        for i in range(1, 16):
            p(f"v_add_f32 v{lg}, v{lg}, v{lg+i}")
        p(f"v_mov_b32 v{lg+1}, v{lg}")
        p(f"v_permlane32_swap_b32 v{lg}, v{lg+1}")
        p(f"v_add_f32 v{lg}, v{lg}, v{lg+1}")
        p(f"v_mul_f32 v{lg}, {f2u(-1.4426950408889634):#x}, v{lg}")
        p(f"v_exp_f32 v{lg}, v{lg}")
        p(f"v_add_f32 v{lg}, 1.0, v{lg}")
        p(f"v_rcp_f32 v{G}, v{lg}")
        p(f"s_add_u32 s{sA0}, s{sXCD}, {F3}")
        p(f"s_lshl_b32 s{sA0}, s{sA0}, 8")
        p(f"v_mov_b32 v{T+7}, s{sA0}")
        self.stamp("p3st0")
        self.lgq = []
        for ct in range(2):
            self.lg_issue((0, ct), self.p3_reads(0, (ct,)))
        for t in range(36):
            g = t >> 2
            if (t & 3) == 2:
                tags = [f"p3s{g+1}"] if 1 <= g < 8 else []
                if g == 1:
                    tags.append("ost")
                if g == 4:
                    tags.append("f3ld")
                if g == 6:
                    tags.append("ofr")
                if tags:
                    q.wait(p, tags)
                if g == 4:
                    poll(p, q, T + 6, T + 7, SRD_WS, 32, "F3")
                p("s_barrier")
                if g == 1:
                    p(f"s_add_u32 s{sA0}, s{sQC}, {F3}")
                    p(f"s_lshl_b32 s{sA0}, s{sA0}, 8")
                    p(f"v_mov_b32 v{T}, {OOB:#x}")
                    p(f"v_mov_b32 v{T+1}, s{sA0}")
                    p(f"v_cmp_eq_u32 vcc, 0, v0")
                    p(f"v_cndmask_b32 v{T}, v{T}, v{T+1}, vcc")
                    p(f"v_mov_b32 v{T+1}, 1")
                    p(f"buffer_atomic_add v{T+1}, v{T}, {S4(SRD_WS)}, 0 offen sc1")
                    q.push("f3add")
                    self.stamp("f3")
                if g == 3:
                    p(f"buffer_load_dword v{T+6}, v{T+7}, {S4(SRD_WS)}, 0 offen sc1")
                    q.push("f3ld")
                if g == 4:
                    p(f"s_lshl_b32 s{sA2}, s{sT32}, 5")
                    p(f"s_lshl_b32 s{sA1}, s{sKQ}, 3")
                    p(f"s_add_u32 s{sA2}, s{sA2}, s{sA1}")
                    p(f"s_lshl_b32 s{sA2}, s{sA2}, 10")
                    p(f"s_add_u32 s{sA2}, s{sA2}, {WS_OF:#x}")
            wb = self.pWB[t & 1]
            if t < 28:
                acc, bfr, first = self.pB, self.HFR + 4*t, t == 0
            else:
                acc, bfr, first = self.pA, self.pOF + 4*(t - 28), t == 28
            for ct in range(2):
                self.lg_wait((t, ct))
                mfma(p, acc + 16*ct, wb + 4*ct, bfr, None if first else acc + 16*ct)
                if t < 35:
                    self.lg_issue((t + 1, ct), self.p3_reads(t + 1, (ct,)))
                if ct == 0:
                    self.p3_emit(t, 2 if t < 4 else 1)
                    if 18 <= t < 22:
                        for j in (2*(t-18), 2*(t-18)+1):
                            o = f" offset:{1024*(j&3)}" if j & 3 else ""
                            p(f"buffer_load_dwordx4 {V4(self.pOF + 4*j)}, v{self.avL16}, {S4(SRD_WS)}, s{sA2} offen{o} sc1")
                            q.push("ofr")
                            if j == 3:
                                p(f"s_add_u32 s{sA2}, s{sA2}, 4096")
            if t == 27:
                self.stamp("p3a")
        self.stamp("p3b")
        p(f"v_sub_f32 v{G+1}, 1.0, v{G}")
        B, A = self.pB, self.pA
        for r in range(32):
            p(f"v_mul_f32 v{B+r}, v{G+1}, v{B+r}")
        for r in range(32):
            p(f"v_fmac_f32 v{B+r}, v{G}, v{A+r}")
        p(f"v_and_b32 v{T}, 31, v{L}                 ; n")
        p(f"v_and_b32 v{T+1}, 15, v{L}")
        p(f"v_lshrrev_b32 v{T+2}, 5, v{L}")
        p(f"v_lshlrev_b32 v{T+2}, 2, v{T+2}           ; 4hi")
        p(f"v_xor_b32 v{T+1}, v{T+1}, v{T+2}          ; (n&15) ^ 4hi")
        p(f"v_lshlrev_b32 v{T+1}, 4, v{T+1}")
        p(f"v_lshl_add_u32 v{T}, v{T}, 8, v{T+1}")
        p(f"s_lshl_b32 s{sA0}, s{sW}, 13")
        p(f"v_add_u32 v{T}, s{sA0}, v{T}")
        for ct in range(2):
            for qq in range(4):
                c = 8*ct + qq
                p(f"v_xor_b32 v{T+1}, {16*c}, v{T}")
                p(f"ds_write_b128 v{T+1}, {V4(B + 16*ct + 4*qq)}")
        p("s_waitcnt lgkmcnt(0)")
        p("s_barrier")
        p(f"v_lshrrev_b32 v{T}, 3, v{L}")
        p(f"s_lshl_b32 s{sA0}, s{sKQ}, 3")
        p(f"v_add_u32 v{T}, s{sA0}, v{T}             ; rho")
        p(f"v_and_b32 v{T+1}, 7, v{L}")
        p(f"v_lshlrev_b32 v{T+1}, 1, v{T+1}           ; 2*(l&7)")
        p(f"v_and_b32 v{T+2}, 15, v{T}")
        p(f"v_xor_b32 v{T+1}, v{T+1}, v{T+2}")
        p(f"v_lshlrev_b32 v{T+1}, 4, v{T+1}")
        p(f"v_lshl_add_u32 v{T+1}, v{T}, 8, v{T+1}")
        p(f"s_lshl_b32 s{sA0}, s{sTR}, 13")
        p(f"v_add_u32 v{T+1}, s{sA0}, v{T+1}")
        p(f"v_xor_b32 v{T+2}, 16, v{T+1}              ; e=1")
        R = 16
        for k in range(4):
            p(f"ds_read_b128 {V4(R + 8*k)}, v{T+1} offset:{16384*k}")
            p(f"ds_read_b128 {V4(R + 8*k + 4)}, v{T+2} offset:{16384*k}")
        srd(p, SRD_T, sOUT, 2048 * 1024)
        p(f"s_lshl_b32 s{sA0}, s{sT32}, 5")
        p(f"v_add_u32 v{T}, s{sA0}, v{T}")
        p(f"v_and_b32 v{T+3}, 7, v{L}")
        p(f"v_lshlrev_b32 v{T+3}, 4, v{T+3}")
        p(f"v_lshl_add_u32 v{T}, v{T}, 10, v{T+3}")
        p(f"s_lshl_b32 s{sA0}, s{sCB}, 7")
        p(f"v_add_u32 v{T}, s{sA0}, v{T}")
        p("s_waitcnt lgkmcnt(0)")
        for r in range(8):
            p(f"v_add_f32 v{R+r}, v{R+r}, v{R+8+r}")
            p(f"v_add_f32 v{R+16+r}, v{R+16+r}, v{R+24+r}")
        for r in range(8):
            p(f"v_add_f32 v{R+r}, v{R+r}, v{R+16+r}")
        for i in range(4):
            p(f"v_cvt_pk_bf16_f32 v{R+8+i}, v{R+2*i}, v{R+2*i+1}")
        p(f"buffer_store_dwordx4 {V4(R+8)}, v{T}, {S4(SRD_T)}, 0 offen")

    def finish(self):
        p = self.p
        if self.o.get("twice"):
            p("s_waitcnt vmcnt(0) lgkmcnt(0)")
            p("s_barrier")
            p("s_cmp_eq_u32 s0, 0")
            p("s_mov_b32 s0, 1")
            p("s_cbranch_scc1 L_restart")
        p("s_waitcnt vmcnt(0)")
        self.stamp("end")
        self.dump_stamps()
        p("s_waitcnt vmcnt(0)")
        p("L_end:")
        p("s_endpgm")

    def build(self):
        self.prologue()
        self.p1()
        if self.stop_after != "p1":
            self.attention()
            if self.stop_after != "att":
                self.p3()
        self.finish()
        if self.stop_after != "p1":
            self.att_slow_code()
        n = self.p.fix_hazards()
        return self.p.text(), n


HEADER = """; Kernarg layout (88 bytes): A_x, A_wqkv, A_wo, B_x, B_W_gate, B_W_up, B_W_down, gate_w, out, debug, ws
; @launch grid=(256,1,1) block=(512,1,1) lds=163840
.amdgcn_target "amdgcn-amd-amdhsa--gfx950"
.text
.globl {name}_kernel
.p2align 8
.type {name}_kernel,@function
{name}_kernel:
"""
FOOTER = """.section .rodata,"a"
.p2align 6
.amdhsa_kernel {name}_kernel
  .amdhsa_next_free_vgpr 256
  .amdhsa_next_free_sgpr 102
  .amdhsa_accum_offset 256
  .amdhsa_group_segment_fixed_size 0
  .amdhsa_kernarg_size 88
  .amdhsa_user_sgpr_count 2
  .amdhsa_user_sgpr_kernarg_segment_ptr 1
  .amdhsa_system_sgpr_workgroup_id_x 1
  .amdhsa_float_denorm_mode_32 3
.end_amdhsa_kernel
"""

def generate(stop_after=None, opts=None):
    g = Gen(stop_after, opts)
    body, n = g.build()
    return HEADER.format(name=NAME) + body + FOOTER.format(name=NAME), n, g.p.count()

if __name__ == "__main__":
    import argparse
    ap = argparse.ArgumentParser()
    ap.add_argument("--stop", default=None)
    ap.add_argument("-o", default="cdna_kernels/" + NAME + ".s")
    ap.add_argument("--opt", action="append", default=[])
    ap.add_argument("--stamps", default="")
    a = ap.parse_args()
    opts = {}
    for o in a.opt:
        k, _, v = o.partition("=")
        opts[k] = int(v) if v else 1
    names = a.stamps.split(",") if a.stamps else []
    if names:
        opts["stamps"] = 1
        opts["stampmap"] = {"start": 0, "end": 11}
        for i, nm in enumerate(names):
            opts["stampmap"][nm] = i + 1
    txt, n, cnt = generate(a.stop, opts)
    open(a.o, "w").write(txt)
    print(f"wrote {a.o}: {cnt} instructions, {n} nop pads")
```

```python
import re

TRANS = ("v_exp_f32", "v_log_f32", "v_rcp_f32", "v_rsq_f32", "v_sqrt_f32", "v_sin_f32", "v_cos_f32",
         "v_rcp_iflag_f32")
BRANCH = ("s_branch", "s_cbranch_scc0", "s_cbranch_scc1", "s_cbranch_vccz", "s_cbranch_vccnz",
          "s_cbranch_execz", "s_cbranch_execnz")

_reg_re = re.compile(r"^(-|\|)?(abs\()?([vsa])(\d+)\)?\|?$")
_rng_re = re.compile(r"^([vsa])\[(\d+):(\d+)\]$")


def regs_of(tok):
    tok = tok.strip()
    if tok.startswith("-"):
        tok = tok[1:]
    if tok.startswith("abs(") and tok.endswith(")"):
        tok = tok[4:-1]
    if tok.startswith("|") and tok.endswith("|"):
        tok = tok[1:-1]
    m = _rng_re.match(tok)
    if m:
        return {(m.group(1), i) for i in range(int(m.group(2)), int(m.group(3)) + 1)}
    m = re.match(r"^([vsa])(\d+)$", tok)
    if m:
        return {(m.group(1), int(m.group(2)))}
    if tok == "vcc":
        return {("s", "vcc_lo"), ("s", "vcc_hi")}
    if tok in ("vcc_lo", "vcc_hi"):
        return {("s", tok)}
    if tok == "exec":
        return {("s", "exec_lo"), ("s", "exec_hi")}
    if tok in ("exec_lo", "exec_hi"):
        return {("s", tok)}
    if tok == "m0":
        return {("s", "m0")}
    return set()


class Ins:
    __slots__ = ("text", "mn", "ops", "mods", "kind", "wr", "rd", "c_rd", "ab_rd", "passes", "is_dpp",
                 "target", "comment", "store_data", "sgpr_rd_vmem", "lds_dma")

    def __init__(self, text):
        self.comment = ""
        if ";" in text:
            text, self.comment = text.split(";", 1)
        text = text.strip()
        self.text = text
        parts = text.split(None, 1)
        self.mn = parts[0]
        rest = parts[1] if len(parts) > 1 else ""
        ops = [o.strip() for o in rest.split(",")] if rest else []
        mods = ""
        if ops:
            last = ops[-1].split(None, 1)
            if len(last) > 1:
                ops[-1] = last[0]
                mods = last[1]
        self.ops, self.mods = ops, mods
        self.wr, self.rd = set(), set()
        self.c_rd, self.ab_rd = set(), set()
        self.passes = 0
        self.is_dpp = False
        self.target = None
        self.store_data = set()
        self.lds_dma = False
        self.classify()

    def classify(self):
        mn, ops, mods = self.mn, self.ops, self.mods
        R = regs_of
        allr = lambda lst: set().union(*[R(o) for o in lst]) if lst else set()
        if mn.startswith("v_mfma") or mn.startswith("v_smfmac"):
            self.kind = "mfma"
            self.wr = R(ops[0])
            self.ab_rd = R(ops[1]) | R(ops[2])
            self.c_rd = R(ops[3])
            self.rd = self.ab_rd | self.c_rd
            self.passes = 8 if "32x32x16" in mn else 4 if "16x16x32" in mn else 16
        elif mn.startswith("v_"):
            self.kind = "valu"
            base = mn.replace("_e32", "").replace("_e64", "").replace("_dpp", "").replace("_sdwa", "")
            self.is_dpp = ("row_" in mods or "quad_perm" in mods or "wave_" in mods or "row_bcast" in mods)
            if base.startswith("v_cmp"):
                self.wr = R(ops[0]); self.rd = allr(ops[1:])
            elif base in ("v_readfirstlane_b32", "v_readlane_b32"):
                self.wr = R(ops[0]); self.rd = allr(ops[1:])
            elif base.startswith("v_permlane") and "swap" in base:
                self.wr = R(ops[0]) | R(ops[1]); self.rd = set(self.wr)
            elif base in ("v_add_co_u32", "v_sub_co_u32", "v_subrev_co_u32"):
                self.wr = R(ops[0]) | R(ops[1]); self.rd = allr(ops[2:])
            elif base in ("v_addc_co_u32", "v_subb_co_u32"):
                self.wr = R(ops[0]) | R(ops[1]); self.rd = allr(ops[2:])
            elif base.startswith("v_fmac") or base.startswith("v_dot2c") or base == "v_writelane_b32":
                self.wr = R(ops[0]); self.rd = allr(ops)
            elif base == "v_nop":
                pass
            else:
                self.wr = R(ops[0]); self.rd = allr(ops[1:])
                if self.is_dpp:
                    self.rd |= R(ops[0])
            if base == "v_cndmask_b32" and len(ops) == 3:
                self.rd |= R("vcc")
            self.rd |= R("exec")
        elif mn.startswith("ds_"):
            self.kind = "ds"
            if mn.startswith("ds_read") or mn.startswith("ds_bpermute") or mn.startswith("ds_permute") or "_rtn" in mn \
                    or mn.startswith("ds_swizzle"):
                self.wr = R(ops[0]); self.rd = allr(ops[1:])
            else:
                self.rd = allr(ops)
        elif mn.startswith("buffer_") or mn.startswith("global_"):
            self.kind = "vmem"
            toks = mods.split()
            is_lds = ("lds" in toks) or mn.startswith("global_load_lds")
            self.lds_dma = is_lds
            if mn in ("buffer_wbl2", "buffer_inv"):
                pass
            elif is_lds:
                self.rd = allr(ops) | R("m0")
            elif "load" in mn:
                self.wr = R(ops[0]); self.rd = allr(ops[1:])
            elif "atomic" in mn:
                self.rd = allr(ops)
                if "sc0" in toks:
                    self.wr = R(ops[0]) if mn.startswith("buffer_") else R(ops[0])
            else:
                self.rd = allr(ops)
                data = ops[0] if mn.startswith("buffer_") else ops[1]
                if "x4" in mn or "x3" in mn:
                    self.store_data = R(data)
        elif mn.startswith("s_"):
            self.kind = "salu"
            if mn in BRANCH:
                self.kind = "branch"
                self.target = ops[0]
            elif mn in ("s_waitcnt", "s_barrier", "s_nop", "s_endpgm", "s_setprio", "s_sleep", "s_set_gpr_idx_off"):
                self.kind = "misc"
            elif mn == "s_set_gpr_idx_on":
                self.wr = R("m0"); self.rd = allr(ops)
            elif mn.startswith("s_cmp") or mn.startswith("s_bitcmp"):
                self.rd = allr(ops)
            elif mn.startswith("s_load") or mn.startswith("s_memtime") or mn.startswith("s_memrealtime"):
                self.kind = "smem"
                self.wr = R(ops[0]); self.rd = allr(ops[1:])
            elif mn in ("s_setpc_b64",):
                self.kind = "jump"
                self.rd = allr(ops)
            elif "saveexec" in mn:
                self.wr = R(ops[0]) | R("exec"); self.rd = allr(ops[1:]) | R("exec")
            else:
                self.wr = R(ops[0]); self.rd = allr(ops[1:])
        else:
            raise ValueError("unknown instruction: " + self.text)

    def states(self):
        if self.mn == "s_nop":
            return int(self.ops[0], 0) + 1
        return 1

    def is_trans(self):
        return self.mn.replace("_e32", "").replace("_e64", "") in TRANS


def vg(rs):
    return {r for r in rs if r[0] in "va"}


def sg(rs):
    return {r for r in rs if r[0] == "s" and not str(r[1]).startswith("exec")}


MFMA_RAW = {2: 5, 4: 8, 8: 12, 16: 20}
MFMA_C_OVERLAP = {2: 4, 4: 6, 8: 10, 16: 18}
MFMA_C_WAR = {2: 1, 4: 3, 8: 7, 16: 15}


def required(p, c):
    need = 0
    if p.kind == "valu":
        pw = vg(p.wr)
        if pw:
            if c.kind == "mfma" and pw & vg(c.rd):
                need = max(need, 2)
            if c.kind == "valu":
                base = c.mn.replace("_e32", "").replace("_e64", "")
                if (base.startswith("v_readlane") or base.startswith("v_readfirstlane")) and pw & vg(c.rd):
                    need = max(need, 1)
                if c.is_dpp and pw & vg(c.rd):
                    need = max(need, 2)
                if base.startswith("v_permlane") and pw & vg(c.rd):
                    need = max(need, 2)
                if p.is_trans() and not c.is_trans() and pw & vg(c.rd):
                    need = max(need, 1)
            if p.is_trans() and c.kind in ("ds", "vmem") and pw & vg(c.rd):
                need = max(need, 1)
        ps = sg(p.wr)
        if ps:
            if c.kind == "vmem" and ps & sg(c.rd):
                need = max(need, 5)
            if c.kind == "valu" and ps & sg(c.rd):
                base = c.mn
                need = max(need, 4 if ("readlane" in base or "writelane" in base) else 2)
            if c.kind in ("salu", "branch", "smem", "jump") and (ps & sg(c.rd)):
                need = max(need, 1)
            if c.kind == "branch" and c.mn in ("s_cbranch_vccz", "s_cbranch_vccnz") and ("s", "vcc_lo") in ps:
                need = max(need, 5)
    if p.kind == "mfma":
        d = vg(p.wr)
        if c.kind == "mfma":
            if d & vg(c.ab_rd):
                need = max(need, MFMA_RAW[p.passes])
            oc = d & vg(c.c_rd)
            if oc:
                if not (vg(c.c_rd) == d and c.passes == p.passes):
                    need = max(need, MFMA_C_OVERLAP[p.passes])
            elif d & vg(c.wr):
                need = max(need, MFMA_C_OVERLAP[p.passes])
        elif c.kind in ("valu", "ds", "vmem"):
            if d & (vg(c.rd) | vg(c.wr)):
                need = max(need, MFMA_RAW[p.passes])
        if c.kind == "valu" and vg(p.c_rd) & vg(c.wr):
            need = max(need, MFMA_C_WAR[p.passes])
    if p.kind == "vmem" and p.store_data:
        if c.kind == "valu" and p.store_data & vg(c.wr):
            need = max(need, 2)
        elif c.kind in ("ds", "vmem", "mfma") and p.store_data & vg(c.wr):
            need = max(need, 1)
    if p.kind == "salu" and ("s", "m0") in p.wr:
        if c.kind == "vmem" and c.lds_dma:
            need = max(need, 1)
    return need


MAXDIST = 21


class Prog:
    def __init__(self):
        self.items = []

    def __call__(self, text):
        for line in text.split("\n"):
            line = line.strip()
            if not line:
                continue
            if line.startswith(";"):
                self.items.append(("raw", line))
            elif line.endswith(":"):
                self.items.append(("label", line[:-1]))
            elif line.startswith("."):
                self.items.append(("raw", line))
            else:
                self.items.append(Ins(line))

    def label(self, name):
        self.items.append(("label", name))

    def comment(self, text):
        self.items.append(("raw", "; " + text))

    def fix_hazards(self, verbose=False):
        inserted = 0
        for _ in range(10000):
            v = self._find_violation()
            if v is None:
                break
            idx, deficit, p, c = v
            if verbose:
                print(f"hazard: [{p.text}] -> [{c.text}] pad {deficit}")
            while deficit > 0:
                n = min(deficit, 16)
                self.items.insert(idx, Ins(f"s_nop {n-1}"))
                deficit -= n
                inserted += 1
        else:
            raise RuntimeError("hazard pass did not converge")
        return inserted

    def _find_violation(self):
        items = self.items
        labels = {it[1]: i for i, it in enumerate(items) if isinstance(it, tuple) and it[0] == "label"}
        start = getattr(self, "_resume", 0)
        for i in range(start, len(items)):
            p = items[i]
            if not isinstance(p, Ins) or p.kind in ("misc", "branch", "smem", "jump"):
                continue
            if p.kind == "salu" and ("s", "m0") not in p.wr:
                continue
            if p.kind == "ds":
                continue
            if p.kind == "vmem" and not p.store_data:
                continue
            stack = [(i + 1, 0)]
            seen = {}
            while stack:
                j, dist = stack.pop()
                while j < len(items) and dist < MAXDIST:
                    if seen.get(j, 99) <= dist:
                        break
                    seen[j] = dist
                    it = items[j]
                    if not isinstance(it, Ins):
                        j += 1
                        continue
                    need = required(p, it)
                    if need > dist:
                        self._resume = max(0, i - 30)
                        return j, need - dist, p, it
                    if it.mn == "s_endpgm" or it.kind == "jump":
                        break
                    dist += it.states()
                    if it.kind == "branch":
                        if it.target in labels:
                            stack.append((labels[it.target], dist))
                        if it.mn == "s_branch":
                            break
                    j += 1
        self._resume = 0
        return None

    def text(self):
        out = []
        for it in self.items:
            if isinstance(it, Ins):
                out.append("    " + it.text + ((" ;" + it.comment) if it.comment else ""))
            elif it[0] == "label":
                out.append(it[1] + ":")
            else:
                out.append(it[1])
        return "\n".join(out) + "\n"

    def count(self):
        return sum(isinstance(it, Ins) for it in self.items)


class VMQ:
    def __init__(self):
        self.alts = [[]]

    def push(self, tag, n=1):
        for a in self.alts:
            a.extend([tag] * n)

    def wait_n(self, tags):
        if isinstance(tags, str):
            tags = (tags,)
        best = None
        for a in self.alts:
            last = max((i for i, t in enumerate(a) if t in tags), default=-1)
            n = len(a) - 1 - last if last >= 0 else None
            if n is not None:
                best = n if best is None else min(best, n)
        return best

    def retire(self, n):
        for k, a in enumerate(self.alts):
            if len(a) > n:
                self.alts[k] = a[len(a) - n:] if n > 0 else []

    def wait(self, prog, tags):
        n = self.wait_n(tags)
        if n is None:
            return
        n = min(n, 63)
        prog(f"s_waitcnt vmcnt({n})")
        self.retire(n)

    def dedup(self):
        seen = []
        for x in self.alts:
            if x not in seen:
                seen.append(x)
        self.alts = seen

    def fork(self):
        import copy
        return copy.deepcopy(self)

    @staticmethod
    def join(qs):
        q = VMQ()
        q.alts = [list(a) for x in qs for a in x.alts]
        return q
```

```python
import sys, os
sys.path.insert(0, os.path.dirname(os.path.abspath(__file__)))
from asmlib import Prog, VMQ

NAME = "gated_mix__mha_block__glu_gated_reglu__prompt"

WS_CNT = 0x0
WS_NRMQ = 0x4000
WS_NRMK = 0x6000
WS_LG = 0x10000
WS_QF = 0x100000
WS_KF = 0x300000
WS_VF = 0x500000
WS_OF = 0x700000
WS_HF = 0x900000
WS_SIZE = 0x1000000
OOB = 0x7FFF0000
F1, F2, F3 = 0, 16, 32

CSCALE = 0.25 * 1.4426950408889634
import struct
def f2u(x): return struct.unpack("<I", struct.pack("<f", x))[0]

sX, sWQKV, sWO, sWG, sWU, sWD, sGW, sOUT, sDBG, sWS = 4, 6, 8, 12, 14, 16, 18, 20, 22, 24
SRD_X, SRD_WS, SRD_G, SRD_DBG, SRD_T, SRD_W1, SRD_U = 28, 32, 36, 40, 44, 96, 4
SRD_W2 = SRD_G
sD1, sD2, sM0K, sM0X, sD0, sM0P, sCB2 = 0, 1, 3, 10, 11, 26, 27
sM0X2 = 26
sW, sRB, sAB, sRT, sCH, sTILE, sXCD, sSLOT = 48, 49, 50, 51, 52, 53, 54, 55
sT0, sT1, sT2, sT3, sT4, sT5 = 56, 57, 58, 59, 60, 61
sADV = 62
sH, sQC = 63, 64
sCS = 65
sPOLL = 66
sTYP = 67
sHFB = 68
sW1OFF, sKVB = 100, 101
sQB, sLGO, sHB1 = 18, 19, 22
sTYPC, sHLD, sLGL = 23, 24, 25
sA0, sA1, sA2, sA3 = 56, 57, 58, 59
sI, sMODE, sT32, sRT64, sCB, sKQ, sTR = 60, 61, 62, 67, 68, 10, 11

def srd(p, dst, ptr, size):
    p(f"s_mov_b32 s{dst}, s{ptr}")
    p(f"s_mov_b32 s{dst+1}, s{ptr+1}")
    p(f"s_mov_b32 s{dst+2}, {size:#x}")
    p(f"s_mov_b32 s{dst+3}, 0x20000")

def S4(r): return f"s[{r}:{r+3}]"
def V4(r): return f"v[{r}:{r+3}]"
def V2(r): return f"v[{r}:{r+1}]"
def V16(r): return f"v[{r}:{r+15}]"

def mfma(p, d, a, b, c):
    cs = "0" if c is None else V16(c)
    p(f"v_mfma_f32_32x32x16_bf16 {V16(d)}, {V4(a)}, {V4(b)}, {cs}")

_uid = [0]
def uid():
    _uid[0] += 1
    return _uid[0]

def poll(p, q, vflag, vaddr, srd_reg, target, what):
    n = uid()
    p(f"v_readfirstlane_b32 s{sT0}, v{vflag}")
    p(f"s_cmp_ge_u32 s{sT0}, {target}")
    p(f"s_cbranch_scc1 L_ok{n}")
    p(f"s_mov_b32 s{sPOLL}, 0")
    p(f"L_poll{n}:")
    p(f"buffer_load_dword v{vflag}, v{vaddr}, {S4(srd_reg)}, 0 offen sc1")
    p("s_waitcnt vmcnt(0)")
    p(f"v_readfirstlane_b32 s{sT0}, v{vflag}")
    p(f"s_add_u32 s{sPOLL}, s{sPOLL}, 1")
    p(f"s_cmp_ge_u32 s{sPOLL}, 0x80000")
    p(f"s_cbranch_scc1 L_ok{n}")
    p(f"s_cmp_lt_u32 s{sT0}, {target}")
    p(f"s_cbranch_scc1 L_poll{n}")
    p(f"L_ok{n}:")


class Gen:
    def __init__(self, stop_after=None, opts=None):
        self.p = Prog()
        self.q = VMQ()
        self.stop_after = stop_after
        self.o = opts or {}

    def stamp(self, name):
        if self.o.get("stamps"):
            i = self.o["stampmap"].get(name)
            if i is not None:
                ins = "s_memrealtime" if self.o.get("rt") else "s_memtime"
                self.p(f"{ins} s[{72+2*i}:{73+2*i}] ; stamp {name}")

    def dump_stamps(self):
        if not self.o.get("stamps"):
            return
        p = self.p
        p("s_memrealtime s[70:71]")
        p("s_waitcnt lgkmcnt(0)")
        p(f"s_lshl_b32 s{sT0}, s2, 3")
        p(f"s_add_u32 s{sT0}, s{sT0}, s{sW}")
        p(f"s_lshl_b32 s{sT0}, s{sT0}, 6")
        p(f"s_add_u32 s{sT0}, s{sT0}, 0x80000")
        for i in range(12):
            p(f"v_mov_b32 v{16+i}, s{72+2*i}")
        p("v_mov_b32 v28, s69")
        p("v_mov_b32 v29, s70")
        p("v_mov_b32 v30, 0")
        p("v_mov_b32 v31, 0")
        p("v_mov_b32 v32, 0")
        p("s_mov_b64 exec, 1")
        for i in range(4):
            p(f"buffer_store_dwordx4 {V4(16+4*i)}, v32, {S4(SRD_WS)}, s{sT0} offen offset:{16*i}")
        p("s_mov_b64 exec, -1")

    def prologue(self):
        p = self.p
        p("s_cmp_ge_u32 s2, 256")
        p("s_cbranch_scc1 L_end")
        if self.o.get("stamps"):
            p("s_memrealtime s[70:71]")
        p(f"s_load_dwordx4 s[4:7], s[0:1], 0")
        p(f"s_load_dwordx2 s[8:9], s[0:1], 16")
        p(f"s_load_dwordx4 s[12:15], s[0:1], 32")
        p(f"s_load_dwordx4 s[16:19], s[0:1], 48")
        p(f"s_load_dwordx4 s[20:23], s[0:1], 64")
        p(f"s_load_dwordx2 s[24:25], s[0:1], 80")
        p("v_lshrrev_b32 v1, 6, v0")
        p("v_and_b32 v2, 63, v0            ; v2 = lane")
        p(f"v_readfirstlane_b32 s{sW}, v1")
        p(f"s_and_b32 s{sXCD}, s2, 7")
        p(f"s_lshr_b32 s{sSLOT}, s2, 3")
        p(f"s_and_b32 s{sT0}, s{sXCD}, 1")
        p(f"s_lshl_b32 s{sT0}, s{sT0}, 3")
        p(f"s_and_b32 s{sT1}, s{sSLOT}, 7")
        p(f"s_add_u32 s{sRB}, s{sT0}, s{sT1}")
        p(f"s_lshr_b32 s{sTYP}, s{sSLOT}, 4")
        p(f"s_and_b32 s{sT0}, s{sXCD}, 6              ; 2*(xcd>>1)")
        p(f"s_bfe_u32 s{sT1}, s{sSLOT}, 0x10003       ; (slot>>3)&1")
        p(f"s_add_u32 s{sAB}, s{sT0}, s{sT1}          ; a / b = 0..7")
        p(f"s_and_b32 s{sRT}, s{sW}, 3")
        p(f"s_lshr_b32 s{sCH}, s{sW}, 2")
        p(f"s_lshl_b32 s{sT0}, s{sRB}, 2")
        p(f"s_add_u32 s{sTILE}, s{sT0}, s{sRT}")
        p(f"s_lshl_b32 s{sT0}, s{sXCD}, 2")
        p(f"s_and_b32 s{sT1}, s{sSLOT}, 3")
        p(f"s_add_u32 s{sH}, s{sT0}, s{sT1}           ; attention head")
        p(f"s_lshr_b32 s{sQC}, s{sSLOT}, 2           ; attention q chunk")
        p(f"s_mov_b32 s{sCS}, {f2u(CSCALE):#x}")
        if self.o.get("twice"):
            p("s_waitcnt lgkmcnt(0)")
            p("s_mov_b32 s0, 0")
            p("s_waitcnt lgkmcnt(0)")
            p("L_restart:")
        self.p1_setup_early()
        p("s_waitcnt lgkmcnt(0)")
        if self.o.get("stamps"):
            p("s_mov_b32 s69, s70")
            for i in range(12):
                p(f"s_mov_b32 s{72+2*i}, 0")
        self.stamp("start")
        srd(p, SRD_X, sX, 2048 * 1024)
        self.p1_setup_srd()

    vLANE = 2
    vXD = (3, 4)
    vW1 = (5, 6, 7)
    vW2 = (8, 9)
    vB = (10, 11, 12)
    vL16 = 13
    vP = (14, 15)
    WB = (16, 28)
    vXR = (40, 41, 42, 43)
    vFLAG, vFADDR, vONE, vDBGA = 44, 45, 46, 47
    TMP = 48
    ACC = 64
    TMP2 = 112
    X = 128
    SLOT1 = 40960
    AREA2 = {8: 0, 9: 16384, 10: 40960, 11: 57344, 12: 98304, 13: 81920, 14: 131072, 15: 147456}
    KVAREA = {16+j: 32768 + 16384*j for j in range(4)}
    KVAREA.update({20+j: 98304 + 16384*j for j in range(4)})
    ONES = 0

    def area(self, g):
        if g < 8:
            return self.SLOT1 * (g % 4)
        if g < 16:
            return self.AREA2[g]
        return self.KVAREA[g]

    def window(self, g):
        if g < 8:
            return 81920 if (g % 4) >= 2 else 0
        return 131072 if self.AREA2[g] >= 131072 else 81920 if self.AREA2[g] >= 81920 else 0

    def p1_setup_early(self):
        p = self.p
        L = self.vLANE
        t0, t1, t2, t3 = 48, 49, 50, 51
        p(f"v_lshlrev_b32 v{self.vL16}, 4, v{L}")
        p(f"s_lshl_b32 s{sT0}, s{sRB}, 7")
        p(f"s_lshl_b32 s{sT1}, s{sW}, 4")
        p(f"s_add_u32 s{sT0}, s{sT0}, s{sT1}")
        p(f"v_lshrrev_b32 v{t1}, 3, v{L}             ; l>>3")
        p(f"v_add_u32 v{t2}, s{sT0}, v{t1}           ; row (e=0)")
        p(f"v_lshrrev_b32 v{t0}, 4, v{L}")
        p(f"v_and_b32 v{t3}, 7, v{L}                 ; l&7")
        p(f"v_xor_b32 v{t0}, v{t0}, v{t3}            ; piece (e=0)")
        p(f"v_lshlrev_b32 v{t0}, 4, v{t0}")
        p(f"v_lshl_add_u32 v{self.vXD[0]}, v{t2}, 10, v{t0}")
        p(f"v_xor_b32 v{t0}, 64, v{self.vXD[0]}        ; piece ^ 4")
        p(f"v_add_u32 v{self.vXD[1]}, 8192, v{t0}      ; +8 rows")
        p(f"v_bfe_u32 v{t0}, v{L}, 4, 1")
        p(f"v_lshlrev_b32 v{t0}, 2, v{t0}")
        p(f"v_xor_b32 v{t3}, v{t3}, v{t0}")
        p(f"v_lshlrev_b32 v{t3}, 4, v{t3}")
        p(f"s_lshl_b32 s{sT0}, s{sW}, 3")
        p(f"v_add_u32 v{t1}, s{sT0}, v{t1}           ; 8w + (l>>3)")
        p(f"s_mul_i32 s{sT0}, s{sAB}, 320")
        p(f"s_add_u32 s{sT0}, s{sT0}, 1024")
        p(f"s_and_b32 s{sT1}, s{sAB}, 1")
        p(f"s_mul_i32 s{sT2}, s{sT1}, 192")
        p(f"s_add_u32 s{sCB2}, s{sT0}, s{sT2}")
        p(f"s_xor_b32 s{sT1}, s{sT1}, 1")
        p(f"s_lshl_b32 s{sT1}, s{sT1}, 7")
        p(f"s_add_u32 s{sT4}, s{sT0}, s{sT1}")
        p(f"s_lshl_b32 s{sT0}, s{sAB}, 7")
        p(f"s_cmp_eq_u32 s{sTYP}, 0")
        p(f"s_cselect_b32 s{sCB2}, s{sT0}, s{sCB2}")
        p(f"v_mul_u32_u24 v{t0}, 3584, v{t1}")
        p(f"v_add3_u32 v{self.vW2[0]}, v{t0}, v{t3}, s{sCB2}")
        p(f"v_xor_b32 v{t2}, 32, v{t3}")
        p(f"v_add3_u32 v{self.vW2[1]}, v{t0}, v{t2}, s{sCB2}")
        p(f"s_cbranch_scc0 L_setupB")
        p(f"v_mul_u32_u24 v{t0}, 3072, v{t1}")
        p(f"v_add3_u32 v{self.vW1[0]}, v{t0}, v{t3}, s{sT0}")
        p(f"v_add3_u32 v{t2}, v{t0}, v{t2}, s{sT0}")
        p(f"v_add_u32 v{self.vW1[1]}, 1024, v{t2}")
        p(f"v_add_u32 v{self.vW1[2]}, 2048, v{self.vW1[0]}")
        p(f"s_lshl_b32 s{sD0}, s{sW}, 10")
        p(f"s_add_u32 s{sD0}, s{sD0}, 16384")
        p(f"s_movk_i32 s{sT5}, 8192")
        p(f"s_mov_b32 s{sADV}, {64*3072}")
        p("s_branch L_setupJ")
        p("L_setupB:")
        p(f"s_and_b32 s{sT0}, s{sW}, 3")
        p(f"s_lshl_b32 s{sT1}, s{sT0}, 4             ; 16*wq")
        p(f"s_mov_b32 s{sT2}, 43691")
        p(f"s_lshl_b32 s{sT3}, s{sCH}, 1")
        for e in range(3):
            r = self.vW1[e]
            p(f"v_add_u32 v{t0}, {64*e}, v{L}           ; j")
            p(f"v_mul_u32_u24 v{t1}, s{sT2}, v{t0}")
            p(f"v_lshrrev_b32 v{t1}, 19, v{t1}          ; j/12")
            p(f"v_mul_u32_u24 v{t2}, 12, v{t1}")
            p(f"v_sub_u32 v{t2}, v{t0}, v{t2}           ; j%12")
            p(f"v_xor_b32 v{t2}, s{sT3}, v{t2}")
            p(f"v_add_u32 v{t1}, s{sT1}, v{t1}")
            p(f"v_mul_u32_u24 v{t1}, 3584, v{t1}")
            p(f"v_lshl_add_u32 v{t1}, v{t2}, 4, v{t1}")
            p(f"v_add_u32 v{r}, s{sT4}, v{t1}")
        p(f"s_mul_i32 s{sD0}, s{sT0}, 3072")
        p(f"s_mul_i32 s{sT1}, s{sCH}, 12288")
        p(f"s_add_u32 s{sD0}, s{sD0}, s{sT1}")
        p(f"s_add_u32 s{sD0}, s{sD0}, 16384")
        p(f"s_movk_i32 s{sT5}, 1024")
        p(f"s_mov_b32 s{sADV}, {64*3584}")
        p(f"s_lshr_b32 s{sHFB}, s{sT4}, 5")
        p("L_setupJ:")
        p(f"s_lshl_b32 s{sM0X}, s{sW}, 11")
        p(f"s_lshl_b32 s{sM0K}, s{sW}, 12")
        p(f"s_lshl_b32 s{sM0P}, s{sW}, 10")
        p(f"s_mov_b32 s{sW1OFF}, 0")

    def p1_setup_srd(self):
        p = self.p
        p(f"s_add_u32 s{sD1}, s{sD0}, s{sT5}")
        p(f"s_add_u32 s{sD2}, s{sD1}, s{sT5}")
        p(f"s_cmp_eq_u32 s{sCH}, 0")
        p(f"s_cselect_b32 s{SRD_W1}, s{sWG}, s{sWU}")
        p(f"s_cselect_b32 s{SRD_W1+1}, s{sWG+1}, s{sWU+1}")
        p(f"s_mov_b32 s{SRD_W1+2}, {512*3584:#x}")
        p(f"s_cmp_eq_u32 s{sTYP}, 0")
        p(f"s_cselect_b32 s{SRD_W1}, s{sWQKV}, s{SRD_W1}")
        p(f"s_cselect_b32 s{SRD_W1+1}, s{sWQKV+1}, s{SRD_W1+1}")
        p(f"s_cselect_b32 s{SRD_W1+2}, {512*3072:#x}, s{SRD_W1+2}")
        p(f"s_mov_b32 s{SRD_W1+3}, 0x20000")

    def p1_setup_late(self):
        p, q = self.p, self.q
        L = self.vLANE
        t0, t1, t2, t3 = 48, 49, 50, 51
        srd(p, SRD_G, sWG, 512 * 3584)
        srd(p, SRD_U, sWU, 512 * 3584)
        srd(p, SRD_T, sGW, 1024)
        p(f"s_lshl_b32 s{sT0}, s{sTYP}, 3")
        p(f"s_add_u32 s{sT0}, s{sT0}, s{sAB}")
        p(f"s_lshl_b32 s{sT1}, s{sT0}, 6            ; *64 bytes")
        p(f"v_lshrrev_b32 v{t0}, 5, v{L}             ; hh")
        p(f"v_lshlrev_b32 v{t0}, 4, v{t0}            ; hh*16")
        p(f"v_add_u32 v{t0}, s{sT1}, v{t0}")
        p(f"buffer_load_dwordx4 {V4(112)}, v{t0}, {S4(SRD_T)}, 0 offen")
        p(f"buffer_load_dwordx4 {V4(116)}, v{t0}, {S4(SRD_T)}, 0 offen offset:32")
        q.push("lgld", 2)
        rowl, sig, grp = 52, 53, 54
        p(f"v_lshrrev_b32 v{t0}, 5, v{L}")
        p(f"v_lshlrev_b32 v{t0}, 3, v{t0}")
        p(f"v_bfe_u32 v{t1}, v{L}, 2, 2")
        p(f"v_add_u32 v{rowl}, v{t0}, v{t1}")
        p(f"v_and_b32 v{t0}, 1, v{L}")
        p(f"v_lshlrev_b32 v{t0}, 4, v{t0}            ; (g&1)*16")
        p(f"v_bfe_u32 v{t1}, v{L}, 1, 1")
        p(f"v_lshl_add_u32 v{sig}, v{t1}, 3, v{t0}    ; 8*sigma")
        p(f"v_bfe_u32 v{grp}, v{L}, 4, 1")
        p(f"v_bfe_u32 v{t0}, v{L}, 3, 1")
        p(f"v_xor_b32 v{t0}, s{sCH}, v{t0}")
        p(f"v_lshlrev_b32 v{t0}, 6, v{t0}")
        p(f"v_lshl_add_u32 v{t0}, v{rowl}, 7, v{t0}")
        p(f"v_add_u32 v{t0}, v{t0}, v{sig}            ; c128")
        p(f"v_mul_u32_u24 v{t1}, {8192+32}, v{grp}")
        p(f"v_add_u32 v{self.vP[0]}, v{t0}, v{t1}")
        p(f"v_xor_b32 v{self.vP[1]}, 32, v{self.vP[0]}")
        p(f"s_cmp_eq_u32 s{sTYP}, 0")
        p(f"s_cbranch_scc0 L_lateB")
        p(f"v_add_u32 v{self.vB[0]}, 16384, v{self.vP[0]}")
        p(f"v_add_u32 v{self.vB[1]}, 16384, v{self.vP[1]}")
        p(f"v_lshl_add_u32 v{t1}, v{grp}, 5, v{t0}")
        p(f"v_add_u32 v{self.vB[2]}, 32768, v{t1}")
        p("s_branch L_lateJ")
        p("L_lateB:")
        p(f"s_mul_i32 s{sT0}, s{sCH}, 96")
        p(f"s_add_u32 s{sT0}, s{sT0}, 16384")
        p(f"v_mul_u32_u24 v{t1}, 192, v{rowl}")
        p(f"v_add3_u32 v{t1}, v{t1}, v{sig}, s{sT0}")
        p(f"s_lshl_b32 s{sT1}, s{sCH}, 6")
        p(f"s_sub_u32 s{sT1}, {12288+32}, s{sT1}")
        p(f"s_sub_u32 s{sT2}, {2*12288}, s{sT1}")
        p(f"v_mul_u32_u24 v{t2}, s{sT1}, v{grp}")
        p(f"v_add_u32 v{self.vB[0]}, v{t1}, v{t2}")
        p(f"v_mul_u32_u24 v{t2}, s{sT2}, v{grp}")
        p(f"v_add_u32 v{self.vB[1]}, v{t1}, v{t2}")
        p(f"v_mov_b32 v{self.vB[2]}, v{self.vB[0]}")
        p("L_lateJ:")
        p(f"v_and_b32 v{t0}, 31, v{L}")
        p(f"s_lshl_b32 s{sT0}, s{sRT}, 5")
        p(f"v_add_u32 v{t1}, s{sT0}, v{t0}")
        p(f"v_lshlrev_b32 v{t1}, 7, v{t1}            ; row*128")
        p(f"v_bfe_u32 v{t0}, v{L}, 1, 3")
        p(f"v_lshrrev_b32 v{t2}, 5, v{L}")
        p(f"v_xor_b32 v{t0}, v{t0}, v{t2}            ; hh ^ f")
        p(f"v_lshl_add_u32 v{t1}, v{t0}, 4, v{t1}")
        for k in range(4):
            p(f"v_xor_b32 v{self.vXR[k]}, {32*k}, v{t1}")
        p(f"v_mov_b32 v{self.vONE}, 1")
        p(f"v_mov_b32 v{self.vDBGA}, 0")
        self.win1 = 0
        self.win2 = 0

    def counter_zero(self):
        p = self.p
        L = self.vLANE
        t0, t1 = 48, 49
        p("s_add_u32 s%d, s2, s%d" % (sT0, sW))
        p(f"s_cmp_eq_u32 s{sT0}, 0")
        p(f"s_cselect_b32 s{sT0}, 0, {OOB:#x}")
        p(f"v_lshlrev_b32 v{t0}, 8, v{L}")
        p(f"v_add_u32 v{t0}, s{sT0}, v{t0}")
        p(f"v_mov_b32 v{t1}, 0")
        p(f"buffer_store_dword v{t1}, v{t0}, {S4(SRD_WS)}, 0 offen sc1")
        self.q.push("cz")

    def counter_flag(self):
        p = self.p
        t0, t1 = 48, 49
        p(f"s_cmp_eq_u32 s2, 0")
        p(f"s_cselect_b32 s{sT0}, 0, {OOB:#x}")
        p(f"v_mov_b32 v{t0}, {OOB:#x}")
        p(f"v_mov_b32 v{t1}, s{sT0}")
        p(f"v_cmp_eq_u32 vcc, 0, v0")
        p(f"v_cndmask_b32 v{t0}, v{t0}, v{t1}, vcc")
        p(f"v_mov_b32 v{t1}, 1")
        p(f"buffer_store_dword v{t1}, v{t0}, {S4(SRD_DBG)}, 0 offen sc1")
        self.q.push("cf")

    def p1_piece(self, g, e):
        p, q = self.p, self.q
        ar = self.area(g)
        if g < 8:
            if e < 2:
                p(f"s_add_u32 m0, s{sM0X}, {ar + 1024*e}")
                p(f"s_movk_i32 s{sT1}, {128*g}")
                p(f"buffer_load_dwordx4 v{self.vXD[e]}, {S4(SRD_X)}, s{sT1} offen lds")
            else:
                d = (sD0, sD1, sD2)[e - 2]
                p(f"s_add_u32 m0, s{d}, {ar}")
                if e == 2 and g > 0:
                    p(f"s_add_u32 s{sW1OFF}, s{sW1OFF}, s{sADV}")
                else:
                    p("s_nop 0")
                p(f"buffer_load_dwordx4 v{self.vW1[e-2]}, {S4(SRD_W1)}, s{sW1OFF} offen lds")
        elif g < 16:
            p(f"s_add_u32 m0, s{sM0P}, {ar + 8192*e}")
            p(f"s_mov_b32 s{sT1}, {229376*(g-8)}")
            p(f"buffer_load_dwordx4 v{self.vW2[e]}, {S4(SRD_G if e == 0 else SRD_U)}, s{sT1} offen lds")
        else:
            j = (g - 16) & 3
            src = (WS_KF if g < 20 else WS_VF) + 16384 * j + 1024 * e
            p(f"s_add_u32 m0, s{sM0X2}, {ar + 1024*e}")
            p(f"s_add_u32 s{sT1}, s{sKVB}, {src:#x}")
            p(f"buffer_load_dwordx4 v{self.avL16}, {S4(SRD_WS)}, s{sT1} offen sc1 lds")
        q.push(f"st{g}")

    def earliest(self, g):
        if g >= 8:
            return {8: 22, 9: 22, 10: 26, 11: 26, 12: 30, 13: 30, 14: 36, 15: 36}[g]
        return 4 * (g - 3) + 2

    def npieces(self, g):
        return 5 if g < 8 else 2

    def emit_pieces(self, step, maxn):
        n = 0
        while self.pending and n < maxn:
            g, e = self.pending[0]
            if g == "aq":
                if step < 58:
                    break
                self.pending.pop(0)
                if self.stop_after != "p1":
                    self.att_loads()
                continue
            if 4 <= g < 16 and step < self.earliest(g):
                break
            if g >= 16 and step < 58:
                break
            if g >= 16 and self.stop_after == "p1":
                self.pending.pop(0)
                continue
            self.pending.pop(0)
            self.p1_piece(g, e)
            n += 1

    def rebase(self, regs, cur, want):
        if want != cur:
            d = want - cur
            for r in regs:
                if d > 0:
                    self.p(f"v_add_u32 v{r}, {d:#x}, v{r}")
                else:
                    self.p(f"v_subrev_u32 v{r}, {-d:#x}, v{r}")
        return want

    def p1_reads(self, ps, s, typ, part=None):
        p = self.p
        g = (s >> 2) + (0 if ps == 1 else 8)
        sp = s & 3
        wb = self.WB[s & 1]
        n = 0
        nt = 3 if ps == 1 else 2
        parts = range(nt) if part is None else [part]
        for t in parts:
            if t >= nt:
                continue
            if ps == 1:
                if t == 0:
                    self.win1 = self.rebase(list(self.vXR) + list(self.vB), self.win1, self.window(g))
                off = self.area(g) - self.win1
                if t == 0:
                    p(f"ds_read_b128 {V4(self.X + 4*s)}, v{self.vXR[sp]} offset:{off}")
                    n += 1
                for j in range(2):
                    if typ == 0:
                        p(f"ds_read_b64_tr_b16 {V2(wb + 4*t + 2*j)}, v{self.vB[t]} offset:{off + (16*sp + 4*j)*128}")
                    else:
                        p(f"ds_read_b64_tr_b16 {V2(wb + 4*t + 2*j)}, v{self.vB[t]} offset:{off + (16*sp + 4*j)*192 + 32*t}")
                    n += 1
            else:
                if t == 0:
                    self.win2 = self.rebase(list(self.vP), self.win2, self.window(g))
                off = self.area(g) - self.win2
                for j in range(2):
                    p(f"ds_read_b64_tr_b16 {V2(wb + 4*t + 2*j)}, v{self.vP[t]} offset:{off + (16*sp + 4*j)*128}")
                    n += 1
        return n

    def p1_midstage(self, g):
        p, q = self.p, self.q
        T = 116
        tags = [f"st{g+1}"] if g + 1 < 16 else []
        if g == 1:
            tags += ["cz"]
        if g == 10:
            tags += ["e1st", "dbg"]
        if g == 14:
            tags += ["f1"]
        self.stamp(f"pre{g}")
        if tags:
            q.wait(p, tags)
        if g == 14:
            poll(p, q, self.vFLAG, self.vFADDR, SRD_WS, 16, "F1")
        self.stamp(f"wait{g}")
        p("s_barrier")
        self.stamp(f"bar{g}")
        if g == 1:
            self.counter_flag()
        if g == 10:
            poll(p, q, self.vFLAG, self.vDBGA, SRD_DBG, 1, "init")
            if self.cur_typ == 0:
                p(f"s_lshl_b32 s{sT0}, s{sAB}, 8")
                p(f"v_mov_b32 v{self.vFADDR}, {OOB:#x}")
                p(f"v_mov_b32 v{T}, s{sT0}")
                p(f"v_cmp_eq_u32 vcc, 0, v0")
                p(f"v_cndmask_b32 v{self.vFADDR}, v{self.vFADDR}, v{T}, vcc")
                p(f"buffer_atomic_add v{self.vONE}, v{self.vFADDR}, {S4(SRD_WS)}, 0 offen sc1")
                q.push("f1add")
        if g == 8:
            p(f"buffer_load_dword v{self.vFLAG}, v{self.vDBGA}, {S4(SRD_DBG)}, 0 offen sc1")
            q.push("dbg")
        if g == 13:
            p(f"v_bfe_u32 v{T+2}, v0, 1, 4")
            p(f"v_and_b32 v{T+2}, 11, v{T+2}")
            p(f"v_cmp_eq_u32 vcc, 0, v{T+2}")
            p(f"v_mov_b32 v{T+1}, 0x3f803f80")
            p(f"v_cndmask_b32 v{T}, 0, v{T+1}, vcc")
            p(f"v_lshlrev_b32 v{T+2}, 3, v0")
            p(f"v_mov_b32 v{T+1}, v{T}")
            p(f"ds_write_b64 v{T+2}, {V2(T)} offset:{self.ONES}")
            self.lg_issue("ones", 1)
            p(f"s_lshr_b32 s{sT0}, s{sH}, 2")
            p(f"s_lshl_b32 s{sT0}, s{sT0}, 8")
            p(f"v_mov_b32 v{self.vFADDR}, s{sT0}")
            p(f"buffer_load_dword v{self.vFLAG}, v{self.vFADDR}, {S4(SRD_WS)}, 0 offen sc1")
            q.push("f1")
            p(f"v_lshlrev_b32 v{self.avL16}, 4, v{self.vLANE}")
            p(f"s_lshl_b32 s{sM0X2}, s{sW}, 11")
            p(f"s_lshl_b32 s{sKVB}, s{sH}, 16")
            p(f"s_add_u32 s{sKVB}, s{sKVB}, s{sM0X2}")
        if g == 14 and not self.o.get("nodma"):
            self.emit_pieces(58, 6)

    def lg_issue(self, tag, n):
        self.lgq += [tag] * n

    def lg_wait(self, tag):
        last = max((i for i, t in enumerate(self.lgq) if t == tag), default=-1)
        if last < 0:
            return
        n = len(self.lgq) - 1 - last
        self.p(f"s_waitcnt lgkmcnt({min(n, 15)})")
        self.lgq = self.lgq[last + 1:]

    def p1_pass(self, ps, typ):
        p, q = self.p, self.q
        nt = 3 if ps == 1 else 2
        acc = [self.ACC + 16*t for t in range(nt)]
        comp = not self.o.get("nocompute")
        for s in range(32):
            gs = s + (0 if ps == 1 else 32)
            g = gs >> 2
            if (s & 3) == 2:
                self.p1_midstage(g)
            nxt = None
            if s < 31:
                nxt = (ps, s + 1)
            elif ps == 1:
                nxt = (2, 0)
            wb = self.WB[s & 1]
            xs = self.X + 4*s
            for t in range(nt):
                c = None if s == 0 else acc[t]
                if comp:
                    self.lg_wait((ps, s, t))
                    if ps == 1 and t == 2 and typ == 0:
                        mfma(p, acc[t], xs, wb + 4*t, c)
                    else:
                        mfma(p, acc[t], wb + 4*t, xs, c)
                    if nxt:
                        n = self.p1_reads(nxt[0], nxt[1], typ, t)
                        self.lg_issue((nxt[0], nxt[1], t), n)
                if not self.o.get("nodma"):
                    if t == 0:
                        self.emit_pieces(gs, 1)
                    elif t == 1 and (ps == 1 or gs >= 58 or gs < 46):
                        self.emit_pieces(gs, 1)
                if ps == 2 and (s, t) in self.deferred:
                    self.deferred.pop((s, t))()

    def p1_first_reads(self, typ):
        self.lgq = []
        for t in range(3):
            n = self.p1_reads(1, 0, typ, t)
            self.lg_issue((1, 0, t), n)

    def store_ws(self, vdata, voff, soff_reg, tag, offset=0):
        o = f" offset:{offset}" if offset else ""
        self.p(f"buffer_store_dwordx4 {V4(vdata)}, v{voff}, {S4(SRD_WS)}, s{soff_reg} offen{o} sc1")
        self.q.push(tag)

    def relu_mul_store(self, a, tmp, unit, tag):
        p = self.p
        for r in range(8):
            p(f"v_max_f32 v{a+r}, 0, v{a+r}")
        for r in range(8):
            p(f"v_mul_f32 v{a+r}, v{a+r}, v{a+8+r}")
        for i in range(4):
            p(f"v_cvt_pk_bf16_f32 v{tmp+i}, v{a+2*i}, v{a+2*i+1}")
        p(f"s_add_u32 s{sT1}, s{sHFB}, {unit * 1024}")
        self.store_ws(tmp, self.vL16, sT1, tag)

    def hf_base(self, unit_reg_expr_lines):
        p = self.p
        for l in unit_reg_expr_lines:
            p(l)
        p(f"s_mul_i32 s{sT1}, s{sTILE}, 112")
        p(f"s_add_u32 s{sHFB}, s{sT0}, s{sT1}")
        p(f"s_lshl_b32 s{sHFB}, s{sHFB}, 10")
        p(f"s_add_u32 s{sHFB}, s{sHFB}, {WS_HF:#x}")

    def p1_logit(self, step):
        p, q = self.p, self.q
        L = self.vLANE
        p(f"s_lshl_b32 s{sT0}, s{sTYP}, 3")
        p(f"s_add_u32 s{sT0}, s{sT0}, s{sAB}          ; j")
        p(f"s_lshl_b32 s{sT1}, s{sT0}, 3")
        p(f"s_set_gpr_idx_on s{sT1}, 0x1")
        for i in range(8):
            p(f"v_mov_b32 v{120+i}, v{self.X+i}")
        p("s_set_gpr_idx_off")
        q.wait(p, "lgld")
        mfma(p, 48, 112, 120, None)
        mfma(p, 48, 116, 124, 48)
        p(f"s_lshl_b32 s{sT1}, s{sT0}, 13")
        p(f"s_add_u32 s{sT1}, s{sT1}, {WS_LG:#x}")
        p(f"s_lshl_b32 s{sT2}, s{sTILE}, 7")
        p(f"s_add_u32 s{sLGO}, s{sT1}, s{sT2}")
        p(f"s_cmp_eq_u32 s{sCH}, 0")
        p(f"s_cselect_b32 s{sT1}, 32, 0")
        p(f"v_lshlrev_b32 v43, 2, v{L}")
        p(f"v_mov_b32 v42, {OOB:#x}")
        p(f"v_cmp_gt_u32 vcc, s{sT1}, v{L}")
        p(f"v_cndmask_b32 v43, v42, v43, vcc")
        def fin():
            p(f"v_mov_b32 v42, v48")
        def f():
            p(f"buffer_store_dword v42, v43, {S4(SRD_WS)}, s{sLGO} offen sc1")
            self.q.push("lgst")
        self.deferred[step] = f
        return fin

    def p1_epi1(self, typ):
        p, q = self.p, self.q
        L = self.vLANE
        self.deferred = {}
        def dstore(step, vdata, voff, const, tag, base, offset=0):
            def f():
                p(f"s_add_u32 s{sT1}, s{base}, {const:#x}")
                self.store_ws(vdata, voff, sT1, tag, offset)
            if step is None:
                self.late_stores.append(f)
            else:
                self.deferred[step] = f
        self.late_stores = []
        lg_fin = self.p1_logit((12, 1))
        if typ == 0:
            A = (self.ACC, self.ACC + 16)
            B = self.ACC + 32
            T = self.TMP
            V = 120
            p(f"s_lshl_b32 s{sT0}, s{sAB}, 2")
            p(f"s_lshl_b32 s{sT1}, s{sCH}, 1")
            p(f"s_add_u32 s{sT0}, s{sT0}, s{sT1}          ; head")
            p(f"s_lshl_b32 s{sT1}, s{sT0}, 6")
            p(f"s_add_u32 s{sT1}, s{sT1}, s{sTILE}        ; h*64+tile")
            p(f"s_lshl_b32 s{sQB}, s{sT1}, 10")
            p(f"s_lshl_b32 s{sT5}, s{sT1}, 2")
            p(f"s_mov_b32 s{sT0}, s{sCS}")
            p(f"s_mov_b32 s{sT1}, s{sCS}")
            for t in range(2):
                for i in range(4):
                    p(f"v_pk_mul_f32 {V2(A[t]+2*i)}, {V2(A[t]+2*i)}, s[{sT0}:{sT1}]")
            lg_fin()
            for t in range(2):
                for i in range(4):
                    p(f"v_cvt_pk_bf16_f32 v{T+8*t+4+i}, v{A[t]+8+2*i}, v{A[t]+8+2*i+1}")
            for i in range(8):
                p(f"v_cvt_pk_bf16_f32 v{V+i}, v{B+2*i}, v{B+2*i+1}")
            for t in range(2):
                for i in range(4):
                    p(f"v_cvt_pk_bf16_f32 v{T+8*t+i}, v{A[t]+2*i}, v{A[t]+2*i+1}")
            a = 40
            p(f"v_bfe_u32 v{a}, v{L}, 4, 1")
            p(f"v_lshlrev_b32 v{a}, 16, v{a}")
            p(f"v_lshrrev_b32 v{a+1}, 5, v{L}")
            p(f"v_lshl_add_u32 v{a}, v{a+1}, 8, v{a}")
            p(f"v_and_b32 v{a+1}, 15, v{L}")
            p(f"v_lshl_add_u32 v{a}, v{a+1}, 4, v{a}")
            dstore((0, 0), T + 4, self.vL16, WS_KF, "e1st", sQB)
            dstore((0, 1), T + 12, self.vL16, WS_KF + 65536, "e1st", sQB)
            dstore((1, 0), V, a, WS_VF, "e1st", sQB)
            dstore((1, 1), V + 4, a, WS_VF, "e1st", sQB, 512)
            dstore((2, 0), T, self.vL16, WS_QF, "e1st", sQB)
            dstore((2, 1), T + 8, self.vL16, WS_QF + 65536, "e1st", sQB)
            N = B
            for t in range(2):
                for h in range(2):
                    r = N + 4*t + 2*h
                    src = A[t] + 8*h
                    p(f"v_pk_mul_f32 {V2(r)}, {V2(src)}, {V2(src)}")
            for i in range(1, 4):
                for t in range(2):
                    for h in range(2):
                        r = N + 4*t + 2*h
                        src = A[t] + 8*h + 2*i
                        p(f"v_pk_fma_f32 {V2(r)}, {V2(src)}, {V2(src)}, {V2(r)}")
            for t in range(2):
                for h in range(2):
                    r = N + 4*t + 2*h
                    p(f"v_add_f32 v{r}, v{r}, v{r+1}")
            for t in range(2):
                p(f"v_permlane32_swap_b32 v{N+4*t}, v{N+4*t+2}")
            for t in range(2):
                p(f"v_add_f32 v{N+4*t}, v{N+4*t}, v{N+4*t+2}")
            na = 104
            p(f"s_add_u32 s{sT0}, s{sT5}, {WS_NRMQ:#x}")
            p(f"s_add_u32 s{sT1}, s{sT5}, {WS_NRMK:#x}")
            p(f"v_mov_b32 v{na}, {OOB:#x}")
            p(f"v_mov_b32 v{na+1}, s{sT0}")
            p(f"v_cmp_eq_u32 vcc, 31, v{L}")
            for sh in (1, 2):
                for t in range(2):
                    p(f"v_max_f32_dpp v{N+4*t}, v{N+4*t}, v{N+4*t} row_shr:{sh} row_mask:0xf bank_mask:0xf")
                if sh == 1:
                    p(f"v_cndmask_b32 v{na}, v{na}, v{na+1}, vcc")
                    p(f"v_mov_b32 v{na+1}, s{sT1}")
                else:
                    p(f"v_cmp_eq_u32 vcc, 63, v{L}")
            for sh in (4, 8):
                for t in range(2):
                    p(f"v_max_f32_dpp v{N+4*t}, v{N+4*t}, v{N+4*t} row_shr:{sh} row_mask:0xf bank_mask:0xf")
                if sh == 4:
                    p(f"v_cndmask_b32 v{na}, v{na}, v{na+1}, vcc")
            for t in range(2):
                p(f"v_max_f32_dpp v{N+4*t}, v{N+4*t}, v{N+4*t} row_bcast:15 row_mask:0xa bank_mask:0xf")
            def nstore(t):
                def f():
                    o = " offset:256" if t else ""
                    p(f"buffer_store_dword v{N+4*t}, v{na}, {S4(SRD_WS)}, 0 offen{o} sc1")
                    q = self.q
                    q.push("e1st")
                return f
            self.deferred[(3, 0)] = nstore(0)
            self.deferred[(3, 1)] = nstore(1)
        else:
            p(f"s_mul_i32 s{sT0}, s{sCH}, 3")
            p(f"s_add_u32 s{sT0}, s{sT0}, s{sHFB}")
            p(f"s_mul_i32 s{sT1}, s{sTILE}, 112")
            p(f"s_add_u32 s{sHB1}, s{sT0}, s{sT1}")
            p(f"s_lshl_b32 s{sHB1}, s{sHB1}, 10")
            for t in range(3):
                a0 = self.ACC + 16*t
                for r in range(8):
                    p(f"v_max_f32 v{a0+r}, 0, v{a0+r}")
                for r in range(8):
                    p(f"v_mul_f32 v{a0+r}, v{a0+r}, v{a0+8+r}")
                if t == 0:
                    lg_fin()
                for i in range(4):
                    p(f"v_cvt_pk_bf16_f32 v{self.TMP+4*t+i}, v{a0+2*i}, v{a0+2*i+1}")
        self.stamp("e1b")

    def p1_epi2(self, typ):
        p = self.p
        p(f"s_lshr_b32 s{sT2}, s{sCB2}, 5")
        p(f"s_lshl_b32 s{sT0}, s{sCH}, 1")
        p(f"s_add_u32 s{sT0}, s{sT0}, s{sT2}")
        p(f"s_mul_i32 s{sT1}, s{sTILE}, 112")
        p(f"s_add_u32 s{sHFB}, s{sT0}, s{sT1}")
        p(f"s_lshl_b32 s{sQB}, s{sHFB}, 10")
        for t in range(2):
            a0 = self.ACC + 16*t
            for r in range(8):
                p(f"v_max_f32 v{a0+r}, 0, v{a0+r}")
            for r in range(8):
                p(f"v_mul_f32 v{a0+r}, v{a0+r}, v{a0+8+r}")
            for i in range(4):
                p(f"v_cvt_pk_bf16_f32 v{128+4*t+i}, v{a0+2*i}, v{a0+2*i+1}")
        if typ == 1:
            for i in range(12):
                p(f"v_mov_b32 v{136+i}, v{self.TMP+i}")

    def late_h_stores(self):
        p = self.p
        for t in range(2):
            p(f"s_add_u32 s{sT1}, s{sQB}, {WS_HF + 1024*t:#x}")
            self.store_ws(128 + 4*t, self.avL16, sT1, "hst")
        n = uid()
        p(f"s_cmp_eq_u32 s{sA3}, 0")
        p(f"s_cbranch_scc1 L_noh_{n}")
        for t in range(3):
            p(f"s_add_u32 s{sT1}, s{sHB1}, {WS_HF + 1024*t:#x}")
            self.store_ws(136 + 4*t, self.avL16, sT1, "hst")
        p(f"L_noh_{n}:")

    def p1(self):
        p, q = self.p, self.q
        self.stamp("predma")
        for g in range(2):
            for e in range(5):
                self.p1_piece(g, e)
        self.stamp("dma0")
        self.pending = [(g, e) for g in list(range(2, 16)) for e in range(self.npieces(g))]
        self.pending += [(16, 0), (16, 1), ("aq", 0), (20, 0), (20, 1), (17, 0), (17, 1), (21, 0), (21, 1)]
        srd(p, SRD_WS, sWS, WS_SIZE)
        srd(p, SRD_DBG, sDBG, 256)
        self.p1_setup_late()
        self.counter_zero()
        self.stamp("setup")
        q.wait(p, ["st0"])
        p("s_barrier")
        self.stamp("st0")
        p(f"s_cmp_eq_u32 s{sTYP}, 0")
        p("s_cbranch_scc0 L_p1_B")
        q0, w0, pend0 = q.fork(), (self.win1, self.win2), list(self.pending)
        ends = []
        for typ in range(2):
            if typ == 1:
                p("L_p1_B:")
                self.q = q0
                self.win1, self.win2 = w0
                self.pending = pend0
            self.cur_typ = typ
            self.p1_first_reads(typ)
            self.p1_pass(1, typ)
            self.stamp("pass1")
            self.p1_epi1(typ)
            self.stamp("epi1")
            self.p1_pass(2, typ)
            assert not self.deferred
            self.stamp("pass2")
            if not self.o.get("nodma"):
                self.emit_pieces(99, 99)
            self.p1_epi2(typ)
            self.stamp("epi2")
            ends.append(self.q)
            if typ == 0:
                p("s_branch L_p1_join")
        p("L_p1_join:")
        self.q = VMQ.join(ends)

    aQ, aK, aV, aS, aP, aO = 4, (8, 12), (16, 24), (32, 48), (64, 72), 80
    avK, avV, avVinc, avL16 = 96, 97, 98, 3
    avT = 100
    HFR = 128
    LGR = 240

    def att_loads(self):
        p, q = self.p, self.q
        L, T = self.vLANE, self.avT
        p(f"s_lshl_b32 s{sA0}, s{sQC}, 3")
        p(f"s_add_u32 s{sA0}, s{sA0}, s{sW}          ; q tile")
        p(f"s_lshl_b32 s{sA1}, s{sH}, 6")
        p(f"s_add_u32 s{sA1}, s{sA1}, s{sA0}         ; h*64+tile")
        p(f"s_lshl_b32 s{sA2}, s{sA1}, 10")
        p(f"s_add_u32 s{sA2}, s{sA2}, {WS_QF:#x}")
        p(f"buffer_load_dwordx4 {V4(self.aQ)}, v{self.vL16}, {S4(SRD_WS)}, s{sA2} offen sc1")
        p(f"s_lshl_b32 s{sA2}, s{sH}, 8")
        p(f"s_add_u32 s{sA2}, s{sA2}, {WS_NRMK:#x}")
        p(f"v_lshlrev_b32 v{T}, 2, v{L}")
        p(f"buffer_load_dword v{T+1}, v{T}, {S4(SRD_WS)}, s{sA2} offen sc1")
        p(f"s_lshl_b32 s{sA2}, s{sA1}, 2")
        p(f"s_add_u32 s{sA2}, s{sA2}, {WS_NRMQ:#x}")
        p(f"v_mov_b32 v{T+3}, 0")
        p(f"buffer_load_dword v{T+2}, v{T+3}, {S4(SRD_WS)}, s{sA2} offen sc1")
        q.push("aq", 3)

    def att_setup(self):
        p, q = self.p, self.q
        L, T = self.vLANE, self.avT
        p(f"v_lshlrev_b32 v{self.avL16}, 4, v{L}")
        p(f"v_add_u32 v{self.avK}, 32768, v{self.avL16}")
        p(f"v_and_b32 v{T+4}, 31, v{L}               ; m")
        p(f"v_lshrrev_b32 v{T+5}, 5, v{L}")
        p(f"v_lshlrev_b32 v{T+5}, 8, v{T+5}")
        p(f"v_and_b32 v{T+6}, 15, v{L}")
        p(f"v_lshl_add_u32 v{T+5}, v{T+6}, 4, v{T+5}")
        p(f"v_add_u32 v{T+5}, 98304, v{T+5}")
        p(f"v_subrev_u32 v{T+6}, 20, v{T+4}")
        p(f"v_mov_b32 v{T+7}, {self.ONES+16}")
        p(f"v_mov_b32 v{T+8}, {self.ONES+80}")
        p(f"v_cmp_gt_u32 vcc, 8, v{T+6}")
        p(f"v_cndmask_b32 v{T+7}, v{T+7}, v{T+8}, vcc")
        p(f"v_and_b32 v{T+6}, 27, v{T+4}")
        p(f"v_subrev_u32 v{T+8}, 16, v{T+7}")
        p(f"v_cmp_eq_u32 vcc, 16, v{T+6}")
        p(f"v_cndmask_b32 v{T+7}, v{T+7}, v{T+8}, vcc")
        p(f"v_cmp_gt_u32 vcc, 16, v{T+4}")
        p(f"v_cndmask_b32 v{self.avV}, v{T+7}, v{T+5}, vcc")
        p(f"v_mov_b32 v{T+7}, 0")
        p(f"v_mov_b32 v{T+8}, 4096")
        p(f"v_cndmask_b32 v{self.avVinc}, v{T+7}, v{T+8}, vcc")
        self.P3COORD = True
        p(f"s_mov_b32 s{sTYPC}, s{sTYP}")
        p(f"s_lshl_b32 s{sRT64}, s{sXCD}, 2")
        p(f"s_and_b32 s{sA0}, s{sSLOT}, 3")
        p(f"s_add_u32 s{sRT64}, s{sRT64}, s{sA0}")
        p(f"s_lshr_b32 s{sCB}, s{sSLOT}, 2")
        p(f"s_lshr_b32 s{sKQ}, s{sW}, 1")
        p(f"s_and_b32 s{sTR}, s{sW}, 1")
        p(f"s_lshl_b32 s{sT32}, s{sRT64}, 1")
        p(f"s_add_u32 s{sT32}, s{sT32}, s{sTR}")
        q.wait(p, ["st16", "st17", "st20", "aq"])
        p("s_barrier")
        self.stamp("kv")
        for sh in (1, 2, 4, 8):
            p(f"v_max_f32_dpp v{T+1}, v{T+1}, v{T+1} row_shr:{sh} row_mask:0xf bank_mask:0xf")
        p(f"v_max_f32_dpp v{T+1}, v{T+1}, v{T+1} row_bcast:15 row_mask:0xa bank_mask:0xf")
        p(f"v_max_f32_dpp v{T+1}, v{T+1}, v{T+1} row_bcast:31 row_mask:0xc bank_mask:0xf")
        p(f"v_readlane_b32 s{sA0}, v{T+1}, 63")
        p(f"v_mul_f32 v{T+2}, s{sA0}, v{T+2}")
        p(f"v_mov_b32 v{T+3}, {f2u(3600.0):#x}")
        p(f"v_cmp_le_f32 vcc, v{T+2}, v{T+3}")
        p(f"s_cmp_eq_u64 vcc, exec")
        p(f"s_cselect_b32 s{sMODE}, 0, 1")
        if self.o.get("force_slow"):
            p(f"s_mov_b32 s{sMODE}, 1")

    def att_tile(self, t, side):
        p = self.p
        tb = t & 3
        Sc, Sn = self.aS[t & 1], self.aS[(t + 1) & 1]
        Kn, Kl = self.aK[(t + 1) & 1], self.aK[t & 1]
        Vc, Vp = self.aV[t & 1], self.aV[(t + 1) & 1]
        Pc, Pp = self.aP[t & 1], self.aP[(t + 1) & 1]
        O, Q = self.aO, self.aQ
        ex = lambda i: p(f"v_exp_f32 v{Sc+i}, v{Sc+i}")
        cv = lambda i: p(f"v_cvt_pk_bf16_f32 v{Pc+i}, v{Sc+2*i}, v{Sc+2*i+1}")
        p("s_waitcnt lgkmcnt(0)")
        if t < 63:
            mfma(p, Sn, Kn, Q, None)
        if t < 62:
            p(f"ds_read_b128 {V4(Kl)}, v{self.avK} offset:{1024*(t+2)}")
        p(f"ds_read_b128 {V4(Vc)}, v{self.avV} offset:{1024*tb}")
        p(f"ds_read_b128 {V4(Vc+4)}, v{self.avV} offset:{1024*tb+512}")
        ex(0); ex(1); ex(2); cv(0); ex(3)
        if t > 0:
            mfma(p, O, Vp, Pp, None if t == 1 else O)
        if side:
            side[0]()
        ex(4); cv(1); ex(5); ex(6); cv(2); ex(7); ex(8); cv(3); ex(9)
        if t > 0:
            mfma(p, O, Vp + 4, Pp + 4, O)
        for f in side[1:]:
            f()
        ex(10); cv(4); ex(11); ex(12); cv(5); ex(13); ex(14); cv(6); ex(15)
        if tb == 3 and t < 63:
            p(f"v_add_u32 v{self.avV}, v{self.avVinc}, v{self.avV}")
        else:
            p("s_nop 0")
        cv(7)

    def side_hstore(self, i):
        p = self.p
        def f():
            if i < 2:
                p(f"s_add_u32 s{sT1}, s{sQB}, {WS_HF + 1024*i:#x}")
                self.store_ws(128 + 4*i, self.avL16, sT1, "hst")
            else:
                n = uid()
                p(f"s_cmp_eq_u32 s{sTYPC}, 0")
                p(f"s_cbranch_scc1 L_noh_{n}")
                p(f"s_add_u32 s{sT1}, s{sHB1}, {WS_HF + 1024*(i-2):#x}")
                qa = self.q.fork()
                self.store_ws(136 + 4*(i-2), self.avL16, sT1, "hst")
                p(f"L_noh_{n}:")
                self.q = VMQ.join([qa, self.q])
                self.q.dedup()
        return f

    def side_kv(self, g, e):
        return lambda: self.p1_piece(g, e)

    def side_warm(self):
        p = self.p
        L, T = self.vLANE, self.avT
        def f():
            srd(p, SRD_T, sWD, 1792 * 1024)
            p(f"s_mul_i32 s{sA0}, s{sSLOT}, 57344")
            p(f"s_mul_i32 s{sA1}, s{sW}, 7168")
            p(f"s_add_u32 s{sA0}, s{sA0}, s{sA1}")
            p(f"v_lshlrev_b32 v{T}, 6, v{L}")
            p(f"buffer_load_dword v{T+3}, v{T}, {S4(SRD_T)}, s{sA0} offen")
            p(f"s_add_u32 s{sA0}, s{sA0}, 3072")
            p(f"buffer_load_dword v{T+4}, v{T}, {S4(SRD_T)}, s{sA0} offen")
            srd(p, SRD_T, sWO, 512 * 1024)
            p(f"s_lshl_b32 s{sA0}, s{sSLOT}, 14")
            p(f"s_lshl_b32 s{sA1}, s{sW}, 11")
            p(f"s_add_u32 s{sA0}, s{sA0}, s{sA1}")
            p(f"v_and_b32 v{T+6}, 31, v{L}")
            p(f"v_lshlrev_b32 v{T+6}, 6, v{T+6}")
            p(f"buffer_load_dword v{T+5}, v{T+6}, {S4(SRD_T)}, s{sA0} offen")
            self.q.push("warm", 3)
        return f

    def side_f2load(self):
        p, T = self.p, self.avT
        def f():
            p(f"s_lshr_b32 s{sA0}, s{sRT64}, 1")
            p(f"s_add_u32 s{sA0}, s{sA0}, {F2}")
            p(f"s_lshl_b32 s{sA0}, s{sA0}, 8")
            p(f"v_mov_b32 v{T}, s{sA0}")
            p(f"buffer_load_dword v{T+1}, v{T}, {S4(SRD_WS)}, 0 offen sc1")
            self.q.push("f2ld")
        return f

    def side_hload(self, j):
        p = self.p
        def f():
            if j == 0:
                p(f"s_mul_i32 s{sHLD}, s{sT32}, 112")
                p(f"s_mul_i32 s{sA1}, s{sKQ}, 28")
                p(f"s_add_u32 s{sHLD}, s{sHLD}, s{sA1}")
                p(f"s_lshl_b32 s{sHLD}, s{sHLD}, 10")
                p(f"s_add_u32 s{sHLD}, s{sHLD}, {WS_HF:#x}")
            o = f" offset:{1024*(j&3)}" if j & 3 else ""
            p(f"buffer_load_dwordx4 {V4(self.HFR + 4*j)}, v{self.avL16}, {S4(SRD_WS)}, s{sHLD} offen{o} sc1")
            self.q.push("hld")
            if (j & 3) == 3:
                p(f"s_add_u32 s{sHLD}, s{sHLD}, 4096")
        return f

    def side_lgload(self, i):
        p, L, T = self.p, self.vLANE, self.avT
        def f():
            if i == 0:
                p(f"v_lshrrev_b32 v{T+7}, 5, v{L}")
                p(f"v_lshlrev_b32 v{T+7}, 16, v{T+7}")
                p(f"v_and_b32 v{T+6}, 31, v{L}")
                p(f"v_lshl_add_u32 v{T+7}, v{T+6}, 2, v{T+7}")
                p(f"s_lshl_b32 s{sLGL}, s{sT32}, 7")
                p(f"s_add_u32 s{sLGL}, s{sLGL}, {WS_LG:#x}")
            p(f"buffer_load_dword v{self.LGR+i}, v{T+7}, {S4(SRD_WS)}, s{sLGL} offen sc1")
            self.q.push("lgl")
            if i < 7:
                p(f"s_add_u32 s{sLGL}, s{sLGL}, 8192")
        return f

    def att_b1(self):
        p, T = self.p, self.avT
        self.q.wait(p, ["hst", "st21", "st18", "lgst"])
        p("s_barrier")
        p(f"s_add_u32 s{sA0}, s{sRB}, {F2}")
        p(f"s_lshl_b32 s{sA0}, s{sA0}, 8")
        p(f"v_mov_b32 v{T+4}, {OOB:#x}")
        p(f"v_mov_b32 v{T+5}, s{sA0}")
        p(f"v_cmp_eq_u32 vcc, 0, v0")
        p(f"v_cndmask_b32 v{T+4}, v{T+4}, v{T+5}, vcc")
        p(f"v_mov_b32 v{T+5}, 1")
        p(f"buffer_atomic_add v{T+5}, v{T+4}, {S4(SRD_WS)}, 0 offen sc1")
        self.q.push("f2add")

    def att_b2(self):
        p, T = self.p, self.avT
        self.q.wait(p, ["st19", "st22", "st23", "f2ld"])
        p("s_waitcnt lgkmcnt(0)")
        p("s_barrier")
        poll(p, self.q, T + 1, T, SRD_WS, 16, "F2")
        self.p3_setup_dma()

    def att_sides(self):
        sd = {t: [] for t in range(64)}
        for i in range(5):
            sd[i].append(self.side_hstore(i))
        order = [(18, 0), (18, 1), (22, 0), (22, 1), (19, 0), (19, 1), (23, 0), (23, 1)]
        for k, (g, e) in enumerate(order):
            sd[5 + k].append(self.side_kv(g, e))
        if self.o.get("warm", 1):
            sd[18].append(self.side_warm())
        sd[28].append(self.side_f2load())
        ops = [(lambda g=g, e=e: self.p3_piece(g, e)) for g in range(2) for e in range(4)]
        ops2 = [self.side_hload(j) for j in range(28)] + [self.side_lgload(i) for i in range(8)]
        seq = []
        while ops or ops2:
            if ops:
                seq.append(ops.pop(0))
            if ops2:
                seq.append(ops2.pop(0))
        t = 32
        n2 = len(seq) - 31
        k = 0
        while k < len(seq):
            sd[t].append(seq[k]); k += 1
            if n2 > 0 and k < len(seq):
                sd[t].append(seq[k]); k += 1; n2 -= 1
            t += 1
        assert t <= 63, t
        return sd

    def att_slow_tile(self):
        p = self.p
        S, P, O, K, V, Q = self.aS[0], self.aP[0], self.aO, self.aK[0], self.aV[0], self.aQ
        T = self.avT
        m_old, m_new, al = T + 8, T + 9, T + 10
        p(f"ds_read_b128 {V4(K)}, v{self.avK}")
        p(f"ds_read_b128 {V4(V)}, v{self.avV}")
        p(f"ds_read_b128 {V4(V+4)}, v{self.avV} offset:512")
        p("s_waitcnt lgkmcnt(0)")
        mfma(p, S, K, Q, None)
        p(f"v_max3_f32 v{m_new}, v{S}, v{S+1}, v{S+2}")
        for r in range(3, 15, 2):
            p(f"v_max3_f32 v{m_new}, v{m_new}, v{S+r}, v{S+r+1}")
        p(f"v_max_f32 v{m_new}, v{m_new}, v{S+15}")
        p(f"v_mov_b32 v{al}, v{m_new}")
        p(f"v_permlane32_swap_b32 v{m_new}, v{al}")
        p(f"v_max3_f32 v{m_new}, v{m_new}, v{al}, v{m_old}")
        p(f"v_sub_f32 v{al}, v{m_old}, v{m_new}")
        p(f"v_exp_f32 v{al}, v{al}")
        p(f"v_mov_b32 v{m_old}, v{m_new}")
        for r in range(16):
            p(f"v_sub_f32 v{S+r}, v{S+r}, v{m_new}")
        for r in range(16):
            p(f"v_exp_f32 v{S+r}, v{S+r}")
        for r in range(16):
            p(f"v_mul_f32 v{O+r}, v{al}, v{O+r}")
        for i in range(8):
            p(f"v_cvt_pk_bf16_f32 v{P+i}, v{S+2*i}, v{S+2*i+1}")
        mfma(p, O, V, P, O)
        mfma(p, O, V + 4, P + 4, O)
        p(f"v_add_u32 v{self.avK}, 1024, v{self.avK}")
        p(f"v_lshrrev_b32 v{al}, 2, v{self.avVinc}")
        p(f"v_add_u32 v{self.avV}, v{al}, v{self.avV}")

    def attention(self):
        p, q = self.p, self.q
        self.att_setup()
        p(f"s_cmp_eq_u32 s{sMODE}, 0")
        p("s_cbranch_scc0 L_att_slow0")
        self.q_slow = self.q.fork()
        p(f"ds_read_b128 {V4(self.aK[0])}, v{self.avK}")
        p(f"ds_read_b128 {V4(self.aK[1])}, v{self.avK} offset:1024")
        p("s_waitcnt lgkmcnt(1)")
        mfma(p, self.aS[0], self.aK[0], self.aQ, None)
        prio = self.o.get("prio", 1)
        if prio:
            p("s_setprio 3")
        sd = self.att_sides()
        for t in range(64):
            if t in (16, 32, 48):
                self.stamp(f"seg{t//16}")
                if prio:
                    p(f"s_setprio {3 - t//16}")
                if t == 16:
                    self.att_b1()
                if t == 32:
                    self.att_b2()
                self.stamp(f"seg{t//16}e")
            self.att_tile(t, [] if self.o.get("noseg") else sd[t])
        p("s_waitcnt lgkmcnt(0)")
        mfma(p, self.aO, self.aV[1], self.aP[1], self.aO)
        mfma(p, self.aO, self.aV[1] + 4, self.aP[1] + 4, self.aO)
        p("L_att_fin:")
        self.stamp("att")
        O, T = self.aO, self.avT
        p(f"v_rcp_f32 v{T}, v{O+8}")
        for r in range(8):
            p(f"v_mul_f32 v{O+r}, v{T}, v{O+r}")
        for i in range(4):
            p(f"v_cvt_pk_bf16_f32 v{T+4+i}, v{O+2*i}, v{O+2*i+1}")
        p(f"s_lshl_b32 s{sA0}, s{sQC}, 3")
        p(f"s_add_u32 s{sA0}, s{sA0}, s{sW}")
        p(f"s_lshl_b32 s{sA0}, s{sA0}, 5")
        p(f"s_add_u32 s{sA0}, s{sA0}, s{sH}")
        p(f"s_lshl_b32 s{sA0}, s{sA0}, 10")
        p(f"s_add_u32 s{sA0}, s{sA0}, {WS_OF:#x}")
        p(f"buffer_store_dwordx4 {V4(T+4)}, v{self.avL16}, {S4(SRD_WS)}, s{sA0} offen sc1")
        self.q = VMQ()
        self.q.push("ost")

    def att_slow_code(self):
        p = self.p
        T = self.avT
        self.q = self.q_slow
        p("L_att_slow0:")
        p(f"v_mov_b32 v{T+8}, 0xff800000")
        for r in range(self.aO, self.aO + 16):
            p(f"v_mov_b32 v{r}, 0")
        sd = self.att_sides()
        def run(n):
            k = uid()
            p(f"s_mov_b32 s{sA3}, 0")
            p(f"L_att_slow_loop{k}:")
            self.att_slow_tile()
            p(f"s_add_u32 s{sA3}, s{sA3}, 1")
            p(f"s_cmp_lt_u32 s{sA3}, {n}")
            p(f"s_cbranch_scc1 L_att_slow_loop{k}")
        for t in range(0, 16):
            for f in sd[t]: f()
        run(16)
        self.att_b1()
        for t in range(16, 32):
            for f in sd[t]: f()
        run(16)
        self.att_b2()
        for t in range(32, 64):
            for f in sd[t]: f()
        run(32)
        p("s_branch L_att_fin")

    pWB = (16, 24)
    pB, pA = 32, 64
    pvD = 112
    pvR = (6, 7, 8, 9)
    pG = 10
    pOF = 128
    pT = 100

    P3SLOT = (1, 3, 0, 2, 4, 1, 3, 0, 2)

    def p3_slot(self, g):
        return 32768 * self.P3SLOT[g]

    def p3_setup_dma(self):
        p = self.p
        L, T = self.vLANE, self.avT
        srd(p, SRD_W2, sWD, 1792 * 1024)
        srd(p, SRD_X, sWO, 512 * 1024)
        p(f"v_bfe_u32 v{T}, v{L}, 4, 1")
        p(f"v_lshlrev_b32 v{T}, 2, v{T}")
        p(f"v_and_b32 v{T+1}, 7, v{L}")
        p(f"v_xor_b32 v{T}, v{T}, v{T+1}")
        p(f"v_lshlrev_b32 v{T}, 4, v{T}")
        p(f"s_lshl_b32 s{sA0}, s{sCB}, 7")
        p(f"v_add_u32 v{T}, s{sA0}, v{T}")
        p(f"v_lshrrev_b32 v{T+1}, 3, v{L}")
        p(f"s_lshl_b32 s{sA1}, s{sTR}, 5")
        p(f"v_add_u32 v{T+1}, s{sA1}, v{T+1}          ; 32*(w&1) + (l>>3)")
        p(f"s_mul_i32 s{sA0}, s{sKQ}, 448")
        p(f"v_add_u32 v{T+2}, s{sA0}, v{T+1}")
        p(f"v_lshl_add_u32 v{self.pvD}, v{T+2}, 10, v{T}")
        p(f"s_lshl_b32 s{sA0}, s{sKQ}, 7")
        p(f"v_add_u32 v{T+2}, s{sA0}, v{T+1}")
        p(f"v_lshl_add_u32 v{self.pvD+1}, v{T+2}, 10, v{T}")

    def p3_piece(self, g, e):
        p, q = self.p, self.q
        sl = self.p3_slot(g)
        if g < 7:
            srd_r, v, row0 = SRD_W2, self.pvD, 64 * g
        else:
            srd_r, v, row0 = SRD_X, self.pvD + 1, 64 * (g - 7)
        p(f"s_add_u32 m0, s{sM0K}, {sl + 1024*e}")
        p(f"s_mov_b32 s{sA1}, {(row0 + 8*e) * 1024}")
        p(f"buffer_load_dwordx4 v{v}, {S4(srd_r)}, s{sA1} offen lds")
        q.push(f"p3s{g}")

    def p3_emit(self, t, maxn):
        n = 0
        while self.pending3 and n < maxn:
            g, e = self.pending3[0]
            if g >= 5 and t < 4 * (g - 4) + 2:
                break
            self.pending3.pop(0)
            self.p3_piece(g, e)
            n += 1

    def p3_reads(self, t, cts=(0, 1)):
        p = self.p
        g, sp = t >> 2, t & 3
        sl = self.p3_slot(g)
        hi = 1 if sl >= 65536 else 0
        off = sl - 65536 * hi
        if sl >= 131072:
            hi, off = 2, sl - 131072
        wb = self.pWB[t & 1]
        for ct in cts:
            base = self.pvR[ct] if hi == 0 else self.pvR[2 + ct] if hi == 1 else self.pT + 8 + ct
            for j in range(2):
                p(f"ds_read_b64_tr_b16 {V2(wb + 4*ct + 2*j)}, v{base} offset:{off + (16*sp + 4*j) * 128}")
        return 2 * len(cts)

    def p3(self):
        p, q = self.p, self.q
        L, T = self.vLANE, self.pT
        p("s_waitcnt vmcnt(1)")
        p("s_barrier")
        self.pending3 = [(g, e) for g in range(2, 9) for e in range(4)]
        self.p3_emit(0, 4)
        p(f"v_lshrrev_b32 v{T}, 5, v{L}")
        p(f"v_lshlrev_b32 v{T}, 3, v{T}")
        p(f"v_bfe_u32 v{T+1}, v{L}, 2, 2")
        p(f"v_add_u32 v{T}, v{T}, v{T+1}             ; row")
        p(f"v_lshlrev_b32 v{T}, 7, v{T}              ; *128")
        p(f"v_and_b32 v{T+1}, 1, v{L}")
        p(f"v_lshlrev_b32 v{T+1}, 2, v{T+1}")
        p(f"v_bfe_u32 v{T+2}, v{L}, 4, 1")
        p(f"v_lshl_add_u32 v{T+1}, v{T+2}, 1, v{T+1}")
        p(f"v_bfe_u32 v{T+2}, v{L}, 1, 1")
        p(f"v_add_u32 v{T+1}, v{T+1}, v{T+2}          ; cg")
        p(f"v_lshl_add_u32 v{T}, v{T+1}, 3, v{T}")
        p(f"s_lshl_b32 s{sA0}, s{sKQ}, 13")
        p(f"v_add_u32 v{T}, s{sA0}, v{T}")
        p(f"v_bfe_u32 v{T+2}, v{L}, 3, 1")
        p(f"v_lshlrev_b32 v{T+2}, 6, v{T+2}           ; 64*b")
        p(f"v_add_u32 v{self.pvR[0]}, v{T}, v{T+2}     ; ct0: 64*b")
        p(f"v_xor_b32 v{T+2}, 64, v{T+2}")
        p(f"v_add_u32 v{self.pvR[1]}, v{T}, v{T+2}     ; ct1: 64*(1-b)")
        for ct in range(2):
            p(f"v_add_u32 v{self.pvR[2+ct]}, 0x10000, v{self.pvR[ct]}")
            p(f"v_add_u32 v{T+8+ct}, 0x20000, v{self.pvR[ct]}")
        G = self.pG
        lg = self.LGR
        for i in range(1, 8):
            p(f"v_add_f32 v{lg}, v{lg}, v{lg+i}")
        p(f"v_mov_b32 v{lg+1}, v{lg}")
        p(f"v_permlane32_swap_b32 v{lg}, v{lg+1}")
        p(f"v_add_f32 v{lg}, v{lg}, v{lg+1}")
        p(f"v_mul_f32 v{lg}, {f2u(-1.4426950408889634):#x}, v{lg}")
        p(f"v_exp_f32 v{lg}, v{lg}")
        p(f"v_add_f32 v{lg}, 1.0, v{lg}")
        p(f"v_rcp_f32 v{G}, v{lg}")
        p(f"s_add_u32 s{sA0}, s{sXCD}, {F3}")
        p(f"s_lshl_b32 s{sA0}, s{sA0}, 8")
        p(f"v_mov_b32 v{T+7}, s{sA0}")
        self.stamp("p3st0")
        self.lgq = []
        for ct in range(2):
            self.lg_issue((0, ct), self.p3_reads(0, (ct,)))
        for t in range(36):
            g = t >> 2
            if (t & 3) == 2:
                tags = [f"p3s{g+1}"] if 1 <= g < 8 else []
                if g == 1:
                    tags.append("ost")
                if g == 5:
                    tags.append("f3ld")
                self.stamp(f"q pre{g}".replace(" ", ""))
                if tags:
                    q.wait(p, tags)
                if g == 5:
                    poll(p, q, T + 6, T + 7, SRD_WS, 32, "F3")
                self.stamp(f"qwait{g}")
                p("s_barrier")
                self.stamp(f"qbar{g}")
                if g == 1:
                    p(f"s_add_u32 s{sA0}, s{sQC}, {F3}")
                    p(f"s_lshl_b32 s{sA0}, s{sA0}, 8")
                    p(f"v_mov_b32 v{T}, {OOB:#x}")
                    p(f"v_mov_b32 v{T+1}, s{sA0}")
                    p(f"v_cmp_eq_u32 vcc, 0, v0")
                    p(f"v_cndmask_b32 v{T}, v{T}, v{T+1}, vcc")
                    p(f"v_mov_b32 v{T+1}, 1")
                    p(f"buffer_atomic_add v{T+1}, v{T}, {S4(SRD_WS)}, 0 offen sc1")
                    q.push("f3add")
                    self.stamp("f3")
                if g == 4:
                    p(f"buffer_load_dword v{T+6}, v{T+7}, {S4(SRD_WS)}, 0 offen sc1")
                    q.push("f3ld")
                if g == 5:
                    p(f"s_lshl_b32 s{sA2}, s{sT32}, 5")
                    p(f"s_lshl_b32 s{sA1}, s{sKQ}, 3")
                    p(f"s_add_u32 s{sA2}, s{sA2}, s{sA1}")
                    p(f"s_lshl_b32 s{sA2}, s{sA2}, 10")
                    p(f"s_add_u32 s{sA2}, s{sA2}, {WS_OF:#x}")
            wb = self.pWB[t & 1]
            if t < 28:
                acc, bfr, first = self.pB, self.HFR + 4*t, t == 0
            else:
                acc, bfr, first = self.pA, self.pOF + 4*(t - 28), t == 28
            if t == 28:
                q.wait(p, "ofr")
            for ct in range(2):
                self.lg_wait((t, ct))
                mfma(p, acc + 16*ct, wb + 4*ct, bfr, None if first else acc + 16*ct)
                if t < 35:
                    self.lg_issue((t + 1, ct), self.p3_reads(t + 1, (ct,)))
                if ct == 0:
                    self.p3_emit(t, 2 if t < 4 else 1)
                    if 22 <= t < 26:
                        for j in (2*(t-22), 2*(t-22)+1):
                            o = f" offset:{1024*(j&3)}" if j & 3 else ""
                            p(f"buffer_load_dwordx4 {V4(self.pOF + 4*j)}, v{self.avL16}, {S4(SRD_WS)}, s{sA2} offen{o} sc1")
                            q.push("ofr")
                            if j == 3:
                                p(f"s_add_u32 s{sA2}, s{sA2}, 4096")
            if t == 27:
                self.stamp("p3a")
        self.stamp("p3b")
        p(f"v_sub_f32 v{G+1}, 1.0, v{G}")
        B, A = self.pB, self.pA
        for r in range(32):
            p(f"v_mul_f32 v{B+r}, v{G+1}, v{B+r}")
        for r in range(32):
            p(f"v_fmac_f32 v{B+r}, v{G}, v{A+r}")
        p(f"v_and_b32 v{T}, 31, v{L}                 ; n")
        p(f"v_and_b32 v{T+1}, 15, v{L}")
        p(f"v_lshrrev_b32 v{T+2}, 5, v{L}")
        p(f"v_lshlrev_b32 v{T+2}, 2, v{T+2}           ; 4hi")
        p(f"v_xor_b32 v{T+1}, v{T+1}, v{T+2}          ; (n&15) ^ 4hi")
        p(f"v_lshlrev_b32 v{T+1}, 4, v{T+1}")
        p(f"v_lshl_add_u32 v{T}, v{T}, 8, v{T+1}")
        p(f"s_lshl_b32 s{sA0}, s{sW}, 13")
        p(f"v_add_u32 v{T}, s{sA0}, v{T}")
        for ct in range(2):
            for qq in range(4):
                c = 8*ct + qq
                p(f"v_xor_b32 v{T+1}, {16*c}, v{T}")
                p(f"ds_write_b128 v{T+1}, {V4(B + 16*ct + 4*qq)}")
        p("s_waitcnt lgkmcnt(0)")
        p("s_barrier")
        p(f"v_lshrrev_b32 v{T}, 3, v{L}")
        p(f"s_lshl_b32 s{sA0}, s{sKQ}, 3")
        p(f"v_add_u32 v{T}, s{sA0}, v{T}             ; rho")
        p(f"v_and_b32 v{T+1}, 7, v{L}")
        p(f"v_lshlrev_b32 v{T+1}, 1, v{T+1}           ; 2*(l&7)")
        p(f"v_and_b32 v{T+2}, 15, v{T}")
        p(f"v_xor_b32 v{T+1}, v{T+1}, v{T+2}")
        p(f"v_lshlrev_b32 v{T+1}, 4, v{T+1}")
        p(f"v_lshl_add_u32 v{T+1}, v{T}, 8, v{T+1}")
        p(f"s_lshl_b32 s{sA0}, s{sTR}, 13")
        p(f"v_add_u32 v{T+1}, s{sA0}, v{T+1}")
        p(f"v_xor_b32 v{T+2}, 16, v{T+1}              ; e=1")
        R = 16
        for k in range(4):
            p(f"ds_read_b128 {V4(R + 8*k)}, v{T+1} offset:{16384*k}")
            p(f"ds_read_b128 {V4(R + 8*k + 4)}, v{T+2} offset:{16384*k}")
        srd(p, SRD_T, sOUT, 2048 * 1024)
        p(f"s_lshl_b32 s{sA0}, s{sT32}, 5")
        p(f"v_add_u32 v{T}, s{sA0}, v{T}")
        p(f"v_and_b32 v{T+3}, 7, v{L}")
        p(f"v_lshlrev_b32 v{T+3}, 4, v{T+3}")
        p(f"v_lshl_add_u32 v{T}, v{T}, 10, v{T+3}")
        p(f"s_lshl_b32 s{sA0}, s{sCB}, 7")
        p(f"v_add_u32 v{T}, s{sA0}, v{T}")
        p("s_waitcnt lgkmcnt(0)")
        for r in range(8):
            p(f"v_add_f32 v{R+r}, v{R+r}, v{R+8+r}")
            p(f"v_add_f32 v{R+16+r}, v{R+16+r}, v{R+24+r}")
        for r in range(8):
            p(f"v_add_f32 v{R+r}, v{R+r}, v{R+16+r}")
        for i in range(4):
            p(f"v_cvt_pk_bf16_f32 v{R+8+i}, v{R+2*i}, v{R+2*i+1}")
        p(f"buffer_store_dwordx4 {V4(R+8)}, v{T}, {S4(SRD_T)}, 0 offen")

    def finish(self):
        p = self.p
        if self.o.get("twice"):
            p("s_waitcnt vmcnt(0) lgkmcnt(0)")
            p("s_barrier")
            p("s_cmp_eq_u32 s0, 0")
            p("s_mov_b32 s0, 1")
            p("s_cbranch_scc1 L_restart")
        p("s_waitcnt vmcnt(0)")
        self.stamp("end")
        self.dump_stamps()
        p("s_waitcnt vmcnt(0)")
        p("L_end:")
        p("s_endpgm")

    def build(self):
        self.prologue()
        self.p1()
        if self.stop_after != "p1":
            self.attention()
            if self.stop_after != "att":
                self.p3()
        self.finish()
        if self.stop_after != "p1":
            self.att_slow_code()
        n = self.p.fix_hazards()
        return self.p.text(), n


HEADER = """; Kernarg layout (88 bytes): A_x, A_wqkv, A_wo, B_x, B_W_gate, B_W_up, B_W_down, gate_w, out, debug, ws
; @launch grid=(256,1,1) block=(512,1,1) lds=163840
.amdgcn_target "amdgcn-amd-amdhsa--gfx950"
.text
.globl {name}_kernel
.p2align 8
.type {name}_kernel,@function
{name}_kernel:
"""
FOOTER = """.section .rodata,"a"
.p2align 6
.amdhsa_kernel {name}_kernel
  .amdhsa_next_free_vgpr 256
  .amdhsa_next_free_sgpr 102
  .amdhsa_accum_offset 256
  .amdhsa_group_segment_fixed_size 0
  .amdhsa_kernarg_size 88
  .amdhsa_user_sgpr_count 2
  .amdhsa_user_sgpr_kernarg_segment_ptr 1
  .amdhsa_system_sgpr_workgroup_id_x 1
  .amdhsa_float_denorm_mode_32 3
.end_amdhsa_kernel
"""

def generate(stop_after=None, opts=None):
    g = Gen(stop_after, opts)
    body, n = g.build()
    return HEADER.format(name=NAME) + body + FOOTER.format(name=NAME), n, g.p.count()

if __name__ == "__main__":
    import argparse
    ap = argparse.ArgumentParser()
    ap.add_argument("--stop", default=None)
    ap.add_argument("-o", default="cdna_kernels/" + NAME + ".s")
    ap.add_argument("--opt", action="append", default=[])
    ap.add_argument("--stamps", default="")
    a = ap.parse_args()
    opts = {}
    for o in a.opt:
        k, _, v = o.partition("=")
        opts[k] = int(v) if v else 1
    names = a.stamps.split(",") if a.stamps else []
    if names:
        opts["stamps"] = 1
        opts["stampmap"] = {"start": 0, "end": 11}
        for i, nm in enumerate(names):
            opts["stampmap"][nm] = i + 1
    txt, n, cnt = generate(a.stop, opts)
    open(a.o, "w").write(txt)
    print(f"wrote {a.o}: {cnt} instructions, {n} nop pads")
```

```python
import sys, os
sys.path.insert(0, os.path.dirname(os.path.abspath(__file__)))
from asmlib import Prog, VMQ

NAME = "gated_mix__mha_block__glu_gated_reglu__prompt"

WS_CNT = 0x0
WS_NRMQ = 0x4000
WS_NRMK = 0x6000
WS_LG = 0x10000
WS_QF = 0x100000
WS_KF = 0x300000
WS_VF = 0x500000
WS_OF = 0x700000
WS_HF = 0x900000
WS_SIZE = 0x1000000
OOB = 0x7FFF0000
F1, F2, F3 = 0, 16, 32

CSCALE = 0.25 * 1.4426950408889634
import struct
def f2u(x): return struct.unpack("<I", struct.pack("<f", x))[0]

sX, sWQKV, sWO, sWG, sWU, sWD, sGW, sOUT, sDBG, sWS = 4, 6, 8, 12, 14, 16, 18, 20, 22, 24
SRD_X, SRD_WS, SRD_G, SRD_DBG, SRD_T, SRD_W1, SRD_U = 28, 32, 36, 40, 44, 96, 4
SRD_W2 = SRD_G
sD1, sD2, sM0K, sM0X, sD0, sM0P, sCB2 = 0, 1, 3, 10, 11, 26, 27
sM0X2 = 26
sW, sRB, sAB, sRT, sCH, sTILE, sXCD, sSLOT = 48, 49, 50, 51, 52, 53, 54, 55
sT0, sT1, sT2, sT3, sT4, sT5 = 56, 57, 58, 59, 60, 61
sADV = 62
sH, sQC = 63, 64
sCS = 65
sPOLL = 66
sTYP = 67
sHFB = 68
sW1OFF, sKVB = 100, 101
sQB, sLGO, sHB1 = 18, 19, 22
sTYPC, sHLD, sLGL = 23, 24, 25
sA0, sA1, sA2, sA3 = 56, 57, 58, 59
sI, sMODE, sT32, sRT64, sCB, sKQ, sTR = 60, 61, 62, 67, 68, 10, 11

def srd(p, dst, ptr, size):
    p(f"s_mov_b32 s{dst}, s{ptr}")
    p(f"s_mov_b32 s{dst+1}, s{ptr+1}")
    p(f"s_mov_b32 s{dst+2}, {size:#x}")
    p(f"s_mov_b32 s{dst+3}, 0x20000")

def S4(r): return f"s[{r}:{r+3}]"
def V4(r): return f"v[{r}:{r+3}]"
def V2(r): return f"v[{r}:{r+1}]"
def V16(r): return f"v[{r}:{r+15}]"

def mfma(p, d, a, b, c):
    cs = "0" if c is None else V16(c)
    p(f"v_mfma_f32_32x32x16_bf16 {V16(d)}, {V4(a)}, {V4(b)}, {cs}")

_uid = [0]
def uid():
    _uid[0] += 1
    return _uid[0]

def poll(p, q, vflag, vaddr, srd_reg, target, what):
    n = uid()
    p(f"v_readfirstlane_b32 s{sT0}, v{vflag}")
    p(f"s_cmp_ge_u32 s{sT0}, {target}")
    p(f"s_cbranch_scc1 L_ok{n}")
    p(f"s_mov_b32 s{sPOLL}, 0")
    p(f"L_poll{n}:")
    p(f"buffer_load_dword v{vflag}, v{vaddr}, {S4(srd_reg)}, 0 offen sc1")
    p("s_waitcnt vmcnt(0)")
    p(f"v_readfirstlane_b32 s{sT0}, v{vflag}")
    p(f"s_add_u32 s{sPOLL}, s{sPOLL}, 1")
    p(f"s_cmp_ge_u32 s{sPOLL}, 0x80000")
    p(f"s_cbranch_scc1 L_ok{n}")
    p(f"s_cmp_lt_u32 s{sT0}, {target}")
    p(f"s_cbranch_scc1 L_poll{n}")
    p(f"L_ok{n}:")


class Gen:
    def __init__(self, stop_after=None, opts=None):
        self.p = Prog()
        self.q = VMQ()
        self.stop_after = stop_after
        self.o = opts or {}

    def stamp(self, name):
        if self.o.get("stamps"):
            i = self.o["stampmap"].get(name)
            if i is not None:
                ins = "s_memrealtime" if self.o.get("rt") else "s_memtime"
                self.p(f"{ins} s[{72+2*i}:{73+2*i}] ; stamp {name}")

    def dump_stamps(self):
        if not self.o.get("stamps"):
            return
        p = self.p
        p("s_memrealtime s[70:71]")
        p("s_waitcnt lgkmcnt(0)")
        p(f"s_lshl_b32 s{sT0}, s2, 3")
        p(f"s_add_u32 s{sT0}, s{sT0}, s{sW}")
        p(f"s_lshl_b32 s{sT0}, s{sT0}, 6")
        p(f"s_add_u32 s{sT0}, s{sT0}, 0x80000")
        for i in range(12):
            p(f"v_mov_b32 v{16+i}, s{72+2*i}")
        p("v_mov_b32 v28, s69")
        p("v_mov_b32 v29, s70")
        p("v_mov_b32 v30, 0")
        p("v_mov_b32 v31, 0")
        p("v_mov_b32 v32, 0")
        p("s_mov_b64 exec, 1")
        for i in range(4):
            p(f"buffer_store_dwordx4 {V4(16+4*i)}, v32, {S4(SRD_WS)}, s{sT0} offen offset:{16*i}")
        p("s_mov_b64 exec, -1")

    def prologue(self):
        p = self.p
        p("s_cmp_ge_u32 s2, 256")
        p("s_cbranch_scc1 L_end")
        if self.o.get("stamps"):
            p("s_memrealtime s[70:71]")
        p(f"s_load_dwordx4 s[4:7], s[0:1], 0")
        p(f"s_load_dwordx2 s[8:9], s[0:1], 16")
        p(f"s_load_dwordx4 s[12:15], s[0:1], 32")
        p(f"s_load_dwordx4 s[16:19], s[0:1], 48")
        p(f"s_load_dwordx4 s[20:23], s[0:1], 64")
        p(f"s_load_dwordx2 s[24:25], s[0:1], 80")
        if self.o.get("pf", 1):
            p("s_getpc_b64 s[26:27]")
            p("L_pfbase:")
            p("s_lshr_b32 s3, s2, 3")
            p("v_lshrrev_b32 v1, 6, v0")
            p("v_lshl_add_u32 v1, s3, 3, v1")
            p("v_and_b32 v2, 3, v0")
            p("v_lshl_add_u32 v1, v1, 2, v2")
            p("v_min_u32 v1, (L_codeend-L_pfbase)/64-1, v1")
            p("v_lshlrev_b32 v1, 6, v1")
            p("global_load_dword v127, v1, s[26:27]")
            self.q.push("pf")
        p("v_lshrrev_b32 v1, 6, v0")
        p("v_and_b32 v2, 63, v0            ; v2 = lane")
        p(f"v_readfirstlane_b32 s{sW}, v1")
        p(f"s_and_b32 s{sXCD}, s2, 7")
        p(f"s_lshr_b32 s{sSLOT}, s2, 3")
        p(f"s_and_b32 s{sT0}, s{sXCD}, 1")
        p(f"s_lshl_b32 s{sT0}, s{sT0}, 3")
        p(f"s_and_b32 s{sT1}, s{sSLOT}, 7")
        p(f"s_add_u32 s{sRB}, s{sT0}, s{sT1}")
        p(f"s_lshr_b32 s{sTYP}, s{sSLOT}, 4")
        p(f"s_and_b32 s{sT0}, s{sXCD}, 6              ; 2*(xcd>>1)")
        p(f"s_bfe_u32 s{sT1}, s{sSLOT}, 0x10003       ; (slot>>3)&1")
        p(f"s_add_u32 s{sAB}, s{sT0}, s{sT1}          ; a / b = 0..7")
        p(f"s_and_b32 s{sRT}, s{sW}, 3")
        p(f"s_lshr_b32 s{sCH}, s{sW}, 2")
        p(f"s_lshl_b32 s{sT0}, s{sRB}, 2")
        p(f"s_add_u32 s{sTILE}, s{sT0}, s{sRT}")
        p(f"s_lshl_b32 s{sT0}, s{sXCD}, 2")
        p(f"s_and_b32 s{sT1}, s{sSLOT}, 3")
        p(f"s_add_u32 s{sH}, s{sT0}, s{sT1}           ; attention head")
        p(f"s_lshr_b32 s{sQC}, s{sSLOT}, 2           ; attention q chunk")
        p(f"s_mov_b32 s{sCS}, {f2u(CSCALE):#x}")
        if self.o.get("twice"):
            p("s_waitcnt lgkmcnt(0)")
            p("s_mov_b32 s0, 0")
            p("s_waitcnt lgkmcnt(0)")
            p("L_restart:")
        self.p1_setup_early()
        p("s_waitcnt lgkmcnt(0)")
        if self.o.get("stamps"):
            p("s_mov_b32 s69, s70")
            for i in range(12):
                p(f"s_mov_b32 s{72+2*i}, 0")
        self.stamp("start")
        srd(p, SRD_X, sX, 2048 * 1024)
        self.p1_setup_srd()

    vLANE = 2
    vXD = (3, 4)
    vW1 = (5, 6, 7)
    vW2 = (8, 9)
    vB = (10, 11, 12)
    vL16 = 13
    vP = (14, 15)
    WB = (16, 28)
    vXR = (40, 41, 42, 43)
    vFLAG, vFADDR, vONE, vDBGA = 44, 45, 46, 47
    TMP = 48
    ACC = 64
    TMP2 = 112
    X = 128
    SLOT1 = 40960
    AREA2 = {8: 0, 9: 16384, 10: 40960, 11: 57344, 12: 98304, 13: 81920, 14: 131072, 15: 147456}
    KVAREA = {16+j: 32768 + 16384*j for j in range(4)}
    KVAREA.update({20+j: 98304 + 16384*j for j in range(4)})
    ONES = 0

    def area(self, g):
        if g < 8:
            return self.SLOT1 * (g % 4)
        if g < 16:
            return self.AREA2[g]
        return self.KVAREA[g]

    def window(self, g):
        if g < 8:
            return 81920 if (g % 4) >= 2 else 0
        return 131072 if self.AREA2[g] >= 131072 else 81920 if self.AREA2[g] >= 81920 else 0

    def p1_setup_early(self):
        p = self.p
        L = self.vLANE
        t0, t1, t2, t3 = 48, 49, 50, 51
        p(f"v_lshlrev_b32 v{self.vL16}, 4, v{L}")
        p(f"s_lshl_b32 s{sT0}, s{sRB}, 7")
        p(f"s_lshl_b32 s{sT1}, s{sW}, 4")
        p(f"s_add_u32 s{sT0}, s{sT0}, s{sT1}")
        p(f"v_lshrrev_b32 v{t1}, 3, v{L}             ; l>>3")
        p(f"v_add_u32 v{t2}, s{sT0}, v{t1}           ; row (e=0)")
        p(f"v_lshrrev_b32 v{t0}, 4, v{L}")
        p(f"v_and_b32 v{t3}, 7, v{L}                 ; l&7")
        p(f"v_xor_b32 v{t0}, v{t0}, v{t3}            ; piece (e=0)")
        p(f"v_lshlrev_b32 v{t0}, 4, v{t0}")
        p(f"v_lshl_add_u32 v{self.vXD[0]}, v{t2}, 10, v{t0}")
        p(f"v_xor_b32 v{t0}, 64, v{self.vXD[0]}        ; piece ^ 4")
        p(f"v_add_u32 v{self.vXD[1]}, 8192, v{t0}      ; +8 rows")
        p(f"v_bfe_u32 v{t0}, v{L}, 4, 1")
        p(f"v_lshlrev_b32 v{t0}, 2, v{t0}")
        p(f"v_xor_b32 v{t3}, v{t3}, v{t0}")
        p(f"v_lshlrev_b32 v{t3}, 4, v{t3}")
        p(f"s_lshl_b32 s{sT0}, s{sW}, 3")
        p(f"v_add_u32 v{t1}, s{sT0}, v{t1}           ; 8w + (l>>3)")
        p(f"s_mul_i32 s{sT0}, s{sAB}, 320")
        p(f"s_add_u32 s{sT0}, s{sT0}, 1024")
        p(f"s_and_b32 s{sT1}, s{sAB}, 1")
        p(f"s_mul_i32 s{sT2}, s{sT1}, 192")
        p(f"s_add_u32 s{sCB2}, s{sT0}, s{sT2}")
        p(f"s_xor_b32 s{sT1}, s{sT1}, 1")
        p(f"s_lshl_b32 s{sT1}, s{sT1}, 7")
        p(f"s_add_u32 s{sT4}, s{sT0}, s{sT1}")
        p(f"s_lshl_b32 s{sT0}, s{sAB}, 7")
        p(f"s_cmp_eq_u32 s{sTYP}, 0")
        p(f"s_cselect_b32 s{sCB2}, s{sT0}, s{sCB2}")
        p(f"v_mul_u32_u24 v{t0}, 3584, v{t1}")
        p(f"v_add3_u32 v{self.vW2[0]}, v{t0}, v{t3}, s{sCB2}")
        p(f"v_xor_b32 v{t2}, 32, v{t3}")
        p(f"v_add3_u32 v{self.vW2[1]}, v{t0}, v{t2}, s{sCB2}")
        p(f"s_cbranch_scc0 L_setupB")
        p(f"v_mul_u32_u24 v{t0}, 3072, v{t1}")
        p(f"v_add3_u32 v{self.vW1[0]}, v{t0}, v{t3}, s{sT0}")
        p(f"v_add3_u32 v{t2}, v{t0}, v{t2}, s{sT0}")
        p(f"v_add_u32 v{self.vW1[1]}, 1024, v{t2}")
        p(f"v_add_u32 v{self.vW1[2]}, 2048, v{self.vW1[0]}")
        p(f"s_lshl_b32 s{sD0}, s{sW}, 10")
        p(f"s_add_u32 s{sD0}, s{sD0}, 16384")
        p(f"s_movk_i32 s{sT5}, 8192")
        p(f"s_mov_b32 s{sADV}, {64*3072}")
        p("s_branch L_setupJ")
        p("L_setupB:")
        p(f"s_and_b32 s{sT0}, s{sW}, 3")
        p(f"s_lshl_b32 s{sT1}, s{sT0}, 4             ; 16*wq")
        p(f"s_mov_b32 s{sT2}, 43691")
        p(f"s_lshl_b32 s{sT3}, s{sCH}, 1")
        for e in range(3):
            r = self.vW1[e]
            p(f"v_add_u32 v{t0}, {64*e}, v{L}           ; j")
            p(f"v_mul_u32_u24 v{t1}, s{sT2}, v{t0}")
            p(f"v_lshrrev_b32 v{t1}, 19, v{t1}          ; j/12")
            p(f"v_mul_u32_u24 v{t2}, 12, v{t1}")
            p(f"v_sub_u32 v{t2}, v{t0}, v{t2}           ; j%12")
            p(f"v_xor_b32 v{t2}, s{sT3}, v{t2}")
            p(f"v_add_u32 v{t1}, s{sT1}, v{t1}")
            p(f"v_mul_u32_u24 v{t1}, 3584, v{t1}")
            p(f"v_lshl_add_u32 v{t1}, v{t2}, 4, v{t1}")
            p(f"v_add_u32 v{r}, s{sT4}, v{t1}")
        p(f"s_mul_i32 s{sD0}, s{sT0}, 3072")
        p(f"s_mul_i32 s{sT1}, s{sCH}, 12288")
        p(f"s_add_u32 s{sD0}, s{sD0}, s{sT1}")
        p(f"s_add_u32 s{sD0}, s{sD0}, 16384")
        p(f"s_movk_i32 s{sT5}, 1024")
        p(f"s_mov_b32 s{sADV}, {64*3584}")
        p(f"s_lshr_b32 s{sHFB}, s{sT4}, 5")
        p("L_setupJ:")
        p(f"s_lshl_b32 s{sM0X}, s{sW}, 11")
        p(f"s_lshl_b32 s{sM0K}, s{sW}, 12")
        p(f"s_lshl_b32 s{sM0P}, s{sW}, 10")
        p(f"s_mov_b32 s{sW1OFF}, 0")

    def p1_setup_srd(self):
        p = self.p
        p(f"s_add_u32 s{sD1}, s{sD0}, s{sT5}")
        p(f"s_add_u32 s{sD2}, s{sD1}, s{sT5}")
        p(f"s_cmp_eq_u32 s{sCH}, 0")
        p(f"s_cselect_b32 s{SRD_W1}, s{sWG}, s{sWU}")
        p(f"s_cselect_b32 s{SRD_W1+1}, s{sWG+1}, s{sWU+1}")
        p(f"s_mov_b32 s{SRD_W1+2}, {512*3584:#x}")
        p(f"s_cmp_eq_u32 s{sTYP}, 0")
        p(f"s_cselect_b32 s{SRD_W1}, s{sWQKV}, s{SRD_W1}")
        p(f"s_cselect_b32 s{SRD_W1+1}, s{sWQKV+1}, s{SRD_W1+1}")
        p(f"s_cselect_b32 s{SRD_W1+2}, {512*3072:#x}, s{SRD_W1+2}")
        p(f"s_mov_b32 s{SRD_W1+3}, 0x20000")

    def p1_setup_late(self):
        p, q = self.p, self.q
        L = self.vLANE
        t0, t1, t2, t3 = 48, 49, 50, 51
        srd(p, SRD_G, sWG, 512 * 3584)
        srd(p, SRD_U, sWU, 512 * 3584)
        srd(p, SRD_T, sGW, 1024)
        p(f"s_lshl_b32 s{sT0}, s{sTYP}, 3")
        p(f"s_add_u32 s{sT0}, s{sT0}, s{sAB}")
        p(f"s_lshl_b32 s{sT1}, s{sT0}, 6            ; *64 bytes")
        p(f"v_lshrrev_b32 v{t0}, 5, v{L}             ; hh")
        p(f"v_lshlrev_b32 v{t0}, 4, v{t0}            ; hh*16")
        p(f"v_add_u32 v{t0}, s{sT1}, v{t0}")
        p(f"buffer_load_dwordx4 {V4(112)}, v{t0}, {S4(SRD_T)}, 0 offen")
        p(f"buffer_load_dwordx4 {V4(116)}, v{t0}, {S4(SRD_T)}, 0 offen offset:32")
        q.push("lgld", 2)
        rowl, sig, grp = 52, 53, 54
        p(f"v_lshrrev_b32 v{t0}, 5, v{L}")
        p(f"v_lshlrev_b32 v{t0}, 3, v{t0}")
        p(f"v_bfe_u32 v{t1}, v{L}, 2, 2")
        p(f"v_add_u32 v{rowl}, v{t0}, v{t1}")
        p(f"v_and_b32 v{t0}, 1, v{L}")
        p(f"v_lshlrev_b32 v{t0}, 4, v{t0}            ; (g&1)*16")
        p(f"v_bfe_u32 v{t1}, v{L}, 1, 1")
        p(f"v_lshl_add_u32 v{sig}, v{t1}, 3, v{t0}    ; 8*sigma")
        p(f"v_bfe_u32 v{grp}, v{L}, 4, 1")
        p(f"v_bfe_u32 v{t0}, v{L}, 3, 1")
        p(f"v_xor_b32 v{t0}, s{sCH}, v{t0}")
        p(f"v_lshlrev_b32 v{t0}, 6, v{t0}")
        p(f"v_lshl_add_u32 v{t0}, v{rowl}, 7, v{t0}")
        p(f"v_add_u32 v{t0}, v{t0}, v{sig}            ; c128")
        p(f"v_mul_u32_u24 v{t1}, {8192+32}, v{grp}")
        p(f"v_add_u32 v{self.vP[0]}, v{t0}, v{t1}")
        p(f"v_xor_b32 v{self.vP[1]}, 32, v{self.vP[0]}")
        p(f"s_cmp_eq_u32 s{sTYP}, 0")
        p(f"s_cbranch_scc0 L_lateB")
        p(f"v_add_u32 v{self.vB[0]}, 16384, v{self.vP[0]}")
        p(f"v_add_u32 v{self.vB[1]}, 16384, v{self.vP[1]}")
        p(f"v_lshl_add_u32 v{t1}, v{grp}, 5, v{t0}")
        p(f"v_add_u32 v{self.vB[2]}, 32768, v{t1}")
        p("s_branch L_lateJ")
        p("L_lateB:")
        p(f"s_mul_i32 s{sT0}, s{sCH}, 96")
        p(f"s_add_u32 s{sT0}, s{sT0}, 16384")
        p(f"v_mul_u32_u24 v{t1}, 192, v{rowl}")
        p(f"v_add3_u32 v{t1}, v{t1}, v{sig}, s{sT0}")
        p(f"s_lshl_b32 s{sT1}, s{sCH}, 6")
        p(f"s_sub_u32 s{sT1}, {12288+32}, s{sT1}")
        p(f"s_sub_u32 s{sT2}, {2*12288}, s{sT1}")
        p(f"v_mul_u32_u24 v{t2}, s{sT1}, v{grp}")
        p(f"v_add_u32 v{self.vB[0]}, v{t1}, v{t2}")
        p(f"v_mul_u32_u24 v{t2}, s{sT2}, v{grp}")
        p(f"v_add_u32 v{self.vB[1]}, v{t1}, v{t2}")
        p(f"v_mov_b32 v{self.vB[2]}, v{self.vB[0]}")
        p("L_lateJ:")
        p(f"v_and_b32 v{t0}, 31, v{L}")
        p(f"s_lshl_b32 s{sT0}, s{sRT}, 5")
        p(f"v_add_u32 v{t1}, s{sT0}, v{t0}")
        p(f"v_lshlrev_b32 v{t1}, 7, v{t1}            ; row*128")
        p(f"v_bfe_u32 v{t0}, v{L}, 1, 3")
        p(f"v_lshrrev_b32 v{t2}, 5, v{L}")
        p(f"v_xor_b32 v{t0}, v{t0}, v{t2}            ; hh ^ f")
        p(f"v_lshl_add_u32 v{t1}, v{t0}, 4, v{t1}")
        for k in range(4):
            p(f"v_xor_b32 v{self.vXR[k]}, {32*k}, v{t1}")
        p(f"v_mov_b32 v{self.vONE}, 1")
        p(f"v_mov_b32 v{self.vDBGA}, 0")
        self.win1 = 0
        self.win2 = 0

    def counter_zero(self):
        p = self.p
        L = self.vLANE
        t0, t1 = 48, 49
        p("s_add_u32 s%d, s2, s%d" % (sT0, sW))
        p(f"s_cmp_eq_u32 s{sT0}, 0")
        p(f"s_cselect_b32 s{sT0}, 0, {OOB:#x}")
        p(f"v_lshlrev_b32 v{t0}, 8, v{L}")
        p(f"v_add_u32 v{t0}, s{sT0}, v{t0}")
        p(f"v_mov_b32 v{t1}, 0")
        p(f"buffer_store_dword v{t1}, v{t0}, {S4(SRD_WS)}, 0 offen sc1")
        self.q.push("cz")

    def counter_flag(self):
        p = self.p
        t0, t1 = 48, 49
        p(f"s_cmp_eq_u32 s2, 0")
        p(f"s_cselect_b32 s{sT0}, 0, {OOB:#x}")
        p(f"v_mov_b32 v{t0}, {OOB:#x}")
        p(f"v_mov_b32 v{t1}, s{sT0}")
        p(f"v_cmp_eq_u32 vcc, 0, v0")
        p(f"v_cndmask_b32 v{t0}, v{t0}, v{t1}, vcc")
        p(f"v_mov_b32 v{t1}, 1")
        p(f"buffer_store_dword v{t1}, v{t0}, {S4(SRD_DBG)}, 0 offen sc1")
        self.q.push("cf")

    def p1_piece(self, g, e):
        p, q = self.p, self.q
        ar = self.area(g)
        if g < 8:
            if e < 2:
                p(f"s_add_u32 m0, s{sM0X}, {ar + 1024*e}")
                p(f"s_movk_i32 s{sT1}, {128*g}")
                p(f"buffer_load_dwordx4 v{self.vXD[e]}, {S4(SRD_X)}, s{sT1} offen lds")
            else:
                d = (sD0, sD1, sD2)[e - 2]
                p(f"s_add_u32 m0, s{d}, {ar}")
                if e == 2 and g > 0:
                    p(f"s_add_u32 s{sW1OFF}, s{sW1OFF}, s{sADV}")
                else:
                    p("s_nop 0")
                p(f"buffer_load_dwordx4 v{self.vW1[e-2]}, {S4(SRD_W1)}, s{sW1OFF} offen lds")
        elif g < 16:
            p(f"s_add_u32 m0, s{sM0P}, {ar + 8192*e}")
            p(f"s_mov_b32 s{sT1}, {229376*(g-8)}")
            p(f"buffer_load_dwordx4 v{self.vW2[e]}, {S4(SRD_G if e == 0 else SRD_U)}, s{sT1} offen lds")
        else:
            j = (g - 16) & 3
            src = (WS_KF if g < 20 else WS_VF) + 16384 * j + 1024 * e
            p(f"s_add_u32 m0, s{sM0X2}, {ar + 1024*e}")
            p(f"s_add_u32 s{sT1}, s{sKVB}, {src:#x}")
            p(f"buffer_load_dwordx4 v{self.avL16}, {S4(SRD_WS)}, s{sT1} offen sc1 lds")
        q.push(f"st{g}")

    def earliest(self, g):
        if g >= 8:
            return {8: 22, 9: 22, 10: 26, 11: 26, 12: 30, 13: 30, 14: 36, 15: 36}[g]
        return 4 * (g - 3) + 2

    def npieces(self, g):
        return 5 if g < 8 else 2

    def emit_pieces(self, step, maxn):
        n = 0
        while self.pending and n < maxn:
            g, e = self.pending[0]
            if g == "aq":
                if step < 58:
                    break
                self.pending.pop(0)
                if self.stop_after != "p1":
                    self.att_loads()
                continue
            if 4 <= g < 16 and step < self.earliest(g):
                break
            if g >= 16 and step < 58:
                break
            if g >= 16 and self.stop_after == "p1":
                self.pending.pop(0)
                continue
            self.pending.pop(0)
            self.p1_piece(g, e)
            n += 1

    def rebase(self, regs, cur, want):
        if want != cur:
            d = want - cur
            for r in regs:
                if d > 0:
                    self.p(f"v_add_u32 v{r}, {d:#x}, v{r}")
                else:
                    self.p(f"v_subrev_u32 v{r}, {-d:#x}, v{r}")
        return want

    def p1_reads(self, ps, s, typ, part=None):
        p = self.p
        g = (s >> 2) + (0 if ps == 1 else 8)
        sp = s & 3
        wb = self.WB[s & 1]
        n = 0
        nt = 3 if ps == 1 else 2
        parts = range(nt) if part is None else [part]
        for t in parts:
            if t >= nt:
                continue
            if ps == 1:
                if t == 0:
                    self.win1 = self.rebase(list(self.vXR) + list(self.vB), self.win1, self.window(g))
                off = self.area(g) - self.win1
                if t == 0:
                    p(f"ds_read_b128 {V4(self.X + 4*s)}, v{self.vXR[sp]} offset:{off}")
                    n += 1
                for j in range(2):
                    if typ == 0:
                        p(f"ds_read_b64_tr_b16 {V2(wb + 4*t + 2*j)}, v{self.vB[t]} offset:{off + (16*sp + 4*j)*128}")
                    else:
                        p(f"ds_read_b64_tr_b16 {V2(wb + 4*t + 2*j)}, v{self.vB[t]} offset:{off + (16*sp + 4*j)*192 + 32*t}")
                    n += 1
            else:
                if t == 0:
                    self.win2 = self.rebase(list(self.vP), self.win2, self.window(g))
                off = self.area(g) - self.win2
                for j in range(2):
                    p(f"ds_read_b64_tr_b16 {V2(wb + 4*t + 2*j)}, v{self.vP[t]} offset:{off + (16*sp + 4*j)*128}")
                    n += 1
        return n

    def p1_midstage(self, g):
        p, q = self.p, self.q
        T = 116
        tags = [f"st{g+1}"] if g + 1 < 16 else []
        if g == 1:
            tags += ["cz"]
        if g == 10:
            tags += ["e1st", "dbg"]
        if g == 14:
            tags += ["f1"]
        self.stamp(f"pre{g}")
        if tags:
            q.wait(p, tags)
        if g == 14:
            poll(p, q, self.vFLAG, self.vFADDR, SRD_WS, 16, "F1")
        self.stamp(f"wait{g}")
        p("s_barrier")
        self.stamp(f"bar{g}")
        if g == 1:
            self.counter_flag()
        if g == 10:
            poll(p, q, self.vFLAG, self.vDBGA, SRD_DBG, 1, "init")
            if self.cur_typ == 0:
                p(f"s_lshl_b32 s{sT0}, s{sAB}, 8")
                p(f"v_mov_b32 v{self.vFADDR}, {OOB:#x}")
                p(f"v_mov_b32 v{T}, s{sT0}")
                p(f"v_cmp_eq_u32 vcc, 0, v0")
                p(f"v_cndmask_b32 v{self.vFADDR}, v{self.vFADDR}, v{T}, vcc")
                p(f"buffer_atomic_add v{self.vONE}, v{self.vFADDR}, {S4(SRD_WS)}, 0 offen sc1")
                q.push("f1add")
        if g == 8:
            p(f"buffer_load_dword v{self.vFLAG}, v{self.vDBGA}, {S4(SRD_DBG)}, 0 offen sc1")
            q.push("dbg")
        if g == 13:
            p(f"v_bfe_u32 v{T+2}, v0, 1, 4")
            p(f"v_and_b32 v{T+2}, 11, v{T+2}")
            p(f"v_cmp_eq_u32 vcc, 0, v{T+2}")
            p(f"v_mov_b32 v{T+1}, 0x3f803f80")
            p(f"v_cndmask_b32 v{T}, 0, v{T+1}, vcc")
            p(f"v_lshlrev_b32 v{T+2}, 3, v0")
            p(f"v_mov_b32 v{T+1}, v{T}")
            p(f"ds_write_b64 v{T+2}, {V2(T)} offset:{self.ONES}")
            self.lg_issue("ones", 1)
            p(f"s_lshr_b32 s{sT0}, s{sH}, 2")
            p(f"s_lshl_b32 s{sT0}, s{sT0}, 8")
            p(f"v_mov_b32 v{self.vFADDR}, s{sT0}")
            p(f"buffer_load_dword v{self.vFLAG}, v{self.vFADDR}, {S4(SRD_WS)}, 0 offen sc1")
            q.push("f1")
            p(f"v_lshlrev_b32 v{self.avL16}, 4, v{self.vLANE}")
            p(f"s_lshl_b32 s{sM0X2}, s{sW}, 11")
            p(f"s_lshl_b32 s{sKVB}, s{sH}, 16")
            p(f"s_add_u32 s{sKVB}, s{sKVB}, s{sM0X2}")
        if g == 14 and not self.o.get("nodma"):
            self.emit_pieces(58, 6)

    def lg_issue(self, tag, n):
        self.lgq += [tag] * n

    def lg_wait(self, tag):
        last = max((i for i, t in enumerate(self.lgq) if t == tag), default=-1)
        if last < 0:
            return
        n = len(self.lgq) - 1 - last
        self.p(f"s_waitcnt lgkmcnt({min(n, 15)})")
        self.lgq = self.lgq[last + 1:]

    def p1_pass(self, ps, typ):
        p, q = self.p, self.q
        nt = 3 if ps == 1 else 2
        acc = [self.ACC + 16*t for t in range(nt)]
        comp = not self.o.get("nocompute")
        for s in range(32):
            gs = s + (0 if ps == 1 else 32)
            g = gs >> 2
            if (s & 3) == 2:
                self.p1_midstage(g)
            nxt = None
            if s < 31:
                nxt = (ps, s + 1)
            elif ps == 1:
                nxt = (2, 0)
            wb = self.WB[s & 1]
            xs = self.X + 4*s
            for t in range(nt):
                c = None if s == 0 else acc[t]
                if comp:
                    self.lg_wait((ps, s, t))
                    if ps == 1 and t == 2 and typ == 0:
                        mfma(p, acc[t], xs, wb + 4*t, c)
                    else:
                        mfma(p, acc[t], wb + 4*t, xs, c)
                    if nxt:
                        n = self.p1_reads(nxt[0], nxt[1], typ, t)
                        self.lg_issue((nxt[0], nxt[1], t), n)
                if not self.o.get("nodma"):
                    if t == 0:
                        self.emit_pieces(gs, 1)
                    elif t == 1 and (ps == 1 or gs >= 58 or gs < 46):
                        self.emit_pieces(gs, 1)
                if ps == 2 and (s, t) in self.deferred:
                    self.deferred.pop((s, t))()

    def p1_first_reads(self, typ):
        self.lgq = []
        for t in range(3):
            n = self.p1_reads(1, 0, typ, t)
            self.lg_issue((1, 0, t), n)

    def store_ws(self, vdata, voff, soff_reg, tag, offset=0):
        o = f" offset:{offset}" if offset else ""
        self.p(f"buffer_store_dwordx4 {V4(vdata)}, v{voff}, {S4(SRD_WS)}, s{soff_reg} offen{o} sc1")
        self.q.push(tag)

    def relu_mul_store(self, a, tmp, unit, tag):
        p = self.p
        for r in range(8):
            p(f"v_max_f32 v{a+r}, 0, v{a+r}")
        for r in range(8):
            p(f"v_mul_f32 v{a+r}, v{a+r}, v{a+8+r}")
        for i in range(4):
            p(f"v_cvt_pk_bf16_f32 v{tmp+i}, v{a+2*i}, v{a+2*i+1}")
        p(f"s_add_u32 s{sT1}, s{sHFB}, {unit * 1024}")
        self.store_ws(tmp, self.vL16, sT1, tag)

    def hf_base(self, unit_reg_expr_lines):
        p = self.p
        for l in unit_reg_expr_lines:
            p(l)
        p(f"s_mul_i32 s{sT1}, s{sTILE}, 112")
        p(f"s_add_u32 s{sHFB}, s{sT0}, s{sT1}")
        p(f"s_lshl_b32 s{sHFB}, s{sHFB}, 10")
        p(f"s_add_u32 s{sHFB}, s{sHFB}, {WS_HF:#x}")

    def p1_logit(self, step):
        p, q = self.p, self.q
        L = self.vLANE
        p(f"s_lshl_b32 s{sT0}, s{sTYP}, 3")
        p(f"s_add_u32 s{sT0}, s{sT0}, s{sAB}          ; j")
        p(f"s_lshl_b32 s{sT1}, s{sT0}, 3")
        p(f"s_set_gpr_idx_on s{sT1}, 0x1")
        for i in range(8):
            p(f"v_mov_b32 v{120+i}, v{self.X+i}")
        p("s_set_gpr_idx_off")
        q.wait(p, "lgld")
        mfma(p, 48, 112, 120, None)
        mfma(p, 48, 116, 124, 48)
        p(f"s_lshl_b32 s{sT1}, s{sT0}, 13")
        p(f"s_add_u32 s{sT1}, s{sT1}, {WS_LG:#x}")
        p(f"s_lshl_b32 s{sT2}, s{sTILE}, 7")
        p(f"s_add_u32 s{sLGO}, s{sT1}, s{sT2}")
        p(f"s_cmp_eq_u32 s{sCH}, 0")
        p(f"s_cselect_b32 s{sT1}, 32, 0")
        p(f"v_lshlrev_b32 v43, 2, v{L}")
        p(f"v_mov_b32 v42, {OOB:#x}")
        p(f"v_cmp_gt_u32 vcc, s{sT1}, v{L}")
        p(f"v_cndmask_b32 v43, v42, v43, vcc")
        def fin():
            p(f"v_mov_b32 v42, v48")
        def f():
            p(f"buffer_store_dword v42, v43, {S4(SRD_WS)}, s{sLGO} offen sc1")
            self.q.push("lgst")
        self.deferred[step] = f
        return fin

    def p1_epi1(self, typ):
        p, q = self.p, self.q
        L = self.vLANE
        self.deferred = {}
        def dstore(step, vdata, voff, const, tag, base, offset=0):
            def f():
                p(f"s_add_u32 s{sT1}, s{base}, {const:#x}")
                self.store_ws(vdata, voff, sT1, tag, offset)
            if step is None:
                self.late_stores.append(f)
            else:
                self.deferred[step] = f
        self.late_stores = []
        lg_fin = self.p1_logit((12, 1))
        if typ == 0:
            A = (self.ACC, self.ACC + 16)
            B = self.ACC + 32
            T = self.TMP
            V = 120
            p(f"s_lshl_b32 s{sT0}, s{sAB}, 2")
            p(f"s_lshl_b32 s{sT1}, s{sCH}, 1")
            p(f"s_add_u32 s{sT0}, s{sT0}, s{sT1}          ; head")
            p(f"s_lshl_b32 s{sT1}, s{sT0}, 6")
            p(f"s_add_u32 s{sT1}, s{sT1}, s{sTILE}        ; h*64+tile")
            p(f"s_lshl_b32 s{sQB}, s{sT1}, 10")
            p(f"s_lshl_b32 s{sT5}, s{sT1}, 2")
            p(f"s_mov_b32 s{sT0}, s{sCS}")
            p(f"s_mov_b32 s{sT1}, s{sCS}")
            for t in range(2):
                for i in range(4):
                    p(f"v_pk_mul_f32 {V2(A[t]+2*i)}, {V2(A[t]+2*i)}, s[{sT0}:{sT1}]")
            lg_fin()
            for t in range(2):
                for i in range(4):
                    p(f"v_cvt_pk_bf16_f32 v{T+8*t+4+i}, v{A[t]+8+2*i}, v{A[t]+8+2*i+1}")
            for i in range(8):
                p(f"v_cvt_pk_bf16_f32 v{V+i}, v{B+2*i}, v{B+2*i+1}")
            for t in range(2):
                for i in range(4):
                    p(f"v_cvt_pk_bf16_f32 v{T+8*t+i}, v{A[t]+2*i}, v{A[t]+2*i+1}")
            a = 40
            p(f"v_bfe_u32 v{a}, v{L}, 4, 1")
            p(f"v_lshlrev_b32 v{a}, 16, v{a}")
            p(f"v_lshrrev_b32 v{a+1}, 5, v{L}")
            p(f"v_lshl_add_u32 v{a}, v{a+1}, 8, v{a}")
            p(f"v_and_b32 v{a+1}, 15, v{L}")
            p(f"v_lshl_add_u32 v{a}, v{a+1}, 4, v{a}")
            dstore((0, 0), T + 4, self.vL16, WS_KF, "e1st", sQB)
            dstore((0, 1), T + 12, self.vL16, WS_KF + 65536, "e1st", sQB)
            dstore((1, 0), V, a, WS_VF, "e1st", sQB)
            dstore((1, 1), V + 4, a, WS_VF, "e1st", sQB, 512)
            dstore((2, 0), T, self.vL16, WS_QF, "e1st", sQB)
            dstore((2, 1), T + 8, self.vL16, WS_QF + 65536, "e1st", sQB)
            N = B
            for t in range(2):
                for h in range(2):
                    r = N + 4*t + 2*h
                    src = A[t] + 8*h
                    p(f"v_pk_mul_f32 {V2(r)}, {V2(src)}, {V2(src)}")
            for i in range(1, 4):
                for t in range(2):
                    for h in range(2):
                        r = N + 4*t + 2*h
                        src = A[t] + 8*h + 2*i
                        p(f"v_pk_fma_f32 {V2(r)}, {V2(src)}, {V2(src)}, {V2(r)}")
            for t in range(2):
                for h in range(2):
                    r = N + 4*t + 2*h
                    p(f"v_add_f32 v{r}, v{r}, v{r+1}")
            for t in range(2):
                p(f"v_permlane32_swap_b32 v{N+4*t}, v{N+4*t+2}")
            for t in range(2):
                p(f"v_add_f32 v{N+4*t}, v{N+4*t}, v{N+4*t+2}")
            na = 104
            p(f"s_add_u32 s{sT0}, s{sT5}, {WS_NRMQ:#x}")
            p(f"s_add_u32 s{sT1}, s{sT5}, {WS_NRMK:#x}")
            p(f"v_mov_b32 v{na}, {OOB:#x}")
            p(f"v_mov_b32 v{na+1}, s{sT0}")
            p(f"v_cmp_eq_u32 vcc, 31, v{L}")
            for sh in (1, 2):
                for t in range(2):
                    p(f"v_max_f32_dpp v{N+4*t}, v{N+4*t}, v{N+4*t} row_shr:{sh} row_mask:0xf bank_mask:0xf")
                if sh == 1:
                    p(f"v_cndmask_b32 v{na}, v{na}, v{na+1}, vcc")
                    p(f"v_mov_b32 v{na+1}, s{sT1}")
                else:
                    p(f"v_cmp_eq_u32 vcc, 63, v{L}")
            for sh in (4, 8):
                for t in range(2):
                    p(f"v_max_f32_dpp v{N+4*t}, v{N+4*t}, v{N+4*t} row_shr:{sh} row_mask:0xf bank_mask:0xf")
                if sh == 4:
                    p(f"v_cndmask_b32 v{na}, v{na}, v{na+1}, vcc")
            for t in range(2):
                p(f"v_max_f32_dpp v{N+4*t}, v{N+4*t}, v{N+4*t} row_bcast:15 row_mask:0xa bank_mask:0xf")
            def nstore(t):
                def f():
                    o = " offset:256" if t else ""
                    p(f"buffer_store_dword v{N+4*t}, v{na}, {S4(SRD_WS)}, 0 offen{o} sc1")
                    q = self.q
                    q.push("e1st")
                return f
            self.deferred[(3, 0)] = nstore(0)
            self.deferred[(3, 1)] = nstore(1)
        else:
            p(f"s_mul_i32 s{sT0}, s{sCH}, 3")
            p(f"s_add_u32 s{sT0}, s{sT0}, s{sHFB}")
            p(f"s_mul_i32 s{sT1}, s{sTILE}, 112")
            p(f"s_add_u32 s{sHB1}, s{sT0}, s{sT1}")
            p(f"s_lshl_b32 s{sHB1}, s{sHB1}, 10")
            for t in range(3):
                a0 = self.ACC + 16*t
                for r in range(8):
                    p(f"v_max_f32 v{a0+r}, 0, v{a0+r}")
                for r in range(8):
                    p(f"v_mul_f32 v{a0+r}, v{a0+r}, v{a0+8+r}")
                if t == 0:
                    lg_fin()
                for i in range(4):
                    p(f"v_cvt_pk_bf16_f32 v{self.TMP+4*t+i}, v{a0+2*i}, v{a0+2*i+1}")
        self.stamp("e1b")

    def p1_epi2(self, typ):
        p = self.p
        p(f"s_lshr_b32 s{sT2}, s{sCB2}, 5")
        p(f"s_lshl_b32 s{sT0}, s{sCH}, 1")
        p(f"s_add_u32 s{sT0}, s{sT0}, s{sT2}")
        p(f"s_mul_i32 s{sT1}, s{sTILE}, 112")
        p(f"s_add_u32 s{sHFB}, s{sT0}, s{sT1}")
        p(f"s_lshl_b32 s{sQB}, s{sHFB}, 10")
        for t in range(2):
            a0 = self.ACC + 16*t
            for r in range(8):
                p(f"v_max_f32 v{a0+r}, 0, v{a0+r}")
            for r in range(8):
                p(f"v_mul_f32 v{a0+r}, v{a0+r}, v{a0+8+r}")
            for i in range(4):
                p(f"v_cvt_pk_bf16_f32 v{128+4*t+i}, v{a0+2*i}, v{a0+2*i+1}")
        if typ == 1:
            for i in range(12):
                p(f"v_mov_b32 v{136+i}, v{self.TMP+i}")

    def late_h_stores(self):
        p = self.p
        for t in range(2):
            p(f"s_add_u32 s{sT1}, s{sQB}, {WS_HF + 1024*t:#x}")
            self.store_ws(128 + 4*t, self.avL16, sT1, "hst")
        n = uid()
        p(f"s_cmp_eq_u32 s{sA3}, 0")
        p(f"s_cbranch_scc1 L_noh_{n}")
        for t in range(3):
            p(f"s_add_u32 s{sT1}, s{sHB1}, {WS_HF + 1024*t:#x}")
            self.store_ws(136 + 4*t, self.avL16, sT1, "hst")
        p(f"L_noh_{n}:")

    def p1(self):
        p, q = self.p, self.q
        self.stamp("predma")
        for g in range(2):
            for e in range(5):
                self.p1_piece(g, e)
        self.stamp("dma0")
        self.pending = [(g, e) for g in list(range(2, 16)) for e in range(self.npieces(g))]
        self.pending += [(16, 0), (16, 1), ("aq", 0), (20, 0), (20, 1), (17, 0), (17, 1), (21, 0), (21, 1)]
        srd(p, SRD_WS, sWS, WS_SIZE)
        srd(p, SRD_DBG, sDBG, 256)
        self.p1_setup_late()
        self.counter_zero()
        self.stamp("setup")
        q.wait(p, ["st0"])
        p("s_barrier")
        self.stamp("st0")
        p(f"s_cmp_eq_u32 s{sTYP}, 0")
        p("s_cbranch_scc0 L_p1_B")
        q0, w0, pend0 = q.fork(), (self.win1, self.win2), list(self.pending)
        ends = []
        for typ in range(2):
            if typ == 1:
                p("L_p1_B:")
                self.q = q0
                self.win1, self.win2 = w0
                self.pending = pend0
            self.cur_typ = typ
            self.p1_first_reads(typ)
            self.p1_pass(1, typ)
            self.stamp("pass1")
            self.p1_epi1(typ)
            self.stamp("epi1")
            self.p1_pass(2, typ)
            assert not self.deferred
            self.stamp("pass2")
            if not self.o.get("nodma"):
                self.emit_pieces(99, 99)
            self.p1_epi2(typ)
            self.stamp("epi2")
            ends.append(self.q)
            if typ == 0:
                p("s_branch L_p1_join")
        p("L_p1_join:")
        self.q = VMQ.join(ends)

    aQ, aK, aV, aS, aP, aO = 4, (8, 12), (16, 24), (32, 48), (64, 72), 80
    avK, avV, avVinc, avL16 = 96, 97, 98, 3
    avT = 100
    HFR = 128
    LGR = 240

    def att_loads(self):
        p, q = self.p, self.q
        L, T = self.vLANE, self.avT
        p(f"s_lshl_b32 s{sA0}, s{sQC}, 3")
        p(f"s_add_u32 s{sA0}, s{sA0}, s{sW}          ; q tile")
        p(f"s_lshl_b32 s{sA1}, s{sH}, 6")
        p(f"s_add_u32 s{sA1}, s{sA1}, s{sA0}         ; h*64+tile")
        p(f"s_lshl_b32 s{sA2}, s{sA1}, 10")
        p(f"s_add_u32 s{sA2}, s{sA2}, {WS_QF:#x}")
        p(f"buffer_load_dwordx4 {V4(self.aQ)}, v{self.vL16}, {S4(SRD_WS)}, s{sA2} offen sc1")
        p(f"s_lshl_b32 s{sA2}, s{sH}, 8")
        p(f"s_add_u32 s{sA2}, s{sA2}, {WS_NRMK:#x}")
        p(f"v_lshlrev_b32 v{T}, 2, v{L}")
        p(f"buffer_load_dword v{T+1}, v{T}, {S4(SRD_WS)}, s{sA2} offen sc1")
        p(f"s_lshl_b32 s{sA2}, s{sA1}, 2")
        p(f"s_add_u32 s{sA2}, s{sA2}, {WS_NRMQ:#x}")
        p(f"v_mov_b32 v{T+3}, 0")
        p(f"buffer_load_dword v{T+2}, v{T+3}, {S4(SRD_WS)}, s{sA2} offen sc1")
        q.push("aq", 3)

    def att_setup(self):
        p, q = self.p, self.q
        L, T = self.vLANE, self.avT
        p(f"v_lshlrev_b32 v{self.avL16}, 4, v{L}")
        p(f"v_add_u32 v{self.avK}, 32768, v{self.avL16}")
        p(f"v_and_b32 v{T+4}, 31, v{L}               ; m")
        p(f"v_lshrrev_b32 v{T+5}, 5, v{L}")
        p(f"v_lshlrev_b32 v{T+5}, 8, v{T+5}")
        p(f"v_and_b32 v{T+6}, 15, v{L}")
        p(f"v_lshl_add_u32 v{T+5}, v{T+6}, 4, v{T+5}")
        p(f"v_add_u32 v{T+5}, 98304, v{T+5}")
        p(f"v_subrev_u32 v{T+6}, 20, v{T+4}")
        p(f"v_mov_b32 v{T+7}, {self.ONES+16}")
        p(f"v_mov_b32 v{T+8}, {self.ONES+80}")
        p(f"v_cmp_gt_u32 vcc, 8, v{T+6}")
        p(f"v_cndmask_b32 v{T+7}, v{T+7}, v{T+8}, vcc")
        p(f"v_and_b32 v{T+6}, 27, v{T+4}")
        p(f"v_subrev_u32 v{T+8}, 16, v{T+7}")
        p(f"v_cmp_eq_u32 vcc, 16, v{T+6}")
        p(f"v_cndmask_b32 v{T+7}, v{T+7}, v{T+8}, vcc")
        p(f"v_cmp_gt_u32 vcc, 16, v{T+4}")
        p(f"v_cndmask_b32 v{self.avV}, v{T+7}, v{T+5}, vcc")
        p(f"v_mov_b32 v{T+7}, 0")
        p(f"v_mov_b32 v{T+8}, 4096")
        p(f"v_cndmask_b32 v{self.avVinc}, v{T+7}, v{T+8}, vcc")
        self.P3COORD = True
        p(f"s_mov_b32 s{sTYPC}, s{sTYP}")
        p(f"s_lshl_b32 s{sRT64}, s{sXCD}, 2")
        p(f"s_and_b32 s{sA0}, s{sSLOT}, 3")
        p(f"s_add_u32 s{sRT64}, s{sRT64}, s{sA0}")
        p(f"s_lshr_b32 s{sCB}, s{sSLOT}, 2")
        p(f"s_lshr_b32 s{sKQ}, s{sW}, 1")
        p(f"s_and_b32 s{sTR}, s{sW}, 1")
        p(f"s_lshl_b32 s{sT32}, s{sRT64}, 1")
        p(f"s_add_u32 s{sT32}, s{sT32}, s{sTR}")
        q.wait(p, ["st16", "st17", "st20", "aq"])
        p("s_barrier")
        self.stamp("kv")
        for sh in (1, 2, 4, 8):
            p(f"v_max_f32_dpp v{T+1}, v{T+1}, v{T+1} row_shr:{sh} row_mask:0xf bank_mask:0xf")
        p(f"v_max_f32_dpp v{T+1}, v{T+1}, v{T+1} row_bcast:15 row_mask:0xa bank_mask:0xf")
        p(f"v_max_f32_dpp v{T+1}, v{T+1}, v{T+1} row_bcast:31 row_mask:0xc bank_mask:0xf")
        p(f"v_readlane_b32 s{sA0}, v{T+1}, 63")
        p(f"v_mul_f32 v{T+2}, s{sA0}, v{T+2}")
        p(f"v_mov_b32 v{T+3}, {f2u(3600.0):#x}")
        p(f"v_cmp_le_f32 vcc, v{T+2}, v{T+3}")
        p(f"s_cmp_eq_u64 vcc, exec")
        p(f"s_cselect_b32 s{sMODE}, 0, 1")
        if self.o.get("force_slow"):
            p(f"s_mov_b32 s{sMODE}, 1")

    def att_tile(self, t, side):
        p = self.p
        tb = t & 3
        Sc, Sn = self.aS[t & 1], self.aS[(t + 1) & 1]
        Kn, Kl = self.aK[(t + 1) & 1], self.aK[t & 1]
        Vc, Vp = self.aV[t & 1], self.aV[(t + 1) & 1]
        Pc, Pp = self.aP[t & 1], self.aP[(t + 1) & 1]
        O, Q = self.aO, self.aQ
        ex = lambda i: p(f"v_exp_f32 v{Sc+i}, v{Sc+i}")
        cv = lambda i: p(f"v_cvt_pk_bf16_f32 v{Pc+i}, v{Sc+2*i}, v{Sc+2*i+1}")
        p("s_waitcnt lgkmcnt(0)")
        if t < 63:
            mfma(p, Sn, Kn, Q, None)
        if t < 62:
            p(f"ds_read_b128 {V4(Kl)}, v{self.avK} offset:{1024*(t+2)}")
        p(f"ds_read_b128 {V4(Vc)}, v{self.avV} offset:{1024*tb}")
        p(f"ds_read_b128 {V4(Vc+4)}, v{self.avV} offset:{1024*tb+512}")
        ex(0); ex(1); ex(2); cv(0); ex(3)
        if t > 0:
            mfma(p, O, Vp, Pp, None if t == 1 else O)
        if side:
            side[0]()
        ex(4); cv(1); ex(5); ex(6); cv(2); ex(7); ex(8); cv(3); ex(9)
        if t > 0:
            mfma(p, O, Vp + 4, Pp + 4, O)
        for f in side[1:]:
            f()
        ex(10); cv(4); ex(11); ex(12); cv(5); ex(13); ex(14); cv(6); ex(15)
        if tb == 3 and t < 63:
            p(f"v_add_u32 v{self.avV}, v{self.avVinc}, v{self.avV}")
        else:
            p("s_nop 0")
        cv(7)

    def side_hstore(self, i):
        p = self.p
        def f():
            if i < 2:
                p(f"s_add_u32 s{sT1}, s{sQB}, {WS_HF + 1024*i:#x}")
                self.store_ws(128 + 4*i, self.avL16, sT1, "hst")
            else:
                n = uid()
                p(f"s_cmp_eq_u32 s{sTYPC}, 0")
                p(f"s_cbranch_scc1 L_noh_{n}")
                p(f"s_add_u32 s{sT1}, s{sHB1}, {WS_HF + 1024*(i-2):#x}")
                qa = self.q.fork()
                self.store_ws(136 + 4*(i-2), self.avL16, sT1, "hst")
                p(f"L_noh_{n}:")
                self.q = VMQ.join([qa, self.q])
                self.q.dedup()
        return f

    def side_kv(self, g, e):
        return lambda: self.p1_piece(g, e)

    def side_warm(self):
        p = self.p
        L, T = self.vLANE, self.avT
        def f():
            srd(p, SRD_T, sWD, 1792 * 1024)
            p(f"s_mul_i32 s{sA0}, s{sSLOT}, 57344")
            p(f"s_mul_i32 s{sA1}, s{sW}, 7168")
            p(f"s_add_u32 s{sA0}, s{sA0}, s{sA1}")
            p(f"v_lshlrev_b32 v{T}, 6, v{L}")
            p(f"buffer_load_dword v{T+3}, v{T}, {S4(SRD_T)}, s{sA0} offen")
            p(f"s_add_u32 s{sA0}, s{sA0}, 3072")
            p(f"buffer_load_dword v{T+4}, v{T}, {S4(SRD_T)}, s{sA0} offen")
            srd(p, SRD_T, sWO, 512 * 1024)
            p(f"s_lshl_b32 s{sA0}, s{sSLOT}, 14")
            p(f"s_lshl_b32 s{sA1}, s{sW}, 11")
            p(f"s_add_u32 s{sA0}, s{sA0}, s{sA1}")
            p(f"v_and_b32 v{T+6}, 31, v{L}")
            p(f"v_lshlrev_b32 v{T+6}, 6, v{T+6}")
            p(f"buffer_load_dword v{T+5}, v{T+6}, {S4(SRD_T)}, s{sA0} offen")
            self.q.push("warm", 3)
        return f

    def side_f2load(self):
        p, T = self.p, self.avT
        def f():
            p(f"s_lshr_b32 s{sA0}, s{sRT64}, 1")
            p(f"s_add_u32 s{sA0}, s{sA0}, {F2}")
            p(f"s_lshl_b32 s{sA0}, s{sA0}, 8")
            p(f"v_mov_b32 v{T}, s{sA0}")
            p(f"buffer_load_dword v{T+1}, v{T}, {S4(SRD_WS)}, 0 offen sc1")
            self.q.push("f2ld")
        return f

    def side_hload(self, j):
        p = self.p
        def f():
            if j == 0:
                p(f"s_mul_i32 s{sHLD}, s{sT32}, 112")
                p(f"s_mul_i32 s{sA1}, s{sKQ}, 28")
                p(f"s_add_u32 s{sHLD}, s{sHLD}, s{sA1}")
                p(f"s_lshl_b32 s{sHLD}, s{sHLD}, 10")
                p(f"s_add_u32 s{sHLD}, s{sHLD}, {WS_HF:#x}")
            o = f" offset:{1024*(j&3)}" if j & 3 else ""
            p(f"buffer_load_dwordx4 {V4(self.HFR + 4*j)}, v{self.avL16}, {S4(SRD_WS)}, s{sHLD} offen{o} sc1")
            self.q.push("hld")
            if (j & 3) == 3:
                p(f"s_add_u32 s{sHLD}, s{sHLD}, 4096")
        return f

    def side_lgload(self, i):
        p, L, T = self.p, self.vLANE, self.avT
        def f():
            if i == 0:
                p(f"v_lshrrev_b32 v{T+7}, 5, v{L}")
                p(f"v_lshlrev_b32 v{T+7}, 16, v{T+7}")
                p(f"v_and_b32 v{T+6}, 31, v{L}")
                p(f"v_lshl_add_u32 v{T+7}, v{T+6}, 2, v{T+7}")
                p(f"s_lshl_b32 s{sLGL}, s{sT32}, 7")
                p(f"s_add_u32 s{sLGL}, s{sLGL}, {WS_LG:#x}")
            p(f"buffer_load_dword v{self.LGR+i}, v{T+7}, {S4(SRD_WS)}, s{sLGL} offen sc1")
            self.q.push("lgl")
            if i < 7:
                p(f"s_add_u32 s{sLGL}, s{sLGL}, 8192")
        return f

    def att_b1(self):
        p, T = self.p, self.avT
        self.q.wait(p, ["hst", "st21", "st18", "lgst"])
        p("s_barrier")
        p(f"s_add_u32 s{sA0}, s{sRB}, {F2}")
        p(f"s_lshl_b32 s{sA0}, s{sA0}, 8")
        p(f"v_mov_b32 v{T+4}, {OOB:#x}")
        p(f"v_mov_b32 v{T+5}, s{sA0}")
        p(f"v_cmp_eq_u32 vcc, 0, v0")
        p(f"v_cndmask_b32 v{T+4}, v{T+4}, v{T+5}, vcc")
        p(f"v_mov_b32 v{T+5}, 1")
        p(f"buffer_atomic_add v{T+5}, v{T+4}, {S4(SRD_WS)}, 0 offen sc1")
        self.q.push("f2add")

    def att_b2(self):
        p, T = self.p, self.avT
        self.q.wait(p, ["st19", "st22", "st23", "f2ld"])
        p("s_waitcnt lgkmcnt(0)")
        p("s_barrier")
        poll(p, self.q, T + 1, T, SRD_WS, 16, "F2")
        self.p3_setup_dma()

    def att_sides(self):
        sd = {t: [] for t in range(64)}
        for i in range(5):
            sd[i].append(self.side_hstore(i))
        order = [(18, 0), (18, 1), (22, 0), (22, 1), (19, 0), (19, 1), (23, 0), (23, 1)]
        for k, (g, e) in enumerate(order):
            sd[5 + k].append(self.side_kv(g, e))
        if self.o.get("warm", 1):
            sd[18].append(self.side_warm())
        sd[28].append(self.side_f2load())
        ops = [(lambda g=g, e=e: self.p3_piece(g, e)) for g in range(2) for e in range(4)]
        ops2 = [self.side_hload(j) for j in range(28)] + [self.side_lgload(i) for i in range(8)]
        seq = []
        while ops or ops2:
            if ops:
                seq.append(ops.pop(0))
            if ops2:
                seq.append(ops2.pop(0))
        t = 32
        n2 = len(seq) - 31
        k = 0
        while k < len(seq):
            sd[t].append(seq[k]); k += 1
            if n2 > 0 and k < len(seq):
                sd[t].append(seq[k]); k += 1; n2 -= 1
            t += 1
        assert t <= 63, t
        return sd

    def att_slow_tile(self):
        p = self.p
        S, P, O, K, V, Q = self.aS[0], self.aP[0], self.aO, self.aK[0], self.aV[0], self.aQ
        T = self.avT
        m_old, m_new, al = T + 8, T + 9, T + 10
        p(f"ds_read_b128 {V4(K)}, v{self.avK}")
        p(f"ds_read_b128 {V4(V)}, v{self.avV}")
        p(f"ds_read_b128 {V4(V+4)}, v{self.avV} offset:512")
        p("s_waitcnt lgkmcnt(0)")
        mfma(p, S, K, Q, None)
        p(f"v_max3_f32 v{m_new}, v{S}, v{S+1}, v{S+2}")
        for r in range(3, 15, 2):
            p(f"v_max3_f32 v{m_new}, v{m_new}, v{S+r}, v{S+r+1}")
        p(f"v_max_f32 v{m_new}, v{m_new}, v{S+15}")
        p(f"v_mov_b32 v{al}, v{m_new}")
        p(f"v_permlane32_swap_b32 v{m_new}, v{al}")
        p(f"v_max3_f32 v{m_new}, v{m_new}, v{al}, v{m_old}")
        p(f"v_sub_f32 v{al}, v{m_old}, v{m_new}")
        p(f"v_exp_f32 v{al}, v{al}")
        p(f"v_mov_b32 v{m_old}, v{m_new}")
        for r in range(16):
            p(f"v_sub_f32 v{S+r}, v{S+r}, v{m_new}")
        for r in range(16):
            p(f"v_exp_f32 v{S+r}, v{S+r}")
        for r in range(16):
            p(f"v_mul_f32 v{O+r}, v{al}, v{O+r}")
        for i in range(8):
            p(f"v_cvt_pk_bf16_f32 v{P+i}, v{S+2*i}, v{S+2*i+1}")
        mfma(p, O, V, P, O)
        mfma(p, O, V + 4, P + 4, O)
        p(f"v_add_u32 v{self.avK}, 1024, v{self.avK}")
        p(f"v_lshrrev_b32 v{al}, 2, v{self.avVinc}")
        p(f"v_add_u32 v{self.avV}, v{al}, v{self.avV}")

    def attention(self):
        p, q = self.p, self.q
        self.att_setup()
        p(f"s_cmp_eq_u32 s{sMODE}, 0")
        p("s_cbranch_scc0 L_att_slow0")
        self.q_slow = self.q.fork()
        p(f"ds_read_b128 {V4(self.aK[0])}, v{self.avK}")
        p(f"ds_read_b128 {V4(self.aK[1])}, v{self.avK} offset:1024")
        p("s_waitcnt lgkmcnt(1)")
        mfma(p, self.aS[0], self.aK[0], self.aQ, None)
        prio = self.o.get("prio", 1)
        if prio:
            p("s_setprio 3")
        sd = self.att_sides()
        for t in range(64):
            if t in (16, 32, 48):
                self.stamp(f"seg{t//16}")
                if prio:
                    p(f"s_setprio {3 - t//16}")
                if t == 16:
                    self.att_b1()
                if t == 32:
                    self.att_b2()
                self.stamp(f"seg{t//16}e")
            self.att_tile(t, [] if self.o.get("noseg") else sd[t])
        p("s_waitcnt lgkmcnt(0)")
        mfma(p, self.aO, self.aV[1], self.aP[1], self.aO)
        mfma(p, self.aO, self.aV[1] + 4, self.aP[1] + 4, self.aO)
        p("L_att_fin:")
        self.stamp("att")
        O, T = self.aO, self.avT
        p(f"v_rcp_f32 v{T}, v{O+8}")
        for r in range(8):
            p(f"v_mul_f32 v{O+r}, v{T}, v{O+r}")
        for i in range(4):
            p(f"v_cvt_pk_bf16_f32 v{T+4+i}, v{O+2*i}, v{O+2*i+1}")
        p(f"s_lshl_b32 s{sA0}, s{sQC}, 3")
        p(f"s_add_u32 s{sA0}, s{sA0}, s{sW}")
        p(f"s_lshl_b32 s{sA0}, s{sA0}, 5")
        p(f"s_add_u32 s{sA0}, s{sA0}, s{sH}")
        p(f"s_lshl_b32 s{sA0}, s{sA0}, 10")
        p(f"s_add_u32 s{sA0}, s{sA0}, {WS_OF:#x}")
        p(f"buffer_store_dwordx4 {V4(T+4)}, v{self.avL16}, {S4(SRD_WS)}, s{sA0} offen sc1")
        self.q = VMQ()
        self.q.push("ost")

    def att_slow_code(self):
        p = self.p
        T = self.avT
        self.q = self.q_slow
        p("L_att_slow0:")
        p(f"v_mov_b32 v{T+8}, 0xff800000")
        for r in range(self.aO, self.aO + 16):
            p(f"v_mov_b32 v{r}, 0")
        sd = self.att_sides()
        def run(n):
            k = uid()
            p(f"s_mov_b32 s{sA3}, 0")
            p(f"L_att_slow_loop{k}:")
            self.att_slow_tile()
            p(f"s_add_u32 s{sA3}, s{sA3}, 1")
            p(f"s_cmp_lt_u32 s{sA3}, {n}")
            p(f"s_cbranch_scc1 L_att_slow_loop{k}")
        for t in range(0, 16):
            for f in sd[t]: f()
        run(16)
        self.att_b1()
        for t in range(16, 32):
            for f in sd[t]: f()
        run(16)
        self.att_b2()
        for t in range(32, 64):
            for f in sd[t]: f()
        run(32)
        p("s_branch L_att_fin")

    pWB = (16, 24)
    pB, pA = 32, 64
    pvD = 112
    pvR = (6, 7, 8, 9)
    pG = 10
    pOF = 128
    pT = 100

    P3SLOT = (1, 3, 0, 2, 4, 1, 3, 0, 2)

    def p3_slot(self, g):
        return 32768 * self.P3SLOT[g]

    def p3_setup_dma(self):
        p = self.p
        L, T = self.vLANE, self.avT
        srd(p, SRD_W2, sWD, 1792 * 1024)
        srd(p, SRD_X, sWO, 512 * 1024)
        p(f"v_bfe_u32 v{T}, v{L}, 4, 1")
        p(f"v_lshlrev_b32 v{T}, 2, v{T}")
        p(f"v_and_b32 v{T+1}, 7, v{L}")
        p(f"v_xor_b32 v{T}, v{T}, v{T+1}")
        p(f"v_lshlrev_b32 v{T}, 4, v{T}")
        p(f"s_lshl_b32 s{sA0}, s{sCB}, 7")
        p(f"v_add_u32 v{T}, s{sA0}, v{T}")
        p(f"v_lshrrev_b32 v{T+1}, 3, v{L}")
        p(f"s_lshl_b32 s{sA1}, s{sTR}, 5")
        p(f"v_add_u32 v{T+1}, s{sA1}, v{T+1}          ; 32*(w&1) + (l>>3)")
        p(f"s_mul_i32 s{sA0}, s{sKQ}, 448")
        p(f"v_add_u32 v{T+2}, s{sA0}, v{T+1}")
        p(f"v_lshl_add_u32 v{self.pvD}, v{T+2}, 10, v{T}")
        p(f"s_lshl_b32 s{sA0}, s{sKQ}, 7")
        p(f"v_add_u32 v{T+2}, s{sA0}, v{T+1}")
        p(f"v_lshl_add_u32 v{self.pvD+1}, v{T+2}, 10, v{T}")

    def p3_piece(self, g, e):
        p, q = self.p, self.q
        sl = self.p3_slot(g)
        if g < 7:
            srd_r, v, row0 = SRD_W2, self.pvD, 64 * g
        else:
            srd_r, v, row0 = SRD_X, self.pvD + 1, 64 * (g - 7)
        p(f"s_add_u32 m0, s{sM0K}, {sl + 1024*e}")
        p(f"s_mov_b32 s{sA1}, {(row0 + 8*e) * 1024}")
        p(f"buffer_load_dwordx4 v{v}, {S4(srd_r)}, s{sA1} offen lds")
        q.push(f"p3s{g}")

    def p3_emit(self, t, maxn):
        n = 0
        while self.pending3 and n < maxn:
            g, e = self.pending3[0]
            if g >= 5 and t < 4 * (g - 4) + 2:
                break
            self.pending3.pop(0)
            self.p3_piece(g, e)
            n += 1

    def p3_reads(self, t, cts=(0, 1)):
        p = self.p
        g, sp = t >> 2, t & 3
        sl = self.p3_slot(g)
        hi = 1 if sl >= 65536 else 0
        off = sl - 65536 * hi
        if sl >= 131072:
            hi, off = 2, sl - 131072
        wb = self.pWB[t & 1]
        for ct in cts:
            base = self.pvR[ct] if hi == 0 else self.pvR[2 + ct] if hi == 1 else self.pT + 8 + ct
            for j in range(2):
                p(f"ds_read_b64_tr_b16 {V2(wb + 4*ct + 2*j)}, v{base} offset:{off + (16*sp + 4*j) * 128}")
        return 2 * len(cts)

    def p3(self):
        p, q = self.p, self.q
        L, T = self.vLANE, self.pT
        p("s_waitcnt vmcnt(1)")
        p("s_barrier")
        self.pending3 = [(g, e) for g in range(2, 9) for e in range(4)]
        self.p3_emit(0, 4)
        p(f"v_lshrrev_b32 v{T}, 5, v{L}")
        p(f"v_lshlrev_b32 v{T}, 3, v{T}")
        p(f"v_bfe_u32 v{T+1}, v{L}, 2, 2")
        p(f"v_add_u32 v{T}, v{T}, v{T+1}             ; row")
        p(f"v_lshlrev_b32 v{T}, 7, v{T}              ; *128")
        p(f"v_and_b32 v{T+1}, 1, v{L}")
        p(f"v_lshlrev_b32 v{T+1}, 2, v{T+1}")
        p(f"v_bfe_u32 v{T+2}, v{L}, 4, 1")
        p(f"v_lshl_add_u32 v{T+1}, v{T+2}, 1, v{T+1}")
        p(f"v_bfe_u32 v{T+2}, v{L}, 1, 1")
        p(f"v_add_u32 v{T+1}, v{T+1}, v{T+2}          ; cg")
        p(f"v_lshl_add_u32 v{T}, v{T+1}, 3, v{T}")
        p(f"s_lshl_b32 s{sA0}, s{sKQ}, 13")
        p(f"v_add_u32 v{T}, s{sA0}, v{T}")
        p(f"v_bfe_u32 v{T+2}, v{L}, 3, 1")
        p(f"v_lshlrev_b32 v{T+2}, 6, v{T+2}           ; 64*b")
        p(f"v_add_u32 v{self.pvR[0]}, v{T}, v{T+2}     ; ct0: 64*b")
        p(f"v_xor_b32 v{T+2}, 64, v{T+2}")
        p(f"v_add_u32 v{self.pvR[1]}, v{T}, v{T+2}     ; ct1: 64*(1-b)")
        for ct in range(2):
            p(f"v_add_u32 v{self.pvR[2+ct]}, 0x10000, v{self.pvR[ct]}")
            p(f"v_add_u32 v{T+8+ct}, 0x20000, v{self.pvR[ct]}")
        G = self.pG
        lg = self.LGR
        for i in range(1, 8):
            p(f"v_add_f32 v{lg}, v{lg}, v{lg+i}")
        p(f"v_mov_b32 v{lg+1}, v{lg}")
        p(f"v_permlane32_swap_b32 v{lg}, v{lg+1}")
        p(f"v_add_f32 v{lg}, v{lg}, v{lg+1}")
        p(f"v_mul_f32 v{lg}, {f2u(-1.4426950408889634):#x}, v{lg}")
        p(f"v_exp_f32 v{lg}, v{lg}")
        p(f"v_add_f32 v{lg}, 1.0, v{lg}")
        p(f"v_rcp_f32 v{G}, v{lg}")
        p(f"s_add_u32 s{sA0}, s{sXCD}, {F3}")
        p(f"s_lshl_b32 s{sA0}, s{sA0}, 8")
        p(f"v_mov_b32 v{T+7}, s{sA0}")
        self.stamp("p3st0")
        self.lgq = []
        for ct in range(2):
            self.lg_issue((0, ct), self.p3_reads(0, (ct,)))
        for t in range(36):
            g = t >> 2
            if (t & 3) == 2:
                tags = [f"p3s{g+1}"] if 1 <= g < 8 else []
                if g == 1:
                    tags.append("ost")
                if g == 5:
                    tags.append("f3ld")
                self.stamp(f"q pre{g}".replace(" ", ""))
                if tags:
                    q.wait(p, tags)
                if g == 5:
                    poll(p, q, T + 6, T + 7, SRD_WS, 32, "F3")
                self.stamp(f"qwait{g}")
                p("s_barrier")
                self.stamp(f"qbar{g}")
                if g == 1:
                    p(f"s_add_u32 s{sA0}, s{sQC}, {F3}")
                    p(f"s_lshl_b32 s{sA0}, s{sA0}, 8")
                    p(f"v_mov_b32 v{T}, {OOB:#x}")
                    p(f"v_mov_b32 v{T+1}, s{sA0}")
                    p(f"v_cmp_eq_u32 vcc, 0, v0")
                    p(f"v_cndmask_b32 v{T}, v{T}, v{T+1}, vcc")
                    p(f"v_mov_b32 v{T+1}, 1")
                    p(f"buffer_atomic_add v{T+1}, v{T}, {S4(SRD_WS)}, 0 offen sc1")
                    q.push("f3add")
                    self.stamp("f3")
                if g == 4:
                    p(f"buffer_load_dword v{T+6}, v{T+7}, {S4(SRD_WS)}, 0 offen sc1")
                    q.push("f3ld")
                if g == 5:
                    p(f"s_lshl_b32 s{sA2}, s{sT32}, 5")
                    p(f"s_lshl_b32 s{sA1}, s{sKQ}, 3")
                    p(f"s_add_u32 s{sA2}, s{sA2}, s{sA1}")
                    p(f"s_lshl_b32 s{sA2}, s{sA2}, 10")
                    p(f"s_add_u32 s{sA2}, s{sA2}, {WS_OF:#x}")
            wb = self.pWB[t & 1]
            if t < 28:
                acc, bfr, first = self.pB, self.HFR + 4*t, t == 0
            else:
                acc, bfr, first = self.pA, self.pOF + 4*(t - 28), t == 28
            if t == 28:
                q.wait(p, "ofr")
            for ct in range(2):
                self.lg_wait((t, ct))
                mfma(p, acc + 16*ct, wb + 4*ct, bfr, None if first else acc + 16*ct)
                if t < 35:
                    self.lg_issue((t + 1, ct), self.p3_reads(t + 1, (ct,)))
                if ct == 0:
                    self.p3_emit(t, 2 if t < 4 else 1)
                    if 22 <= t < 26:
                        for j in (2*(t-22), 2*(t-22)+1):
                            o = f" offset:{1024*(j&3)}" if j & 3 else ""
                            p(f"buffer_load_dwordx4 {V4(self.pOF + 4*j)}, v{self.avL16}, {S4(SRD_WS)}, s{sA2} offen{o} sc1")
                            q.push("ofr")
                            if j == 3:
                                p(f"s_add_u32 s{sA2}, s{sA2}, 4096")
            if t == 27:
                self.stamp("p3a")
        self.stamp("p3b")
        p(f"v_sub_f32 v{G+1}, 1.0, v{G}")
        B, A = self.pB, self.pA
        for r in range(32):
            p(f"v_mul_f32 v{B+r}, v{G+1}, v{B+r}")
        for r in range(32):
            p(f"v_fmac_f32 v{B+r}, v{G}, v{A+r}")
        p(f"v_and_b32 v{T}, 31, v{L}                 ; n")
        p(f"v_and_b32 v{T+1}, 15, v{L}")
        p(f"v_lshrrev_b32 v{T+2}, 5, v{L}")
        p(f"v_lshlrev_b32 v{T+2}, 2, v{T+2}           ; 4hi")
        p(f"v_xor_b32 v{T+1}, v{T+1}, v{T+2}          ; (n&15) ^ 4hi")
        p(f"v_lshlrev_b32 v{T+1}, 4, v{T+1}")
        p(f"v_lshl_add_u32 v{T}, v{T}, 8, v{T+1}")
        p(f"s_lshl_b32 s{sA0}, s{sW}, 13")
        p(f"v_add_u32 v{T}, s{sA0}, v{T}")
        for ct in range(2):
            for qq in range(4):
                c = 8*ct + qq
                p(f"v_xor_b32 v{T+1}, {16*c}, v{T}")
                p(f"ds_write_b128 v{T+1}, {V4(B + 16*ct + 4*qq)}")
        p("s_waitcnt lgkmcnt(0)")
        p("s_barrier")
        p(f"v_lshrrev_b32 v{T}, 3, v{L}")
        p(f"s_lshl_b32 s{sA0}, s{sKQ}, 3")
        p(f"v_add_u32 v{T}, s{sA0}, v{T}             ; rho")
        p(f"v_and_b32 v{T+1}, 7, v{L}")
        p(f"v_lshlrev_b32 v{T+1}, 1, v{T+1}           ; 2*(l&7)")
        p(f"v_and_b32 v{T+2}, 15, v{T}")
        p(f"v_xor_b32 v{T+1}, v{T+1}, v{T+2}")
        p(f"v_lshlrev_b32 v{T+1}, 4, v{T+1}")
        p(f"v_lshl_add_u32 v{T+1}, v{T}, 8, v{T+1}")
        p(f"s_lshl_b32 s{sA0}, s{sTR}, 13")
        p(f"v_add_u32 v{T+1}, s{sA0}, v{T+1}")
        p(f"v_xor_b32 v{T+2}, 16, v{T+1}              ; e=1")
        R = 16
        for k in range(4):
            p(f"ds_read_b128 {V4(R + 8*k)}, v{T+1} offset:{16384*k}")
            p(f"ds_read_b128 {V4(R + 8*k + 4)}, v{T+2} offset:{16384*k}")
        srd(p, SRD_T, sOUT, 2048 * 1024)
        p(f"s_lshl_b32 s{sA0}, s{sT32}, 5")
        p(f"v_add_u32 v{T}, s{sA0}, v{T}")
        p(f"v_and_b32 v{T+3}, 7, v{L}")
        p(f"v_lshlrev_b32 v{T+3}, 4, v{T+3}")
        p(f"v_lshl_add_u32 v{T}, v{T}, 10, v{T+3}")
        p(f"s_lshl_b32 s{sA0}, s{sCB}, 7")
        p(f"v_add_u32 v{T}, s{sA0}, v{T}")
        p("s_waitcnt lgkmcnt(0)")
        for r in range(8):
            p(f"v_add_f32 v{R+r}, v{R+r}, v{R+8+r}")
            p(f"v_add_f32 v{R+16+r}, v{R+16+r}, v{R+24+r}")
        for r in range(8):
            p(f"v_add_f32 v{R+r}, v{R+r}, v{R+16+r}")
        for i in range(4):
            p(f"v_cvt_pk_bf16_f32 v{R+8+i}, v{R+2*i}, v{R+2*i+1}")
        p(f"buffer_store_dwordx4 {V4(R+8)}, v{T}, {S4(SRD_T)}, 0 offen")

    def finish(self):
        p = self.p
        if self.o.get("twice"):
            p("s_waitcnt vmcnt(0) lgkmcnt(0)")
            p("s_barrier")
            p("s_cmp_eq_u32 s0, 0")
            p("s_mov_b32 s0, 1")
            p("s_cbranch_scc1 L_restart")
        p("s_waitcnt vmcnt(0)")
        self.stamp("end")
        self.dump_stamps()
        p("s_waitcnt vmcnt(0)")
        p("L_end:")
        p("s_endpgm")

    def build(self):
        self.prologue()
        self.p1()
        if self.stop_after != "p1":
            self.attention()
            if self.stop_after != "att":
                self.p3()
        self.finish()
        if self.stop_after != "p1":
            self.att_slow_code()
        self.p("L_codeend:")
        n = self.p.fix_hazards()
        return self.p.text(), n


HEADER = """; Kernarg layout (88 bytes): A_x, A_wqkv, A_wo, B_x, B_W_gate, B_W_up, B_W_down, gate_w, out, debug, ws
; @launch grid=(256,1,1) block=(512,1,1) lds=163840
.amdgcn_target "amdgcn-amd-amdhsa--gfx950"
.text
.globl {name}_kernel
.p2align 8
.type {name}_kernel,@function
{name}_kernel:
"""
FOOTER = """.section .rodata,"a"
.p2align 6
.amdhsa_kernel {name}_kernel
  .amdhsa_next_free_vgpr 256
  .amdhsa_next_free_sgpr 102
  .amdhsa_accum_offset 256
  .amdhsa_group_segment_fixed_size 0
  .amdhsa_kernarg_size 88
  .amdhsa_user_sgpr_count 2
  .amdhsa_user_sgpr_kernarg_segment_ptr 1
  .amdhsa_system_sgpr_workgroup_id_x 1
  .amdhsa_float_denorm_mode_32 3
.end_amdhsa_kernel
"""

def generate(stop_after=None, opts=None):
    g = Gen(stop_after, opts)
    body, n = g.build()
    return HEADER.format(name=NAME) + body + FOOTER.format(name=NAME), n, g.p.count()

if __name__ == "__main__":
    import argparse
    ap = argparse.ArgumentParser()
    ap.add_argument("--stop", default=None)
    ap.add_argument("-o", default="cdna_kernels/" + NAME + ".s")
    ap.add_argument("--opt", action="append", default=[])
    ap.add_argument("--stamps", default="")
    a = ap.parse_args()
    opts = {}
    for o in a.opt:
        k, _, v = o.partition("=")
        opts[k] = int(v) if v else 1
    names = a.stamps.split(",") if a.stamps else []
    if names:
        opts["stamps"] = 1
        opts["stampmap"] = {"start": 0, "end": 11}
        for i, nm in enumerate(names):
            opts["stampmap"][nm] = i + 1
    txt, n, cnt = generate(a.stop, opts)
    open(a.o, "w").write(txt)
    print(f"wrote {a.o}: {cnt} instructions, {n} nop pads")
```

```python
import sys, os
sys.path.insert(0, os.path.dirname(os.path.abspath(__file__)))
from asmlib import Prog, VMQ

NAME = "gated_mix__mha_block__glu_gated_reglu__prompt"

WS_CNT = 0x0
WS_NRMQ = 0x4000
WS_NRMK = 0x6000
WS_LG = 0x10000
WS_QF = 0x200000
WS_KF = 0x400000
WS_VF = 0x600000
WS_OF = 0x800000
WS_HF = 0xA00000
WS_SIZE = 0x1100000
OOB = 0x7FFF0000
F1, F2, F3 = 0, 16, 32

CSCALE = 0.25 * 1.4426950408889634
import struct
def f2u(x): return struct.unpack("<I", struct.pack("<f", x))[0]

sX, sWQKV, sWO, sWG, sWU, sWD, sGW, sOUT, sDBG, sWS = 4, 6, 8, 12, 14, 16, 18, 20, 22, 24
SRD_X, SRD_WS, SRD_G, SRD_DBG, SRD_T, SRD_W1, SRD_U = 28, 32, 36, 40, 44, 96, 4
SRD_W2 = SRD_G
sD1, sD2, sM0K, sM0X, sD0, sM0P, sCB2 = 0, 1, 3, 10, 11, 26, 27
sM0X2 = 26
sW, sRB, sAB, sRT, sCH, sTILE, sXCD, sSLOT = 48, 49, 50, 51, 52, 53, 54, 55
sT0, sT1, sT2, sT3, sT4, sT5 = 56, 57, 58, 59, 60, 61
sADV = 62
sH, sQC = 63, 64
sCS = 65
sPOLL = 66
sTYP = 67
sHFB = 68
sW1OFF, sKVB = 100, 101
sQB, sLGO, sHB1 = 18, 19, 22
sEXP, sLOC = 23, 12
sTYPC, sHLD, sLGL = 23, 24, 25
sA0, sA1, sA2, sA3 = 56, 57, 58, 59
sI, sMODE, sT32, sRT64, sCB, sKQ, sTR = 60, 61, 62, 67, 68, 10, 11

def srd(p, dst, ptr, size):
    p(f"s_mov_b32 s{dst}, s{ptr}")
    p(f"s_mov_b32 s{dst+1}, s{ptr+1}")
    p(f"s_mov_b32 s{dst+2}, {size:#x}")
    p(f"s_mov_b32 s{dst+3}, 0x20000")

def S4(r): return f"s[{r}:{r+3}]"
def V4(r): return f"v[{r}:{r+3}]"
def V2(r): return f"v[{r}:{r+1}]"
def V16(r): return f"v[{r}:{r+15}]"

def mfma(p, d, a, b, c):
    cs = "0" if c is None else V16(c)
    p(f"v_mfma_f32_32x32x16_bf16 {V16(d)}, {V4(a)}, {V4(b)}, {cs}")

_uid = [0]
def uid():
    _uid[0] += 1
    return _uid[0]

def poll(p, q, vflag, vaddr, srd_reg, target, what):
    n = uid()
    p(f"v_readfirstlane_b32 s{sT0}, v{vflag}")
    p(f"s_cmp_ge_u32 s{sT0}, {target}")
    p(f"s_cbranch_scc1 L_ok{n}")
    p(f"s_mov_b32 s{sPOLL}, 0")
    p(f"L_poll{n}:")
    p(f"buffer_load_dword v{vflag}, v{vaddr}, {S4(srd_reg)}, 0 offen sc1")
    p("s_waitcnt vmcnt(0)")
    p(f"v_readfirstlane_b32 s{sT0}, v{vflag}")
    p(f"s_add_u32 s{sPOLL}, s{sPOLL}, 1")
    p(f"s_cmp_ge_u32 s{sPOLL}, 0x80000")
    p(f"s_cbranch_scc1 L_ok{n}")
    p(f"s_cmp_lt_u32 s{sT0}, {target}")
    p(f"s_cbranch_scc1 L_poll{n}")
    p(f"L_ok{n}:")


class Gen:
    def __init__(self, stop_after=None, opts=None):
        self.p = Prog()
        self.q = VMQ()
        self.stop_after = stop_after
        self.o = opts or {}

    def stamp(self, name):
        if self.o.get("stamps"):
            i = self.o["stampmap"].get(name)
            if i is not None:
                ins = "s_memrealtime" if self.o.get("rt") else "s_memtime"
                self.p(f"{ins} s[{72+2*i}:{73+2*i}] ; stamp {name}")

    def dump_stamps(self):
        if not self.o.get("stamps"):
            return
        p = self.p
        p("s_memrealtime s[70:71]")
        p("s_waitcnt lgkmcnt(0)")
        p(f"s_lshl_b32 s{sT0}, s2, 3")
        p(f"s_add_u32 s{sT0}, s{sT0}, s{sW}")
        p(f"s_lshl_b32 s{sT0}, s{sT0}, 6")
        p(f"s_add_u32 s{sT0}, s{sT0}, 0x80000")
        for i in range(12):
            p(f"v_mov_b32 v{16+i}, s{72+2*i}")
        p("v_mov_b32 v28, s69")
        p("v_mov_b32 v29, s70")
        p("v_mov_b32 v30, 0")
        p("v_mov_b32 v31, 0")
        p("v_mov_b32 v32, 0")
        p("s_mov_b64 exec, 1")
        for i in range(4):
            p(f"buffer_store_dwordx4 {V4(16+4*i)}, v32, {S4(SRD_WS)}, s{sT0} offen offset:{16*i}")
        p("s_mov_b64 exec, -1")

    def prologue(self):
        p = self.p
        p("s_cmp_ge_u32 s2, 256")
        p("s_cbranch_scc1 L_end")
        if self.o.get("stamps"):
            p("s_memrealtime s[70:71]")
        p(f"s_load_dwordx4 s[4:7], s[0:1], 0")
        p(f"s_load_dwordx2 s[8:9], s[0:1], 16")
        p(f"s_load_dwordx4 s[12:15], s[0:1], 32")
        p(f"s_load_dwordx4 s[16:19], s[0:1], 48")
        p(f"s_load_dwordx4 s[20:23], s[0:1], 64")
        p(f"s_load_dwordx2 s[24:25], s[0:1], 80")
        if self.o.get("pf", 1):
            p("s_getpc_b64 s[26:27]")
            p("L_pfbase:")
            p("s_lshr_b32 s3, s2, 3")
            p("v_lshrrev_b32 v1, 6, v0")
            p("v_lshl_add_u32 v1, s3, 3, v1")
            p("v_and_b32 v2, 3, v0")
            p("v_lshl_add_u32 v1, v1, 2, v2")
            p("v_min_u32 v1, (L_codeend-L_pfbase)/64-1, v1")
            p("v_lshlrev_b32 v1, 6, v1")
            p("global_load_dword v127, v1, s[26:27]")
            self.q.push("pf")
        p("v_lshrrev_b32 v1, 6, v0")
        p("v_and_b32 v2, 63, v0            ; v2 = lane")
        p(f"v_readfirstlane_b32 s{sW}, v1")
        p(f"s_and_b32 s{sXCD}, s2, 7")
        p(f"s_lshr_b32 s{sSLOT}, s2, 3")
        if self.o.get("local", 1):
            p(f"s_and_b32 s{sRB}, s{sSLOT}, 15")
            p(f"s_lshr_b32 s{sTYP}, s{sSLOT}, 4")
            p(f"s_mov_b32 s{sAB}, s{sXCD}")
        else:
            p(f"s_and_b32 s{sT0}, s{sXCD}, 1")
            p(f"s_lshl_b32 s{sT0}, s{sT0}, 3")
            p(f"s_and_b32 s{sT1}, s{sSLOT}, 7")
            p(f"s_add_u32 s{sRB}, s{sT0}, s{sT1}")
            p(f"s_lshr_b32 s{sTYP}, s{sSLOT}, 4")
            p(f"s_and_b32 s{sT0}, s{sXCD}, 6              ; 2*(xcd>>1)")
            p(f"s_bfe_u32 s{sT1}, s{sSLOT}, 0x10003       ; (slot>>3)&1")
            p(f"s_add_u32 s{sAB}, s{sT0}, s{sT1}          ; a / b = 0..7")
        p(f"s_and_b32 s{sRT}, s{sW}, 3")
        p(f"s_lshr_b32 s{sCH}, s{sW}, 2")
        p(f"s_lshl_b32 s{sT0}, s{sRB}, 2")
        p(f"s_add_u32 s{sTILE}, s{sT0}, s{sRT}")
        p(f"s_lshl_b32 s{sT0}, s{sXCD}, 2")
        p(f"s_and_b32 s{sT1}, s{sSLOT}, 3")
        p(f"s_add_u32 s{sH}, s{sT0}, s{sT1}           ; attention head")
        p(f"s_lshr_b32 s{sQC}, s{sSLOT}, 2           ; attention q chunk")
        p(f"s_mov_b32 s{sCS}, {f2u(CSCALE):#x}")
        if self.o.get("twice"):
            p("s_waitcnt lgkmcnt(0)")
            p("s_mov_b32 s0, 0")
            p("s_waitcnt lgkmcnt(0)")
            p("L_restart:")
        self.p1_setup_early()
        p("s_waitcnt lgkmcnt(0)")
        if self.o.get("stamps"):
            p("s_mov_b32 s69, s70")
            for i in range(12):
                p(f"s_mov_b32 s{72+2*i}, 0")
        self.stamp("start")
        srd(p, SRD_X, sX, 2048 * 1024)
        self.p1_setup_srd()

    vLANE = 2
    vXD = (3, 4)
    vW1 = (5, 6, 7)
    vW2 = (8, 9)
    vB = (10, 11, 12)
    vL16 = 13
    vP = (14, 15)
    WB = (16, 28)
    vXR = (40, 41, 42, 43)
    vFLAG, vFADDR, vONE, vDBGA = 44, 45, 46, 47
    TMP = 48
    ACC = 64
    TMP2 = 112
    X = 128
    SLOT1 = 40960
    AREA2 = {8: 0, 9: 16384, 10: 40960, 11: 57344, 12: 98304, 13: 81920, 14: 131072, 15: 147456}
    KVAREA = {16+j: 32768 + 16384*j for j in range(4)}
    KVAREA.update({20+j: 98304 + 16384*j for j in range(4)})
    ONES = 0

    def area(self, g):
        if g < 8:
            return self.SLOT1 * (g % 4)
        if g < 16:
            return self.AREA2[g]
        return self.KVAREA[g]

    def window(self, g):
        if g < 8:
            return 81920 if (g % 4) >= 2 else 0
        return 131072 if self.AREA2[g] >= 131072 else 81920 if self.AREA2[g] >= 81920 else 0

    def p1_setup_early(self):
        p = self.p
        L = self.vLANE
        t0, t1, t2, t3 = 48, 49, 50, 51
        p(f"v_lshlrev_b32 v{self.vL16}, 4, v{L}")
        p(f"s_lshl_b32 s{sT0}, s{sRB}, 7")
        p(f"s_lshl_b32 s{sT1}, s{sW}, 4")
        p(f"s_add_u32 s{sT0}, s{sT0}, s{sT1}")
        p(f"v_lshrrev_b32 v{t1}, 3, v{L}             ; l>>3")
        p(f"v_add_u32 v{t2}, s{sT0}, v{t1}           ; row (e=0)")
        p(f"v_lshrrev_b32 v{t0}, 4, v{L}")
        p(f"v_and_b32 v{t3}, 7, v{L}                 ; l&7")
        p(f"v_xor_b32 v{t0}, v{t0}, v{t3}            ; piece (e=0)")
        p(f"v_lshlrev_b32 v{t0}, 4, v{t0}")
        p(f"v_lshl_add_u32 v{self.vXD[0]}, v{t2}, 10, v{t0}")
        p(f"v_xor_b32 v{t0}, 64, v{self.vXD[0]}        ; piece ^ 4")
        p(f"v_add_u32 v{self.vXD[1]}, 8192, v{t0}      ; +8 rows")
        p(f"v_bfe_u32 v{t0}, v{L}, 4, 1")
        p(f"v_lshlrev_b32 v{t0}, 2, v{t0}")
        p(f"v_xor_b32 v{t3}, v{t3}, v{t0}")
        p(f"v_lshlrev_b32 v{t3}, 4, v{t3}")
        p(f"s_lshl_b32 s{sT0}, s{sW}, 3")
        p(f"v_add_u32 v{t1}, s{sT0}, v{t1}           ; 8w + (l>>3)")
        p(f"s_mul_i32 s{sT0}, s{sAB}, 320")
        p(f"s_add_u32 s{sT0}, s{sT0}, 1024")
        p(f"s_and_b32 s{sT1}, s{sAB}, 1")
        p(f"s_mul_i32 s{sT2}, s{sT1}, 192")
        p(f"s_add_u32 s{sCB2}, s{sT0}, s{sT2}")
        p(f"s_xor_b32 s{sT1}, s{sT1}, 1")
        p(f"s_lshl_b32 s{sT1}, s{sT1}, 7")
        p(f"s_add_u32 s{sT4}, s{sT0}, s{sT1}")
        p(f"s_lshl_b32 s{sT0}, s{sAB}, 7")
        p(f"s_cmp_eq_u32 s{sTYP}, 0")
        p(f"s_cselect_b32 s{sCB2}, s{sT0}, s{sCB2}")
        p(f"v_mul_u32_u24 v{t0}, 3584, v{t1}")
        p(f"v_add3_u32 v{self.vW2[0]}, v{t0}, v{t3}, s{sCB2}")
        p(f"v_xor_b32 v{t2}, 32, v{t3}")
        p(f"v_add3_u32 v{self.vW2[1]}, v{t0}, v{t2}, s{sCB2}")
        p(f"s_cbranch_scc0 L_setupB")
        p(f"v_mul_u32_u24 v{t0}, 3072, v{t1}")
        p(f"v_add3_u32 v{self.vW1[0]}, v{t0}, v{t3}, s{sT0}")
        p(f"v_add3_u32 v{t2}, v{t0}, v{t2}, s{sT0}")
        p(f"v_add_u32 v{self.vW1[1]}, 1024, v{t2}")
        p(f"v_add_u32 v{self.vW1[2]}, 2048, v{self.vW1[0]}")
        p(f"s_lshl_b32 s{sD0}, s{sW}, 10")
        p(f"s_add_u32 s{sD0}, s{sD0}, 16384")
        p(f"s_movk_i32 s{sT5}, 8192")
        p(f"s_mov_b32 s{sADV}, {64*3072}")
        p("s_branch L_setupJ")
        p("L_setupB:")
        p(f"s_and_b32 s{sT0}, s{sW}, 3")
        p(f"s_lshl_b32 s{sT1}, s{sT0}, 4             ; 16*wq")
        p(f"s_mov_b32 s{sT2}, 43691")
        p(f"s_lshl_b32 s{sT3}, s{sCH}, 1")
        for e in range(3):
            r = self.vW1[e]
            p(f"v_add_u32 v{t0}, {64*e}, v{L}           ; j")
            p(f"v_mul_u32_u24 v{t1}, s{sT2}, v{t0}")
            p(f"v_lshrrev_b32 v{t1}, 19, v{t1}          ; j/12")
            p(f"v_mul_u32_u24 v{t2}, 12, v{t1}")
            p(f"v_sub_u32 v{t2}, v{t0}, v{t2}           ; j%12")
            p(f"v_xor_b32 v{t2}, s{sT3}, v{t2}")
            p(f"v_add_u32 v{t1}, s{sT1}, v{t1}")
            p(f"v_mul_u32_u24 v{t1}, 3584, v{t1}")
            p(f"v_lshl_add_u32 v{t1}, v{t2}, 4, v{t1}")
            p(f"v_add_u32 v{r}, s{sT4}, v{t1}")
        p(f"s_mul_i32 s{sD0}, s{sT0}, 3072")
        p(f"s_mul_i32 s{sT1}, s{sCH}, 12288")
        p(f"s_add_u32 s{sD0}, s{sD0}, s{sT1}")
        p(f"s_add_u32 s{sD0}, s{sD0}, 16384")
        p(f"s_movk_i32 s{sT5}, 1024")
        p(f"s_mov_b32 s{sADV}, {64*3584}")
        p(f"s_lshr_b32 s{sHFB}, s{sT4}, 5")
        p("L_setupJ:")
        p(f"s_lshl_b32 s{sM0X}, s{sW}, 11")
        p(f"s_lshl_b32 s{sM0K}, s{sW}, 12")
        p(f"s_lshl_b32 s{sM0P}, s{sW}, 10")
        p(f"s_mov_b32 s{sW1OFF}, 0")

    def p1_setup_srd(self):
        p = self.p
        p(f"s_add_u32 s{sD1}, s{sD0}, s{sT5}")
        p(f"s_add_u32 s{sD2}, s{sD1}, s{sT5}")
        p(f"s_cmp_eq_u32 s{sCH}, 0")
        p(f"s_cselect_b32 s{SRD_W1}, s{sWG}, s{sWU}")
        p(f"s_cselect_b32 s{SRD_W1+1}, s{sWG+1}, s{sWU+1}")
        p(f"s_mov_b32 s{SRD_W1+2}, {512*3584:#x}")
        p(f"s_cmp_eq_u32 s{sTYP}, 0")
        p(f"s_cselect_b32 s{SRD_W1}, s{sWQKV}, s{SRD_W1}")
        p(f"s_cselect_b32 s{SRD_W1+1}, s{sWQKV+1}, s{SRD_W1+1}")
        p(f"s_cselect_b32 s{SRD_W1+2}, {512*3072:#x}, s{SRD_W1+2}")
        p(f"s_mov_b32 s{SRD_W1+3}, 0x20000")

    def p1_setup_late(self):
        p, q = self.p, self.q
        L = self.vLANE
        t0, t1, t2, t3 = 48, 49, 50, 51
        srd(p, SRD_G, sWG, 512 * 3584)
        srd(p, SRD_U, sWU, 512 * 3584)
        srd(p, SRD_T, sGW, 1024)
        p(f"s_lshl_b32 s{sT0}, s{sTYP}, 3")
        p(f"s_add_u32 s{sT0}, s{sT0}, s{sAB}")
        p(f"s_lshl_b32 s{sT1}, s{sT0}, 6            ; *64 bytes")
        p(f"v_lshrrev_b32 v{t0}, 5, v{L}             ; hh")
        p(f"v_lshlrev_b32 v{t0}, 4, v{t0}            ; hh*16")
        p(f"v_add_u32 v{t0}, s{sT1}, v{t0}")
        p(f"buffer_load_dwordx4 {V4(112)}, v{t0}, {S4(SRD_T)}, 0 offen")
        p(f"buffer_load_dwordx4 {V4(116)}, v{t0}, {S4(SRD_T)}, 0 offen offset:32")
        q.push("lgld", 2)
        rowl, sig, grp = 52, 53, 54
        p(f"v_lshrrev_b32 v{t0}, 5, v{L}")
        p(f"v_lshlrev_b32 v{t0}, 3, v{t0}")
        p(f"v_bfe_u32 v{t1}, v{L}, 2, 2")
        p(f"v_add_u32 v{rowl}, v{t0}, v{t1}")
        p(f"v_and_b32 v{t0}, 1, v{L}")
        p(f"v_lshlrev_b32 v{t0}, 4, v{t0}            ; (g&1)*16")
        p(f"v_bfe_u32 v{t1}, v{L}, 1, 1")
        p(f"v_lshl_add_u32 v{sig}, v{t1}, 3, v{t0}    ; 8*sigma")
        p(f"v_bfe_u32 v{grp}, v{L}, 4, 1")
        p(f"v_bfe_u32 v{t0}, v{L}, 3, 1")
        p(f"v_xor_b32 v{t0}, s{sCH}, v{t0}")
        p(f"v_lshlrev_b32 v{t0}, 6, v{t0}")
        p(f"v_lshl_add_u32 v{t0}, v{rowl}, 7, v{t0}")
        p(f"v_add_u32 v{t0}, v{t0}, v{sig}            ; c128")
        p(f"v_mul_u32_u24 v{t1}, {8192+32}, v{grp}")
        p(f"v_add_u32 v{self.vP[0]}, v{t0}, v{t1}")
        p(f"v_xor_b32 v{self.vP[1]}, 32, v{self.vP[0]}")
        p(f"s_cmp_eq_u32 s{sTYP}, 0")
        p(f"s_cbranch_scc0 L_lateB")
        p(f"v_add_u32 v{self.vB[0]}, 16384, v{self.vP[0]}")
        p(f"v_add_u32 v{self.vB[1]}, 16384, v{self.vP[1]}")
        p(f"v_lshl_add_u32 v{t1}, v{grp}, 5, v{t0}")
        p(f"v_add_u32 v{self.vB[2]}, 32768, v{t1}")
        p("s_branch L_lateJ")
        p("L_lateB:")
        p(f"s_mul_i32 s{sT0}, s{sCH}, 96")
        p(f"s_add_u32 s{sT0}, s{sT0}, 16384")
        p(f"v_mul_u32_u24 v{t1}, 192, v{rowl}")
        p(f"v_add3_u32 v{t1}, v{t1}, v{sig}, s{sT0}")
        p(f"s_lshl_b32 s{sT1}, s{sCH}, 6")
        p(f"s_sub_u32 s{sT1}, {12288+32}, s{sT1}")
        p(f"s_sub_u32 s{sT2}, {2*12288}, s{sT1}")
        p(f"v_mul_u32_u24 v{t2}, s{sT1}, v{grp}")
        p(f"v_add_u32 v{self.vB[0]}, v{t1}, v{t2}")
        p(f"v_mul_u32_u24 v{t2}, s{sT2}, v{grp}")
        p(f"v_add_u32 v{self.vB[1]}, v{t1}, v{t2}")
        p(f"v_mov_b32 v{self.vB[2]}, v{self.vB[0]}")
        p("L_lateJ:")
        p(f"v_and_b32 v{t0}, 31, v{L}")
        p(f"s_lshl_b32 s{sT0}, s{sRT}, 5")
        p(f"v_add_u32 v{t1}, s{sT0}, v{t0}")
        p(f"v_lshlrev_b32 v{t1}, 7, v{t1}            ; row*128")
        p(f"v_bfe_u32 v{t0}, v{L}, 1, 3")
        p(f"v_lshrrev_b32 v{t2}, 5, v{L}")
        p(f"v_xor_b32 v{t0}, v{t0}, v{t2}            ; hh ^ f")
        p(f"v_lshl_add_u32 v{t1}, v{t0}, 4, v{t1}")
        for k in range(4):
            p(f"v_xor_b32 v{self.vXR[k]}, {32*k}, v{t1}")
        p(f"v_mov_b32 v{self.vONE}, 1")
        p(f"v_mov_b32 v{self.vDBGA}, 0")
        self.win1 = 0
        self.win2 = 0

    def counter_zero(self):
        p = self.p
        L = self.vLANE
        t0, t1 = 48, 49
        p("s_add_u32 s%d, s2, s%d" % (sT0, sW))
        p(f"s_cmp_eq_u32 s{sT0}, 0")
        p(f"s_cselect_b32 s{sT0}, 0, {OOB:#x}")
        p(f"v_lshlrev_b32 v{t0}, 8, v{L}")
        p(f"v_add_u32 v{t0}, s{sT0}, v{t0}")
        p(f"v_mov_b32 v{t1}, 0")
        p(f"buffer_store_dword v{t1}, v{t0}, {S4(SRD_WS)}, 0 offen sc1")
        self.q.push("cz")

    def census_add(self):
        p = self.p
        t0, t1 = 48, 49
        p(f"v_readfirstlane_b32 s{sT3}, v{self.vFLAG}")
        p(f"s_getreg_b32 s{sT0}, hwreg(HW_REG_XCC_ID, 0, 4)")
        p(f"s_mul_i32 s{sT1}, s{sT0}, s{sT0}")
        p(f"s_lshl_b32 s{sT1}, s{sT1}, 16")
        p(f"s_lshl_b32 s{sT2}, s{sT0}, 8")
        p(f"s_add_u32 s{sT1}, s{sT1}, s{sT2}")
        p(f"s_add_u32 s{sT1}, s{sT1}, 1")
        p(f"s_lshl_b32 s{sEXP}, s{sT1}, 5")
        p(f"s_add_u32 s{sT2}, s{sXCD}, 48")
        p(f"s_lshl_b32 s{sT2}, s{sT2}, 8")
        p(f"s_cmp_ge_u32 s{sT3}, 1")
        p(f"s_cselect_b32 s{sT2}, s{sT2}, {OOB:#x}")
        p(f"s_cselect_b32 s{sLOC}, 1, 0")
        p(f"v_mov_b32 v{t0}, {OOB:#x}")
        p(f"v_mov_b32 v{t1}, s{sT2}")
        p(f"v_cmp_eq_u32 vcc, 0, v0")
        p(f"v_cndmask_b32 v{t0}, v{t0}, v{t1}, vcc")
        p(f"v_mov_b32 v{t1}, s{sT1}")
        p(f"buffer_atomic_add v{t1}, v{t0}, {S4(SRD_WS)}, 0 offen sc1")
        self.q.push("cadd")

    def census_load(self):
        p = self.p
        p(f"s_add_u32 s{sT2}, s{sXCD}, 48")
        p(f"s_lshl_b32 s{sT2}, s{sT2}, 8")
        p(f"v_mov_b32 v{self.vFADDR}, s{sT2}")
        p(f"buffer_load_dword v{self.vFLAG}, v{self.vFADDR}, {S4(SRD_WS)}, 0 offen sc1")
        self.q.push("cld")

    def census_check(self):
        p = self.p
        self.q.wait(p, "cld")
        p(f"v_readfirstlane_b32 s{sT0}, v{self.vFLAG}")
        p(f"s_cmp_eq_u32 s{sT0}, s{sEXP}")
        p(f"s_cselect_b32 s{sLOC}, s{sLOC}, 0")
        if self.o.get("nolocal"):
            p(f"s_mov_b32 s{sLOC}, 0")

    def counter_flag(self):
        p = self.p
        t0, t1 = 48, 49
        p(f"s_cmp_eq_u32 s2, 0")
        p(f"s_cselect_b32 s{sT0}, 0, {OOB:#x}")
        p(f"v_mov_b32 v{t0}, {OOB:#x}")
        p(f"v_mov_b32 v{t1}, s{sT0}")
        p(f"v_cmp_eq_u32 vcc, 0, v0")
        p(f"v_cndmask_b32 v{t0}, v{t0}, v{t1}, vcc")
        p(f"v_mov_b32 v{t1}, 1")
        p(f"buffer_store_dword v{t1}, v{t0}, {S4(SRD_DBG)}, 0 offen sc1")
        self.q.push("cf")

    def p1_piece(self, g, e):
        p, q = self.p, self.q
        ar = self.area(g)
        if g < 8:
            if e < 2:
                p(f"s_add_u32 m0, s{sM0X}, {ar + 1024*e}")
                p(f"s_movk_i32 s{sT1}, {128*g}")
                p(f"buffer_load_dwordx4 v{self.vXD[e]}, {S4(SRD_X)}, s{sT1} offen lds")
            else:
                d = (sD0, sD1, sD2)[e - 2]
                p(f"s_add_u32 m0, s{d}, {ar}")
                if e == 2 and g > 0:
                    p(f"s_add_u32 s{sW1OFF}, s{sW1OFF}, s{sADV}")
                else:
                    p("s_nop 0")
                p(f"buffer_load_dwordx4 v{self.vW1[e-2]}, {S4(SRD_W1)}, s{sW1OFF} offen lds")
        elif g < 16:
            p(f"s_add_u32 m0, s{sM0P}, {ar + 8192*e}")
            p(f"s_mov_b32 s{sT1}, {229376*(g-8)}")
            p(f"buffer_load_dwordx4 v{self.vW2[e]}, {S4(SRD_G if e == 0 else SRD_U)}, s{sT1} offen lds")
        else:
            j = (g - 16) & 3
            src = (WS_KF if g < 20 else WS_VF) + 16384 * j + 1024 * e
            p(f"s_add_u32 m0, s{sM0X2}, {ar + 1024*e}")
            p(f"s_add_u32 s{sT1}, s{sKVB}, {src:#x}")
            p(f"buffer_load_dwordx4 v{self.avL16}, {S4(SRD_WS)}, s{sT1} offen sc1 lds")
        q.push(f"st{g}")

    def earliest(self, g):
        if g >= 8:
            return {8: 22, 9: 22, 10: 26, 11: 26, 12: 30, 13: 30, 14: 36, 15: 36}[g]
        return 4 * (g - 3) + 2

    def npieces(self, g):
        return 5 if g < 8 else 2

    def emit_pieces(self, step, maxn):
        n = 0
        while self.pending and n < maxn:
            g, e = self.pending[0]
            if g == "aq":
                if step < 58:
                    break
                self.pending.pop(0)
                if self.stop_after != "p1":
                    self.att_loads()
                continue
            if 4 <= g < 16 and step < self.earliest(g):
                break
            if g >= 16 and step < 58:
                break
            if g >= 16 and self.stop_after == "p1":
                self.pending.pop(0)
                continue
            self.pending.pop(0)
            self.p1_piece(g, e)
            n += 1

    def rebase(self, regs, cur, want):
        if want != cur:
            d = want - cur
            for r in regs:
                if d > 0:
                    self.p(f"v_add_u32 v{r}, {d:#x}, v{r}")
                else:
                    self.p(f"v_subrev_u32 v{r}, {-d:#x}, v{r}")
        return want

    def p1_reads(self, ps, s, typ, part=None):
        p = self.p
        g = (s >> 2) + (0 if ps == 1 else 8)
        sp = s & 3
        wb = self.WB[s & 1]
        n = 0
        nt = 3 if ps == 1 else 2
        parts = range(nt) if part is None else [part]
        for t in parts:
            if t >= nt:
                continue
            if ps == 1:
                if t == 0:
                    self.win1 = self.rebase(list(self.vXR) + list(self.vB), self.win1, self.window(g))
                off = self.area(g) - self.win1
                if t == 0:
                    p(f"ds_read_b128 {V4(self.X + 4*s)}, v{self.vXR[sp]} offset:{off}")
                    n += 1
                for j in range(2):
                    if typ == 0:
                        p(f"ds_read_b64_tr_b16 {V2(wb + 4*t + 2*j)}, v{self.vB[t]} offset:{off + (16*sp + 4*j)*128}")
                    else:
                        p(f"ds_read_b64_tr_b16 {V2(wb + 4*t + 2*j)}, v{self.vB[t]} offset:{off + (16*sp + 4*j)*192 + 32*t}")
                    n += 1
            else:
                if t == 0:
                    self.win2 = self.rebase(list(self.vP), self.win2, self.window(g))
                off = self.area(g) - self.win2
                for j in range(2):
                    p(f"ds_read_b64_tr_b16 {V2(wb + 4*t + 2*j)}, v{self.vP[t]} offset:{off + (16*sp + 4*j)*128}")
                    n += 1
        return n

    def p1_midstage(self, g):
        p, q = self.p, self.q
        T = 116
        tags = [f"st{g+1}"] if g + 1 < 16 else []
        if g == 1:
            tags += ["cz"]
        if g == 4 and self.o.get("local", 1):
            tags += ["dbg0"]
        if g == 10:
            tags += ["e1st", "dbg"]
        if g == 14:
            tags += ["f1"]
        self.stamp(f"pre{g}")
        if tags:
            q.wait(p, tags)
        if g == 14:
            poll(p, q, self.vFLAG, self.vFADDR, SRD_WS, 16, "F1")
        self.stamp(f"wait{g}")
        p("s_barrier")
        self.stamp(f"bar{g}")
        if g == 1:
            self.counter_flag()
        if g == 10:
            poll(p, q, self.vFLAG, self.vDBGA, SRD_DBG, 1, "init")
            if self.cur_typ == 0:
                p(f"s_lshl_b32 s{sT0}, s{sAB}, 8")
                p(f"v_mov_b32 v{self.vFADDR}, {OOB:#x}")
                p(f"v_mov_b32 v{T}, s{sT0}")
                p(f"v_cmp_eq_u32 vcc, 0, v0")
                p(f"v_cndmask_b32 v{self.vFADDR}, v{self.vFADDR}, v{T}, vcc")
                self.stamp("f1iss")
                p(f"buffer_atomic_add v{self.vONE}, v{self.vFADDR}, {S4(SRD_WS)}, 0 offen sc1")
                q.push("f1add")
                if self.o.get("diagf1"):
                    p("s_waitcnt vmcnt(0)")
                    self.stamp("f1done")
        if self.o.get("local", 1):
            if g == 2:
                p(f"buffer_load_dword v{self.vFLAG}, v{self.vDBGA}, {S4(SRD_DBG)}, 0 offen sc1")
                q.push("dbg0")
            if g == 4:
                self.census_add()
            if g == 7 and self.cur_typ == 0:
                self.census_load()
        if g == 8:
            p(f"buffer_load_dword v{self.vFLAG}, v{self.vDBGA}, {S4(SRD_DBG)}, 0 offen sc1")
            q.push("dbg")
        if g == 13:
            p(f"v_bfe_u32 v{T+2}, v0, 1, 4")
            p(f"v_and_b32 v{T+2}, 11, v{T+2}")
            p(f"v_cmp_eq_u32 vcc, 0, v{T+2}")
            p(f"v_mov_b32 v{T+1}, 0x3f803f80")
            p(f"v_cndmask_b32 v{T}, 0, v{T+1}, vcc")
            p(f"v_lshlrev_b32 v{T+2}, 3, v0")
            p(f"v_mov_b32 v{T+1}, v{T}")
            p(f"ds_write_b64 v{T+2}, {V2(T)} offset:{self.ONES}")
            self.lg_issue("ones", 1)
            p(f"s_lshr_b32 s{sT0}, s{sH}, 2")
            p(f"s_lshl_b32 s{sT0}, s{sT0}, 8")
            p(f"v_mov_b32 v{self.vFADDR}, s{sT0}")
            p(f"buffer_load_dword v{self.vFLAG}, v{self.vFADDR}, {S4(SRD_WS)}, 0 offen sc1")
            q.push("f1")
            p(f"v_lshlrev_b32 v{self.avL16}, 4, v{self.vLANE}")
            p(f"s_lshl_b32 s{sM0X2}, s{sW}, 11")
            p(f"s_lshl_b32 s{sKVB}, s{sH}, 16")
            p(f"s_add_u32 s{sKVB}, s{sKVB}, s{sM0X2}")
        if g == 14 and not self.o.get("nodma"):
            self.emit_pieces(58, 6)

    def lg_issue(self, tag, n):
        self.lgq += [tag] * n

    def lg_wait(self, tag):
        last = max((i for i, t in enumerate(self.lgq) if t == tag), default=-1)
        if last < 0:
            return
        n = len(self.lgq) - 1 - last
        self.p(f"s_waitcnt lgkmcnt({min(n, 15)})")
        self.lgq = self.lgq[last + 1:]

    def p1_pass(self, ps, typ):
        p, q = self.p, self.q
        nt = 3 if ps == 1 else 2
        acc = [self.ACC + 16*t for t in range(nt)]
        comp = not self.o.get("nocompute")
        for s in range(32):
            gs = s + (0 if ps == 1 else 32)
            g = gs >> 2
            if (s & 3) == 2:
                self.p1_midstage(g)
            nxt = None
            if s < 31:
                nxt = (ps, s + 1)
            elif ps == 1:
                nxt = (2, 0)
            wb = self.WB[s & 1]
            xs = self.X + 4*s
            for t in range(nt):
                c = None if s == 0 else acc[t]
                if comp:
                    self.lg_wait((ps, s, t))
                    if self.o.get("nomfma"):
                        pass
                    elif ps == 1 and t == 2 and typ == 0:
                        mfma(p, acc[t], xs, wb + 4*t, c)
                    else:
                        mfma(p, acc[t], wb + 4*t, xs, c)
                    if nxt and not self.o.get("nolds"):
                        n = self.p1_reads(nxt[0], nxt[1], typ, t)
                        self.lg_issue((nxt[0], nxt[1], t), n)
                if not self.o.get("nodma"):
                    if t == 0:
                        self.emit_pieces(gs, 1)
                    elif t == 1 and (ps == 1 or gs >= 58 or gs < 46):
                        self.emit_pieces(gs, 1)
                if ps == 2 and (s, t) in self.deferred:
                    self.deferred.pop((s, t))()

    def p1_first_reads(self, typ):
        self.lgq = []
        for t in range(3):
            n = self.p1_reads(1, 0, typ, t)
            self.lg_issue((1, 0, t), n)

    def store_ws(self, vdata, voff, soff_reg, tag, offset=0):
        o = f" offset:{offset}" if offset else ""
        self.p(f"buffer_store_dwordx4 {V4(vdata)}, v{voff}, {S4(SRD_WS)}, s{soff_reg} offen{o} sc1")
        self.q.push(tag)

    def relu_mul_store(self, a, tmp, unit, tag):
        p = self.p
        for r in range(8):
            p(f"v_max_f32 v{a+r}, 0, v{a+r}")
        for r in range(8):
            p(f"v_mul_f32 v{a+r}, v{a+r}, v{a+8+r}")
        for i in range(4):
            p(f"v_cvt_pk_bf16_f32 v{tmp+i}, v{a+2*i}, v{a+2*i+1}")
        p(f"s_add_u32 s{sT1}, s{sHFB}, {unit * 1024}")
        self.store_ws(tmp, self.vL16, sT1, tag)

    def hf_base(self, unit_reg_expr_lines):
        p = self.p
        for l in unit_reg_expr_lines:
            p(l)
        p(f"s_mul_i32 s{sT1}, s{sTILE}, 112")
        p(f"s_add_u32 s{sHFB}, s{sT0}, s{sT1}")
        p(f"s_lshl_b32 s{sHFB}, s{sHFB}, 10")
        p(f"s_add_u32 s{sHFB}, s{sHFB}, {WS_HF:#x}")

    def p1_logit(self, step):
        p, q = self.p, self.q
        L = self.vLANE
        p(f"s_lshl_b32 s{sT0}, s{sTYP}, 3")
        p(f"s_add_u32 s{sT0}, s{sT0}, s{sAB}          ; j")
        p(f"s_lshl_b32 s{sT1}, s{sT0}, 3")
        p(f"s_set_gpr_idx_on s{sT1}, 0x1")
        for i in range(8):
            p(f"v_mov_b32 v{120+i}, v{self.X+i}")
        p("s_set_gpr_idx_off")
        q.wait(p, "lgld")
        mfma(p, 48, 112, 120, None)
        mfma(p, 48, 116, 124, 48)
        p(f"s_lshl_b32 s{sT1}, s{sT0}, 13")
        p(f"s_add_u32 s{sT1}, s{sT1}, {WS_LG:#x}")
        p(f"s_lshl_b32 s{sT2}, s{sTILE}, 7")
        p(f"s_add_u32 s{sLGO}, s{sT1}, s{sT2}")
        p(f"s_cmp_eq_u32 s{sCH}, 0")
        p(f"s_cselect_b32 s{sT1}, 32, 0")
        p(f"v_lshlrev_b32 v43, 2, v{L}")
        p(f"v_mov_b32 v42, {OOB:#x}")
        p(f"v_cmp_gt_u32 vcc, s{sT1}, v{L}")
        p(f"v_cndmask_b32 v43, v42, v43, vcc")
        def fin():
            p(f"v_mov_b32 v42, v48")
        def f():
            p(f"buffer_store_dword v42, v43, {S4(SRD_WS)}, s{sLGO} offen sc1")
            self.q.push("lgst")
        self.deferred[step] = f
        return fin

    def p1_epi1(self, typ):
        p, q = self.p, self.q
        L = self.vLANE
        self.deferred = {}
        local = self.o.get("local", 1) and typ == 0
        if local:
            self.census_check()
        def two_flavours(emit):
            if not local:
                emit(" sc1")
                return
            n = uid()
            p(f"s_cmp_eq_u32 s{sLOC}, 0")
            p(f"s_cbranch_scc1 L_wt{n}")
            emit("")
            p(f"s_branch L_st{n}")
            p(f"L_wt{n}:")
            emit(" sc1")
            p(f"L_st{n}:")
        self.two_flavours = two_flavours
        def dstore(step, vdata, voff, const, tag, base, offset=0):
            def f():
                p(f"s_add_u32 s{sT1}, s{base}, {const:#x}")
                o = f" offset:{offset}" if offset else ""
                two_flavours(lambda fl: p(f"buffer_store_dwordx4 {V4(vdata)}, v{voff}, {S4(SRD_WS)}, s{sT1} offen{o}{fl}"))
                self.q.push(tag)
            if step is None:
                self.late_stores.append(f)
            else:
                self.deferred[step] = f
        self.late_stores = []
        lg_fin = self.p1_logit((12, 1))
        if typ == 0:
            A = (self.ACC, self.ACC + 16)
            B = self.ACC + 32
            T = self.TMP
            V = 120
            p(f"s_lshl_b32 s{sT0}, s{sAB}, 2")
            p(f"s_lshl_b32 s{sT1}, s{sCH}, 1")
            p(f"s_add_u32 s{sT0}, s{sT0}, s{sT1}          ; head")
            p(f"s_lshl_b32 s{sT1}, s{sT0}, 6")
            p(f"s_add_u32 s{sT1}, s{sT1}, s{sTILE}        ; h*64+tile")
            p(f"s_lshl_b32 s{sQB}, s{sT1}, 10")
            p(f"s_lshl_b32 s{sT5}, s{sAB}, 4")
            p(f"s_add_u32 s{sT5}, s{sT5}, s{sRB}")
            p(f"s_lshl_b32 s{sT5}, s{sT5}, 7          ; (a*16+rb)*128")
            p(f"s_lshl_b32 s{sT0}, s{sCH}, 6")
            p(f"s_add_u32 s{sT5}, s{sT5}, s{sT0}")
            p(f"s_lshl_b32 s{sT0}, s{sRT}, 3")
            p(f"s_add_u32 s{sT5}, s{sT5}, s{sT0}")
            p(f"s_mov_b32 s{sT0}, s{sCS}")
            p(f"s_mov_b32 s{sT1}, s{sCS}")
            for t in range(2):
                for i in range(4):
                    p(f"v_pk_mul_f32 {V2(A[t]+2*i)}, {V2(A[t]+2*i)}, s[{sT0}:{sT1}]")
            lg_fin()
            for t in range(2):
                for i in range(4):
                    p(f"v_cvt_pk_bf16_f32 v{T+8*t+4+i}, v{A[t]+8+2*i}, v{A[t]+8+2*i+1}")
            for i in range(8):
                p(f"v_cvt_pk_bf16_f32 v{V+i}, v{B+2*i}, v{B+2*i+1}")
            for t in range(2):
                for i in range(4):
                    p(f"v_cvt_pk_bf16_f32 v{T+8*t+i}, v{A[t]+2*i}, v{A[t]+2*i+1}")
            a = 40
            p(f"v_bfe_u32 v{a}, v{L}, 4, 1")
            p(f"v_lshlrev_b32 v{a}, 16, v{a}")
            p(f"v_lshrrev_b32 v{a+1}, 5, v{L}")
            p(f"v_lshl_add_u32 v{a}, v{a+1}, 8, v{a}")
            p(f"v_and_b32 v{a+1}, 15, v{L}")
            p(f"v_lshl_add_u32 v{a}, v{a+1}, 4, v{a}")
            dstore((0, 0), T + 4, self.vL16, WS_KF, "e1st", sQB)
            dstore((0, 1), T + 12, self.vL16, WS_KF + 65536, "e1st", sQB)
            dstore((1, 0), V, a, WS_VF, "e1st", sQB)
            dstore((1, 1), V + 4, a, WS_VF, "e1st", sQB, 512)
            dstore((2, 0), T, self.vL16, WS_QF, "e1st", sQB)
            dstore((2, 1), T + 8, self.vL16, WS_QF + 65536, "e1st", sQB)
            N = B
            for t in range(2):
                for h in range(2):
                    r = N + 4*t + 2*h
                    src = A[t] + 8*h
                    p(f"v_pk_mul_f32 {V2(r)}, {V2(src)}, {V2(src)}")
            for i in range(1, 4):
                for t in range(2):
                    for h in range(2):
                        r = N + 4*t + 2*h
                        src = A[t] + 8*h + 2*i
                        p(f"v_pk_fma_f32 {V2(r)}, {V2(src)}, {V2(src)}, {V2(r)}")
            for t in range(2):
                for h in range(2):
                    r = N + 4*t + 2*h
                    p(f"v_add_f32 v{r}, v{r}, v{r+1}")
            for t in range(2):
                p(f"v_permlane32_swap_b32 v{N+4*t}, v{N+4*t+2}")
            for t in range(2):
                p(f"v_add_f32 v{N+4*t}, v{N+4*t}, v{N+4*t+2}")
            na = 104
            p(f"s_add_u32 s{sT0}, s{sT5}, {WS_NRMQ:#x}")
            p(f"s_add_u32 s{sT1}, s{sT5}, {WS_NRMQ + 4:#x}")
            p(f"v_mov_b32 v{na}, {OOB:#x}")
            p(f"v_mov_b32 v{na+1}, s{sT0}")
            p(f"v_cmp_eq_u32 vcc, 31, v{L}")
            for sh in (1, 2):
                for t in range(2):
                    p(f"v_max_f32_dpp v{N+4*t}, v{N+4*t}, v{N+4*t} row_shr:{sh} row_mask:0xf bank_mask:0xf")
                if sh == 1:
                    p(f"v_cndmask_b32 v{na}, v{na}, v{na+1}, vcc")
                    p(f"v_mov_b32 v{na+1}, s{sT1}")
                else:
                    p(f"v_cmp_eq_u32 vcc, 63, v{L}")
            for sh in (4, 8):
                for t in range(2):
                    p(f"v_max_f32_dpp v{N+4*t}, v{N+4*t}, v{N+4*t} row_shr:{sh} row_mask:0xf bank_mask:0xf")
                if sh == 4:
                    p(f"v_cndmask_b32 v{na}, v{na}, v{na+1}, vcc")
            for t in range(2):
                p(f"v_max_f32_dpp v{N+4*t}, v{N+4*t}, v{N+4*t} row_bcast:15 row_mask:0xa bank_mask:0xf")
            def nstore(t):
                def f():
                    o = " offset:32" if t else ""
                    two_flavours(lambda fl: p(f"buffer_store_dword v{N+4*t}, v{na}, {S4(SRD_WS)}, 0 offen{o}{fl}"))
                    q = self.q
                    q.push("e1st")
                return f
            self.deferred[(3, 0)] = nstore(0)
            self.deferred[(3, 1)] = nstore(1)
        else:
            p(f"s_mul_i32 s{sT0}, s{sCH}, 3")
            p(f"s_add_u32 s{sT0}, s{sT0}, s{sHFB}")
            p(f"s_mul_i32 s{sT1}, s{sTILE}, 112")
            p(f"s_add_u32 s{sHB1}, s{sT0}, s{sT1}")
            p(f"s_lshl_b32 s{sHB1}, s{sHB1}, 10")
            for t in range(3):
                a0 = self.ACC + 16*t
                for r in range(8):
                    p(f"v_max_f32 v{a0+r}, 0, v{a0+r}")
                for r in range(8):
                    p(f"v_mul_f32 v{a0+r}, v{a0+r}, v{a0+8+r}")
                if t == 0:
                    lg_fin()
                for i in range(4):
                    p(f"v_cvt_pk_bf16_f32 v{self.TMP+4*t+i}, v{a0+2*i}, v{a0+2*i+1}")
        self.stamp("e1b")

    def p1_epi2(self, typ):
        p = self.p
        p(f"s_lshr_b32 s{sT2}, s{sCB2}, 5")
        p(f"s_lshl_b32 s{sT0}, s{sCH}, 1")
        p(f"s_add_u32 s{sT0}, s{sT0}, s{sT2}")
        p(f"s_mul_i32 s{sT1}, s{sTILE}, 112")
        p(f"s_add_u32 s{sHFB}, s{sT0}, s{sT1}")
        p(f"s_lshl_b32 s{sQB}, s{sHFB}, 10")
        for t in range(2):
            a0 = self.ACC + 16*t
            for r in range(8):
                p(f"v_max_f32 v{a0+r}, 0, v{a0+r}")
            for r in range(8):
                p(f"v_mul_f32 v{a0+r}, v{a0+r}, v{a0+8+r}")
            for i in range(4):
                p(f"v_cvt_pk_bf16_f32 v{128+4*t+i}, v{a0+2*i}, v{a0+2*i+1}")
        if typ == 1:
            for i in range(12):
                p(f"v_mov_b32 v{136+i}, v{self.TMP+i}")

    def late_h_stores(self):
        p = self.p
        for t in range(2):
            p(f"s_add_u32 s{sT1}, s{sQB}, {WS_HF + 1024*t:#x}")
            self.store_ws(128 + 4*t, self.avL16, sT1, "hst")
        n = uid()
        p(f"s_cmp_eq_u32 s{sA3}, 0")
        p(f"s_cbranch_scc1 L_noh_{n}")
        for t in range(3):
            p(f"s_add_u32 s{sT1}, s{sHB1}, {WS_HF + 1024*t:#x}")
            self.store_ws(136 + 4*t, self.avL16, sT1, "hst")
        p(f"L_noh_{n}:")

    def p1(self):
        p, q = self.p, self.q
        self.stamp("predma")
        for g in range(2):
            for e in range(5):
                self.p1_piece(g, e)
        self.stamp("dma0")
        self.pending = [(g, e) for g in list(range(2, 16)) for e in range(self.npieces(g))]
        self.pending += [(16, 0), (16, 1), ("aq", 0), (20, 0), (20, 1), (17, 0), (17, 1), (21, 0), (21, 1)]
        srd(p, SRD_WS, sWS, WS_SIZE)
        srd(p, SRD_DBG, sDBG, 256)
        self.p1_setup_late()
        self.counter_zero()
        self.stamp("setup")
        q.wait(p, ["st0"])
        p("s_barrier")
        self.stamp("st0")
        p(f"s_cmp_eq_u32 s{sTYP}, 0")
        p("s_cbranch_scc0 L_p1_B")
        q0, w0, pend0 = q.fork(), (self.win1, self.win2), list(self.pending)
        ends = []
        for typ in range(2):
            if typ == 1:
                p("L_p1_B:")
                self.q = q0
                self.win1, self.win2 = w0
                self.pending = pend0
            self.cur_typ = typ
            self.p1_first_reads(typ)
            self.p1_pass(1, typ)
            self.stamp("pass1")
            self.p1_epi1(typ)
            self.stamp("epi1")
            self.p1_pass(2, typ)
            assert not self.deferred
            self.stamp("pass2")
            if not self.o.get("nodma"):
                self.emit_pieces(99, 99)
            self.p1_epi2(typ)
            self.stamp("epi2")
            ends.append(self.q)
            if typ == 0:
                p("s_branch L_p1_join")
        p("L_p1_join:")
        self.q = VMQ.join(ends)

    aQ, aK, aV, aS, aP, aO = 4, (8, 12), (16, 24), (32, 48), (64, 72), 80
    avK, avV, avVinc, avL16 = 96, 97, 98, 3
    avT = 100
    HFR = 128
    LGR = 240

    def att_loads(self):
        p, q = self.p, self.q
        L, T = self.vLANE, self.avT
        p(f"s_lshl_b32 s{sA0}, s{sQC}, 3")
        p(f"s_add_u32 s{sA0}, s{sA0}, s{sW}          ; q tile")
        p(f"s_lshl_b32 s{sA1}, s{sH}, 6")
        p(f"s_add_u32 s{sA1}, s{sA1}, s{sA0}         ; h*64+tile")
        p(f"s_lshl_b32 s{sA2}, s{sA1}, 10")
        p(f"s_add_u32 s{sA2}, s{sA2}, {WS_QF:#x}")
        p(f"buffer_load_dwordx4 {V4(self.aQ)}, v{self.vL16}, {S4(SRD_WS)}, s{sA2} offen sc1")
        p(f"s_lshr_b32 s{sA2}, s{sH}, 2")
        p(f"s_lshl_b32 s{sA2}, s{sA2}, 11")
        p(f"s_and_b32 s{sA1}, s{sH}, 3")
        p(f"s_lshl_b32 s{sA1}, s{sA1}, 5")
        p(f"s_add_u32 s{sA2}, s{sA2}, s{sA1}")
        p(f"s_add_u32 s{sA2}, s{sA2}, {WS_NRMQ:#x}")
        p(f"v_lshrrev_b32 v{T}, 2, v{L}")
        p(f"v_lshlrev_b32 v{T}, 7, v{T}")
        p(f"v_and_b32 v{T+3}, 3, v{L}")
        p(f"v_lshl_add_u32 v{T}, v{T+3}, 3, v{T}")
        p(f"buffer_load_dword v{T+1}, v{T}, {S4(SRD_WS)}, s{sA2} offen offset:4 sc1")
        p(f"s_lshr_b32 s{sA1}, s{sA0}, 2")
        p(f"s_lshl_b32 s{sA1}, s{sA1}, 7")
        p(f"s_and_b32 s{sA0}, s{sA0}, 3")
        p(f"s_lshl_b32 s{sA0}, s{sA0}, 3")
        p(f"s_add_u32 s{sA2}, s{sA2}, s{sA1}")
        p(f"s_add_u32 s{sA2}, s{sA2}, s{sA0}")
        p(f"v_mov_b32 v{T+3}, 0")
        p(f"buffer_load_dword v{T+2}, v{T+3}, {S4(SRD_WS)}, s{sA2} offen sc1")
        q.push("aq", 3)

    def att_setup(self):
        p, q = self.p, self.q
        L, T = self.vLANE, self.avT
        p(f"v_lshlrev_b32 v{self.avL16}, 4, v{L}")
        p(f"v_add_u32 v{self.avK}, 32768, v{self.avL16}")
        p(f"v_and_b32 v{T+4}, 31, v{L}               ; m")
        p(f"v_lshrrev_b32 v{T+5}, 5, v{L}")
        p(f"v_lshlrev_b32 v{T+5}, 8, v{T+5}")
        p(f"v_and_b32 v{T+6}, 15, v{L}")
        p(f"v_lshl_add_u32 v{T+5}, v{T+6}, 4, v{T+5}")
        p(f"v_add_u32 v{T+5}, 98304, v{T+5}")
        p(f"v_subrev_u32 v{T+6}, 20, v{T+4}")
        p(f"v_mov_b32 v{T+7}, {self.ONES+16}")
        p(f"v_mov_b32 v{T+8}, {self.ONES+80}")
        p(f"v_cmp_gt_u32 vcc, 8, v{T+6}")
        p(f"v_cndmask_b32 v{T+7}, v{T+7}, v{T+8}, vcc")
        p(f"v_and_b32 v{T+6}, 27, v{T+4}")
        p(f"v_subrev_u32 v{T+8}, 16, v{T+7}")
        p(f"v_cmp_eq_u32 vcc, 16, v{T+6}")
        p(f"v_cndmask_b32 v{T+7}, v{T+7}, v{T+8}, vcc")
        p(f"v_cmp_gt_u32 vcc, 16, v{T+4}")
        p(f"v_cndmask_b32 v{self.avV}, v{T+7}, v{T+5}, vcc")
        p(f"v_mov_b32 v{T+7}, 0")
        p(f"v_mov_b32 v{T+8}, 4096")
        p(f"v_cndmask_b32 v{self.avVinc}, v{T+7}, v{T+8}, vcc")
        self.P3COORD = True
        p(f"s_mov_b32 s{sTYPC}, s{sTYP}")
        p(f"s_lshl_b32 s{sRT64}, s{sXCD}, 2")
        p(f"s_and_b32 s{sA0}, s{sSLOT}, 3")
        p(f"s_add_u32 s{sRT64}, s{sRT64}, s{sA0}")
        p(f"s_lshr_b32 s{sCB}, s{sSLOT}, 2")
        p(f"s_lshr_b32 s{sKQ}, s{sW}, 1")
        p(f"s_and_b32 s{sTR}, s{sW}, 1")
        p(f"s_lshl_b32 s{sT32}, s{sRT64}, 1")
        p(f"s_add_u32 s{sT32}, s{sT32}, s{sTR}")
        q.wait(p, ["st16", "st17", "st20", "aq"])
        p("s_barrier")
        self.stamp("kv")
        for sh in (1, 2, 4, 8):
            p(f"v_max_f32_dpp v{T+1}, v{T+1}, v{T+1} row_shr:{sh} row_mask:0xf bank_mask:0xf")
        p(f"v_max_f32_dpp v{T+1}, v{T+1}, v{T+1} row_bcast:15 row_mask:0xa bank_mask:0xf")
        p(f"v_max_f32_dpp v{T+1}, v{T+1}, v{T+1} row_bcast:31 row_mask:0xc bank_mask:0xf")
        p(f"v_readlane_b32 s{sA0}, v{T+1}, 63")
        p(f"v_mul_f32 v{T+2}, s{sA0}, v{T+2}")
        p(f"v_mov_b32 v{T+3}, {f2u(3600.0):#x}")
        p(f"v_cmp_le_f32 vcc, v{T+2}, v{T+3}")
        p(f"s_cmp_eq_u64 vcc, exec")
        p(f"s_cselect_b32 s{sMODE}, 0, 1")
        if self.o.get("force_slow"):
            p(f"s_mov_b32 s{sMODE}, 1")

    def att_tile(self, t, side):
        p = self.p
        tb = t & 3
        Sc, Sn = self.aS[t & 1], self.aS[(t + 1) & 1]
        Kn, Kl = self.aK[(t + 1) & 1], self.aK[t & 1]
        Vc, Vp = self.aV[t & 1], self.aV[(t + 1) & 1]
        Pc, Pp = self.aP[t & 1], self.aP[(t + 1) & 1]
        O, Q = self.aO, self.aQ
        ex = lambda i: p(f"v_exp_f32 v{Sc+i}, v{Sc+i}")
        cv = lambda i: p(f"v_cvt_pk_bf16_f32 v{Pc+i}, v{Sc+2*i}, v{Sc+2*i+1}")
        p("s_waitcnt lgkmcnt(0)")
        if t < 63:
            mfma(p, Sn, Kn, Q, None)
        if t < 62:
            p(f"ds_read_b128 {V4(Kl)}, v{self.avK} offset:{1024*(t+2)}")
        p(f"ds_read_b128 {V4(Vc)}, v{self.avV} offset:{1024*tb}")
        p(f"ds_read_b128 {V4(Vc+4)}, v{self.avV} offset:{1024*tb+512}")
        ex(0); ex(1); ex(2); cv(0); ex(3)
        if t > 0:
            mfma(p, O, Vp, Pp, None if t == 1 else O)
        if side:
            side[0]()
        ex(4); cv(1); ex(5); ex(6); cv(2); ex(7); ex(8); cv(3); ex(9)
        if t > 0:
            mfma(p, O, Vp + 4, Pp + 4, O)
        for f in side[1:]:
            f()
        ex(10); cv(4); ex(11); ex(12); cv(5); ex(13); ex(14); cv(6); ex(15)
        if tb == 3 and t < 63:
            p(f"v_add_u32 v{self.avV}, v{self.avVinc}, v{self.avV}")
        else:
            p("s_nop 0")
        cv(7)

    def side_hstore(self, i):
        p = self.p
        def f():
            if i < 2:
                p(f"s_add_u32 s{sT1}, s{sQB}, {WS_HF + 1024*i:#x}")
                self.store_ws(128 + 4*i, self.avL16, sT1, "hst")
            else:
                n = uid()
                p(f"s_cmp_eq_u32 s{sTYPC}, 0")
                p(f"s_cbranch_scc1 L_noh_{n}")
                p(f"s_add_u32 s{sT1}, s{sHB1}, {WS_HF + 1024*(i-2):#x}")
                qa = self.q.fork()
                self.store_ws(136 + 4*(i-2), self.avL16, sT1, "hst")
                p(f"L_noh_{n}:")
                self.q = VMQ.join([qa, self.q])
                self.q.dedup()
        return f

    def side_kv(self, g, e):
        return lambda: self.p1_piece(g, e)

    def side_warm(self):
        p = self.p
        L, T = self.vLANE, self.avT
        def f():
            srd(p, SRD_T, sWD, 1792 * 1024)
            p(f"s_mul_i32 s{sA0}, s{sSLOT}, 57344")
            p(f"s_mul_i32 s{sA1}, s{sW}, 7168")
            p(f"s_add_u32 s{sA0}, s{sA0}, s{sA1}")
            p(f"v_lshlrev_b32 v{T}, 6, v{L}")
            p(f"buffer_load_dword v{T+3}, v{T}, {S4(SRD_T)}, s{sA0} offen")
            p(f"s_add_u32 s{sA0}, s{sA0}, 3072")
            p(f"buffer_load_dword v{T+4}, v{T}, {S4(SRD_T)}, s{sA0} offen")
            srd(p, SRD_T, sWO, 512 * 1024)
            p(f"s_lshl_b32 s{sA0}, s{sSLOT}, 14")
            p(f"s_lshl_b32 s{sA1}, s{sW}, 11")
            p(f"s_add_u32 s{sA0}, s{sA0}, s{sA1}")
            p(f"v_and_b32 v{T+6}, 31, v{L}")
            p(f"v_lshlrev_b32 v{T+6}, 6, v{T+6}")
            p(f"buffer_load_dword v{T+5}, v{T+6}, {S4(SRD_T)}, s{sA0} offen")
            self.q.push("warm", 3)
        return f

    def side_f2load(self):
        p, T = self.p, self.avT
        def f():
            p(f"s_lshr_b32 s{sA0}, s{sRT64}, 1")
            p(f"s_add_u32 s{sA0}, s{sA0}, {F2}")
            p(f"s_lshl_b32 s{sA0}, s{sA0}, 8")
            p(f"v_mov_b32 v{T}, s{sA0}")
            p(f"buffer_load_dword v{T+1}, v{T}, {S4(SRD_WS)}, 0 offen sc1")
            self.q.push("f2ld")
        return f

    def side_hload(self, j):
        p = self.p
        def f():
            if j == 0:
                p(f"s_mul_i32 s{sHLD}, s{sT32}, 112")
                p(f"s_mul_i32 s{sA1}, s{sKQ}, 28")
                p(f"s_add_u32 s{sHLD}, s{sHLD}, s{sA1}")
                p(f"s_lshl_b32 s{sHLD}, s{sHLD}, 10")
                p(f"s_add_u32 s{sHLD}, s{sHLD}, {WS_HF:#x}")
            o = f" offset:{1024*(j&3)}" if j & 3 else ""
            p(f"buffer_load_dwordx4 {V4(self.HFR + 4*j)}, v{self.avL16}, {S4(SRD_WS)}, s{sHLD} offen{o} sc1")
            self.q.push("hld")
            if (j & 3) == 3:
                p(f"s_add_u32 s{sHLD}, s{sHLD}, 4096")
        return f

    def side_lgload(self, i):
        p, L, T = self.p, self.vLANE, self.avT
        def f():
            if i == 0:
                p(f"v_lshrrev_b32 v{T+7}, 5, v{L}")
                p(f"v_lshlrev_b32 v{T+7}, 16, v{T+7}")
                p(f"v_and_b32 v{T+6}, 31, v{L}")
                p(f"v_lshl_add_u32 v{T+7}, v{T+6}, 2, v{T+7}")
                p(f"s_lshl_b32 s{sLGL}, s{sT32}, 7")
                p(f"s_add_u32 s{sLGL}, s{sLGL}, {WS_LG:#x}")
            p(f"buffer_load_dword v{self.LGR+i}, v{T+7}, {S4(SRD_WS)}, s{sLGL} offen sc1")
            self.q.push("lgl")
            if i < 7:
                p(f"s_add_u32 s{sLGL}, s{sLGL}, 8192")
        return f

    def att_b1(self):
        p, T = self.p, self.avT
        self.q.wait(p, ["hst", "st21", "st18", "lgst"])
        p("s_barrier")
        p(f"s_add_u32 s{sA0}, s{sRB}, {F2}")
        p(f"s_lshl_b32 s{sA0}, s{sA0}, 8")
        p(f"v_mov_b32 v{T+4}, {OOB:#x}")
        p(f"v_mov_b32 v{T+5}, s{sA0}")
        p(f"v_cmp_eq_u32 vcc, 0, v0")
        p(f"v_cndmask_b32 v{T+4}, v{T+4}, v{T+5}, vcc")
        p(f"v_mov_b32 v{T+5}, 1")
        p(f"buffer_atomic_add v{T+5}, v{T+4}, {S4(SRD_WS)}, 0 offen sc1")
        self.q.push("f2add")

    def att_b2(self):
        p, T = self.p, self.avT
        self.q.wait(p, ["st19", "st22", "st23", "f2ld"])
        p("s_waitcnt lgkmcnt(0)")
        p("s_barrier")
        poll(p, self.q, T + 1, T, SRD_WS, 16, "F2")
        self.p3_setup_dma()

    def att_sides(self):
        sd = {t: [] for t in range(64)}
        for i in range(5):
            sd[i].append(self.side_hstore(i))
        order = [(18, 0), (18, 1), (22, 0), (22, 1), (19, 0), (19, 1), (23, 0), (23, 1)]
        for k, (g, e) in enumerate(order):
            sd[5 + k].append(self.side_kv(g, e))
        if self.o.get("warm", 1):
            sd[18].append(self.side_warm())
        sd[28].append(self.side_f2load())
        ops = [(lambda g=g, e=e: self.p3_piece(g, e)) for g in range(2) for e in range(4)]
        ops2 = [self.side_hload(j) for j in range(28)] + [self.side_lgload(i) for i in range(8)]
        seq = []
        while ops or ops2:
            if ops:
                seq.append(ops.pop(0))
            if ops2:
                seq.append(ops2.pop(0))
        t = 32
        n2 = len(seq) - 31
        k = 0
        while k < len(seq):
            sd[t].append(seq[k]); k += 1
            if n2 > 0 and k < len(seq):
                sd[t].append(seq[k]); k += 1; n2 -= 1
            t += 1
        assert t <= 63, t
        return sd

    def att_slow_tile(self):
        p = self.p
        S, P, O, K, V, Q = self.aS[0], self.aP[0], self.aO, self.aK[0], self.aV[0], self.aQ
        T = self.avT
        m_old, m_new, al = T + 8, T + 9, T + 10
        p(f"ds_read_b128 {V4(K)}, v{self.avK}")
        p(f"ds_read_b128 {V4(V)}, v{self.avV}")
        p(f"ds_read_b128 {V4(V+4)}, v{self.avV} offset:512")
        p("s_waitcnt lgkmcnt(0)")
        mfma(p, S, K, Q, None)
        p(f"v_max3_f32 v{m_new}, v{S}, v{S+1}, v{S+2}")
        for r in range(3, 15, 2):
            p(f"v_max3_f32 v{m_new}, v{m_new}, v{S+r}, v{S+r+1}")
        p(f"v_max_f32 v{m_new}, v{m_new}, v{S+15}")
        p(f"v_mov_b32 v{al}, v{m_new}")
        p(f"v_permlane32_swap_b32 v{m_new}, v{al}")
        p(f"v_max3_f32 v{m_new}, v{m_new}, v{al}, v{m_old}")
        p(f"v_sub_f32 v{al}, v{m_old}, v{m_new}")
        p(f"v_exp_f32 v{al}, v{al}")
        p(f"v_mov_b32 v{m_old}, v{m_new}")
        for r in range(16):
            p(f"v_sub_f32 v{S+r}, v{S+r}, v{m_new}")
        for r in range(16):
            p(f"v_exp_f32 v{S+r}, v{S+r}")
        for r in range(16):
            p(f"v_mul_f32 v{O+r}, v{al}, v{O+r}")
        for i in range(8):
            p(f"v_cvt_pk_bf16_f32 v{P+i}, v{S+2*i}, v{S+2*i+1}")
        mfma(p, O, V, P, O)
        mfma(p, O, V + 4, P + 4, O)
        p(f"v_add_u32 v{self.avK}, 1024, v{self.avK}")
        p(f"v_lshrrev_b32 v{al}, 2, v{self.avVinc}")
        p(f"v_add_u32 v{self.avV}, v{al}, v{self.avV}")

    def attention(self):
        p, q = self.p, self.q
        self.att_setup()
        p(f"s_cmp_eq_u32 s{sMODE}, 0")
        p("s_cbranch_scc0 L_att_slow0")
        self.q_slow = self.q.fork()
        p(f"ds_read_b128 {V4(self.aK[0])}, v{self.avK}")
        p(f"ds_read_b128 {V4(self.aK[1])}, v{self.avK} offset:1024")
        p("s_waitcnt lgkmcnt(1)")
        mfma(p, self.aS[0], self.aK[0], self.aQ, None)
        prio = self.o.get("prio", 2)
        def ladder(t):
            if prio == 1:
                return 3 - t // 16
            return 3 - (t % 16) // 4 if t < 32 else 3 - (t - 32) // 8
        sd = self.att_sides()
        for t in range(64):
            if prio and (t == 0 or ladder(t) != ladder(t - 1)) and t not in (16, 32):
                p(f"s_setprio {ladder(t)}")
            if t in (16, 32, 48):
                self.stamp(f"seg{t//16}")
                if prio and t in (16, 32):
                    p(f"s_setprio {ladder(t)}")
                if t == 16:
                    self.att_b1()
                if t == 32:
                    self.att_b2()
                self.stamp(f"seg{t//16}e")
            self.att_tile(t, [] if self.o.get("noseg") else sd[t])
        p("s_waitcnt lgkmcnt(0)")
        mfma(p, self.aO, self.aV[1], self.aP[1], self.aO)
        mfma(p, self.aO, self.aV[1] + 4, self.aP[1] + 4, self.aO)
        p("L_att_fin:")
        self.stamp("att")
        O, T = self.aO, self.avT
        p(f"v_rcp_f32 v{T}, v{O+8}")
        for r in range(8):
            p(f"v_mul_f32 v{O+r}, v{T}, v{O+r}")
        for i in range(4):
            p(f"v_cvt_pk_bf16_f32 v{T+4+i}, v{O+2*i}, v{O+2*i+1}")
        p(f"s_lshl_b32 s{sA0}, s{sQC}, 3")
        p(f"s_add_u32 s{sA0}, s{sA0}, s{sW}")
        p(f"s_lshl_b32 s{sA0}, s{sA0}, 5")
        p(f"s_add_u32 s{sA0}, s{sA0}, s{sH}")
        p(f"s_lshl_b32 s{sA0}, s{sA0}, 10")
        p(f"s_add_u32 s{sA0}, s{sA0}, {WS_OF:#x}")
        p(f"buffer_store_dwordx4 {V4(T+4)}, v{self.avL16}, {S4(SRD_WS)}, s{sA0} offen sc1")
        self.q = VMQ()
        self.q.push("ost")

    def att_slow_code(self):
        p = self.p
        T = self.avT
        self.q = self.q_slow
        p("L_att_slow0:")
        p(f"v_mov_b32 v{T+8}, 0xff800000")
        for r in range(self.aO, self.aO + 16):
            p(f"v_mov_b32 v{r}, 0")
        sd = self.att_sides()
        def run(n):
            k = uid()
            p(f"s_mov_b32 s{sA3}, 0")
            p(f"L_att_slow_loop{k}:")
            self.att_slow_tile()
            p(f"s_add_u32 s{sA3}, s{sA3}, 1")
            p(f"s_cmp_lt_u32 s{sA3}, {n}")
            p(f"s_cbranch_scc1 L_att_slow_loop{k}")
        for t in range(0, 16):
            for f in sd[t]: f()
        run(16)
        self.att_b1()
        for t in range(16, 32):
            for f in sd[t]: f()
        run(16)
        self.att_b2()
        for t in range(32, 64):
            for f in sd[t]: f()
        run(32)
        p("s_branch L_att_fin")

    pWB = (16, 24)
    pB, pA = 32, 64
    pvD = 112
    pvR = (6, 7, 8, 9)
    pG = 10
    pOF = 128
    pT = 100

    P3SLOT = (1, 3, 0, 2, 4, 1, 3, 0, 2)

    def p3_slot(self, g):
        return 32768 * self.P3SLOT[g]

    def p3_setup_dma(self):
        p = self.p
        L, T = self.vLANE, self.avT
        srd(p, SRD_W2, sWD, 1792 * 1024)
        srd(p, SRD_X, sWO, 512 * 1024)
        p(f"v_bfe_u32 v{T}, v{L}, 4, 1")
        p(f"v_lshlrev_b32 v{T}, 2, v{T}")
        p(f"v_and_b32 v{T+1}, 7, v{L}")
        p(f"v_xor_b32 v{T}, v{T}, v{T+1}")
        p(f"v_lshlrev_b32 v{T}, 4, v{T}")
        p(f"s_lshl_b32 s{sA0}, s{sCB}, 7")
        p(f"v_add_u32 v{T}, s{sA0}, v{T}")
        p(f"v_lshrrev_b32 v{T+1}, 3, v{L}")
        p(f"s_lshl_b32 s{sA1}, s{sTR}, 5")
        p(f"v_add_u32 v{T+1}, s{sA1}, v{T+1}          ; 32*(w&1) + (l>>3)")
        p(f"s_mul_i32 s{sA0}, s{sKQ}, 448")
        p(f"v_add_u32 v{T+2}, s{sA0}, v{T+1}")
        p(f"v_lshl_add_u32 v{self.pvD}, v{T+2}, 10, v{T}")
        p(f"s_lshl_b32 s{sA0}, s{sKQ}, 7")
        p(f"v_add_u32 v{T+2}, s{sA0}, v{T+1}")
        p(f"v_lshl_add_u32 v{self.pvD+1}, v{T+2}, 10, v{T}")

    def p3_piece(self, g, e):
        p, q = self.p, self.q
        sl = self.p3_slot(g)
        if g < 7:
            srd_r, v, row0 = SRD_W2, self.pvD, 64 * g
        else:
            srd_r, v, row0 = SRD_X, self.pvD + 1, 64 * (g - 7)
        p(f"s_add_u32 m0, s{sM0K}, {sl + 1024*e}")
        p(f"s_mov_b32 s{sA1}, {(row0 + 8*e) * 1024}")
        p(f"buffer_load_dwordx4 v{v}, {S4(srd_r)}, s{sA1} offen lds")
        q.push(f"p3s{g}")

    def p3_emit(self, t, maxn):
        n = 0
        while self.pending3 and n < maxn:
            g, e = self.pending3[0]
            if g >= 5 and t < 4 * (g - 4) + 2:
                break
            self.pending3.pop(0)
            self.p3_piece(g, e)
            n += 1

    def p3_reads(self, t, cts=(0, 1)):
        p = self.p
        g, sp = t >> 2, t & 3
        sl = self.p3_slot(g)
        hi = 1 if sl >= 65536 else 0
        off = sl - 65536 * hi
        if sl >= 131072:
            hi, off = 2, sl - 131072
        wb = self.pWB[t & 1]
        for ct in cts:
            base = self.pvR[ct] if hi == 0 else self.pvR[2 + ct] if hi == 1 else self.pT + 8 + ct
            for j in range(2):
                p(f"ds_read_b64_tr_b16 {V2(wb + 4*ct + 2*j)}, v{base} offset:{off + (16*sp + 4*j) * 128}")
        return 2 * len(cts)

    def p3(self):
        p, q = self.p, self.q
        L, T = self.vLANE, self.pT
        p("s_waitcnt vmcnt(1)")
        p("s_barrier")
        self.pending3 = [(g, e) for g in range(2, 9) for e in range(4)]
        self.p3_emit(0, 4)
        p(f"v_lshrrev_b32 v{T}, 5, v{L}")
        p(f"v_lshlrev_b32 v{T}, 3, v{T}")
        p(f"v_bfe_u32 v{T+1}, v{L}, 2, 2")
        p(f"v_add_u32 v{T}, v{T}, v{T+1}             ; row")
        p(f"v_lshlrev_b32 v{T}, 7, v{T}              ; *128")
        p(f"v_and_b32 v{T+1}, 1, v{L}")
        p(f"v_lshlrev_b32 v{T+1}, 2, v{T+1}")
        p(f"v_bfe_u32 v{T+2}, v{L}, 4, 1")
        p(f"v_lshl_add_u32 v{T+1}, v{T+2}, 1, v{T+1}")
        p(f"v_bfe_u32 v{T+2}, v{L}, 1, 1")
        p(f"v_add_u32 v{T+1}, v{T+1}, v{T+2}          ; cg")
        p(f"v_lshl_add_u32 v{T}, v{T+1}, 3, v{T}")
        p(f"s_lshl_b32 s{sA0}, s{sKQ}, 13")
        p(f"v_add_u32 v{T}, s{sA0}, v{T}")
        p(f"v_bfe_u32 v{T+2}, v{L}, 3, 1")
        p(f"v_lshlrev_b32 v{T+2}, 6, v{T+2}           ; 64*b")
        p(f"v_add_u32 v{self.pvR[0]}, v{T}, v{T+2}     ; ct0: 64*b")
        p(f"v_xor_b32 v{T+2}, 64, v{T+2}")
        p(f"v_add_u32 v{self.pvR[1]}, v{T}, v{T+2}     ; ct1: 64*(1-b)")
        for ct in range(2):
            p(f"v_add_u32 v{self.pvR[2+ct]}, 0x10000, v{self.pvR[ct]}")
            p(f"v_add_u32 v{T+8+ct}, 0x20000, v{self.pvR[ct]}")
        self.stamp("p3st0")
        self.lgq = []
        for ct in range(2):
            self.lg_issue((0, ct), self.p3_reads(0, (ct,)))
        G = self.pG
        wA, rA0, rA1, oA = 114, 115, 116, 117
        B, A = self.pB, self.pA

        def gate():
            lg = self.LGR
            for i in range(1, 8):
                p(f"v_add_f32 v{lg}, v{lg}, v{lg+i}")
            p(f"v_mov_b32 v{lg+1}, v{lg}")
            p(f"v_permlane32_swap_b32 v{lg}, v{lg+1}")
            p(f"v_add_f32 v{lg}, v{lg}, v{lg+1}")
            p(f"v_mul_f32 v{lg}, {f2u(-1.4426950408889634):#x}, v{lg}")
            p(f"v_exp_f32 v{lg}, v{lg}")
            p(f"v_add_f32 v{lg}, 1.0, v{lg}")
            p(f"v_rcp_f32 v{G}, v{lg}")
            p(f"v_sub_f32 v{G+1}, 1.0, v{G}")

        def addr1():
            p(f"v_and_b32 v{T}, 31, v{L}                 ; n")
            p(f"v_and_b32 v{T+1}, 15, v{L}")
            p(f"v_lshrrev_b32 v{T+2}, 5, v{L}")
            p(f"v_lshlrev_b32 v{T+2}, 2, v{T+2}           ; 4hi")
            p(f"v_xor_b32 v{T+1}, v{T+1}, v{T+2}          ; (n&15) ^ 4hi")
            p(f"v_lshlrev_b32 v{T+1}, 4, v{T+1}")
            p(f"v_lshl_add_u32 v{T}, v{T}, 8, v{T+1}")
            p(f"s_lshl_b32 s{sA0}, s{sW}, 13")
            p(f"v_add_u32 v{wA}, s{sA0}, v{T}")

        def addr2():
            p(f"v_lshrrev_b32 v{T}, 3, v{L}")
            p(f"s_lshl_b32 s{sA0}, s{sKQ}, 3")
            p(f"v_add_u32 v{T}, s{sA0}, v{T}             ; rho")
            p(f"v_and_b32 v{T+1}, 7, v{L}")
            p(f"v_lshlrev_b32 v{T+1}, 1, v{T+1}           ; 2*(l&7)")
            p(f"v_and_b32 v{T+2}, 15, v{T}")
            p(f"v_xor_b32 v{T+1}, v{T+1}, v{T+2}")
            p(f"v_lshlrev_b32 v{T+1}, 4, v{T+1}")
            p(f"v_lshl_add_u32 v{T+1}, v{T}, 8, v{T+1}")
            p(f"s_lshl_b32 s{sA0}, s{sTR}, 13")
            p(f"v_add_u32 v{rA0}, s{sA0}, v{T+1}")
            p(f"v_xor_b32 v{rA1}, 16, v{rA0}              ; e=1")
            p(f"s_lshl_b32 s{sA0}, s{sT32}, 5")
            p(f"v_add_u32 v{T}, s{sA0}, v{T}")
            p(f"v_and_b32 v{T+3}, 7, v{L}")
            p(f"v_lshlrev_b32 v{T+3}, 4, v{T+3}")
            p(f"v_lshl_add_u32 v{T}, v{T}, 10, v{T+3}")
            p(f"s_lshl_b32 s{sA0}, s{sCB}, 7")
            p(f"v_add_u32 v{oA}, s{sA0}, v{T}")
            srd(p, SRD_T, sOUT, 2048 * 1024)

        def f3addr():
            p(f"s_add_u32 s{sA0}, s{sXCD}, {F3}")
            p(f"s_lshl_b32 s{sA0}, s{sA0}, 8")
            p(f"v_mov_b32 v{T+7}, s{sA0}")

        extra = {4: gate, 8: addr1, 9: f3addr, 12: addr2}
        for t in range(36):
            g = t >> 2
            if (t & 3) == 2:
                tags = [f"p3s{g+1}"] if 1 <= g < 8 else []
                if g == 0:
                    tags.append("ost")
                if g == 5:
                    tags.append("f3ld")
                self.stamp(f"qpre{g}")
                if tags:
                    q.wait(p, tags)
                if g == 5:
                    poll(p, q, T + 6, T + 7, SRD_WS, 32, "F3")
                self.stamp(f"qwait{g}")
                p("s_barrier")
                self.stamp(f"qbar{g}")
                if g == 0:
                    p(f"s_add_u32 s{sA0}, s{sQC}, {F3}")
                    p(f"s_lshl_b32 s{sA0}, s{sA0}, 8")
                    p(f"v_mov_b32 v{T}, {OOB:#x}")
                    p(f"v_mov_b32 v{T+1}, s{sA0}")
                    p(f"v_cmp_eq_u32 vcc, 0, v0")
                    p(f"v_cndmask_b32 v{T}, v{T}, v{T+1}, vcc")
                    p(f"v_mov_b32 v{T+1}, 1")
                    p(f"buffer_atomic_add v{T+1}, v{T}, {S4(SRD_WS)}, 0 offen sc1")
                    q.push("f3add")
                    self.stamp("f3")
                if g == 4:
                    p(f"buffer_load_dword v{T+6}, v{T+7}, {S4(SRD_WS)}, 0 offen sc1")
                    q.push("f3ld")
                if g == 5:
                    p(f"s_lshl_b32 s{sA2}, s{sT32}, 5")
                    p(f"s_lshl_b32 s{sA1}, s{sKQ}, 3")
                    p(f"s_add_u32 s{sA2}, s{sA2}, s{sA1}")
                    p(f"s_lshl_b32 s{sA2}, s{sA2}, 10")
                    p(f"s_add_u32 s{sA2}, s{sA2}, {WS_OF:#x}")
                    for j in range(8):
                        o = f" offset:{1024*(j&3)}" if j & 3 else ""
                        p(f"buffer_load_dwordx4 {V4(self.pOF + 4*j)}, v{self.avL16}, {S4(SRD_WS)}, s{sA2} offen{o} sc1")
                        q.push("ofr")
                        if j == 3:
                            p(f"s_add_u32 s{sA2}, s{sA2}, 4096")
            wb = self.pWB[t & 1]
            if t < 28:
                acc, bfr, first = self.pB, self.HFR + 4*t, t == 0
            else:
                acc, bfr, first = self.pA, self.pOF + 4*(t - 28), t == 28
            if t == 28:
                q.wait(p, "ofr")
            for ct in range(2):
                self.lg_wait((t, ct))
                mfma(p, acc + 16*ct, wb + 4*ct, bfr, None if first else acc + 16*ct)
                if t < 35:
                    self.lg_issue((t + 1, ct), self.p3_reads(t + 1, (ct,)))
                if ct == 0:
                    self.p3_emit(t, 2 if t < 4 else 1)
                    if t in extra:
                        extra[t]()
                if t >= 30 and t < 34:
                    k = 2*(t - 30) + ct
                    for r in range(4*k, 4*k + 4):
                        p(f"v_mul_f32 v{B+r}, v{G+1}, v{B+r}")
            if t == 27:
                self.stamp("p3a")
        self.stamp("p3b")
        for ct in range(2):
            for qq in range(4):
                r0 = 16*ct + 4*qq
                for r in range(r0, r0 + 4):
                    p(f"v_fmac_f32 v{B+r}, v{G}, v{A+r}")
                c = 8*ct + qq
                p(f"v_xor_b32 v{T+1+(qq&1)}, {16*c}, v{wA}")
                p(f"ds_write_b128 v{T+1+(qq&1)}, {V4(B + r0)}")
        p("s_waitcnt lgkmcnt(0)")
        p("s_barrier")
        R = 16
        for k in range(4):
            p(f"ds_read_b128 {V4(R + 8*k)}, v{rA0} offset:{16384*k}")
            p(f"ds_read_b128 {V4(R + 8*k + 4)}, v{rA1} offset:{16384*k}")
        p("s_waitcnt lgkmcnt(4)")
        for r in range(8):
            p(f"v_add_f32 v{R+r}, v{R+r}, v{R+8+r}")
        p("s_waitcnt lgkmcnt(0)")
        for r in range(8):
            p(f"v_add_f32 v{R+16+r}, v{R+16+r}, v{R+24+r}")
        for r in range(8):
            p(f"v_add_f32 v{R+r}, v{R+r}, v{R+16+r}")
        for i in range(4):
            p(f"v_cvt_pk_bf16_f32 v{R+8+i}, v{R+2*i}, v{R+2*i+1}")
        p(f"buffer_store_dwordx4 {V4(R+8)}, v{oA}, {S4(SRD_T)}, 0 offen")

    def finish(self):
        p = self.p
        if self.o.get("twice"):
            p("s_waitcnt vmcnt(0) lgkmcnt(0)")
            p("s_barrier")
            p("s_cmp_eq_u32 s0, 0")
            p("s_mov_b32 s0, 1")
            p("s_cbranch_scc1 L_restart")
        if self.o.get("stamps"):
            p("s_waitcnt vmcnt(0)")
            self.stamp("end")
            self.dump_stamps()
        p("L_end:")
        p("s_endpgm")

    def build(self):
        self.prologue()
        self.p1()
        if self.stop_after != "p1":
            self.attention()
            if self.stop_after != "att":
                self.p3()
        self.finish()
        if self.stop_after != "p1":
            self.att_slow_code()
        self.p("L_codeend:")
        n = self.p.fix_hazards()
        return self.p.text(), n


HEADER = """; Kernarg layout (88 bytes): A_x, A_wqkv, A_wo, B_x, B_W_gate, B_W_up, B_W_down, gate_w, out, debug, ws
; @launch grid=(256,1,1) block=(512,1,1) lds=163840
.amdgcn_target "amdgcn-amd-amdhsa--gfx950"
.text
.globl {name}_kernel
.p2align 8
.type {name}_kernel,@function
{name}_kernel:
"""
FOOTER = """.section .rodata,"a"
.p2align 6
.amdhsa_kernel {name}_kernel
  .amdhsa_next_free_vgpr 256
  .amdhsa_next_free_sgpr 102
  .amdhsa_accum_offset 256
  .amdhsa_group_segment_fixed_size 0
  .amdhsa_kernarg_size 88
  .amdhsa_user_sgpr_count 2
  .amdhsa_user_sgpr_kernarg_segment_ptr 1
  .amdhsa_system_sgpr_workgroup_id_x 1
  .amdhsa_float_denorm_mode_32 3
.end_amdhsa_kernel
"""

def generate(stop_after=None, opts=None):
    g = Gen(stop_after, opts)
    body, n = g.build()
    return HEADER.format(name=NAME) + body + FOOTER.format(name=NAME), n, g.p.count()

if __name__ == "__main__":
    import argparse
    ap = argparse.ArgumentParser()
    ap.add_argument("--stop", default=None)
    ap.add_argument("-o", default="cdna_kernels/" + NAME + ".s")
    ap.add_argument("--opt", action="append", default=[])
    ap.add_argument("--stamps", default="")
    a = ap.parse_args()
    opts = {}
    for o in a.opt:
        k, _, v = o.partition("=")
        opts[k] = int(v) if v else 1
    names = a.stamps.split(",") if a.stamps else []
    if names:
        opts["stamps"] = 1
        opts["stampmap"] = {"start": 0, "end": 11}
        for i, nm in enumerate(names):
            opts["stampmap"][nm] = i + 1
    txt, n, cnt = generate(a.stop, opts)
    open(a.o, "w").write(txt)
    print(f"wrote {a.o}: {cnt} instructions, {n} nop pads")
```

```python
import sys, os
sys.path.insert(0, os.path.dirname(os.path.abspath(__file__)))
from asmlib import Prog, VMQ

NAME = "gated_mix__mha_block__glu_gated_reglu__prompt"

WS_CNT = 0x0
WS_NRMQ = 0x4000
WS_NRMK = 0x6000
WS_LG = 0x10000
WS_QF = 0x200000
WS_KF = 0x400000
WS_VF = 0x600000
WS_OF = 0x800000
WS_HF = 0xA00000
WS_SIZE = 0x1100000
OOB = 0x7FFF0000
F1, F2, F3 = 0, 16, 32

CSCALE = 0.25 * 1.4426950408889634
import struct
def f2u(x): return struct.unpack("<I", struct.pack("<f", x))[0]

sX, sWQKV, sWO, sWG, sWU, sWD, sGW, sOUT, sDBG, sWS = 4, 6, 8, 12, 14, 16, 18, 20, 22, 24
SRD_X, SRD_WS, SRD_G, SRD_DBG, SRD_T, SRD_W1, SRD_U = 28, 32, 36, 40, 44, 96, 4
SRD_W2 = SRD_G
sD1, sD2, sM0K, sM0X, sD0, sM0P, sCB2 = 0, 1, 3, 10, 11, 26, 27
sM0X2 = 26
sW, sRB, sAB, sRT, sCH, sTILE, sXCD, sSLOT = 48, 49, 50, 51, 52, 53, 54, 55
sT0, sT1, sT2, sT3, sT4, sT5 = 56, 57, 58, 59, 60, 61
sADV = 62
sH, sQC = 63, 64
sCS = 65
sPOLL = 66
sTYP = 67
sHFB = 68
sW1OFF, sKVB = 100, 101
sQB, sLGO, sHB1 = 18, 19, 22
sEXP, sLOC = 23, 12
sTYPC, sHLD, sLGL = 23, 24, 25
sA0, sA1, sA2, sA3 = 56, 57, 58, 59
sI, sMODE, sT32, sRT64, sCB, sKQ, sTR = 60, 61, 62, 67, 68, 10, 11

def srd(p, dst, ptr, size):
    p(f"s_mov_b32 s{dst}, s{ptr}")
    p(f"s_mov_b32 s{dst+1}, s{ptr+1}")
    p(f"s_mov_b32 s{dst+2}, {size:#x}")
    p(f"s_mov_b32 s{dst+3}, 0x20000")

def S4(r): return f"s[{r}:{r+3}]"
def V4(r): return f"v[{r}:{r+3}]"
def V2(r): return f"v[{r}:{r+1}]"
def V16(r): return f"v[{r}:{r+15}]"

def mfma(p, d, a, b, c):
    cs = "0" if c is None else V16(c)
    p(f"v_mfma_f32_32x32x16_bf16 {V16(d)}, {V4(a)}, {V4(b)}, {cs}")

_uid = [0]
def uid():
    _uid[0] += 1
    return _uid[0]

def poll(p, q, vflag, vaddr, srd_reg, target, what):
    n = uid()
    p(f"v_readfirstlane_b32 s{sT0}, v{vflag}")
    p(f"s_cmp_ge_u32 s{sT0}, {target}")
    p(f"s_cbranch_scc1 L_ok{n}")
    p(f"s_mov_b32 s{sPOLL}, 0")
    p(f"L_poll{n}:")
    p(f"buffer_load_dword v{vflag}, v{vaddr}, {S4(srd_reg)}, 0 offen sc1")
    p("s_waitcnt vmcnt(0)")
    p(f"v_readfirstlane_b32 s{sT0}, v{vflag}")
    p(f"s_add_u32 s{sPOLL}, s{sPOLL}, 1")
    p(f"s_cmp_ge_u32 s{sPOLL}, 0x80000")
    p(f"s_cbranch_scc1 L_ok{n}")
    p(f"s_cmp_lt_u32 s{sT0}, {target}")
    p(f"s_cbranch_scc1 L_poll{n}")
    p(f"L_ok{n}:")


class Gen:
    def __init__(self, stop_after=None, opts=None):
        self.p = Prog()
        self.q = VMQ()
        self.stop_after = stop_after
        self.o = opts or {}

    def stamp(self, name):
        if self.o.get("stamps"):
            i = self.o["stampmap"].get(name)
            if i is not None:
                ins = "s_memrealtime" if self.o.get("rt") else "s_memtime"
                self.p(f"{ins} s[{72+2*i}:{73+2*i}] ; stamp {name}")

    def dump_stamps(self):
        if not self.o.get("stamps"):
            return
        p = self.p
        p("s_memrealtime s[70:71]")
        p("s_waitcnt lgkmcnt(0)")
        p(f"s_lshl_b32 s{sT0}, s2, 3")
        p(f"s_add_u32 s{sT0}, s{sT0}, s{sW}")
        p(f"s_lshl_b32 s{sT0}, s{sT0}, 6")
        p(f"s_add_u32 s{sT0}, s{sT0}, 0x80000")
        for i in range(12):
            p(f"v_mov_b32 v{16+i}, s{72+2*i}")
        p("v_mov_b32 v28, s69")
        p("v_mov_b32 v29, s70")
        p("v_mov_b32 v30, 0")
        p("v_mov_b32 v31, 0")
        p("v_mov_b32 v32, 0")
        p("s_mov_b64 exec, 1")
        for i in range(4):
            p(f"buffer_store_dwordx4 {V4(16+4*i)}, v32, {S4(SRD_WS)}, s{sT0} offen offset:{16*i}")
        p("s_mov_b64 exec, -1")

    def prologue(self):
        p = self.p
        p("s_cmp_ge_u32 s2, 256")
        p("s_cbranch_scc1 L_end")
        if self.o.get("stamps"):
            p("s_memrealtime s[70:71]")
        p(f"s_load_dwordx4 s[4:7], s[0:1], 0")
        p(f"s_load_dwordx2 s[8:9], s[0:1], 16")
        p(f"s_load_dwordx4 s[12:15], s[0:1], 32")
        p(f"s_load_dwordx4 s[16:19], s[0:1], 48")
        p(f"s_load_dwordx4 s[20:23], s[0:1], 64")
        p(f"s_load_dwordx2 s[24:25], s[0:1], 80")
        if self.o.get("pf", 1):
            p("s_getpc_b64 s[26:27]")
            p("L_pfbase:")
            p("s_lshr_b32 s3, s2, 3")
            p("v_lshrrev_b32 v1, 6, v0")
            p("v_lshl_add_u32 v1, s3, 3, v1")
            p("v_and_b32 v2, 3, v0")
            p("v_lshl_add_u32 v1, v1, 2, v2")
            p("v_min_u32 v1, (L_codeend-L_pfbase)/64-1, v1")
            p("v_lshlrev_b32 v1, 6, v1")
            p("global_load_dword v127, v1, s[26:27]")
            self.q.push("pf")
        p("v_lshrrev_b32 v1, 6, v0")
        p("v_and_b32 v2, 63, v0            ; v2 = lane")
        p(f"v_readfirstlane_b32 s{sW}, v1")
        p(f"s_and_b32 s{sXCD}, s2, 7")
        p(f"s_lshr_b32 s{sSLOT}, s2, 3")
        if self.o.get("local", 1):
            p(f"s_and_b32 s{sRB}, s{sSLOT}, 15")
            p(f"s_lshr_b32 s{sTYP}, s{sSLOT}, 4")
            p(f"s_mov_b32 s{sAB}, s{sXCD}")
        else:
            p(f"s_and_b32 s{sT0}, s{sXCD}, 1")
            p(f"s_lshl_b32 s{sT0}, s{sT0}, 3")
            p(f"s_and_b32 s{sT1}, s{sSLOT}, 7")
            p(f"s_add_u32 s{sRB}, s{sT0}, s{sT1}")
            p(f"s_lshr_b32 s{sTYP}, s{sSLOT}, 4")
            p(f"s_and_b32 s{sT0}, s{sXCD}, 6              ; 2*(xcd>>1)")
            p(f"s_bfe_u32 s{sT1}, s{sSLOT}, 0x10003       ; (slot>>3)&1")
            p(f"s_add_u32 s{sAB}, s{sT0}, s{sT1}          ; a / b = 0..7")
        p(f"s_and_b32 s{sRT}, s{sW}, 3")
        p(f"s_lshr_b32 s{sCH}, s{sW}, 2")
        p(f"s_lshl_b32 s{sT0}, s{sRB}, 2")
        p(f"s_add_u32 s{sTILE}, s{sT0}, s{sRT}")
        p(f"s_lshl_b32 s{sT0}, s{sXCD}, 2")
        p(f"s_and_b32 s{sT1}, s{sSLOT}, 3")
        p(f"s_add_u32 s{sH}, s{sT0}, s{sT1}           ; attention head")
        p(f"s_lshr_b32 s{sQC}, s{sSLOT}, 2           ; attention q chunk")
        p(f"s_mov_b32 s{sCS}, {f2u(CSCALE):#x}")
        if self.o.get("twice"):
            p("s_waitcnt lgkmcnt(0)")
            p("s_mov_b32 s0, 0")
            p("s_waitcnt lgkmcnt(0)")
            p("L_restart:")
        self.p1_setup_early()
        p("s_waitcnt lgkmcnt(0)")
        if self.o.get("stamps"):
            p("s_mov_b32 s69, s70")
            for i in range(12):
                p(f"s_mov_b32 s{72+2*i}, 0")
        self.stamp("start")
        srd(p, SRD_X, sX, 2048 * 1024)
        self.p1_setup_srd()

    vLANE = 2
    vXD = (3, 4)
    vW1 = (5, 6, 7)
    vW2 = (8, 9)
    vB = (10, 11, 12)
    vL16 = 13
    vP = (14, 15)
    WB = (16, 28)
    vXR = (40, 41, 42, 43)
    vFLAG, vFADDR, vONE, vDBGA = 44, 45, 46, 47
    TMP = 48
    ACC = 64
    TMP2 = 112
    X = 128
    SLOT1 = 40960
    AREA2 = {8: 0, 9: 16384, 10: 40960, 11: 57344, 12: 98304, 13: 81920, 14: 131072, 15: 147456}
    KVAREA = {16+j: 32768 + 16384*j for j in range(4)}
    KVAREA.update({20+j: 98304 + 16384*j for j in range(4)})
    ONES = 0

    def area(self, g):
        if g < 8:
            return self.SLOT1 * (g % 4)
        if g < 16:
            return self.AREA2[g]
        return self.KVAREA[g]

    def window(self, g):
        if g < 8:
            return 81920 if (g % 4) >= 2 else 0
        return 131072 if self.AREA2[g] >= 131072 else 81920 if self.AREA2[g] >= 81920 else 0

    def p1_setup_early(self):
        p = self.p
        L = self.vLANE
        t0, t1, t2, t3 = 48, 49, 50, 51
        p(f"v_lshlrev_b32 v{self.vL16}, 4, v{L}")
        p(f"s_lshl_b32 s{sT0}, s{sRB}, 7")
        p(f"s_lshl_b32 s{sT1}, s{sW}, 4")
        p(f"s_add_u32 s{sT0}, s{sT0}, s{sT1}")
        p(f"v_lshrrev_b32 v{t1}, 3, v{L}             ; l>>3")
        p(f"v_add_u32 v{t2}, s{sT0}, v{t1}           ; row (e=0)")
        p(f"v_lshrrev_b32 v{t0}, 4, v{L}")
        p(f"v_and_b32 v{t3}, 7, v{L}                 ; l&7")
        p(f"v_xor_b32 v{t0}, v{t0}, v{t3}            ; piece (e=0)")
        p(f"v_lshlrev_b32 v{t0}, 4, v{t0}")
        p(f"v_lshl_add_u32 v{self.vXD[0]}, v{t2}, 10, v{t0}")
        p(f"v_xor_b32 v{t0}, 64, v{self.vXD[0]}        ; piece ^ 4")
        p(f"v_add_u32 v{self.vXD[1]}, 8192, v{t0}      ; +8 rows")
        p(f"v_bfe_u32 v{t0}, v{L}, 4, 1")
        p(f"v_lshlrev_b32 v{t0}, 2, v{t0}")
        p(f"v_xor_b32 v{t3}, v{t3}, v{t0}")
        p(f"v_lshlrev_b32 v{t3}, 4, v{t3}")
        p(f"s_lshl_b32 s{sT0}, s{sW}, 3")
        p(f"v_add_u32 v{t1}, s{sT0}, v{t1}           ; 8w + (l>>3)")
        p(f"s_mul_i32 s{sT0}, s{sAB}, 320")
        p(f"s_add_u32 s{sT0}, s{sT0}, 1024")
        p(f"s_and_b32 s{sT1}, s{sAB}, 1")
        p(f"s_mul_i32 s{sT2}, s{sT1}, 192")
        p(f"s_add_u32 s{sCB2}, s{sT0}, s{sT2}")
        p(f"s_xor_b32 s{sT1}, s{sT1}, 1")
        p(f"s_lshl_b32 s{sT1}, s{sT1}, 7")
        p(f"s_add_u32 s{sT4}, s{sT0}, s{sT1}")
        p(f"s_lshl_b32 s{sT0}, s{sAB}, 7")
        p(f"s_cmp_eq_u32 s{sTYP}, 0")
        p(f"s_cselect_b32 s{sCB2}, s{sT0}, s{sCB2}")
        p(f"v_mul_u32_u24 v{t0}, 3584, v{t1}")
        p(f"v_add3_u32 v{self.vW2[0]}, v{t0}, v{t3}, s{sCB2}")
        p(f"v_xor_b32 v{t2}, 32, v{t3}")
        p(f"v_add3_u32 v{self.vW2[1]}, v{t0}, v{t2}, s{sCB2}")
        p(f"s_cbranch_scc0 L_setupB")
        p(f"v_mul_u32_u24 v{t0}, 3072, v{t1}")
        p(f"v_add3_u32 v{self.vW1[0]}, v{t0}, v{t3}, s{sT0}")
        p(f"v_add3_u32 v{t2}, v{t0}, v{t2}, s{sT0}")
        p(f"v_add_u32 v{self.vW1[1]}, 1024, v{t2}")
        p(f"v_add_u32 v{self.vW1[2]}, 2048, v{self.vW1[0]}")
        p(f"s_lshl_b32 s{sD0}, s{sW}, 10")
        p(f"s_add_u32 s{sD0}, s{sD0}, 16384")
        p(f"s_movk_i32 s{sT5}, 8192")
        p(f"s_mov_b32 s{sADV}, {64*3072}")
        p("s_branch L_setupJ")
        p("L_setupB:")
        p(f"s_and_b32 s{sT0}, s{sW}, 3")
        p(f"s_lshl_b32 s{sT1}, s{sT0}, 4             ; 16*wq")
        p(f"s_mov_b32 s{sT2}, 43691")
        p(f"s_lshl_b32 s{sT3}, s{sCH}, 1")
        for e in range(3):
            r = self.vW1[e]
            p(f"v_add_u32 v{t0}, {64*e}, v{L}           ; j")
            p(f"v_mul_u32_u24 v{t1}, s{sT2}, v{t0}")
            p(f"v_lshrrev_b32 v{t1}, 19, v{t1}          ; j/12")
            p(f"v_mul_u32_u24 v{t2}, 12, v{t1}")
            p(f"v_sub_u32 v{t2}, v{t0}, v{t2}           ; j%12")
            p(f"v_xor_b32 v{t2}, s{sT3}, v{t2}")
            p(f"v_add_u32 v{t1}, s{sT1}, v{t1}")
            p(f"v_mul_u32_u24 v{t1}, 3584, v{t1}")
            p(f"v_lshl_add_u32 v{t1}, v{t2}, 4, v{t1}")
            p(f"v_add_u32 v{r}, s{sT4}, v{t1}")
        p(f"s_mul_i32 s{sD0}, s{sT0}, 3072")
        p(f"s_mul_i32 s{sT1}, s{sCH}, 12288")
        p(f"s_add_u32 s{sD0}, s{sD0}, s{sT1}")
        p(f"s_add_u32 s{sD0}, s{sD0}, 16384")
        p(f"s_movk_i32 s{sT5}, 1024")
        p(f"s_mov_b32 s{sADV}, {64*3584}")
        p(f"s_lshr_b32 s{sHFB}, s{sT4}, 5")
        p("L_setupJ:")
        p(f"s_lshl_b32 s{sM0X}, s{sW}, 11")
        p(f"s_lshl_b32 s{sM0K}, s{sW}, 12")
        p(f"s_lshl_b32 s{sM0P}, s{sW}, 10")
        p(f"s_mov_b32 s{sW1OFF}, 0")

    def p1_setup_srd(self):
        p = self.p
        p(f"s_add_u32 s{sD1}, s{sD0}, s{sT5}")
        p(f"s_add_u32 s{sD2}, s{sD1}, s{sT5}")
        p(f"s_cmp_eq_u32 s{sCH}, 0")
        p(f"s_cselect_b32 s{SRD_W1}, s{sWG}, s{sWU}")
        p(f"s_cselect_b32 s{SRD_W1+1}, s{sWG+1}, s{sWU+1}")
        p(f"s_mov_b32 s{SRD_W1+2}, {512*3584:#x}")
        p(f"s_cmp_eq_u32 s{sTYP}, 0")
        p(f"s_cselect_b32 s{SRD_W1}, s{sWQKV}, s{SRD_W1}")
        p(f"s_cselect_b32 s{SRD_W1+1}, s{sWQKV+1}, s{SRD_W1+1}")
        p(f"s_cselect_b32 s{SRD_W1+2}, {512*3072:#x}, s{SRD_W1+2}")
        p(f"s_mov_b32 s{SRD_W1+3}, 0x20000")

    def p1_setup_late(self):
        p, q = self.p, self.q
        L = self.vLANE
        t0, t1, t2, t3 = 48, 49, 50, 51
        srd(p, SRD_G, sWG, 512 * 3584)
        srd(p, SRD_U, sWU, 512 * 3584)
        srd(p, SRD_T, sGW, 1024)
        p(f"s_lshl_b32 s{sT0}, s{sTYP}, 3")
        p(f"s_add_u32 s{sT0}, s{sT0}, s{sAB}")
        p(f"s_lshl_b32 s{sT1}, s{sT0}, 6            ; *64 bytes")
        p(f"v_lshrrev_b32 v{t0}, 5, v{L}             ; hh")
        p(f"v_lshlrev_b32 v{t0}, 4, v{t0}            ; hh*16")
        p(f"v_add_u32 v{t0}, s{sT1}, v{t0}")
        p(f"buffer_load_dwordx4 {V4(112)}, v{t0}, {S4(SRD_T)}, 0 offen")
        p(f"buffer_load_dwordx4 {V4(116)}, v{t0}, {S4(SRD_T)}, 0 offen offset:32")
        q.push("lgld", 2)
        rowl, sig, grp = 52, 53, 54
        p(f"v_lshrrev_b32 v{t0}, 5, v{L}")
        p(f"v_lshlrev_b32 v{t0}, 3, v{t0}")
        p(f"v_bfe_u32 v{t1}, v{L}, 2, 2")
        p(f"v_add_u32 v{rowl}, v{t0}, v{t1}")
        p(f"v_and_b32 v{t0}, 1, v{L}")
        p(f"v_lshlrev_b32 v{t0}, 4, v{t0}            ; (g&1)*16")
        p(f"v_bfe_u32 v{t1}, v{L}, 1, 1")
        p(f"v_lshl_add_u32 v{sig}, v{t1}, 3, v{t0}    ; 8*sigma")
        p(f"v_bfe_u32 v{grp}, v{L}, 4, 1")
        p(f"v_bfe_u32 v{t0}, v{L}, 3, 1")
        p(f"v_xor_b32 v{t0}, s{sCH}, v{t0}")
        p(f"v_lshlrev_b32 v{t0}, 6, v{t0}")
        p(f"v_lshl_add_u32 v{t0}, v{rowl}, 7, v{t0}")
        p(f"v_add_u32 v{t0}, v{t0}, v{sig}            ; c128")
        p(f"v_mul_u32_u24 v{t1}, {8192+32}, v{grp}")
        p(f"v_add_u32 v{self.vP[0]}, v{t0}, v{t1}")
        p(f"v_xor_b32 v{self.vP[1]}, 32, v{self.vP[0]}")
        p(f"s_cmp_eq_u32 s{sTYP}, 0")
        p(f"s_cbranch_scc0 L_lateB")
        p(f"v_add_u32 v{self.vB[0]}, 16384, v{self.vP[0]}")
        p(f"v_add_u32 v{self.vB[1]}, 16384, v{self.vP[1]}")
        p(f"v_lshl_add_u32 v{t1}, v{grp}, 5, v{t0}")
        p(f"v_add_u32 v{self.vB[2]}, 32768, v{t1}")
        p("s_branch L_lateJ")
        p("L_lateB:")
        p(f"s_mul_i32 s{sT0}, s{sCH}, 96")
        p(f"s_add_u32 s{sT0}, s{sT0}, 16384")
        p(f"v_mul_u32_u24 v{t1}, 192, v{rowl}")
        p(f"v_add3_u32 v{t1}, v{t1}, v{sig}, s{sT0}")
        p(f"s_lshl_b32 s{sT1}, s{sCH}, 6")
        p(f"s_sub_u32 s{sT1}, {12288+32}, s{sT1}")
        p(f"s_sub_u32 s{sT2}, {2*12288}, s{sT1}")
        p(f"v_mul_u32_u24 v{t2}, s{sT1}, v{grp}")
        p(f"v_add_u32 v{self.vB[0]}, v{t1}, v{t2}")
        p(f"v_mul_u32_u24 v{t2}, s{sT2}, v{grp}")
        p(f"v_add_u32 v{self.vB[1]}, v{t1}, v{t2}")
        p(f"v_mov_b32 v{self.vB[2]}, v{self.vB[0]}")
        p("L_lateJ:")
        p(f"v_and_b32 v{t0}, 31, v{L}")
        p(f"s_lshl_b32 s{sT0}, s{sRT}, 5")
        p(f"v_add_u32 v{t1}, s{sT0}, v{t0}")
        p(f"v_lshlrev_b32 v{t1}, 7, v{t1}            ; row*128")
        p(f"v_bfe_u32 v{t0}, v{L}, 1, 3")
        p(f"v_lshrrev_b32 v{t2}, 5, v{L}")
        p(f"v_xor_b32 v{t0}, v{t0}, v{t2}            ; hh ^ f")
        p(f"v_lshl_add_u32 v{t1}, v{t0}, 4, v{t1}")
        for k in range(4):
            p(f"v_xor_b32 v{self.vXR[k]}, {32*k}, v{t1}")
        p(f"v_mov_b32 v{self.vONE}, 1")
        p(f"v_mov_b32 v{self.vDBGA}, 0")
        self.win1 = 0
        self.win2 = 0

    def counter_zero(self):
        p = self.p
        L = self.vLANE
        t0, t1 = 48, 49
        p("s_add_u32 s%d, s2, s%d" % (sT0, sW))
        p(f"s_cmp_eq_u32 s{sT0}, 0")
        p(f"s_cselect_b32 s{sT0}, 0, {OOB:#x}")
        p(f"v_lshlrev_b32 v{t0}, 8, v{L}")
        p(f"v_add_u32 v{t0}, s{sT0}, v{t0}")
        p(f"v_mov_b32 v{t1}, 0")
        p(f"buffer_store_dword v{t1}, v{t0}, {S4(SRD_WS)}, 0 offen sc1")
        self.q.push("cz")

    def census_add(self):
        p = self.p
        t0, t1 = 48, 49
        p(f"v_readfirstlane_b32 s{sT3}, v{self.vFLAG}")
        p(f"s_getreg_b32 s{sT0}, hwreg(HW_REG_XCC_ID, 0, 4)")
        p(f"s_mul_i32 s{sT1}, s{sT0}, s{sT0}")
        p(f"s_lshl_b32 s{sT1}, s{sT1}, 16")
        p(f"s_lshl_b32 s{sT2}, s{sT0}, 8")
        p(f"s_add_u32 s{sT1}, s{sT1}, s{sT2}")
        p(f"s_add_u32 s{sT1}, s{sT1}, 1")
        p(f"s_lshl_b32 s{sEXP}, s{sT1}, 5")
        p(f"s_add_u32 s{sT2}, s{sXCD}, 48")
        p(f"s_lshl_b32 s{sT2}, s{sT2}, 8")
        p(f"s_cmp_ge_u32 s{sT3}, 1")
        p(f"s_cselect_b32 s{sT2}, s{sT2}, {OOB:#x}")
        p(f"s_cselect_b32 s{sLOC}, 1, 0")
        p(f"v_mov_b32 v{t0}, {OOB:#x}")
        p(f"v_mov_b32 v{t1}, s{sT2}")
        p(f"v_cmp_eq_u32 vcc, 0, v0")
        p(f"v_cndmask_b32 v{t0}, v{t0}, v{t1}, vcc")
        p(f"v_mov_b32 v{t1}, s{sT1}")
        p(f"buffer_atomic_add v{t1}, v{t0}, {S4(SRD_WS)}, 0 offen sc1")
        self.q.push("cadd")

    def census_load(self):
        p = self.p
        p(f"s_add_u32 s{sT2}, s{sXCD}, 48")
        p(f"s_lshl_b32 s{sT2}, s{sT2}, 8")
        p(f"v_mov_b32 v{self.vFADDR}, s{sT2}")
        p(f"buffer_load_dword v{self.vFLAG}, v{self.vFADDR}, {S4(SRD_WS)}, 0 offen sc1")
        self.q.push("cld")

    def census_check(self):
        p = self.p
        self.q.wait(p, "cld")
        p(f"v_readfirstlane_b32 s{sT0}, v{self.vFLAG}")
        p(f"s_cmp_eq_u32 s{sT0}, s{sEXP}")
        p(f"s_cselect_b32 s{sLOC}, s{sLOC}, 0")
        if self.o.get("nolocal"):
            p(f"s_mov_b32 s{sLOC}, 0")

    def counter_flag(self):
        p = self.p
        t0, t1 = 48, 49
        p(f"s_cmp_eq_u32 s2, 0")
        p(f"s_cselect_b32 s{sT0}, 0, {OOB:#x}")
        p(f"v_mov_b32 v{t0}, {OOB:#x}")
        p(f"v_mov_b32 v{t1}, s{sT0}")
        p(f"v_cmp_eq_u32 vcc, 0, v0")
        p(f"v_cndmask_b32 v{t0}, v{t0}, v{t1}, vcc")
        p(f"v_mov_b32 v{t1}, 1")
        p(f"buffer_store_dword v{t1}, v{t0}, {S4(SRD_DBG)}, 0 offen sc1")
        self.q.push("cf")

    def p1_piece(self, g, e):
        p, q = self.p, self.q
        ar = self.area(g)
        if g < 8:
            if e < 2:
                p(f"s_add_u32 m0, s{sM0X}, {ar + 1024*e}")
                p(f"s_movk_i32 s{sT1}, {128*g}")
                p(f"buffer_load_dwordx4 v{self.vXD[e]}, {S4(SRD_X)}, s{sT1} offen lds")
            else:
                d = (sD0, sD1, sD2)[e - 2]
                p(f"s_add_u32 m0, s{d}, {ar}")
                if e == 2 and g > 0:
                    p(f"s_add_u32 s{sW1OFF}, s{sW1OFF}, s{sADV}")
                else:
                    p("s_nop 0")
                p(f"buffer_load_dwordx4 v{self.vW1[e-2]}, {S4(SRD_W1)}, s{sW1OFF} offen lds")
        elif g < 16:
            p(f"s_add_u32 m0, s{sM0P}, {ar + 8192*e}")
            p(f"s_mov_b32 s{sT1}, {229376*(g-8)}")
            p(f"buffer_load_dwordx4 v{self.vW2[e]}, {S4(SRD_G if e == 0 else SRD_U)}, s{sT1} offen lds")
        else:
            j = (g - 16) & 3
            src = (WS_KF if g < 20 else WS_VF) + 16384 * j + 1024 * e
            p(f"s_add_u32 m0, s{sM0X2}, {ar + 1024*e}")
            p(f"s_add_u32 s{sT1}, s{sKVB}, {src:#x}")
            p(f"buffer_load_dwordx4 v{self.avL16}, {S4(SRD_WS)}, s{sT1} offen sc1 lds")
        q.push(f"st{g}")

    def earliest(self, g):
        if g >= 8:
            return {8: 22, 9: 22, 10: 26, 11: 26, 12: 30, 13: 30, 14: 36, 15: 36}[g]
        return 4 * (g - 3) + 2

    def npieces(self, g):
        return 5 if g < 8 else 2

    def emit_pieces(self, step, maxn):
        n = 0
        while self.pending and n < maxn:
            g, e = self.pending[0]
            if g == "aq":
                if step < 58:
                    break
                self.pending.pop(0)
                if self.stop_after != "p1":
                    self.att_loads()
                continue
            if 4 <= g < 16 and step < self.earliest(g):
                break
            if g >= 16 and step < 58:
                break
            if g >= 16 and self.stop_after == "p1":
                self.pending.pop(0)
                continue
            self.pending.pop(0)
            self.p1_piece(g, e)
            n += 1

    def rebase(self, regs, cur, want):
        if want != cur:
            d = want - cur
            for r in regs:
                if d > 0:
                    self.p(f"v_add_u32 v{r}, {d:#x}, v{r}")
                else:
                    self.p(f"v_subrev_u32 v{r}, {-d:#x}, v{r}")
        return want

    def p1_reads(self, ps, s, typ, part=None):
        p = self.p
        g = (s >> 2) + (0 if ps == 1 else 8)
        sp = s & 3
        wb = self.WB[s & 1]
        n = 0
        nt = 3 if ps == 1 else 2
        parts = range(nt) if part is None else [part]
        for t in parts:
            if t >= nt:
                continue
            if ps == 1:
                if t == 0:
                    self.win1 = self.rebase(list(self.vXR) + list(self.vB), self.win1, self.window(g))
                off = self.area(g) - self.win1
                if t == 0:
                    p(f"ds_read_b128 {V4(self.X + 4*s)}, v{self.vXR[sp]} offset:{off}")
                    n += 1
                for j in range(2):
                    if typ == 0:
                        p(f"ds_read_b64_tr_b16 {V2(wb + 4*t + 2*j)}, v{self.vB[t]} offset:{off + (16*sp + 4*j)*128}")
                    else:
                        p(f"ds_read_b64_tr_b16 {V2(wb + 4*t + 2*j)}, v{self.vB[t]} offset:{off + (16*sp + 4*j)*192 + 32*t}")
                    n += 1
            else:
                if t == 0:
                    self.win2 = self.rebase(list(self.vP), self.win2, self.window(g))
                off = self.area(g) - self.win2
                for j in range(2):
                    p(f"ds_read_b64_tr_b16 {V2(wb + 4*t + 2*j)}, v{self.vP[t]} offset:{off + (16*sp + 4*j)*128}")
                    n += 1
        return n

    def p1_midstage(self, g):
        p, q = self.p, self.q
        T = 116
        tags = [f"st{g+1}"] if g + 1 < 16 else []
        if g == 1:
            tags += ["cz"]
        if g == 4 and self.o.get("local", 1):
            tags += ["dbg0"]
        if g == 10:
            tags += ["e1st", "dbg"]
        if g == 14:
            tags += ["f1"]
        self.stamp(f"pre{g}")
        if tags:
            q.wait(p, tags)
        if g == 14:
            poll(p, q, self.vFLAG, self.vFADDR, SRD_WS, 16, "F1")
        self.stamp(f"wait{g}")
        p("s_barrier")
        self.stamp(f"bar{g}")
        if g == 1:
            self.counter_flag()
        if g == 10:
            poll(p, q, self.vFLAG, self.vDBGA, SRD_DBG, 1, "init")
            if self.cur_typ == 0:
                p(f"s_lshl_b32 s{sT0}, s{sAB}, 8")
                p(f"v_mov_b32 v{self.vFADDR}, {OOB:#x}")
                p(f"v_mov_b32 v{T}, s{sT0}")
                p(f"v_cmp_eq_u32 vcc, 0, v0")
                p(f"v_cndmask_b32 v{self.vFADDR}, v{self.vFADDR}, v{T}, vcc")
                self.stamp("f1iss")
                p(f"buffer_atomic_add v{self.vONE}, v{self.vFADDR}, {S4(SRD_WS)}, 0 offen sc1")
                q.push("f1add")
                if self.o.get("diagf1"):
                    p("s_waitcnt vmcnt(0)")
                    self.stamp("f1done")
        if self.o.get("local", 1):
            if g == 2:
                p(f"buffer_load_dword v{self.vFLAG}, v{self.vDBGA}, {S4(SRD_DBG)}, 0 offen sc1")
                q.push("dbg0")
            if g == 4:
                self.census_add()
            if g == 7 and self.cur_typ == 0:
                self.census_load()
        if g == 8:
            p(f"buffer_load_dword v{self.vFLAG}, v{self.vDBGA}, {S4(SRD_DBG)}, 0 offen sc1")
            q.push("dbg")
        if g == 13:
            p(f"v_bfe_u32 v{T+2}, v0, 1, 4")
            p(f"v_and_b32 v{T+2}, 11, v{T+2}")
            p(f"v_cmp_eq_u32 vcc, 0, v{T+2}")
            p(f"v_mov_b32 v{T+1}, 0x3f803f80")
            p(f"v_cndmask_b32 v{T}, 0, v{T+1}, vcc")
            p(f"v_lshlrev_b32 v{T+2}, 3, v0")
            p(f"v_mov_b32 v{T+1}, v{T}")
            p(f"ds_write_b64 v{T+2}, {V2(T)} offset:{self.ONES}")
            self.lg_issue("ones", 1)
            p(f"s_lshr_b32 s{sT0}, s{sH}, 2")
            p(f"s_lshl_b32 s{sT0}, s{sT0}, 8")
            p(f"v_mov_b32 v{self.vFADDR}, s{sT0}")
            p(f"buffer_load_dword v{self.vFLAG}, v{self.vFADDR}, {S4(SRD_WS)}, 0 offen sc1")
            q.push("f1")
            p(f"v_lshlrev_b32 v{self.avL16}, 4, v{self.vLANE}")
            p(f"s_lshl_b32 s{sM0X2}, s{sW}, 11")
            p(f"s_lshl_b32 s{sKVB}, s{sH}, 16")
            p(f"s_add_u32 s{sKVB}, s{sKVB}, s{sM0X2}")
        if g == 14 and not self.o.get("nodma"):
            self.emit_pieces(58, 6)

    def lg_issue(self, tag, n):
        self.lgq += [tag] * n

    def lg_wait(self, tag):
        last = max((i for i, t in enumerate(self.lgq) if t == tag), default=-1)
        if last < 0:
            return
        n = len(self.lgq) - 1 - last
        self.p(f"s_waitcnt lgkmcnt({min(n, 15)})")
        self.lgq = self.lgq[last + 1:]

    def p1_pass(self, ps, typ):
        p, q = self.p, self.q
        nt = 3 if ps == 1 else 2
        acc = [self.ACC + 16*t for t in range(nt)]
        comp = not self.o.get("nocompute")
        for s in range(32):
            gs = s + (0 if ps == 1 else 32)
            g = gs >> 2
            if (s & 3) == 2:
                self.p1_midstage(g)
            nxt = None
            if s < 31:
                nxt = (ps, s + 1)
            elif ps == 1:
                nxt = (2, 0)
            wb = self.WB[s & 1]
            xs = self.X + 4*s
            for t in range(nt):
                c = None if s == 0 else acc[t]
                if comp:
                    self.lg_wait((ps, s, t))
                    if self.o.get("nomfma"):
                        pass
                    elif ps == 1 and t == 2 and typ == 0:
                        mfma(p, acc[t], xs, wb + 4*t, c)
                    else:
                        mfma(p, acc[t], wb + 4*t, xs, c)
                    if nxt and not self.o.get("nolds"):
                        n = self.p1_reads(nxt[0], nxt[1], typ, t)
                        self.lg_issue((nxt[0], nxt[1], t), n)
                if not self.o.get("nodma"):
                    if t == 0:
                        self.emit_pieces(gs, 1)
                    elif t == 1 and (ps == 1 or gs >= 58 or gs < 46):
                        self.emit_pieces(gs, 1)
                if ps == 2 and (s, t) in self.deferred:
                    self.deferred.pop((s, t))()

    def p1_first_reads(self, typ):
        self.lgq = []
        for t in range(3):
            n = self.p1_reads(1, 0, typ, t)
            self.lg_issue((1, 0, t), n)

    def store_ws(self, vdata, voff, soff_reg, tag, offset=0):
        o = f" offset:{offset}" if offset else ""
        self.p(f"buffer_store_dwordx4 {V4(vdata)}, v{voff}, {S4(SRD_WS)}, s{soff_reg} offen{o} sc1")
        self.q.push(tag)

    def relu_mul_store(self, a, tmp, unit, tag):
        p = self.p
        for r in range(8):
            p(f"v_max_f32 v{a+r}, 0, v{a+r}")
        for r in range(8):
            p(f"v_mul_f32 v{a+r}, v{a+r}, v{a+8+r}")
        for i in range(4):
            p(f"v_cvt_pk_bf16_f32 v{tmp+i}, v{a+2*i}, v{a+2*i+1}")
        p(f"s_add_u32 s{sT1}, s{sHFB}, {unit * 1024}")
        self.store_ws(tmp, self.vL16, sT1, tag)

    def hf_base(self, unit_reg_expr_lines):
        p = self.p
        for l in unit_reg_expr_lines:
            p(l)
        p(f"s_mul_i32 s{sT1}, s{sTILE}, 112")
        p(f"s_add_u32 s{sHFB}, s{sT0}, s{sT1}")
        p(f"s_lshl_b32 s{sHFB}, s{sHFB}, 10")
        p(f"s_add_u32 s{sHFB}, s{sHFB}, {WS_HF:#x}")

    def p1_logit(self, step):
        p, q = self.p, self.q
        L = self.vLANE
        p(f"s_lshl_b32 s{sT0}, s{sTYP}, 3")
        p(f"s_add_u32 s{sT0}, s{sT0}, s{sAB}          ; j")
        p(f"s_lshl_b32 s{sT1}, s{sT0}, 3")
        p(f"s_set_gpr_idx_on s{sT1}, 0x1")
        for i in range(8):
            p(f"v_mov_b32 v{120+i}, v{self.X+i}")
        p("s_set_gpr_idx_off")
        q.wait(p, "lgld")
        mfma(p, 48, 112, 120, None)
        mfma(p, 48, 116, 124, 48)
        p(f"s_lshl_b32 s{sT1}, s{sT0}, 13")
        p(f"s_add_u32 s{sT1}, s{sT1}, {WS_LG:#x}")
        p(f"s_lshl_b32 s{sT2}, s{sTILE}, 7")
        p(f"s_add_u32 s{sLGO}, s{sT1}, s{sT2}")
        p(f"s_cmp_eq_u32 s{sCH}, 0")
        p(f"s_cselect_b32 s{sT1}, 32, 0")
        p(f"v_lshlrev_b32 v43, 2, v{L}")
        p(f"v_mov_b32 v42, {OOB:#x}")
        p(f"v_cmp_gt_u32 vcc, s{sT1}, v{L}")
        p(f"v_cndmask_b32 v43, v42, v43, vcc")
        def fin():
            p(f"v_mov_b32 v42, v48")
        def f():
            p(f"buffer_store_dword v42, v43, {S4(SRD_WS)}, s{sLGO} offen sc1")
            self.q.push("lgst")
        self.deferred[step] = f
        return fin

    def p1_epi1(self, typ):
        p, q = self.p, self.q
        L = self.vLANE
        self.deferred = {}
        local = self.o.get("local", 1) and typ == 0
        if local:
            self.census_check()
        def two_flavours(emit):
            if not local:
                emit(" sc1")
                return
            n = uid()
            p(f"s_cmp_eq_u32 s{sLOC}, 0")
            p(f"s_cbranch_scc1 L_wt{n}")
            emit("")
            p(f"s_branch L_st{n}")
            p(f"L_wt{n}:")
            emit(" sc1")
            p(f"L_st{n}:")
        self.two_flavours = two_flavours
        def dstore(step, vdata, voff, const, tag, base, offset=0):
            def f():
                p(f"s_add_u32 s{sT1}, s{base}, {const:#x}")
                o = f" offset:{offset}" if offset else ""
                two_flavours(lambda fl: p(f"buffer_store_dwordx4 {V4(vdata)}, v{voff}, {S4(SRD_WS)}, s{sT1} offen{o}{fl}"))
                self.q.push(tag)
            if step is None:
                self.late_stores.append(f)
            else:
                self.deferred[step] = f
        self.late_stores = []
        lg_fin = self.p1_logit((12, 1))
        if typ == 0:
            A = (self.ACC, self.ACC + 16)
            B = self.ACC + 32
            T = self.TMP
            V = 120
            p(f"s_lshl_b32 s{sT0}, s{sAB}, 2")
            p(f"s_lshl_b32 s{sT1}, s{sCH}, 1")
            p(f"s_add_u32 s{sT0}, s{sT0}, s{sT1}          ; head")
            p(f"s_lshl_b32 s{sT1}, s{sT0}, 6")
            p(f"s_add_u32 s{sT1}, s{sT1}, s{sTILE}        ; h*64+tile")
            p(f"s_lshl_b32 s{sQB}, s{sT1}, 10")
            p(f"s_lshl_b32 s{sT5}, s{sAB}, 4")
            p(f"s_add_u32 s{sT5}, s{sT5}, s{sRB}")
            p(f"s_lshl_b32 s{sT5}, s{sT5}, 7          ; (a*16+rb)*128")
            p(f"s_lshl_b32 s{sT0}, s{sCH}, 6")
            p(f"s_add_u32 s{sT5}, s{sT5}, s{sT0}")
            p(f"s_lshl_b32 s{sT0}, s{sRT}, 3")
            p(f"s_add_u32 s{sT5}, s{sT5}, s{sT0}")
            p(f"s_mov_b32 s{sT0}, s{sCS}")
            p(f"s_mov_b32 s{sT1}, s{sCS}")
            for t in range(2):
                for i in range(4):
                    p(f"v_pk_mul_f32 {V2(A[t]+2*i)}, {V2(A[t]+2*i)}, s[{sT0}:{sT1}]")
            lg_fin()
            for t in range(2):
                for i in range(4):
                    p(f"v_cvt_pk_bf16_f32 v{T+8*t+4+i}, v{A[t]+8+2*i}, v{A[t]+8+2*i+1}")
            for i in range(8):
                p(f"v_cvt_pk_bf16_f32 v{V+i}, v{B+2*i}, v{B+2*i+1}")
            for t in range(2):
                for i in range(4):
                    p(f"v_cvt_pk_bf16_f32 v{T+8*t+i}, v{A[t]+2*i}, v{A[t]+2*i+1}")
            a = 40
            p(f"v_bfe_u32 v{a}, v{L}, 4, 1")
            p(f"v_lshlrev_b32 v{a}, 16, v{a}")
            p(f"v_lshrrev_b32 v{a+1}, 5, v{L}")
            p(f"v_lshl_add_u32 v{a}, v{a+1}, 8, v{a}")
            p(f"v_and_b32 v{a+1}, 15, v{L}")
            p(f"v_lshl_add_u32 v{a}, v{a+1}, 4, v{a}")
            dstore((0, 0), T + 4, self.vL16, WS_KF, "e1st", sQB)
            dstore((0, 1), T + 12, self.vL16, WS_KF + 65536, "e1st", sQB)
            dstore((1, 0), V, a, WS_VF, "e1st", sQB)
            dstore((1, 1), V + 4, a, WS_VF, "e1st", sQB, 512)
            dstore((2, 0), T, self.vL16, WS_QF, "e1st", sQB)
            dstore((2, 1), T + 8, self.vL16, WS_QF + 65536, "e1st", sQB)
            N = B
            for t in range(2):
                for h in range(2):
                    r = N + 4*t + 2*h
                    src = A[t] + 8*h
                    p(f"v_pk_mul_f32 {V2(r)}, {V2(src)}, {V2(src)}")
            for i in range(1, 4):
                for t in range(2):
                    for h in range(2):
                        r = N + 4*t + 2*h
                        src = A[t] + 8*h + 2*i
                        p(f"v_pk_fma_f32 {V2(r)}, {V2(src)}, {V2(src)}, {V2(r)}")
            for t in range(2):
                for h in range(2):
                    r = N + 4*t + 2*h
                    p(f"v_add_f32 v{r}, v{r}, v{r+1}")
            for t in range(2):
                p(f"v_permlane32_swap_b32 v{N+4*t}, v{N+4*t+2}")
            for t in range(2):
                p(f"v_add_f32 v{N+4*t}, v{N+4*t}, v{N+4*t+2}")
            na = 104
            p(f"s_add_u32 s{sT0}, s{sT5}, {WS_NRMQ:#x}")
            p(f"s_add_u32 s{sT1}, s{sT5}, {WS_NRMQ + 4:#x}")
            p(f"v_mov_b32 v{na}, {OOB:#x}")
            p(f"v_mov_b32 v{na+1}, s{sT0}")
            p(f"v_cmp_eq_u32 vcc, 31, v{L}")
            for sh in (1, 2):
                for t in range(2):
                    p(f"v_max_f32_dpp v{N+4*t}, v{N+4*t}, v{N+4*t} row_shr:{sh} row_mask:0xf bank_mask:0xf")
                if sh == 1:
                    p(f"v_cndmask_b32 v{na}, v{na}, v{na+1}, vcc")
                    p(f"v_mov_b32 v{na+1}, s{sT1}")
                else:
                    p(f"v_cmp_eq_u32 vcc, 63, v{L}")
            for sh in (4, 8):
                for t in range(2):
                    p(f"v_max_f32_dpp v{N+4*t}, v{N+4*t}, v{N+4*t} row_shr:{sh} row_mask:0xf bank_mask:0xf")
                if sh == 4:
                    p(f"v_cndmask_b32 v{na}, v{na}, v{na+1}, vcc")
            for t in range(2):
                p(f"v_max_f32_dpp v{N+4*t}, v{N+4*t}, v{N+4*t} row_bcast:15 row_mask:0xa bank_mask:0xf")
            def nstore(t):
                def f():
                    o = " offset:32" if t else ""
                    two_flavours(lambda fl: p(f"buffer_store_dword v{N+4*t}, v{na}, {S4(SRD_WS)}, 0 offen{o}{fl}"))
                    q = self.q
                    q.push("e1st")
                return f
            self.deferred[(3, 0)] = nstore(0)
            self.deferred[(3, 1)] = nstore(1)
        else:
            p(f"s_mul_i32 s{sT0}, s{sCH}, 3")
            p(f"s_add_u32 s{sT0}, s{sT0}, s{sHFB}")
            p(f"s_mul_i32 s{sT1}, s{sTILE}, 112")
            p(f"s_add_u32 s{sHB1}, s{sT0}, s{sT1}")
            p(f"s_lshl_b32 s{sHB1}, s{sHB1}, 10")
            for t in range(3):
                a0 = self.ACC + 16*t
                for r in range(8):
                    p(f"v_max_f32 v{a0+r}, 0, v{a0+r}")
                for r in range(8):
                    p(f"v_mul_f32 v{a0+r}, v{a0+r}, v{a0+8+r}")
                if t == 0:
                    lg_fin()
                for i in range(4):
                    p(f"v_cvt_pk_bf16_f32 v{self.TMP+4*t+i}, v{a0+2*i}, v{a0+2*i+1}")
        self.stamp("e1b")

    def p1_epi2(self, typ):
        p = self.p
        p(f"s_lshr_b32 s{sT2}, s{sCB2}, 5")
        p(f"s_lshl_b32 s{sT0}, s{sCH}, 1")
        p(f"s_add_u32 s{sT0}, s{sT0}, s{sT2}")
        p(f"s_mul_i32 s{sT1}, s{sTILE}, 112")
        p(f"s_add_u32 s{sHFB}, s{sT0}, s{sT1}")
        p(f"s_lshl_b32 s{sQB}, s{sHFB}, 10")
        for t in range(2):
            a0 = self.ACC + 16*t
            for r in range(8):
                p(f"v_max_f32 v{a0+r}, 0, v{a0+r}")
            for r in range(8):
                p(f"v_mul_f32 v{a0+r}, v{a0+r}, v{a0+8+r}")
            for i in range(4):
                p(f"v_cvt_pk_bf16_f32 v{128+4*t+i}, v{a0+2*i}, v{a0+2*i+1}")
        if typ == 1:
            for i in range(12):
                p(f"v_mov_b32 v{136+i}, v{self.TMP+i}")

    def late_h_stores(self):
        p = self.p
        for t in range(2):
            p(f"s_add_u32 s{sT1}, s{sQB}, {WS_HF + 1024*t:#x}")
            self.store_ws(128 + 4*t, self.avL16, sT1, "hst")
        n = uid()
        p(f"s_cmp_eq_u32 s{sA3}, 0")
        p(f"s_cbranch_scc1 L_noh_{n}")
        for t in range(3):
            p(f"s_add_u32 s{sT1}, s{sHB1}, {WS_HF + 1024*t:#x}")
            self.store_ws(136 + 4*t, self.avL16, sT1, "hst")
        p(f"L_noh_{n}:")

    def p1(self):
        p, q = self.p, self.q
        self.stamp("predma")
        for g in range(2):
            for e in range(5):
                self.p1_piece(g, e)
        self.stamp("dma0")
        self.pending = [(g, e) for g in list(range(2, 16)) for e in range(self.npieces(g))]
        self.pending += [(16, 0), (16, 1), ("aq", 0), (20, 0), (20, 1), (17, 0), (17, 1), (21, 0), (21, 1)]
        srd(p, SRD_WS, sWS, WS_SIZE)
        srd(p, SRD_DBG, sDBG, 256)
        self.p1_setup_late()
        self.counter_zero()
        self.stamp("setup")
        q.wait(p, ["st0"])
        p("s_barrier")
        self.stamp("st0")
        p(f"s_cmp_eq_u32 s{sTYP}, 0")
        p("s_cbranch_scc0 L_p1_B")
        q0, w0, pend0 = q.fork(), (self.win1, self.win2), list(self.pending)
        ends = []
        for typ in range(2):
            if typ == 1:
                p("L_p1_B:")
                self.q = q0
                self.win1, self.win2 = w0
                self.pending = pend0
            self.cur_typ = typ
            self.p1_first_reads(typ)
            self.p1_pass(1, typ)
            self.stamp("pass1")
            self.p1_epi1(typ)
            self.stamp("epi1")
            self.p1_pass(2, typ)
            assert not self.deferred
            self.stamp("pass2")
            if not self.o.get("nodma"):
                self.emit_pieces(99, 99)
            self.p1_epi2(typ)
            self.stamp("epi2")
            ends.append(self.q)
            if typ == 0:
                p("s_branch L_p1_join")
        p("L_p1_join:")
        self.q = VMQ.join(ends)

    aQ, aK, aV, aS, aP, aO = 4, (8, 12), (16, 24), (32, 48), (64, 72), 80
    avK, avV, avVinc, avL16 = 96, 97, 98, 3
    avT = 100
    HFR = 128
    LGR = 240

    def att_loads(self):
        p, q = self.p, self.q
        L, T = self.vLANE, self.avT
        p(f"s_lshl_b32 s{sA0}, s{sQC}, 3")
        p(f"s_add_u32 s{sA0}, s{sA0}, s{sW}          ; q tile")
        p(f"s_lshl_b32 s{sA1}, s{sH}, 6")
        p(f"s_add_u32 s{sA1}, s{sA1}, s{sA0}         ; h*64+tile")
        p(f"s_lshl_b32 s{sA2}, s{sA1}, 10")
        p(f"s_add_u32 s{sA2}, s{sA2}, {WS_QF:#x}")
        p(f"buffer_load_dwordx4 {V4(self.aQ)}, v{self.vL16}, {S4(SRD_WS)}, s{sA2} offen sc1")
        p(f"s_lshr_b32 s{sA2}, s{sH}, 2")
        p(f"s_lshl_b32 s{sA2}, s{sA2}, 11")
        p(f"s_and_b32 s{sA1}, s{sH}, 3")
        p(f"s_lshl_b32 s{sA1}, s{sA1}, 5")
        p(f"s_add_u32 s{sA2}, s{sA2}, s{sA1}")
        p(f"s_add_u32 s{sA2}, s{sA2}, {WS_NRMQ:#x}")
        p(f"v_lshrrev_b32 v{T}, 2, v{L}")
        p(f"v_lshlrev_b32 v{T}, 7, v{T}")
        p(f"v_and_b32 v{T+3}, 3, v{L}")
        p(f"v_lshl_add_u32 v{T}, v{T+3}, 3, v{T}")
        p(f"buffer_load_dword v{T+1}, v{T}, {S4(SRD_WS)}, s{sA2} offen offset:4 sc1")
        p(f"s_lshr_b32 s{sA1}, s{sA0}, 2")
        p(f"s_lshl_b32 s{sA1}, s{sA1}, 7")
        p(f"s_and_b32 s{sA0}, s{sA0}, 3")
        p(f"s_lshl_b32 s{sA0}, s{sA0}, 3")
        p(f"s_add_u32 s{sA2}, s{sA2}, s{sA1}")
        p(f"s_add_u32 s{sA2}, s{sA2}, s{sA0}")
        p(f"v_mov_b32 v{T+3}, 0")
        p(f"buffer_load_dword v{T+2}, v{T+3}, {S4(SRD_WS)}, s{sA2} offen sc1")
        q.push("aq", 3)

    def att_setup(self):
        p, q = self.p, self.q
        L, T = self.vLANE, self.avT
        p(f"v_lshlrev_b32 v{self.avL16}, 4, v{L}")
        p(f"v_add_u32 v{self.avK}, 32768, v{self.avL16}")
        p(f"v_and_b32 v{T+4}, 31, v{L}               ; m")
        p(f"v_lshrrev_b32 v{T+5}, 5, v{L}")
        p(f"v_lshlrev_b32 v{T+5}, 8, v{T+5}")
        p(f"v_and_b32 v{T+6}, 15, v{L}")
        p(f"v_lshl_add_u32 v{T+5}, v{T+6}, 4, v{T+5}")
        p(f"v_add_u32 v{T+5}, 98304, v{T+5}")
        p(f"v_subrev_u32 v{T+6}, 20, v{T+4}")
        p(f"v_mov_b32 v{T+7}, {self.ONES+16}")
        p(f"v_mov_b32 v{T+8}, {self.ONES+80}")
        p(f"v_cmp_gt_u32 vcc, 8, v{T+6}")
        p(f"v_cndmask_b32 v{T+7}, v{T+7}, v{T+8}, vcc")
        p(f"v_and_b32 v{T+6}, 27, v{T+4}")
        p(f"v_subrev_u32 v{T+8}, 16, v{T+7}")
        p(f"v_cmp_eq_u32 vcc, 16, v{T+6}")
        p(f"v_cndmask_b32 v{T+7}, v{T+7}, v{T+8}, vcc")
        p(f"v_cmp_gt_u32 vcc, 16, v{T+4}")
        p(f"v_cndmask_b32 v{self.avV}, v{T+7}, v{T+5}, vcc")
        p(f"v_mov_b32 v{T+7}, 0")
        p(f"v_mov_b32 v{T+8}, 4096")
        p(f"v_cndmask_b32 v{self.avVinc}, v{T+7}, v{T+8}, vcc")
        self.P3COORD = True
        p(f"s_mov_b32 s{sTYPC}, s{sTYP}")
        p(f"s_lshl_b32 s{sRT64}, s{sXCD}, 2")
        p(f"s_and_b32 s{sA0}, s{sSLOT}, 3")
        p(f"s_add_u32 s{sRT64}, s{sRT64}, s{sA0}")
        p(f"s_lshr_b32 s{sCB}, s{sSLOT}, 2")
        p(f"s_lshr_b32 s{sKQ}, s{sW}, 1")
        p(f"s_and_b32 s{sTR}, s{sW}, 1")
        p(f"s_lshl_b32 s{sT32}, s{sRT64}, 1")
        p(f"s_add_u32 s{sT32}, s{sT32}, s{sTR}")
        q.wait(p, ["st16", "st17", "st20", "aq"])
        p("s_barrier")
        self.stamp("kv")
        for sh in (1, 2, 4, 8):
            p(f"v_max_f32_dpp v{T+1}, v{T+1}, v{T+1} row_shr:{sh} row_mask:0xf bank_mask:0xf")
        p(f"v_max_f32_dpp v{T+1}, v{T+1}, v{T+1} row_bcast:15 row_mask:0xa bank_mask:0xf")
        p(f"v_max_f32_dpp v{T+1}, v{T+1}, v{T+1} row_bcast:31 row_mask:0xc bank_mask:0xf")
        p(f"v_readlane_b32 s{sA0}, v{T+1}, 63")
        p(f"v_mul_f32 v{T+2}, s{sA0}, v{T+2}")
        p(f"v_mov_b32 v{T+3}, {f2u(3600.0):#x}")
        p(f"v_cmp_le_f32 vcc, v{T+2}, v{T+3}")
        p(f"s_cmp_eq_u64 vcc, exec")
        p(f"s_cselect_b32 s{sMODE}, 0, 1")
        if self.o.get("force_slow"):
            p(f"s_mov_b32 s{sMODE}, 1")

    def att_tile(self, t, side):
        p = self.p
        tb = t & 3
        Sc, Sn = self.aS[t & 1], self.aS[(t + 1) & 1]
        Kn, Kl = self.aK[(t + 1) & 1], self.aK[t & 1]
        Vc, Vp = self.aV[t & 1], self.aV[(t + 1) & 1]
        Pc, Pp = self.aP[t & 1], self.aP[(t + 1) & 1]
        O, Q = self.aO, self.aQ
        ex = lambda i: p(f"v_exp_f32 v{Sc+i}, v{Sc+i}")
        cv = lambda i: p(f"v_cvt_pk_bf16_f32 v{Pc+i}, v{Sc+2*i}, v{Sc+2*i+1}")
        p("s_waitcnt lgkmcnt(0)")
        if t < 63:
            mfma(p, Sn, Kn, Q, None)
        if t < 62:
            p(f"ds_read_b128 {V4(Kl)}, v{self.avK} offset:{1024*(t+2)}")
        p(f"ds_read_b128 {V4(Vc)}, v{self.avV} offset:{1024*tb}")
        p(f"ds_read_b128 {V4(Vc+4)}, v{self.avV} offset:{1024*tb+512}")
        ex(0); ex(1); ex(2); cv(0); ex(3)
        if t > 0:
            mfma(p, O, Vp, Pp, None if t == 1 else O)
        if side:
            side[0]()
        ex(4); cv(1); ex(5); ex(6); cv(2); ex(7); ex(8); cv(3); ex(9)
        if t > 0:
            mfma(p, O, Vp + 4, Pp + 4, O)
        for f in side[1:]:
            f()
        ex(10); cv(4); ex(11); ex(12); cv(5); ex(13); ex(14); cv(6); ex(15)
        if tb == 3 and t < 63:
            p(f"v_add_u32 v{self.avV}, v{self.avVinc}, v{self.avV}")
        else:
            p("s_nop 0")
        cv(7)

    def side_hstore(self, i):
        p = self.p
        def f():
            if i < 2:
                p(f"s_add_u32 s{sT1}, s{sQB}, {WS_HF + 1024*i:#x}")
                self.store_ws(128 + 4*i, self.avL16, sT1, "hst")
            else:
                n = uid()
                p(f"s_cmp_eq_u32 s{sTYPC}, 0")
                p(f"s_cbranch_scc1 L_noh_{n}")
                p(f"s_add_u32 s{sT1}, s{sHB1}, {WS_HF + 1024*(i-2):#x}")
                qa = self.q.fork()
                self.store_ws(136 + 4*(i-2), self.avL16, sT1, "hst")
                p(f"L_noh_{n}:")
                self.q = VMQ.join([qa, self.q])
                self.q.dedup()
        return f

    def side_kv(self, g, e):
        return lambda: self.p1_piece(g, e)

    def side_warm(self):
        p = self.p
        L, T = self.vLANE, self.avT
        def f():
            srd(p, SRD_T, sWD, 1792 * 1024)
            p(f"s_mul_i32 s{sA0}, s{sSLOT}, 57344")
            p(f"s_mul_i32 s{sA1}, s{sW}, 7168")
            p(f"s_add_u32 s{sA0}, s{sA0}, s{sA1}")
            p(f"v_lshlrev_b32 v{T}, 6, v{L}")
            p(f"buffer_load_dword v{T+3}, v{T}, {S4(SRD_T)}, s{sA0} offen")
            p(f"s_add_u32 s{sA0}, s{sA0}, 3072")
            p(f"buffer_load_dword v{T+4}, v{T}, {S4(SRD_T)}, s{sA0} offen")
            srd(p, SRD_T, sWO, 512 * 1024)
            p(f"s_lshl_b32 s{sA0}, s{sSLOT}, 14")
            p(f"s_lshl_b32 s{sA1}, s{sW}, 11")
            p(f"s_add_u32 s{sA0}, s{sA0}, s{sA1}")
            p(f"v_and_b32 v{T+6}, 31, v{L}")
            p(f"v_lshlrev_b32 v{T+6}, 6, v{T+6}")
            p(f"buffer_load_dword v{T+5}, v{T+6}, {S4(SRD_T)}, s{sA0} offen")
            self.q.push("warm", 3)
        return f

    def side_f2load(self):
        p, T = self.p, self.avT
        def f():
            p(f"s_lshr_b32 s{sA0}, s{sRT64}, 1")
            p(f"s_add_u32 s{sA0}, s{sA0}, {F2}")
            p(f"s_lshl_b32 s{sA0}, s{sA0}, 8")
            p(f"v_mov_b32 v{T}, s{sA0}")
            p(f"buffer_load_dword v{T+1}, v{T}, {S4(SRD_WS)}, 0 offen sc1")
            self.q.push("f2ld")
        return f

    def side_hload(self, j):
        p = self.p
        def f():
            if j == 0:
                p(f"s_mul_i32 s{sHLD}, s{sT32}, 112")
                p(f"s_mul_i32 s{sA1}, s{sKQ}, 28")
                p(f"s_add_u32 s{sHLD}, s{sHLD}, s{sA1}")
                p(f"s_lshl_b32 s{sHLD}, s{sHLD}, 10")
                p(f"s_add_u32 s{sHLD}, s{sHLD}, {WS_HF:#x}")
            o = f" offset:{1024*(j&3)}" if j & 3 else ""
            p(f"buffer_load_dwordx4 {V4(self.HFR + 4*j)}, v{self.avL16}, {S4(SRD_WS)}, s{sHLD} offen{o} sc1")
            self.q.push("hld")
            if (j & 3) == 3:
                p(f"s_add_u32 s{sHLD}, s{sHLD}, 4096")
        return f

    def side_lgload(self, i):
        p, L, T = self.p, self.vLANE, self.avT
        def f():
            if i == 0:
                p(f"v_lshrrev_b32 v{T+7}, 5, v{L}")
                p(f"v_lshlrev_b32 v{T+7}, 16, v{T+7}")
                p(f"v_and_b32 v{T+6}, 31, v{L}")
                p(f"v_lshl_add_u32 v{T+7}, v{T+6}, 2, v{T+7}")
                p(f"s_lshl_b32 s{sLGL}, s{sT32}, 7")
                p(f"s_add_u32 s{sLGL}, s{sLGL}, {WS_LG:#x}")
            p(f"buffer_load_dword v{self.LGR+i}, v{T+7}, {S4(SRD_WS)}, s{sLGL} offen sc1")
            self.q.push("lgl")
            if i < 7:
                p(f"s_add_u32 s{sLGL}, s{sLGL}, 8192")
        return f

    def att_b1(self):
        p, T = self.p, self.avT
        self.q.wait(p, ["hst", "st21", "st18", "lgst"])
        p("s_barrier")
        p(f"s_add_u32 s{sA0}, s{sRB}, {F2}")
        p(f"s_lshl_b32 s{sA0}, s{sA0}, 8")
        p(f"v_mov_b32 v{T+4}, {OOB:#x}")
        p(f"v_mov_b32 v{T+5}, s{sA0}")
        p(f"v_cmp_eq_u32 vcc, 0, v0")
        p(f"v_cndmask_b32 v{T+4}, v{T+4}, v{T+5}, vcc")
        p(f"v_mov_b32 v{T+5}, 1")
        p(f"buffer_atomic_add v{T+5}, v{T+4}, {S4(SRD_WS)}, 0 offen sc1")
        self.q.push("f2add")

    def att_b2(self):
        p, T = self.p, self.avT
        self.q.wait(p, ["st19", "st22", "st23", "f2ld"])
        p("s_waitcnt lgkmcnt(0)")
        p("s_barrier")
        poll(p, self.q, T + 1, T, SRD_WS, 16, "F2")
        self.p3_setup_dma()

    def att_sides(self):
        sd = {t: [] for t in range(64)}
        for i in range(5):
            sd[i].append(self.side_hstore(i))
        order = [(18, 0), (18, 1), (22, 0), (22, 1), (19, 0), (19, 1), (23, 0), (23, 1)]
        for k, (g, e) in enumerate(order):
            sd[5 + k].append(self.side_kv(g, e))
        if self.o.get("warm", 1):
            sd[18].append(self.side_warm())
        if self.o.get("wb"):
            def wb():
                n = uid()
                p = self.p
                p(f"s_add_u32 s{sA0}, s{sSLOT}, s{sW}")
                p(f"s_cmp_eq_u32 s{sA0}, 0")
                p(f"s_cbranch_scc0 L_nowb{n}")
                qa = self.q.fork()
                p("buffer_wbl2 sc1")
                self.q.push("wb")
                p(f"L_nowb{n}:")
                self.q = VMQ.join([qa, self.q]); self.q.dedup()
            sd[self.o["wb"]].append(wb)
        sd[28].append(self.side_f2load())
        ops = [(lambda g=g, e=e: self.p3_piece(g, e)) for g in range(2) for e in range(4)]
        ops2 = [self.side_hload(j) for j in range(28)] + [self.side_lgload(i) for i in range(8)]
        seq = []
        while ops or ops2:
            if ops:
                seq.append(ops.pop(0))
            if ops2:
                seq.append(ops2.pop(0))
        t = 32
        n2 = len(seq) - 31
        k = 0
        while k < len(seq):
            sd[t].append(seq[k]); k += 1
            if n2 > 0 and k < len(seq):
                sd[t].append(seq[k]); k += 1; n2 -= 1
            t += 1
        assert t <= 63, t
        return sd

    def att_slow_tile(self):
        p = self.p
        S, P, O, K, V, Q = self.aS[0], self.aP[0], self.aO, self.aK[0], self.aV[0], self.aQ
        T = self.avT
        m_old, m_new, al = T + 8, T + 9, T + 10
        p(f"ds_read_b128 {V4(K)}, v{self.avK}")
        p(f"ds_read_b128 {V4(V)}, v{self.avV}")
        p(f"ds_read_b128 {V4(V+4)}, v{self.avV} offset:512")
        p("s_waitcnt lgkmcnt(0)")
        mfma(p, S, K, Q, None)
        p(f"v_max3_f32 v{m_new}, v{S}, v{S+1}, v{S+2}")
        for r in range(3, 15, 2):
            p(f"v_max3_f32 v{m_new}, v{m_new}, v{S+r}, v{S+r+1}")
        p(f"v_max_f32 v{m_new}, v{m_new}, v{S+15}")
        p(f"v_mov_b32 v{al}, v{m_new}")
        p(f"v_permlane32_swap_b32 v{m_new}, v{al}")
        p(f"v_max3_f32 v{m_new}, v{m_new}, v{al}, v{m_old}")
        p(f"v_sub_f32 v{al}, v{m_old}, v{m_new}")
        p(f"v_exp_f32 v{al}, v{al}")
        p(f"v_mov_b32 v{m_old}, v{m_new}")
        for r in range(16):
            p(f"v_sub_f32 v{S+r}, v{S+r}, v{m_new}")
        for r in range(16):
            p(f"v_exp_f32 v{S+r}, v{S+r}")
        for r in range(16):
            p(f"v_mul_f32 v{O+r}, v{al}, v{O+r}")
        for i in range(8):
            p(f"v_cvt_pk_bf16_f32 v{P+i}, v{S+2*i}, v{S+2*i+1}")
        mfma(p, O, V, P, O)
        mfma(p, O, V + 4, P + 4, O)
        p(f"v_add_u32 v{self.avK}, 1024, v{self.avK}")
        p(f"v_lshrrev_b32 v{al}, 2, v{self.avVinc}")
        p(f"v_add_u32 v{self.avV}, v{al}, v{self.avV}")

    def attention(self):
        p, q = self.p, self.q
        self.att_setup()
        p(f"s_cmp_eq_u32 s{sMODE}, 0")
        p("s_cbranch_scc0 L_att_slow0")
        self.q_slow = self.q.fork()
        p(f"ds_read_b128 {V4(self.aK[0])}, v{self.avK}")
        p(f"ds_read_b128 {V4(self.aK[1])}, v{self.avK} offset:1024")
        p("s_waitcnt lgkmcnt(1)")
        mfma(p, self.aS[0], self.aK[0], self.aQ, None)
        prio = self.o.get("prio", 2)
        def ladder(t):
            if prio == 1:
                return 3 - t // 16
            return 3 - (t % 16) // 4 if t < 32 else 3 - (t - 32) // 8
        sd = self.att_sides()
        for t in range(64):
            if prio and (t == 0 or ladder(t) != ladder(t - 1)) and t not in (16, 32):
                p(f"s_setprio {ladder(t)}")
            if t in (16, 32, 48):
                self.stamp(f"seg{t//16}")
                if prio and t in (16, 32):
                    p(f"s_setprio {ladder(t)}")
                if t == 16:
                    self.att_b1()
                if t == 32:
                    self.att_b2()
                self.stamp(f"seg{t//16}e")
            self.att_tile(t, [] if self.o.get("noseg") else sd[t])
        p("s_waitcnt lgkmcnt(0)")
        mfma(p, self.aO, self.aV[1], self.aP[1], self.aO)
        mfma(p, self.aO, self.aV[1] + 4, self.aP[1] + 4, self.aO)
        p("L_att_fin:")
        self.stamp("att")
        O, T = self.aO, self.avT
        p(f"v_rcp_f32 v{T}, v{O+8}")
        for r in range(8):
            p(f"v_mul_f32 v{O+r}, v{T}, v{O+r}")
        for i in range(4):
            p(f"v_cvt_pk_bf16_f32 v{T+4+i}, v{O+2*i}, v{O+2*i+1}")
        p(f"s_lshl_b32 s{sA0}, s{sQC}, 3")
        p(f"s_add_u32 s{sA0}, s{sA0}, s{sW}")
        p(f"s_lshl_b32 s{sA0}, s{sA0}, 5")
        p(f"s_add_u32 s{sA0}, s{sA0}, s{sH}")
        p(f"s_lshl_b32 s{sA0}, s{sA0}, 10")
        p(f"s_add_u32 s{sA0}, s{sA0}, {WS_OF:#x}")
        p(f"buffer_store_dwordx4 {V4(T+4)}, v{self.avL16}, {S4(SRD_WS)}, s{sA0} offen sc1")
        self.q = VMQ()
        self.q.push("ost")

    def att_slow_code(self):
        p = self.p
        T = self.avT
        self.q = self.q_slow
        p("L_att_slow0:")
        p(f"v_mov_b32 v{T+8}, 0xff800000")
        for r in range(self.aO, self.aO + 16):
            p(f"v_mov_b32 v{r}, 0")
        sd = self.att_sides()
        def run(n):
            k = uid()
            p(f"s_mov_b32 s{sA3}, 0")
            p(f"L_att_slow_loop{k}:")
            self.att_slow_tile()
            p(f"s_add_u32 s{sA3}, s{sA3}, 1")
            p(f"s_cmp_lt_u32 s{sA3}, {n}")
            p(f"s_cbranch_scc1 L_att_slow_loop{k}")
        for t in range(0, 16):
            for f in sd[t]: f()
        run(16)
        self.att_b1()
        for t in range(16, 32):
            for f in sd[t]: f()
        run(16)
        self.att_b2()
        for t in range(32, 64):
            for f in sd[t]: f()
        run(32)
        p("s_branch L_att_fin")

    pWB = (16, 24)
    pB, pA = 32, 64
    pvD = 112
    pvR = (6, 7, 8, 9)
    pG = 10
    pOF = 128
    pT = 100

    P3SLOT = (1, 3, 0, 2, 4, 1, 3, 0, 2)

    def p3_slot(self, g):
        return 32768 * self.P3SLOT[g]

    def p3_setup_dma(self):
        p = self.p
        L, T = self.vLANE, self.avT
        srd(p, SRD_W2, sWD, 1792 * 1024)
        srd(p, SRD_X, sWO, 512 * 1024)
        p(f"v_bfe_u32 v{T}, v{L}, 4, 1")
        p(f"v_lshlrev_b32 v{T}, 2, v{T}")
        p(f"v_and_b32 v{T+1}, 7, v{L}")
        p(f"v_xor_b32 v{T}, v{T}, v{T+1}")
        p(f"v_lshlrev_b32 v{T}, 4, v{T}")
        p(f"s_lshl_b32 s{sA0}, s{sCB}, 7")
        p(f"v_add_u32 v{T}, s{sA0}, v{T}")
        p(f"v_lshrrev_b32 v{T+1}, 3, v{L}")
        p(f"s_lshl_b32 s{sA1}, s{sTR}, 5")
        p(f"v_add_u32 v{T+1}, s{sA1}, v{T+1}          ; 32*(w&1) + (l>>3)")
        p(f"s_mul_i32 s{sA0}, s{sKQ}, 448")
        p(f"v_add_u32 v{T+2}, s{sA0}, v{T+1}")
        p(f"v_lshl_add_u32 v{self.pvD}, v{T+2}, 10, v{T}")
        p(f"s_lshl_b32 s{sA0}, s{sKQ}, 7")
        p(f"v_add_u32 v{T+2}, s{sA0}, v{T+1}")
        p(f"v_lshl_add_u32 v{self.pvD+1}, v{T+2}, 10, v{T}")

    def p3_piece(self, g, e):
        p, q = self.p, self.q
        sl = self.p3_slot(g)
        if g < 7:
            srd_r, v, row0 = SRD_W2, self.pvD, 64 * g
        else:
            srd_r, v, row0 = SRD_X, self.pvD + 1, 64 * (g - 7)
        p(f"s_add_u32 m0, s{sM0K}, {sl + 1024*e}")
        p(f"s_mov_b32 s{sA1}, {(row0 + 8*e) * 1024}")
        p(f"buffer_load_dwordx4 v{v}, {S4(srd_r)}, s{sA1} offen lds")
        q.push(f"p3s{g}")

    def p3_emit(self, t, maxn):
        n = 0
        while self.pending3 and n < maxn:
            g, e = self.pending3[0]
            if g >= 5 and t < 4 * (g - 4) + 2:
                break
            self.pending3.pop(0)
            self.p3_piece(g, e)
            n += 1

    def p3_reads(self, t, cts=(0, 1)):
        p = self.p
        g, sp = t >> 2, t & 3
        sl = self.p3_slot(g)
        hi = 1 if sl >= 65536 else 0
        off = sl - 65536 * hi
        if sl >= 131072:
            hi, off = 2, sl - 131072
        wb = self.pWB[t & 1]
        for ct in cts:
            base = self.pvR[ct] if hi == 0 else self.pvR[2 + ct] if hi == 1 else self.pT + 8 + ct
            for j in range(2):
                p(f"ds_read_b64_tr_b16 {V2(wb + 4*ct + 2*j)}, v{base} offset:{off + (16*sp + 4*j) * 128}")
        return 2 * len(cts)

    def p3(self):
        p, q = self.p, self.q
        L, T = self.vLANE, self.pT
        p("s_waitcnt vmcnt(1)")
        p("s_barrier")
        self.pending3 = [(g, e) for g in range(2, 9) for e in range(4)]
        self.p3_emit(0, 4)
        p(f"v_lshrrev_b32 v{T}, 5, v{L}")
        p(f"v_lshlrev_b32 v{T}, 3, v{T}")
        p(f"v_bfe_u32 v{T+1}, v{L}, 2, 2")
        p(f"v_add_u32 v{T}, v{T}, v{T+1}             ; row")
        p(f"v_lshlrev_b32 v{T}, 7, v{T}              ; *128")
        p(f"v_and_b32 v{T+1}, 1, v{L}")
        p(f"v_lshlrev_b32 v{T+1}, 2, v{T+1}")
        p(f"v_bfe_u32 v{T+2}, v{L}, 4, 1")
        p(f"v_lshl_add_u32 v{T+1}, v{T+2}, 1, v{T+1}")
        p(f"v_bfe_u32 v{T+2}, v{L}, 1, 1")
        p(f"v_add_u32 v{T+1}, v{T+1}, v{T+2}          ; cg")
        p(f"v_lshl_add_u32 v{T}, v{T+1}, 3, v{T}")
        p(f"s_lshl_b32 s{sA0}, s{sKQ}, 13")
        p(f"v_add_u32 v{T}, s{sA0}, v{T}")
        p(f"v_bfe_u32 v{T+2}, v{L}, 3, 1")
        p(f"v_lshlrev_b32 v{T+2}, 6, v{T+2}           ; 64*b")
        p(f"v_add_u32 v{self.pvR[0]}, v{T}, v{T+2}     ; ct0: 64*b")
        p(f"v_xor_b32 v{T+2}, 64, v{T+2}")
        p(f"v_add_u32 v{self.pvR[1]}, v{T}, v{T+2}     ; ct1: 64*(1-b)")
        for ct in range(2):
            p(f"v_add_u32 v{self.pvR[2+ct]}, 0x10000, v{self.pvR[ct]}")
            p(f"v_add_u32 v{T+8+ct}, 0x20000, v{self.pvR[ct]}")
        self.stamp("p3st0")
        self.lgq = []
        for ct in range(2):
            self.lg_issue((0, ct), self.p3_reads(0, (ct,)))
        G = self.pG
        wA, rA0, rA1, oA = 114, 115, 116, 117
        B, A = self.pB, self.pA

        def gate():
            lg = self.LGR
            for i in range(1, 8):
                p(f"v_add_f32 v{lg}, v{lg}, v{lg+i}")
            p(f"v_mov_b32 v{lg+1}, v{lg}")
            p(f"v_permlane32_swap_b32 v{lg}, v{lg+1}")
            p(f"v_add_f32 v{lg}, v{lg}, v{lg+1}")
            p(f"v_mul_f32 v{lg}, {f2u(-1.4426950408889634):#x}, v{lg}")
            p(f"v_exp_f32 v{lg}, v{lg}")
            p(f"v_add_f32 v{lg}, 1.0, v{lg}")
            p(f"v_rcp_f32 v{G}, v{lg}")
            p(f"v_sub_f32 v{G+1}, 1.0, v{G}")

        def addr1():
            p(f"v_and_b32 v{T}, 31, v{L}                 ; n")
            p(f"v_and_b32 v{T+1}, 15, v{L}")
            p(f"v_lshrrev_b32 v{T+2}, 5, v{L}")
            p(f"v_lshlrev_b32 v{T+2}, 2, v{T+2}           ; 4hi")
            p(f"v_xor_b32 v{T+1}, v{T+1}, v{T+2}          ; (n&15) ^ 4hi")
            p(f"v_lshlrev_b32 v{T+1}, 4, v{T+1}")
            p(f"v_lshl_add_u32 v{T}, v{T}, 8, v{T+1}")
            p(f"s_lshl_b32 s{sA0}, s{sW}, 13")
            p(f"v_add_u32 v{wA}, s{sA0}, v{T}")

        def addr2():
            p(f"v_lshrrev_b32 v{T}, 3, v{L}")
            p(f"s_lshl_b32 s{sA0}, s{sKQ}, 3")
            p(f"v_add_u32 v{T}, s{sA0}, v{T}             ; rho")
            p(f"v_and_b32 v{T+1}, 7, v{L}")
            p(f"v_lshlrev_b32 v{T+1}, 1, v{T+1}           ; 2*(l&7)")
            p(f"v_and_b32 v{T+2}, 15, v{T}")
            p(f"v_xor_b32 v{T+1}, v{T+1}, v{T+2}")
            p(f"v_lshlrev_b32 v{T+1}, 4, v{T+1}")
            p(f"v_lshl_add_u32 v{T+1}, v{T}, 8, v{T+1}")
            p(f"s_lshl_b32 s{sA0}, s{sTR}, 13")
            p(f"v_add_u32 v{rA0}, s{sA0}, v{T+1}")
            p(f"v_xor_b32 v{rA1}, 16, v{rA0}              ; e=1")
            p(f"s_lshl_b32 s{sA0}, s{sT32}, 5")
            p(f"v_add_u32 v{T}, s{sA0}, v{T}")
            p(f"v_and_b32 v{T+3}, 7, v{L}")
            p(f"v_lshlrev_b32 v{T+3}, 4, v{T+3}")
            p(f"v_lshl_add_u32 v{T}, v{T}, 10, v{T+3}")
            p(f"s_lshl_b32 s{sA0}, s{sCB}, 7")
            p(f"v_add_u32 v{oA}, s{sA0}, v{T}")
            srd(p, SRD_T, sOUT, 2048 * 1024)

        def f3addr():
            p(f"s_add_u32 s{sA0}, s{sXCD}, {F3}")
            p(f"s_lshl_b32 s{sA0}, s{sA0}, 8")
            p(f"v_mov_b32 v{T+7}, s{sA0}")

        extra = {4: gate, 8: addr1, 9: f3addr, 12: addr2}
        for t in range(36):
            g = t >> 2
            if (t & 3) == 2:
                tags = [f"p3s{g+1}"] if 1 <= g < 8 else []
                if g == 0:
                    tags.append("ost")
                if g == 5:
                    tags.append("f3ld")
                self.stamp(f"qpre{g}")
                if tags:
                    q.wait(p, tags)
                if g == 5:
                    poll(p, q, T + 6, T + 7, SRD_WS, 32, "F3")
                self.stamp(f"qwait{g}")
                p("s_barrier")
                self.stamp(f"qbar{g}")
                if g == 0:
                    p(f"s_add_u32 s{sA0}, s{sQC}, {F3}")
                    p(f"s_lshl_b32 s{sA0}, s{sA0}, 8")
                    p(f"v_mov_b32 v{T}, {OOB:#x}")
                    p(f"v_mov_b32 v{T+1}, s{sA0}")
                    p(f"v_cmp_eq_u32 vcc, 0, v0")
                    p(f"v_cndmask_b32 v{T}, v{T}, v{T+1}, vcc")
                    p(f"v_mov_b32 v{T+1}, 1")
                    p(f"buffer_atomic_add v{T+1}, v{T}, {S4(SRD_WS)}, 0 offen sc1")
                    q.push("f3add")
                    self.stamp("f3")
                if g == 4:
                    p(f"buffer_load_dword v{T+6}, v{T+7}, {S4(SRD_WS)}, 0 offen sc1")
                    q.push("f3ld")
                if g == 5:
                    p(f"s_lshl_b32 s{sA2}, s{sT32}, 5")
                    p(f"s_lshl_b32 s{sA1}, s{sKQ}, 3")
                    p(f"s_add_u32 s{sA2}, s{sA2}, s{sA1}")
                    p(f"s_lshl_b32 s{sA2}, s{sA2}, 10")
                    p(f"s_add_u32 s{sA2}, s{sA2}, {WS_OF:#x}")
                    for j in range(8):
                        o = f" offset:{1024*(j&3)}" if j & 3 else ""
                        p(f"buffer_load_dwordx4 {V4(self.pOF + 4*j)}, v{self.avL16}, {S4(SRD_WS)}, s{sA2} offen{o} sc1")
                        q.push("ofr")
                        if j == 3:
                            p(f"s_add_u32 s{sA2}, s{sA2}, 4096")
            wb = self.pWB[t & 1]
            if t < 28:
                acc, bfr, first = self.pB, self.HFR + 4*t, t == 0
            else:
                acc, bfr, first = self.pA, self.pOF + 4*(t - 28), t == 28
            if t == 28:
                q.wait(p, "ofr")
            for ct in range(2):
                self.lg_wait((t, ct))
                mfma(p, acc + 16*ct, wb + 4*ct, bfr, None if first else acc + 16*ct)
                if t < 35:
                    self.lg_issue((t + 1, ct), self.p3_reads(t + 1, (ct,)))
                if ct == 0:
                    self.p3_emit(t, 2 if t < 4 else 1)
                    if t in extra:
                        extra[t]()
                if t >= 30 and t < 34:
                    k = 2*(t - 30) + ct
                    for r in range(4*k, 4*k + 4):
                        p(f"v_mul_f32 v{B+r}, v{G+1}, v{B+r}")
            if t == 27:
                self.stamp("p3a")
        self.stamp("p3b")
        for ct in range(2):
            for qq in range(4):
                r0 = 16*ct + 4*qq
                for r in range(r0, r0 + 4):
                    p(f"v_fmac_f32 v{B+r}, v{G}, v{A+r}")
                c = 8*ct + qq
                p(f"v_xor_b32 v{T+1+(qq&1)}, {16*c}, v{wA}")
                p(f"ds_write_b128 v{T+1+(qq&1)}, {V4(B + r0)}")
        p("s_waitcnt lgkmcnt(0)")
        p("s_barrier")
        R = 16
        for k in range(4):
            p(f"ds_read_b128 {V4(R + 8*k)}, v{rA0} offset:{16384*k}")
            p(f"ds_read_b128 {V4(R + 8*k + 4)}, v{rA1} offset:{16384*k}")
        p("s_waitcnt lgkmcnt(4)")
        for r in range(8):
            p(f"v_add_f32 v{R+r}, v{R+r}, v{R+8+r}")
        p("s_waitcnt lgkmcnt(0)")
        for r in range(8):
            p(f"v_add_f32 v{R+16+r}, v{R+16+r}, v{R+24+r}")
        for r in range(8):
            p(f"v_add_f32 v{R+r}, v{R+r}, v{R+16+r}")
        for i in range(4):
            p(f"v_cvt_pk_bf16_f32 v{R+8+i}, v{R+2*i}, v{R+2*i+1}")
        p(f"buffer_store_dwordx4 {V4(R+8)}, v{oA}, {S4(SRD_T)}, 0 offen" + (" sc1" if self.o.get("outsc1") else "") + (" nt" if self.o.get("outnt") else ""))

    def finish(self):
        p = self.p
        if self.o.get("twice"):
            p("s_waitcnt vmcnt(0) lgkmcnt(0)")
            p("s_barrier")
            p("s_cmp_eq_u32 s0, 0")
            p("s_mov_b32 s0, 1")
            p("s_cbranch_scc1 L_restart")
        if self.o.get("stamps"):
            p("s_waitcnt vmcnt(0)")
            self.stamp("end")
            self.dump_stamps()
        p("L_end:")
        p("s_endpgm")

    def build(self):
        self.prologue()
        self.p1()
        if self.stop_after != "p1":
            self.attention()
            if self.stop_after != "att":
                self.p3()
        self.finish()
        if self.stop_after != "p1":
            self.att_slow_code()
        self.p("L_codeend:")
        n = self.p.fix_hazards()
        return self.p.text(), n


HEADER = """; Kernarg layout (88 bytes): A_x, A_wqkv, A_wo, B_x, B_W_gate, B_W_up, B_W_down, gate_w, out, debug, ws
; @launch grid=(256,1,1) block=(512,1,1) lds=163840
.amdgcn_target "amdgcn-amd-amdhsa--gfx950"
.text
.globl {name}_kernel
.p2align 8
.type {name}_kernel,@function
{name}_kernel:
"""
FOOTER = """.section .rodata,"a"
.p2align 6
.amdhsa_kernel {name}_kernel
  .amdhsa_next_free_vgpr 256
  .amdhsa_next_free_sgpr 102
  .amdhsa_accum_offset 256
  .amdhsa_group_segment_fixed_size 0
  .amdhsa_kernarg_size 88
  .amdhsa_user_sgpr_count 2
  .amdhsa_user_sgpr_kernarg_segment_ptr 1
  .amdhsa_system_sgpr_workgroup_id_x 1
  .amdhsa_float_denorm_mode_32 3
.end_amdhsa_kernel
"""

def generate(stop_after=None, opts=None):
    g = Gen(stop_after, opts)
    body, n = g.build()
    return HEADER.format(name=NAME) + body + FOOTER.format(name=NAME), n, g.p.count()

if __name__ == "__main__":
    import argparse
    ap = argparse.ArgumentParser()
    ap.add_argument("--stop", default=None)
    ap.add_argument("-o", default="cdna_kernels/" + NAME + ".s")
    ap.add_argument("--opt", action="append", default=[])
    ap.add_argument("--stamps", default="")
    a = ap.parse_args()
    opts = {}
    for o in a.opt:
        k, _, v = o.partition("=")
        opts[k] = int(v) if v else 1
    names = a.stamps.split(",") if a.stamps else []
    if names:
        opts["stamps"] = 1
        opts["stampmap"] = {"start": 0, "end": 11}
        for i, nm in enumerate(names):
            opts["stampmap"][nm] = i + 1
    txt, n, cnt = generate(a.stop, opts)
    open(a.o, "w").write(txt)
    print(f"wrote {a.o}: {cnt} instructions, {n} nop pads")
```

```python
import sys, os
sys.path.insert(0, os.path.dirname(os.path.abspath(__file__)))
from asmlib import Prog, VMQ

NAME = "gated_mix__mha_block__glu_gated_reglu__prompt"

WS_CNT = 0x0
WS_NRMQ = 0x4000
WS_NRMK = 0x6000
WS_LG = 0x10000
WS_QF = 0x200000
WS_KF = 0x400000
WS_VF = 0x600000
WS_OF = 0x800000
WS_HF = 0xA00000
WS_SIZE = 0x1100000
OOB = 0x7FFF0000
F1, F2, F3 = 0, 16, 32

CSCALE = 0.25 * 1.4426950408889634
import struct
def f2u(x): return struct.unpack("<I", struct.pack("<f", x))[0]

sX, sWQKV, sWO, sWG, sWU, sWD, sGW, sOUT, sDBG, sWS = 4, 6, 8, 12, 14, 16, 18, 20, 22, 24
SRD_X, SRD_WS, SRD_G, SRD_DBG, SRD_T, SRD_W1, SRD_U = 28, 32, 36, 40, 44, 96, 4
SRD_W2 = SRD_G
sD1, sD2, sM0K, sM0X, sD0, sM0P, sCB2 = 0, 1, 3, 10, 11, 26, 27
sM0X2 = 26
sW, sRB, sAB, sRT, sCH, sTILE, sXCD, sSLOT = 48, 49, 50, 51, 52, 53, 54, 55
sT0, sT1, sT2, sT3, sT4, sT5 = 56, 57, 58, 59, 60, 61
sADV = 62
sH, sQC = 63, 64
sCS = 65
sPOLL = 66
sTYP = 67
sHFB = 68
sW1OFF, sKVB = 100, 101
sQB, sLGO, sHB1 = 18, 19, 22
sEXP, sLOC = 23, 12
sTYPC, sHLD, sLGL = 23, 24, 25
sA0, sA1, sA2, sA3 = 56, 57, 58, 59
sI, sMODE, sT32, sRT64, sCB, sKQ, sTR = 60, 61, 62, 67, 68, 10, 11

def srd(p, dst, ptr, size):
    p(f"s_mov_b32 s{dst}, s{ptr}")
    p(f"s_mov_b32 s{dst+1}, s{ptr+1}")
    p(f"s_mov_b32 s{dst+2}, {size:#x}")
    p(f"s_mov_b32 s{dst+3}, 0x20000")

def S4(r): return f"s[{r}:{r+3}]"
def V4(r): return f"v[{r}:{r+3}]"
def V2(r): return f"v[{r}:{r+1}]"
def V16(r): return f"v[{r}:{r+15}]"

def mfma(p, d, a, b, c):
    cs = "0" if c is None else V16(c)
    p(f"v_mfma_f32_32x32x16_bf16 {V16(d)}, {V4(a)}, {V4(b)}, {cs}")

_uid = [0]
def uid():
    _uid[0] += 1
    return _uid[0]

POLLOPT = {"w0": 1, "sleep": 1}
def poll(p, q, vflag, vaddr, srd_reg, target, what):
    n = uid()
    if POLLOPT["w0"]:
        p(f"s_cmp_eq_u32 s{sW}, 0")
        p(f"s_cbranch_scc0 L_ok{n}")
    p(f"v_readfirstlane_b32 s{sT0}, v{vflag}")
    p(f"s_cmp_ge_u32 s{sT0}, {target}")
    p(f"s_cbranch_scc1 L_ok{n}")
    p(f"s_mov_b32 s{sPOLL}, 0")
    p(f"L_poll{n}:")
    if POLLOPT["sleep"]:
        p(f"s_sleep {POLLOPT['sleep']}")
    p(f"buffer_load_dword v{vflag}, v{vaddr}, {S4(srd_reg)}, 0 offen sc1")
    p("s_waitcnt vmcnt(0)")
    p(f"v_readfirstlane_b32 s{sT0}, v{vflag}")
    p(f"s_add_u32 s{sPOLL}, s{sPOLL}, 1")
    p(f"s_cmp_ge_u32 s{sPOLL}, 0x80000")
    p(f"s_cbranch_scc1 L_ok{n}")
    p(f"s_cmp_lt_u32 s{sT0}, {target}")
    p(f"s_cbranch_scc1 L_poll{n}")
    p(f"L_ok{n}:")


class Gen:
    def __init__(self, stop_after=None, opts=None):
        self.p = Prog()
        self.q = VMQ()
        self.stop_after = stop_after
        self.o = opts or {}

    def stamp(self, name):
        if self.o.get("stamps"):
            i = self.o["stampmap"].get(name)
            if i is not None:
                ins = "s_memrealtime" if self.o.get("rt") else "s_memtime"
                self.p(f"{ins} s[{72+2*i}:{73+2*i}] ; stamp {name}")

    def dump_stamps(self):
        if not self.o.get("stamps"):
            return
        p = self.p
        p("s_memrealtime s[70:71]")
        p("s_waitcnt lgkmcnt(0)")
        p(f"s_lshl_b32 s{sT0}, s2, 3")
        p(f"s_add_u32 s{sT0}, s{sT0}, s{sW}")
        p(f"s_lshl_b32 s{sT0}, s{sT0}, 6")
        p(f"s_add_u32 s{sT0}, s{sT0}, 0x80000")
        for i in range(12):
            p(f"v_mov_b32 v{16+i}, s{72+2*i}")
        p("v_mov_b32 v28, s69")
        p("v_mov_b32 v29, s70")
        p("v_mov_b32 v30, 0")
        p("v_mov_b32 v31, 0")
        p("v_mov_b32 v32, 0")
        p("s_mov_b64 exec, 1")
        for i in range(4):
            p(f"buffer_store_dwordx4 {V4(16+4*i)}, v32, {S4(SRD_WS)}, s{sT0} offen offset:{16*i}")
        p("s_mov_b64 exec, -1")

    def prologue(self):
        p = self.p
        p("s_cmp_ge_u32 s2, 256")
        p("s_cbranch_scc1 L_end")
        if self.o.get("stamps"):
            p("s_memrealtime s[70:71]")
        p(f"s_load_dwordx4 s[4:7], s[0:1], 0")
        p(f"s_load_dwordx2 s[8:9], s[0:1], 16")
        p(f"s_load_dwordx4 s[12:15], s[0:1], 32")
        p(f"s_load_dwordx4 s[16:19], s[0:1], 48")
        p(f"s_load_dwordx4 s[20:23], s[0:1], 64")
        p(f"s_load_dwordx2 s[24:25], s[0:1], 80")
        if self.o.get("pf", 1):
            p("s_getpc_b64 s[26:27]")
            p("L_pfbase:")
            p("s_lshr_b32 s3, s2, 3")
            p("v_lshrrev_b32 v1, 6, v0")
            p("v_lshl_add_u32 v1, s3, 3, v1")
            p("v_and_b32 v2, 3, v0")
            p("v_lshl_add_u32 v1, v1, 2, v2")
            p("v_min_u32 v1, (L_codeend-L_pfbase)/64-1, v1")
            p("v_lshlrev_b32 v1, 6, v1")
            p("global_load_dword v127, v1, s[26:27]")
            self.q.push("pf")
        for i in range(self.o.get("padk", 0) * 128):
            p("s_mov_b32 s69, 0x12345678")
        p("v_lshrrev_b32 v1, 6, v0")
        p("v_and_b32 v2, 63, v0            ; v2 = lane")
        p(f"v_readfirstlane_b32 s{sW}, v1")
        p(f"s_and_b32 s{sXCD}, s2, 7")
        p(f"s_lshr_b32 s{sSLOT}, s2, 3")
        if self.o.get("local", 1):
            p(f"s_and_b32 s{sRB}, s{sSLOT}, 15")
            p(f"s_lshr_b32 s{sTYP}, s{sSLOT}, 4")
            p(f"s_mov_b32 s{sAB}, s{sXCD}")
        else:
            p(f"s_and_b32 s{sT0}, s{sXCD}, 1")
            p(f"s_lshl_b32 s{sT0}, s{sT0}, 3")
            p(f"s_and_b32 s{sT1}, s{sSLOT}, 7")
            p(f"s_add_u32 s{sRB}, s{sT0}, s{sT1}")
            p(f"s_lshr_b32 s{sTYP}, s{sSLOT}, 4")
            p(f"s_and_b32 s{sT0}, s{sXCD}, 6              ; 2*(xcd>>1)")
            p(f"s_bfe_u32 s{sT1}, s{sSLOT}, 0x10003       ; (slot>>3)&1")
            p(f"s_add_u32 s{sAB}, s{sT0}, s{sT1}          ; a / b = 0..7")
        p(f"s_and_b32 s{sRT}, s{sW}, 3")
        p(f"s_lshr_b32 s{sCH}, s{sW}, 2")
        p(f"s_lshl_b32 s{sT0}, s{sRB}, 2")
        p(f"s_add_u32 s{sTILE}, s{sT0}, s{sRT}")
        p(f"s_lshl_b32 s{sT0}, s{sXCD}, 2")
        p(f"s_and_b32 s{sT1}, s{sSLOT}, 3")
        p(f"s_add_u32 s{sH}, s{sT0}, s{sT1}           ; attention head")
        p(f"s_lshr_b32 s{sQC}, s{sSLOT}, 2           ; attention q chunk")
        p(f"s_mov_b32 s{sCS}, {f2u(CSCALE):#x}")
        if self.o.get("twice"):
            p("s_waitcnt lgkmcnt(0)")
            p("s_mov_b32 s0, 0")
            p("s_waitcnt lgkmcnt(0)")
            p("L_restart:")
        self.p1_setup_early()
        p("s_waitcnt lgkmcnt(0)")
        if self.o.get("stamps"):
            p("s_mov_b32 s69, s70")
            for i in range(12):
                p(f"s_mov_b32 s{72+2*i}, 0")
        self.stamp("start")
        srd(p, SRD_X, sX, 2048 * 1024)
        self.p1_setup_srd()

    vLANE = 2
    vXD = (3, 4)
    vW1 = (5, 6, 7)
    vW2 = (8, 9)
    vB = (10, 11, 12)
    vL16 = 13
    vP = (14, 15)
    WB = (16, 28)
    vXR = (40, 41, 42, 43)
    vFLAG, vFADDR, vONE, vDBGA = 44, 45, 46, 47
    TMP = 48
    ACC = 64
    TMP2 = 112
    X = 128
    SLOT1 = 40960
    AREA2 = {8: 0, 9: 16384, 10: 40960, 11: 57344, 12: 98304, 13: 81920, 14: 131072, 15: 147456}
    KVAREA = {16+j: 32768 + 16384*j for j in range(4)}
    KVAREA.update({20+j: 98304 + 16384*j for j in range(4)})
    ONES = 0
    F1G = 13

    def area(self, g):
        if g < 8:
            return self.SLOT1 * (g % 4)
        if g < 16:
            return self.AREA2[g]
        return self.KVAREA[g]

    def window(self, g):
        if g < 8:
            return 81920 if (g % 4) >= 2 else 0
        return 131072 if self.AREA2[g] >= 131072 else 81920 if self.AREA2[g] >= 81920 else 0

    def p1_setup_early(self):
        p = self.p
        L = self.vLANE
        t0, t1, t2, t3 = 48, 49, 50, 51
        p(f"v_lshlrev_b32 v{self.vL16}, 4, v{L}")
        p(f"s_lshl_b32 s{sT0}, s{sRB}, 7")
        p(f"s_lshl_b32 s{sT1}, s{sW}, 4")
        p(f"s_add_u32 s{sT0}, s{sT0}, s{sT1}")
        p(f"v_lshrrev_b32 v{t1}, 3, v{L}             ; l>>3")
        p(f"v_add_u32 v{t2}, s{sT0}, v{t1}           ; row (e=0)")
        p(f"v_lshrrev_b32 v{t0}, 4, v{L}")
        p(f"v_and_b32 v{t3}, 7, v{L}                 ; l&7")
        p(f"v_xor_b32 v{t0}, v{t0}, v{t3}            ; piece (e=0)")
        p(f"v_lshlrev_b32 v{t0}, 4, v{t0}")
        p(f"v_lshl_add_u32 v{self.vXD[0]}, v{t2}, 10, v{t0}")
        p(f"v_xor_b32 v{t0}, 64, v{self.vXD[0]}        ; piece ^ 4")
        p(f"v_add_u32 v{self.vXD[1]}, 8192, v{t0}      ; +8 rows")
        p(f"v_bfe_u32 v{t0}, v{L}, 4, 1")
        p(f"v_lshlrev_b32 v{t0}, 2, v{t0}")
        p(f"v_xor_b32 v{t3}, v{t3}, v{t0}")
        p(f"v_lshlrev_b32 v{t3}, 4, v{t3}")
        p(f"s_lshl_b32 s{sT0}, s{sW}, 3")
        p(f"v_add_u32 v{t1}, s{sT0}, v{t1}           ; 8w + (l>>3)")
        p(f"s_mul_i32 s{sT0}, s{sAB}, 320")
        p(f"s_add_u32 s{sT0}, s{sT0}, 1024")
        p(f"s_and_b32 s{sT1}, s{sAB}, 1")
        p(f"s_mul_i32 s{sT2}, s{sT1}, 192")
        p(f"s_add_u32 s{sCB2}, s{sT0}, s{sT2}")
        p(f"s_xor_b32 s{sT1}, s{sT1}, 1")
        p(f"s_lshl_b32 s{sT1}, s{sT1}, 7")
        p(f"s_add_u32 s{sT4}, s{sT0}, s{sT1}")
        p(f"s_lshl_b32 s{sT0}, s{sAB}, 7")
        p(f"s_cmp_eq_u32 s{sTYP}, 0")
        p(f"s_cselect_b32 s{sCB2}, s{sT0}, s{sCB2}")
        p(f"v_mul_u32_u24 v{t0}, 3584, v{t1}")
        p(f"v_add3_u32 v{self.vW2[0]}, v{t0}, v{t3}, s{sCB2}")
        p(f"v_xor_b32 v{t2}, 32, v{t3}")
        p(f"v_add3_u32 v{self.vW2[1]}, v{t0}, v{t2}, s{sCB2}")
        p(f"s_cbranch_scc0 L_setupB")
        p(f"v_mul_u32_u24 v{t0}, 3072, v{t1}")
        p(f"v_add3_u32 v{self.vW1[0]}, v{t0}, v{t3}, s{sT0}")
        p(f"v_add3_u32 v{t2}, v{t0}, v{t2}, s{sT0}")
        p(f"v_add_u32 v{self.vW1[1]}, 1024, v{t2}")
        p(f"v_add_u32 v{self.vW1[2]}, 2048, v{self.vW1[0]}")
        p(f"s_lshl_b32 s{sD0}, s{sW}, 10")
        p(f"s_add_u32 s{sD0}, s{sD0}, 16384")
        p(f"s_movk_i32 s{sT5}, 8192")
        p(f"s_mov_b32 s{sADV}, {64*3072}")
        p("s_branch L_setupJ")
        p("L_setupB:")
        p(f"s_and_b32 s{sT0}, s{sW}, 3")
        p(f"s_lshl_b32 s{sT1}, s{sT0}, 4             ; 16*wq")
        p(f"s_mov_b32 s{sT2}, 43691")
        p(f"s_lshl_b32 s{sT3}, s{sCH}, 1")
        for e in range(3):
            r = self.vW1[e]
            p(f"v_add_u32 v{t0}, {64*e}, v{L}           ; j")
            p(f"v_mul_u32_u24 v{t1}, s{sT2}, v{t0}")
            p(f"v_lshrrev_b32 v{t1}, 19, v{t1}          ; j/12")
            p(f"v_mul_u32_u24 v{t2}, 12, v{t1}")
            p(f"v_sub_u32 v{t2}, v{t0}, v{t2}           ; j%12")
            p(f"v_xor_b32 v{t2}, s{sT3}, v{t2}")
            p(f"v_add_u32 v{t1}, s{sT1}, v{t1}")
            p(f"v_mul_u32_u24 v{t1}, 3584, v{t1}")
            p(f"v_lshl_add_u32 v{t1}, v{t2}, 4, v{t1}")
            p(f"v_add_u32 v{r}, s{sT4}, v{t1}")
        p(f"s_mul_i32 s{sD0}, s{sT0}, 3072")
        p(f"s_mul_i32 s{sT1}, s{sCH}, 12288")
        p(f"s_add_u32 s{sD0}, s{sD0}, s{sT1}")
        p(f"s_add_u32 s{sD0}, s{sD0}, 16384")
        p(f"s_movk_i32 s{sT5}, 1024")
        p(f"s_mov_b32 s{sADV}, {64*3584}")
        p(f"s_lshr_b32 s{sHFB}, s{sT4}, 5")
        p("L_setupJ:")
        p(f"s_lshl_b32 s{sM0X}, s{sW}, 11")
        p(f"s_lshl_b32 s{sM0K}, s{sW}, 12")
        p(f"s_lshl_b32 s{sM0P}, s{sW}, 10")
        p(f"s_mov_b32 s{sW1OFF}, 0")

    def p1_setup_srd(self):
        p = self.p
        p(f"s_add_u32 s{sD1}, s{sD0}, s{sT5}")
        p(f"s_add_u32 s{sD2}, s{sD1}, s{sT5}")
        p(f"s_cmp_eq_u32 s{sCH}, 0")
        p(f"s_cselect_b32 s{SRD_W1}, s{sWG}, s{sWU}")
        p(f"s_cselect_b32 s{SRD_W1+1}, s{sWG+1}, s{sWU+1}")
        p(f"s_mov_b32 s{SRD_W1+2}, {512*3584:#x}")
        p(f"s_cmp_eq_u32 s{sTYP}, 0")
        p(f"s_cselect_b32 s{SRD_W1}, s{sWQKV}, s{SRD_W1}")
        p(f"s_cselect_b32 s{SRD_W1+1}, s{sWQKV+1}, s{SRD_W1+1}")
        p(f"s_cselect_b32 s{SRD_W1+2}, {512*3072:#x}, s{SRD_W1+2}")
        p(f"s_mov_b32 s{SRD_W1+3}, 0x20000")

    def p1_setup_late(self):
        p, q = self.p, self.q
        L = self.vLANE
        t0, t1, t2, t3 = 48, 49, 50, 51
        srd(p, SRD_G, sWG, 512 * 3584)
        srd(p, SRD_U, sWU, 512 * 3584)
        srd(p, SRD_T, sGW, 1024)
        p(f"s_lshl_b32 s{sT0}, s{sTYP}, 3")
        p(f"s_add_u32 s{sT0}, s{sT0}, s{sAB}")
        p(f"s_lshl_b32 s{sT1}, s{sT0}, 6            ; *64 bytes")
        p(f"v_lshrrev_b32 v{t0}, 5, v{L}             ; hh")
        p(f"v_lshlrev_b32 v{t0}, 4, v{t0}            ; hh*16")
        p(f"v_add_u32 v{t0}, s{sT1}, v{t0}")
        p(f"buffer_load_dwordx4 {V4(112)}, v{t0}, {S4(SRD_T)}, 0 offen")
        p(f"buffer_load_dwordx4 {V4(116)}, v{t0}, {S4(SRD_T)}, 0 offen offset:32")
        q.push("lgld", 2)
        rowl, sig, grp = 52, 53, 54
        p(f"v_lshrrev_b32 v{t0}, 5, v{L}")
        p(f"v_lshlrev_b32 v{t0}, 3, v{t0}")
        p(f"v_bfe_u32 v{t1}, v{L}, 2, 2")
        p(f"v_add_u32 v{rowl}, v{t0}, v{t1}")
        p(f"v_and_b32 v{t0}, 1, v{L}")
        p(f"v_lshlrev_b32 v{t0}, 4, v{t0}            ; (g&1)*16")
        p(f"v_bfe_u32 v{t1}, v{L}, 1, 1")
        p(f"v_lshl_add_u32 v{sig}, v{t1}, 3, v{t0}    ; 8*sigma")
        p(f"v_bfe_u32 v{grp}, v{L}, 4, 1")
        p(f"v_bfe_u32 v{t0}, v{L}, 3, 1")
        p(f"v_xor_b32 v{t0}, s{sCH}, v{t0}")
        p(f"v_lshlrev_b32 v{t0}, 6, v{t0}")
        p(f"v_lshl_add_u32 v{t0}, v{rowl}, 7, v{t0}")
        p(f"v_add_u32 v{t0}, v{t0}, v{sig}            ; c128")
        p(f"v_mul_u32_u24 v{t1}, {8192+32}, v{grp}")
        p(f"v_add_u32 v{self.vP[0]}, v{t0}, v{t1}")
        p(f"v_xor_b32 v{self.vP[1]}, 32, v{self.vP[0]}")
        p(f"s_cmp_eq_u32 s{sTYP}, 0")
        p(f"s_cbranch_scc0 L_lateB")
        p(f"v_add_u32 v{self.vB[0]}, 16384, v{self.vP[0]}")
        p(f"v_add_u32 v{self.vB[1]}, 16384, v{self.vP[1]}")
        p(f"v_lshl_add_u32 v{t1}, v{grp}, 5, v{t0}")
        p(f"v_add_u32 v{self.vB[2]}, 32768, v{t1}")
        p("s_branch L_lateJ")
        p("L_lateB:")
        p(f"s_mul_i32 s{sT0}, s{sCH}, 96")
        p(f"s_add_u32 s{sT0}, s{sT0}, 16384")
        p(f"v_mul_u32_u24 v{t1}, 192, v{rowl}")
        p(f"v_add3_u32 v{t1}, v{t1}, v{sig}, s{sT0}")
        p(f"s_lshl_b32 s{sT1}, s{sCH}, 6")
        p(f"s_sub_u32 s{sT1}, {12288+32}, s{sT1}")
        p(f"s_sub_u32 s{sT2}, {2*12288}, s{sT1}")
        p(f"v_mul_u32_u24 v{t2}, s{sT1}, v{grp}")
        p(f"v_add_u32 v{self.vB[0]}, v{t1}, v{t2}")
        p(f"v_mul_u32_u24 v{t2}, s{sT2}, v{grp}")
        p(f"v_add_u32 v{self.vB[1]}, v{t1}, v{t2}")
        p(f"v_mov_b32 v{self.vB[2]}, v{self.vB[0]}")
        p("L_lateJ:")
        p(f"v_and_b32 v{t0}, 31, v{L}")
        p(f"s_lshl_b32 s{sT0}, s{sRT}, 5")
        p(f"v_add_u32 v{t1}, s{sT0}, v{t0}")
        p(f"v_lshlrev_b32 v{t1}, 7, v{t1}            ; row*128")
        p(f"v_bfe_u32 v{t0}, v{L}, 1, 3")
        p(f"v_lshrrev_b32 v{t2}, 5, v{L}")
        p(f"v_xor_b32 v{t0}, v{t0}, v{t2}            ; hh ^ f")
        p(f"v_lshl_add_u32 v{t1}, v{t0}, 4, v{t1}")
        for k in range(4):
            p(f"v_xor_b32 v{self.vXR[k]}, {32*k}, v{t1}")
        p(f"v_mov_b32 v{self.vONE}, 1")
        p(f"v_mov_b32 v{self.vDBGA}, 0")
        self.win1 = 0
        self.win2 = 0

    def counter_zero(self):
        p = self.p
        L = self.vLANE
        t0, t1 = 48, 49
        p("s_add_u32 s%d, s2, s%d" % (sT0, sW))
        p(f"s_cmp_eq_u32 s{sT0}, 0")
        p(f"s_cselect_b32 s{sT0}, 0, {OOB:#x}")
        p(f"v_lshlrev_b32 v{t0}, 8, v{L}")
        p(f"v_add_u32 v{t0}, s{sT0}, v{t0}")
        p(f"v_mov_b32 v{t1}, 0")
        p(f"buffer_store_dword v{t1}, v{t0}, {S4(SRD_WS)}, 0 offen sc1")
        self.q.push("cz")

    def census_add(self):
        p = self.p
        t0, t1 = 48, 49
        p(f"v_readfirstlane_b32 s{sT3}, v{self.vFLAG}")
        p(f"s_getreg_b32 s{sT0}, hwreg(HW_REG_XCC_ID, 0, 4)")
        p(f"s_mul_i32 s{sT1}, s{sT0}, s{sT0}")
        p(f"s_lshl_b32 s{sT1}, s{sT1}, 16")
        p(f"s_lshl_b32 s{sT2}, s{sT0}, 8")
        p(f"s_add_u32 s{sT1}, s{sT1}, s{sT2}")
        p(f"s_add_u32 s{sT1}, s{sT1}, 1")
        p(f"s_lshl_b32 s{sEXP}, s{sT1}, 5")
        p(f"s_add_u32 s{sT2}, s{sXCD}, 48")
        p(f"s_lshl_b32 s{sT2}, s{sT2}, 8")
        p(f"s_cmp_ge_u32 s{sT3}, 1")
        p(f"s_cselect_b32 s{sT2}, s{sT2}, {OOB:#x}")
        p(f"s_cselect_b32 s{sLOC}, 1, 0")
        p(f"v_mov_b32 v{t0}, {OOB:#x}")
        p(f"v_mov_b32 v{t1}, s{sT2}")
        p(f"v_cmp_eq_u32 vcc, 0, v0")
        p(f"v_cndmask_b32 v{t0}, v{t0}, v{t1}, vcc")
        p(f"v_mov_b32 v{t1}, s{sT1}")
        p(f"buffer_atomic_add v{t1}, v{t0}, {S4(SRD_WS)}, 0 offen sc1")
        self.q.push("cadd")

    def census_load(self):
        p = self.p
        p(f"s_add_u32 s{sT2}, s{sXCD}, 48")
        p(f"s_lshl_b32 s{sT2}, s{sT2}, 8")
        p(f"v_mov_b32 v{self.vFADDR}, s{sT2}")
        p(f"buffer_load_dword v{self.vFLAG}, v{self.vFADDR}, {S4(SRD_WS)}, 0 offen sc1")
        self.q.push("cld")

    def census_check(self):
        p = self.p
        self.q.wait(p, "cld")
        p(f"v_readfirstlane_b32 s{sT0}, v{self.vFLAG}")
        p(f"s_cmp_eq_u32 s{sT0}, s{sEXP}")
        p(f"s_cselect_b32 s{sLOC}, s{sLOC}, 0")
        if self.o.get("nolocal"):
            p(f"s_mov_b32 s{sLOC}, 0")

    def counter_flag(self):
        p = self.p
        t0, t1 = 48, 49
        p(f"s_cmp_eq_u32 s2, 0")
        p(f"s_cselect_b32 s{sT0}, 0, {OOB:#x}")
        p(f"v_mov_b32 v{t0}, {OOB:#x}")
        p(f"v_mov_b32 v{t1}, s{sT0}")
        p(f"v_cmp_eq_u32 vcc, 0, v0")
        p(f"v_cndmask_b32 v{t0}, v{t0}, v{t1}, vcc")
        p(f"v_mov_b32 v{t1}, 1")
        p(f"buffer_store_dword v{t1}, v{t0}, {S4(SRD_DBG)}, 0 offen sc1")
        self.q.push("cf")

    def p1_piece(self, g, e):
        p, q = self.p, self.q
        ar = self.area(g)
        if g < 8:
            if e < 2:
                p(f"s_add_u32 m0, s{sM0X}, {ar + 1024*e}")
                p(f"s_movk_i32 s{sT1}, {128*g}")
                p(f"buffer_load_dwordx4 v{self.vXD[e]}, {S4(SRD_X)}, s{sT1} offen lds")
            else:
                d = (sD0, sD1, sD2)[e - 2]
                p(f"s_add_u32 m0, s{d}, {ar}")
                if e == 2 and g > 0:
                    p(f"s_add_u32 s{sW1OFF}, s{sW1OFF}, s{sADV}")
                else:
                    p("s_nop 0")
                p(f"buffer_load_dwordx4 v{self.vW1[e-2]}, {S4(SRD_W1)}, s{sW1OFF} offen lds")
        elif g < 16:
            p(f"s_add_u32 m0, s{sM0P}, {ar + 8192*e}")
            p(f"s_mov_b32 s{sT1}, {229376*(g-8)}")
            p(f"buffer_load_dwordx4 v{self.vW2[e]}, {S4(SRD_G if e == 0 else SRD_U)}, s{sT1} offen lds")
        else:
            j = (g - 16) & 3
            src = (WS_KF if g < 20 else WS_VF) + 16384 * j + 1024 * e
            p(f"s_add_u32 m0, s{sM0X2}, {ar + 1024*e}")
            p(f"s_add_u32 s{sT1}, s{sKVB}, {src:#x}")
            p(f"buffer_load_dwordx4 v{self.avL16}, {S4(SRD_WS)}, s{sT1} offen sc1 lds")
        q.push(f"st{g}")

    def earliest(self, g):
        if g >= 8:
            return {8: 22, 9: 22, 10: 26, 11: 26, 12: 30, 13: 30, 14: 36, 15: 36}[g]
        return 4 * (g - 3) + 2

    def npieces(self, g):
        return 5 if g < 8 else 2

    def emit_pieces(self, step, maxn):
        n = 0
        while self.pending and n < maxn:
            g, e = self.pending[0]
            if g == "aq":
                if step < 4 * self.F1G + 2:
                    break
                self.pending.pop(0)
                if self.stop_after != "p1":
                    self.att_loads()
                n += 1
                continue
            if 4 <= g < 16 and step < self.earliest(g):
                break
            if g >= 16 and step < 4 * self.F1G + 2:
                break
            if g >= 16 and self.stop_after == "p1":
                self.pending.pop(0)
                continue
            self.pending.pop(0)
            self.p1_piece(g, e)
            n += 1

    def rebase(self, regs, cur, want):
        if want != cur:
            d = want - cur
            for r in regs:
                if d > 0:
                    self.p(f"v_add_u32 v{r}, {d:#x}, v{r}")
                else:
                    self.p(f"v_subrev_u32 v{r}, {-d:#x}, v{r}")
        return want

    def p1_reads(self, ps, s, typ, part=None):
        p = self.p
        g = (s >> 2) + (0 if ps == 1 else 8)
        sp = s & 3
        wb = self.WB[s & 1]
        n = 0
        nt = 3 if ps == 1 else 2
        parts = range(nt) if part is None else [part]
        for t in parts:
            if t >= nt:
                continue
            if ps == 1:
                if t == 0:
                    self.win1 = self.rebase(list(self.vXR) + list(self.vB), self.win1, self.window(g))
                off = self.area(g) - self.win1
                if t == 0:
                    p(f"ds_read_b128 {V4(self.X + 4*s)}, v{self.vXR[sp]} offset:{off}")
                    n += 1
                for j in range(2):
                    if typ == 0:
                        p(f"ds_read_b64_tr_b16 {V2(wb + 4*t + 2*j)}, v{self.vB[t]} offset:{off + (16*sp + 4*j)*128}")
                    else:
                        p(f"ds_read_b64_tr_b16 {V2(wb + 4*t + 2*j)}, v{self.vB[t]} offset:{off + (16*sp + 4*j)*192 + 32*t}")
                    n += 1
            else:
                if t == 0:
                    self.win2 = self.rebase(list(self.vP), self.win2, self.window(g))
                off = self.area(g) - self.win2
                for j in range(2):
                    p(f"ds_read_b64_tr_b16 {V2(wb + 4*t + 2*j)}, v{self.vP[t]} offset:{off + (16*sp + 4*j)*128}")
                    n += 1
        return n

    def p1_midstage(self, g):
        p, q = self.p, self.q
        T = 116
        tags = [f"st{g+1}"] if g + 1 < 16 else []
        if g == 1:
            tags += ["cz"]
        if g == 4 and self.o.get("local", 1):
            tags += ["dbg0"]
        if g == 10:
            tags += ["e1st", "dbg"]
        if g == self.F1G:
            tags += ["f1"]
        self.stamp(f"pre{g}")
        if tags:
            q.wait(p, tags)
        if g == self.F1G:
            poll(p, q, self.vFLAG, self.vFADDR, SRD_WS, 16, "F1")
        self.stamp(f"wait{g}")
        p("s_barrier")
        self.stamp(f"bar{g}")
        if g == 1:
            self.counter_flag()
        if g == 10:
            poll(p, q, self.vFLAG, self.vDBGA, SRD_DBG, 1, "init")
            if self.cur_typ == 0:
                p(f"s_lshl_b32 s{sT0}, s{sAB}, 8")
                p(f"v_mov_b32 v{self.vFADDR}, {OOB:#x}")
                p(f"v_mov_b32 v{T}, s{sT0}")
                p(f"v_cmp_eq_u32 vcc, 0, v0")
                p(f"v_cndmask_b32 v{self.vFADDR}, v{self.vFADDR}, v{T}, vcc")
                self.stamp("f1iss")
                p(f"buffer_atomic_add v{self.vONE}, v{self.vFADDR}, {S4(SRD_WS)}, 0 offen sc1")
                q.push("f1add")
                if self.o.get("diagf1"):
                    p("s_waitcnt vmcnt(0)")
                    self.stamp("f1done")
        if self.o.get("local", 1):
            if g == 2:
                p(f"buffer_load_dword v{self.vFLAG}, v{self.vDBGA}, {S4(SRD_DBG)}, 0 offen sc1")
                q.push("dbg0")
            if g == 4:
                self.census_add()
            if g == 7 and self.cur_typ == 0:
                self.census_load()
        if g == 8:
            p(f"buffer_load_dword v{self.vFLAG}, v{self.vDBGA}, {S4(SRD_DBG)}, 0 offen sc1")
            q.push("dbg")
        if g == 13:
            p(f"v_bfe_u32 v{T+2}, v0, 1, 4")
            p(f"v_and_b32 v{T+2}, 11, v{T+2}")
            p(f"v_cmp_eq_u32 vcc, 0, v{T+2}")
            p(f"v_mov_b32 v{T+1}, 0x3f803f80")
            p(f"v_cndmask_b32 v{T}, 0, v{T+1}, vcc")
            p(f"v_lshlrev_b32 v{T+2}, 3, v0")
            p(f"v_mov_b32 v{T+1}, v{T}")
            p(f"ds_write_b64 v{T+2}, {V2(T)} offset:{self.ONES}")
            self.lg_issue("ones", 1)
        if g == self.F1G - 1:
            p(f"s_lshr_b32 s{sT0}, s{sH}, 2")
            p(f"s_lshl_b32 s{sT0}, s{sT0}, 8")
            p(f"v_mov_b32 v{self.vFADDR}, s{sT0}")
            p(f"buffer_load_dword v{self.vFLAG}, v{self.vFADDR}, {S4(SRD_WS)}, 0 offen sc1")
            q.push("f1")
            p(f"v_lshlrev_b32 v{self.avL16}, 4, v{self.vLANE}")
            p(f"s_lshl_b32 s{sM0X2}, s{sW}, 11")
            p(f"s_lshl_b32 s{sKVB}, s{sH}, 16")
            p(f"s_add_u32 s{sKVB}, s{sKVB}, s{sM0X2}")
        if g == 14 and self.F1G == 14 and not self.o.get("nodma"):
            self.emit_pieces(58, 6)

    def lg_issue(self, tag, n):
        self.lgq += [tag] * n

    def lg_wait(self, tag):
        last = max((i for i, t in enumerate(self.lgq) if t == tag), default=-1)
        if last < 0:
            return
        n = len(self.lgq) - 1 - last
        self.p(f"s_waitcnt lgkmcnt({min(n, 15)})")
        self.lgq = self.lgq[last + 1:]

    def p1_pass(self, ps, typ):
        p, q = self.p, self.q
        nt = 3 if ps == 1 else 2
        acc = [self.ACC + 16*t for t in range(nt)]
        comp = not self.o.get("nocompute")
        for s in range(32):
            gs = s + (0 if ps == 1 else 32)
            g = gs >> 2
            if (s & 3) == 2:
                self.p1_midstage(g)
            nxt = None
            if s < 31:
                nxt = (ps, s + 1)
            elif ps == 1:
                nxt = (2, 0)
            wb = self.WB[s & 1]
            xs = self.X + 4*s
            for t in range(nt):
                c = None if s == 0 else acc[t]
                if comp:
                    self.lg_wait((ps, s, t))
                    if self.o.get("nomfma"):
                        pass
                    elif ps == 1 and t == 2 and typ == 0:
                        mfma(p, acc[t], xs, wb + 4*t, c)
                    else:
                        mfma(p, acc[t], wb + 4*t, xs, c)
                    if nxt and not self.o.get("nolds"):
                        n = self.p1_reads(nxt[0], nxt[1], typ, t)
                        self.lg_issue((nxt[0], nxt[1], t), n)
                if not self.o.get("nodma"):
                    if t == 0:
                        self.emit_pieces(gs, 1)
                    elif t == 1 and (ps == 1 or gs < 46):
                        self.emit_pieces(gs, 1)
                if ps == 2 and (s, t) in self.deferred:
                    self.deferred.pop((s, t))()

    def p1_first_reads(self, typ):
        self.lgq = []
        for t in range(3):
            n = self.p1_reads(1, 0, typ, t)
            self.lg_issue((1, 0, t), n)

    def store_ws(self, vdata, voff, soff_reg, tag, offset=0):
        o = f" offset:{offset}" if offset else ""
        self.p(f"buffer_store_dwordx4 {V4(vdata)}, v{voff}, {S4(SRD_WS)}, s{soff_reg} offen{o} sc1")
        self.q.push(tag)

    def relu_mul_store(self, a, tmp, unit, tag):
        p = self.p
        for r in range(8):
            p(f"v_max_f32 v{a+r}, 0, v{a+r}")
        for r in range(8):
            p(f"v_mul_f32 v{a+r}, v{a+r}, v{a+8+r}")
        for i in range(4):
            p(f"v_cvt_pk_bf16_f32 v{tmp+i}, v{a+2*i}, v{a+2*i+1}")
        p(f"s_add_u32 s{sT1}, s{sHFB}, {unit * 1024}")
        self.store_ws(tmp, self.vL16, sT1, tag)

    def hf_base(self, unit_reg_expr_lines):
        p = self.p
        for l in unit_reg_expr_lines:
            p(l)
        p(f"s_mul_i32 s{sT1}, s{sTILE}, 112")
        p(f"s_add_u32 s{sHFB}, s{sT0}, s{sT1}")
        p(f"s_lshl_b32 s{sHFB}, s{sHFB}, 10")
        p(f"s_add_u32 s{sHFB}, s{sHFB}, {WS_HF:#x}")

    def p1_logit(self, step):
        p, q = self.p, self.q
        L = self.vLANE
        p(f"s_lshl_b32 s{sT0}, s{sTYP}, 3")
        p(f"s_add_u32 s{sT0}, s{sT0}, s{sAB}          ; j")
        p(f"s_lshl_b32 s{sT1}, s{sT0}, 3")
        p(f"s_set_gpr_idx_on s{sT1}, 0x1")
        for i in range(8):
            p(f"v_mov_b32 v{120+i}, v{self.X+i}")
        p("s_set_gpr_idx_off")
        q.wait(p, "lgld")
        mfma(p, 48, 112, 120, None)
        mfma(p, 48, 116, 124, 48)
        p(f"s_lshl_b32 s{sT1}, s{sT0}, 13")
        p(f"s_add_u32 s{sT1}, s{sT1}, {WS_LG:#x}")
        p(f"s_lshl_b32 s{sT2}, s{sTILE}, 7")
        p(f"s_add_u32 s{sLGO}, s{sT1}, s{sT2}")
        p(f"s_cmp_eq_u32 s{sCH}, 0")
        p(f"s_cselect_b32 s{sT1}, 32, 0")
        p(f"v_lshlrev_b32 v43, 2, v{L}")
        p(f"v_mov_b32 v42, {OOB:#x}")
        p(f"v_cmp_gt_u32 vcc, s{sT1}, v{L}")
        p(f"v_cndmask_b32 v43, v42, v43, vcc")
        def fin():
            p(f"v_mov_b32 v42, v48")
        def f():
            p(f"buffer_store_dword v42, v43, {S4(SRD_WS)}, s{sLGO} offen sc1")
            self.q.push("lgst")
        self.deferred[step] = f
        return fin

    def p1_epi1(self, typ):
        p, q = self.p, self.q
        L = self.vLANE
        self.deferred = {}
        local = self.o.get("local", 1) and typ == 0
        if local:
            self.census_check()
        def two_flavours(emit):
            if not local:
                emit(" sc1")
                return
            n = uid()
            p(f"s_cmp_eq_u32 s{sLOC}, 0")
            p(f"s_cbranch_scc1 L_wt{n}")
            emit("")
            p(f"s_branch L_st{n}")
            p(f"L_wt{n}:")
            emit(" sc1")
            p(f"L_st{n}:")
        self.two_flavours = two_flavours
        def dstore(step, vdata, voff, const, tag, base, offset=0):
            def f():
                p(f"s_add_u32 s{sT1}, s{base}, {const:#x}")
                o = f" offset:{offset}" if offset else ""
                two_flavours(lambda fl: p(f"buffer_store_dwordx4 {V4(vdata)}, v{voff}, {S4(SRD_WS)}, s{sT1} offen{o}{fl}"))
                self.q.push(tag)
            if step is None:
                self.late_stores.append(f)
            else:
                self.deferred[step] = f
        self.late_stores = []
        lg_fin = self.p1_logit((12, 1))
        if typ == 0:
            A = (self.ACC, self.ACC + 16)
            B = self.ACC + 32
            T = self.TMP
            V = 120
            p(f"s_lshl_b32 s{sT0}, s{sAB}, 2")
            p(f"s_lshl_b32 s{sT1}, s{sCH}, 1")
            p(f"s_add_u32 s{sT0}, s{sT0}, s{sT1}          ; head")
            p(f"s_lshl_b32 s{sT1}, s{sT0}, 6")
            p(f"s_add_u32 s{sT1}, s{sT1}, s{sTILE}        ; h*64+tile")
            p(f"s_lshl_b32 s{sQB}, s{sT1}, 10")
            p(f"s_lshl_b32 s{sT5}, s{sAB}, 4")
            p(f"s_add_u32 s{sT5}, s{sT5}, s{sRB}")
            p(f"s_lshl_b32 s{sT5}, s{sT5}, 7          ; (a*16+rb)*128")
            p(f"s_lshl_b32 s{sT0}, s{sCH}, 6")
            p(f"s_add_u32 s{sT5}, s{sT5}, s{sT0}")
            p(f"s_lshl_b32 s{sT0}, s{sRT}, 3")
            p(f"s_add_u32 s{sT5}, s{sT5}, s{sT0}")
            p(f"s_mov_b32 s{sT0}, s{sCS}")
            p(f"s_mov_b32 s{sT1}, s{sCS}")
            for t in range(2):
                for i in range(4):
                    p(f"v_pk_mul_f32 {V2(A[t]+2*i)}, {V2(A[t]+2*i)}, s[{sT0}:{sT1}]")
            lg_fin()
            for t in range(2):
                for i in range(4):
                    p(f"v_cvt_pk_bf16_f32 v{T+8*t+4+i}, v{A[t]+8+2*i}, v{A[t]+8+2*i+1}")
            for i in range(8):
                p(f"v_cvt_pk_bf16_f32 v{V+i}, v{B+2*i}, v{B+2*i+1}")
            for t in range(2):
                for i in range(4):
                    p(f"v_cvt_pk_bf16_f32 v{T+8*t+i}, v{A[t]+2*i}, v{A[t]+2*i+1}")
            a = 40
            p(f"v_bfe_u32 v{a}, v{L}, 4, 1")
            p(f"v_lshlrev_b32 v{a}, 16, v{a}")
            p(f"v_lshrrev_b32 v{a+1}, 5, v{L}")
            p(f"v_lshl_add_u32 v{a}, v{a+1}, 8, v{a}")
            p(f"v_and_b32 v{a+1}, 15, v{L}")
            p(f"v_lshl_add_u32 v{a}, v{a+1}, 4, v{a}")
            dstore((0, 0), T + 4, self.vL16, WS_KF, "e1st", sQB)
            dstore((0, 1), T + 12, self.vL16, WS_KF + 65536, "e1st", sQB)
            dstore((1, 0), V, a, WS_VF, "e1st", sQB)
            dstore((1, 1), V + 4, a, WS_VF, "e1st", sQB, 512)
            dstore((2, 0), T, self.vL16, WS_QF, "e1st", sQB)
            dstore((2, 1), T + 8, self.vL16, WS_QF + 65536, "e1st", sQB)
            N = B
            for t in range(2):
                for h in range(2):
                    r = N + 4*t + 2*h
                    src = A[t] + 8*h
                    p(f"v_pk_mul_f32 {V2(r)}, {V2(src)}, {V2(src)}")
            for i in range(1, 4):
                for t in range(2):
                    for h in range(2):
                        r = N + 4*t + 2*h
                        src = A[t] + 8*h + 2*i
                        p(f"v_pk_fma_f32 {V2(r)}, {V2(src)}, {V2(src)}, {V2(r)}")
            for t in range(2):
                for h in range(2):
                    r = N + 4*t + 2*h
                    p(f"v_add_f32 v{r}, v{r}, v{r+1}")
            for t in range(2):
                p(f"v_permlane32_swap_b32 v{N+4*t}, v{N+4*t+2}")
            for t in range(2):
                p(f"v_add_f32 v{N+4*t}, v{N+4*t}, v{N+4*t+2}")
            na = 104
            p(f"s_add_u32 s{sT0}, s{sT5}, {WS_NRMQ:#x}")
            p(f"s_add_u32 s{sT1}, s{sT5}, {WS_NRMQ + 4:#x}")
            p(f"v_mov_b32 v{na}, {OOB:#x}")
            p(f"v_mov_b32 v{na+1}, s{sT0}")
            p(f"v_cmp_eq_u32 vcc, 31, v{L}")
            for sh in (1, 2):
                for t in range(2):
                    p(f"v_max_f32_dpp v{N+4*t}, v{N+4*t}, v{N+4*t} row_shr:{sh} row_mask:0xf bank_mask:0xf")
                if sh == 1:
                    p(f"v_cndmask_b32 v{na}, v{na}, v{na+1}, vcc")
                    p(f"v_mov_b32 v{na+1}, s{sT1}")
                else:
                    p(f"v_cmp_eq_u32 vcc, 63, v{L}")
            for sh in (4, 8):
                for t in range(2):
                    p(f"v_max_f32_dpp v{N+4*t}, v{N+4*t}, v{N+4*t} row_shr:{sh} row_mask:0xf bank_mask:0xf")
                if sh == 4:
                    p(f"v_cndmask_b32 v{na}, v{na}, v{na+1}, vcc")
            for t in range(2):
                p(f"v_max_f32_dpp v{N+4*t}, v{N+4*t}, v{N+4*t} row_bcast:15 row_mask:0xa bank_mask:0xf")
            def nstore(t):
                def f():
                    o = " offset:32" if t else ""
                    two_flavours(lambda fl: p(f"buffer_store_dword v{N+4*t}, v{na}, {S4(SRD_WS)}, 0 offen{o}{fl}"))
                    q = self.q
                    q.push("e1st")
                return f
            self.deferred[(3, 0)] = nstore(0)
            self.deferred[(3, 1)] = nstore(1)
        else:
            p(f"s_mul_i32 s{sT0}, s{sCH}, 3")
            p(f"s_add_u32 s{sT0}, s{sT0}, s{sHFB}")
            p(f"s_mul_i32 s{sT1}, s{sTILE}, 112")
            p(f"s_add_u32 s{sHB1}, s{sT0}, s{sT1}")
            p(f"s_lshl_b32 s{sHB1}, s{sHB1}, 10")
            for t in range(3):
                a0 = self.ACC + 16*t
                for r in range(8):
                    p(f"v_max_f32 v{a0+r}, 0, v{a0+r}")
                for r in range(8):
                    p(f"v_mul_f32 v{a0+r}, v{a0+r}, v{a0+8+r}")
                if t == 0:
                    lg_fin()
                for i in range(4):
                    p(f"v_cvt_pk_bf16_f32 v{self.TMP+4*t+i}, v{a0+2*i}, v{a0+2*i+1}")
        self.stamp("e1b")

    def p1_epi2(self, typ):
        p = self.p
        p(f"s_lshr_b32 s{sT2}, s{sCB2}, 5")
        p(f"s_lshl_b32 s{sT0}, s{sCH}, 1")
        p(f"s_add_u32 s{sT0}, s{sT0}, s{sT2}")
        p(f"s_mul_i32 s{sT1}, s{sTILE}, 112")
        p(f"s_add_u32 s{sHFB}, s{sT0}, s{sT1}")
        p(f"s_lshl_b32 s{sQB}, s{sHFB}, 10")
        for t in range(2):
            a0 = self.ACC + 16*t
            for r in range(8):
                p(f"v_max_f32 v{a0+r}, 0, v{a0+r}")
            for r in range(8):
                p(f"v_mul_f32 v{a0+r}, v{a0+r}, v{a0+8+r}")
            for i in range(4):
                p(f"v_cvt_pk_bf16_f32 v{128+4*t+i}, v{a0+2*i}, v{a0+2*i+1}")
        if typ == 1:
            for i in range(12):
                p(f"v_mov_b32 v{136+i}, v{self.TMP+i}")

    def late_h_stores(self):
        p = self.p
        for t in range(2):
            p(f"s_add_u32 s{sT1}, s{sQB}, {WS_HF + 1024*t:#x}")
            self.store_ws(128 + 4*t, self.avL16, sT1, "hst")
        n = uid()
        p(f"s_cmp_eq_u32 s{sA3}, 0")
        p(f"s_cbranch_scc1 L_noh_{n}")
        for t in range(3):
            p(f"s_add_u32 s{sT1}, s{sHB1}, {WS_HF + 1024*t:#x}")
            self.store_ws(136 + 4*t, self.avL16, sT1, "hst")
        p(f"L_noh_{n}:")

    def p1(self):
        p, q = self.p, self.q
        self.stamp("predma")
        for g in range(2):
            for e in range(5):
                self.p1_piece(g, e)
        self.stamp("dma0")
        self.pending = [(g, e) for g in list(range(2, 16)) for e in range(self.npieces(g))]
        self.pending += [(16, 0), (16, 1), (20, 0), (20, 1), ("aq", 0), (17, 0), (17, 1), (21, 0), (21, 1)]
        srd(p, SRD_WS, sWS, WS_SIZE)
        srd(p, SRD_DBG, sDBG, 256)
        self.p1_setup_late()
        self.counter_zero()
        self.stamp("setup")
        q.wait(p, ["st0"])
        p("s_barrier")
        self.stamp("st0")
        p(f"s_cmp_eq_u32 s{sTYP}, 0")
        p("s_cbranch_scc0 L_p1_B")
        q0, w0, pend0 = q.fork(), (self.win1, self.win2), list(self.pending)
        ends = []
        for typ in range(2):
            if typ == 1:
                p("L_p1_B:")
                self.q = q0
                self.win1, self.win2 = w0
                self.pending = pend0
            self.cur_typ = typ
            self.p1_first_reads(typ)
            self.p1_pass(1, typ)
            self.stamp("pass1")
            self.p1_epi1(typ)
            self.stamp("epi1")
            self.p1_pass(2, typ)
            assert not self.deferred
            self.stamp("pass2")
            if not self.o.get("nodma"):
                self.emit_pieces(99, 99)
            self.p1_epi2(typ)
            self.stamp("epi2")
            ends.append(self.q)
            if typ == 0:
                p("s_branch L_p1_join")
        p("L_p1_join:")
        self.q = VMQ.join(ends)

    aQ, aK, aV, aS, aP, aO = 4, (8, 12), (16, 24), (32, 48), (64, 72), 80
    avK, avV, avVinc, avL16 = 96, 97, 98, 3
    avT = 100
    HFR = 128
    LGR = 240

    def att_loads(self):
        p, q = self.p, self.q
        L, T = self.vLANE, self.avT
        p(f"s_lshl_b32 s{sA0}, s{sQC}, 3")
        p(f"s_add_u32 s{sA0}, s{sA0}, s{sW}          ; q tile")
        p(f"s_lshl_b32 s{sA1}, s{sH}, 6")
        p(f"s_add_u32 s{sA1}, s{sA1}, s{sA0}         ; h*64+tile")
        p(f"s_lshl_b32 s{sA2}, s{sA1}, 10")
        p(f"s_add_u32 s{sA2}, s{sA2}, {WS_QF:#x}")
        p(f"buffer_load_dwordx4 {V4(self.aQ)}, v{self.vL16}, {S4(SRD_WS)}, s{sA2} offen sc1")
        p(f"s_lshr_b32 s{sA2}, s{sH}, 2")
        p(f"s_lshl_b32 s{sA2}, s{sA2}, 11")
        p(f"s_and_b32 s{sA1}, s{sH}, 3")
        p(f"s_lshl_b32 s{sA1}, s{sA1}, 5")
        p(f"s_add_u32 s{sA2}, s{sA2}, s{sA1}")
        p(f"s_add_u32 s{sA2}, s{sA2}, {WS_NRMQ:#x}")
        p(f"v_lshrrev_b32 v{T}, 2, v{L}")
        p(f"v_lshlrev_b32 v{T}, 7, v{T}")
        p(f"v_and_b32 v{T+3}, 3, v{L}")
        p(f"v_lshl_add_u32 v{T}, v{T+3}, 3, v{T}")
        p(f"buffer_load_dword v{T+1}, v{T}, {S4(SRD_WS)}, s{sA2} offen offset:4 sc1")
        p(f"s_lshr_b32 s{sA1}, s{sA0}, 2")
        p(f"s_lshl_b32 s{sA1}, s{sA1}, 7")
        p(f"s_and_b32 s{sA0}, s{sA0}, 3")
        p(f"s_lshl_b32 s{sA0}, s{sA0}, 3")
        p(f"s_add_u32 s{sA2}, s{sA2}, s{sA1}")
        p(f"s_add_u32 s{sA2}, s{sA2}, s{sA0}")
        p(f"v_mov_b32 v{T+3}, 0")
        p(f"buffer_load_dword v{T+2}, v{T+3}, {S4(SRD_WS)}, s{sA2} offen sc1")
        q.push("aq", 3)

    def att_setup(self):
        p, q = self.p, self.q
        L, T = self.vLANE, self.avT
        p(f"v_lshlrev_b32 v{self.avL16}, 4, v{L}")
        p(f"v_add_u32 v{self.avK}, 32768, v{self.avL16}")
        p(f"v_and_b32 v{T+4}, 31, v{L}               ; m")
        p(f"v_lshrrev_b32 v{T+5}, 5, v{L}")
        p(f"v_lshlrev_b32 v{T+5}, 8, v{T+5}")
        p(f"v_and_b32 v{T+6}, 15, v{L}")
        p(f"v_lshl_add_u32 v{T+5}, v{T+6}, 4, v{T+5}")
        p(f"v_add_u32 v{T+5}, 98304, v{T+5}")
        p(f"v_subrev_u32 v{T+6}, 20, v{T+4}")
        p(f"v_mov_b32 v{T+7}, {self.ONES+16}")
        p(f"v_mov_b32 v{T+8}, {self.ONES+80}")
        p(f"v_cmp_gt_u32 vcc, 8, v{T+6}")
        p(f"v_cndmask_b32 v{T+7}, v{T+7}, v{T+8}, vcc")
        p(f"v_and_b32 v{T+6}, 27, v{T+4}")
        p(f"v_subrev_u32 v{T+8}, 16, v{T+7}")
        p(f"v_cmp_eq_u32 vcc, 16, v{T+6}")
        p(f"v_cndmask_b32 v{T+7}, v{T+7}, v{T+8}, vcc")
        p(f"v_cmp_gt_u32 vcc, 16, v{T+4}")
        p(f"v_cndmask_b32 v{self.avV}, v{T+7}, v{T+5}, vcc")
        p(f"v_mov_b32 v{T+7}, 0")
        p(f"v_mov_b32 v{T+8}, 4096")
        p(f"v_cndmask_b32 v{self.avVinc}, v{T+7}, v{T+8}, vcc")
        self.P3COORD = True
        p(f"s_mov_b32 s{sTYPC}, s{sTYP}")
        p(f"s_lshl_b32 s{sRT64}, s{sXCD}, 2")
        p(f"s_and_b32 s{sA0}, s{sSLOT}, 3")
        p(f"s_add_u32 s{sRT64}, s{sRT64}, s{sA0}")
        p(f"s_lshr_b32 s{sCB}, s{sSLOT}, 2")
        p(f"s_lshr_b32 s{sKQ}, s{sW}, 1")
        p(f"s_and_b32 s{sTR}, s{sW}, 1")
        p(f"s_lshl_b32 s{sT32}, s{sRT64}, 1")
        p(f"s_add_u32 s{sT32}, s{sT32}, s{sTR}")
        q.wait(p, ["st16", "st17", "st20", "aq"])
        p("s_barrier")
        self.stamp("kv")
        for sh in (1, 2, 4, 8):
            p(f"v_max_f32_dpp v{T+1}, v{T+1}, v{T+1} row_shr:{sh} row_mask:0xf bank_mask:0xf")
        p(f"v_max_f32_dpp v{T+1}, v{T+1}, v{T+1} row_bcast:15 row_mask:0xa bank_mask:0xf")
        p(f"v_max_f32_dpp v{T+1}, v{T+1}, v{T+1} row_bcast:31 row_mask:0xc bank_mask:0xf")
        p(f"v_readlane_b32 s{sA0}, v{T+1}, 63")
        p(f"v_mul_f32 v{T+2}, s{sA0}, v{T+2}")
        p(f"v_mov_b32 v{T+3}, {f2u(3600.0):#x}")
        p(f"v_cmp_le_f32 vcc, v{T+2}, v{T+3}")
        p(f"s_cmp_eq_u64 vcc, exec")
        p(f"s_cselect_b32 s{sMODE}, 0, 1")
        if self.o.get("force_slow"):
            p(f"s_mov_b32 s{sMODE}, 1")

    def att_tile(self, t, side):
        p = self.p
        tb = t & 3
        Sc, Sn = self.aS[t & 1], self.aS[(t + 1) & 1]
        Kn, Kl = self.aK[(t + 1) & 1], self.aK[t & 1]
        Vc, Vp = self.aV[t & 1], self.aV[(t + 1) & 1]
        Pc, Pp = self.aP[t & 1], self.aP[(t + 1) & 1]
        O, Q = self.aO, self.aQ
        ex = lambda i: p(f"v_exp_f32 v{Sc+i}, v{Sc+i}")
        cv = lambda i: p(f"v_cvt_pk_bf16_f32 v{Pc+i}, v{Sc+2*i}, v{Sc+2*i+1}")
        p("s_waitcnt lgkmcnt(0)")
        if t < 63:
            mfma(p, Sn, Kn, Q, None)
        if t < 62:
            p(f"ds_read_b128 {V4(Kl)}, v{self.avK} offset:{1024*(t+2)}")
        p(f"ds_read_b128 {V4(Vc)}, v{self.avV} offset:{1024*tb}")
        p(f"ds_read_b128 {V4(Vc+4)}, v{self.avV} offset:{1024*tb+512}")
        ex(0); ex(1); ex(2); cv(0); ex(3)
        if t > 0:
            mfma(p, O, Vp, Pp, None if t == 1 else O)
        if side:
            side[0]()
        ex(4); cv(1); ex(5); ex(6); cv(2); ex(7); ex(8); cv(3); ex(9)
        if t > 0:
            mfma(p, O, Vp + 4, Pp + 4, O)
        for f in side[1:]:
            f()
        ex(10); cv(4); ex(11); ex(12); cv(5); ex(13); ex(14); cv(6); ex(15)
        if tb == 3 and t < 63:
            p(f"v_add_u32 v{self.avV}, v{self.avVinc}, v{self.avV}")
        else:
            p("s_nop 0")
        cv(7)

    def side_hstore(self, i):
        p = self.p
        def f():
            if i < 2:
                p(f"s_add_u32 s{sT1}, s{sQB}, {WS_HF + 1024*i:#x}")
                self.store_ws(128 + 4*i, self.avL16, sT1, "hst")
            else:
                n = uid()
                p(f"s_cmp_eq_u32 s{sTYPC}, 0")
                p(f"s_cbranch_scc1 L_noh_{n}")
                p(f"s_add_u32 s{sT1}, s{sHB1}, {WS_HF + 1024*(i-2):#x}")
                qa = self.q.fork()
                self.store_ws(136 + 4*(i-2), self.avL16, sT1, "hst")
                p(f"L_noh_{n}:")
                self.q = VMQ.join([qa, self.q])
                self.q.dedup()
        return f

    def side_kv(self, g, e):
        return lambda: self.p1_piece(g, e)

    def side_warm(self):
        p = self.p
        L, T = self.vLANE, self.avT
        def f():
            srd(p, SRD_T, sWD, 1792 * 1024)
            p(f"s_mul_i32 s{sA0}, s{sSLOT}, 57344")
            p(f"s_mul_i32 s{sA1}, s{sW}, 7168")
            p(f"s_add_u32 s{sA0}, s{sA0}, s{sA1}")
            p(f"v_lshlrev_b32 v{T}, 6, v{L}")
            p(f"buffer_load_dword v{T+3}, v{T}, {S4(SRD_T)}, s{sA0} offen")
            p(f"s_add_u32 s{sA0}, s{sA0}, 3072")
            p(f"buffer_load_dword v{T+4}, v{T}, {S4(SRD_T)}, s{sA0} offen")
            srd(p, SRD_T, sWO, 512 * 1024)
            p(f"s_lshl_b32 s{sA0}, s{sSLOT}, 14")
            p(f"s_lshl_b32 s{sA1}, s{sW}, 11")
            p(f"s_add_u32 s{sA0}, s{sA0}, s{sA1}")
            p(f"v_and_b32 v{T+6}, 31, v{L}")
            p(f"v_lshlrev_b32 v{T+6}, 6, v{T+6}")
            p(f"buffer_load_dword v{T+5}, v{T+6}, {S4(SRD_T)}, s{sA0} offen")
            self.q.push("warm", 3)
        return f

    def side_f2load(self):
        p, T = self.p, self.avT
        def f():
            p(f"s_lshr_b32 s{sA0}, s{sRT64}, 1")
            p(f"s_add_u32 s{sA0}, s{sA0}, {F2}")
            p(f"s_lshl_b32 s{sA0}, s{sA0}, 8")
            p(f"v_mov_b32 v{T}, s{sA0}")
            p(f"buffer_load_dword v{T+1}, v{T}, {S4(SRD_WS)}, 0 offen sc1")
            self.q.push("f2ld")
        return f

    def side_hload(self, j):
        p = self.p
        def f():
            if j == 0:
                p(f"s_mul_i32 s{sHLD}, s{sT32}, 112")
                p(f"s_mul_i32 s{sA1}, s{sKQ}, 28")
                p(f"s_add_u32 s{sHLD}, s{sHLD}, s{sA1}")
                p(f"s_lshl_b32 s{sHLD}, s{sHLD}, 10")
                p(f"s_add_u32 s{sHLD}, s{sHLD}, {WS_HF:#x}")
            o = f" offset:{1024*(j&3)}" if j & 3 else ""
            p(f"buffer_load_dwordx4 {V4(self.HFR + 4*j)}, v{self.avL16}, {S4(SRD_WS)}, s{sHLD} offen{o} sc1")
            self.q.push("hld")
            if (j & 3) == 3:
                p(f"s_add_u32 s{sHLD}, s{sHLD}, 4096")
        return f

    def side_lgload(self, i):
        p, L, T = self.p, self.vLANE, self.avT
        def f():
            if i == 0:
                p(f"v_lshrrev_b32 v{T+7}, 5, v{L}")
                p(f"v_lshlrev_b32 v{T+7}, 16, v{T+7}")
                p(f"v_and_b32 v{T+6}, 31, v{L}")
                p(f"v_lshl_add_u32 v{T+7}, v{T+6}, 2, v{T+7}")
                p(f"s_lshl_b32 s{sLGL}, s{sT32}, 7")
                p(f"s_add_u32 s{sLGL}, s{sLGL}, {WS_LG:#x}")
            p(f"buffer_load_dword v{self.LGR+i}, v{T+7}, {S4(SRD_WS)}, s{sLGL} offen sc1")
            self.q.push("lgl")
            if i < 7:
                p(f"s_add_u32 s{sLGL}, s{sLGL}, 8192")
        return f

    def att_b1(self):
        p, T = self.p, self.avT
        self.q.wait(p, ["hst", "st21", "st18", "lgst"])
        p("s_barrier")
        p(f"s_add_u32 s{sA0}, s{sRB}, {F2}")
        p(f"s_lshl_b32 s{sA0}, s{sA0}, 8")
        p(f"v_mov_b32 v{T+4}, {OOB:#x}")
        p(f"v_mov_b32 v{T+5}, s{sA0}")
        p(f"v_cmp_eq_u32 vcc, 0, v0")
        p(f"v_cndmask_b32 v{T+4}, v{T+4}, v{T+5}, vcc")
        p(f"v_mov_b32 v{T+5}, 1")
        p(f"buffer_atomic_add v{T+5}, v{T+4}, {S4(SRD_WS)}, 0 offen sc1")
        self.q.push("f2add")

    def att_b2(self):
        p, T = self.p, self.avT
        self.q.wait(p, ["st19", "st22", "st23", "f2ld"])
        poll(p, self.q, T + 1, T, SRD_WS, 16, "F2")
        p("s_waitcnt lgkmcnt(0)")
        p("s_barrier")
        self.p3_setup_dma()

    def att_sides(self):
        sd = {t: [] for t in range(64)}
        for i in range(5):
            sd[i].append(self.side_hstore(i))
        order = [(18, 0), (18, 1), (22, 0), (22, 1), (19, 0), (19, 1), (23, 0), (23, 1)]
        for k, (g, e) in enumerate(order):
            sd[5 + k].append(self.side_kv(g, e))
        if self.o.get("warm", 1):
            sd[18].append(self.side_warm())
        if self.o.get("wb"):
            def wb():
                n = uid()
                p = self.p
                p(f"s_add_u32 s{sA0}, s{sSLOT}, s{sW}")
                p(f"s_cmp_eq_u32 s{sA0}, 0")
                p(f"s_cbranch_scc0 L_nowb{n}")
                qa = self.q.fork()
                p("buffer_wbl2 sc1")
                self.q.push("wb")
                p(f"L_nowb{n}:")
                self.q = VMQ.join([qa, self.q]); self.q.dedup()
            sd[self.o["wb"]].append(wb)
        sd[28].append(self.side_f2load())
        ops = [(lambda g=g, e=e: self.p3_piece(g, e)) for g in range(2) for e in range(4)]
        ops2 = [self.side_hload(j) for j in range(28)] + [self.side_lgload(i) for i in range(8)]
        seq = []
        while ops or ops2:
            if ops:
                seq.append(ops.pop(0))
            if ops2:
                seq.append(ops2.pop(0))
        t = 32
        n2 = len(seq) - 31
        k = 0
        while k < len(seq):
            sd[t].append(seq[k]); k += 1
            if n2 > 0 and k < len(seq):
                sd[t].append(seq[k]); k += 1; n2 -= 1
            t += 1
        assert t <= 63, t
        return sd

    def att_slow_tile(self):
        p = self.p
        S, P, O, K, V, Q = self.aS[0], self.aP[0], self.aO, self.aK[0], self.aV[0], self.aQ
        T = self.avT
        m_old, m_new, al = T + 8, T + 9, T + 10
        p(f"ds_read_b128 {V4(K)}, v{self.avK}")
        p(f"ds_read_b128 {V4(V)}, v{self.avV}")
        p(f"ds_read_b128 {V4(V+4)}, v{self.avV} offset:512")
        p("s_waitcnt lgkmcnt(0)")
        mfma(p, S, K, Q, None)
        p(f"v_max3_f32 v{m_new}, v{S}, v{S+1}, v{S+2}")
        for r in range(3, 15, 2):
            p(f"v_max3_f32 v{m_new}, v{m_new}, v{S+r}, v{S+r+1}")
        p(f"v_max_f32 v{m_new}, v{m_new}, v{S+15}")
        p(f"v_mov_b32 v{al}, v{m_new}")
        p(f"v_permlane32_swap_b32 v{m_new}, v{al}")
        p(f"v_max3_f32 v{m_new}, v{m_new}, v{al}, v{m_old}")
        p(f"v_sub_f32 v{al}, v{m_old}, v{m_new}")
        p(f"v_exp_f32 v{al}, v{al}")
        p(f"v_mov_b32 v{m_old}, v{m_new}")
        for r in range(16):
            p(f"v_sub_f32 v{S+r}, v{S+r}, v{m_new}")
        for r in range(16):
            p(f"v_exp_f32 v{S+r}, v{S+r}")
        for r in range(16):
            p(f"v_mul_f32 v{O+r}, v{al}, v{O+r}")
        for i in range(8):
            p(f"v_cvt_pk_bf16_f32 v{P+i}, v{S+2*i}, v{S+2*i+1}")
        mfma(p, O, V, P, O)
        mfma(p, O, V + 4, P + 4, O)
        p(f"v_add_u32 v{self.avK}, 1024, v{self.avK}")
        p(f"v_lshrrev_b32 v{al}, 2, v{self.avVinc}")
        p(f"v_add_u32 v{self.avV}, v{al}, v{self.avV}")

    def attention(self):
        p, q = self.p, self.q
        self.att_setup()
        p(f"s_cmp_eq_u32 s{sMODE}, 0")
        p("s_cbranch_scc0 L_att_slow0")
        self.q_slow = self.q.fork()
        p(f"ds_read_b128 {V4(self.aK[0])}, v{self.avK}")
        p(f"ds_read_b128 {V4(self.aK[1])}, v{self.avK} offset:1024")
        p("s_waitcnt lgkmcnt(1)")
        mfma(p, self.aS[0], self.aK[0], self.aQ, None)
        prio = self.o.get("prio", 2)
        def ladder(t):
            if prio == 1:
                return 3 - t // 16
            return 3 - (t % 16) // 4 if t < 32 else 3 - (t - 32) // 8
        sd = self.att_sides()
        for t in range(64):
            if prio and (t == 0 or ladder(t) != ladder(t - 1)) and t not in (16, 32):
                p(f"s_setprio {ladder(t)}")
            if t in (16, 32, 48):
                self.stamp(f"seg{t//16}")
                if prio and t in (16, 32):
                    p(f"s_setprio {ladder(t)}")
                if t == 16:
                    self.att_b1()
                if t == 32:
                    self.att_b2()
                self.stamp(f"seg{t//16}e")
            self.att_tile(t, [] if self.o.get("noseg") else sd[t])
        p("s_waitcnt lgkmcnt(0)")
        mfma(p, self.aO, self.aV[1], self.aP[1], self.aO)
        mfma(p, self.aO, self.aV[1] + 4, self.aP[1] + 4, self.aO)
        p("L_att_fin:")
        self.stamp("att")
        O, T = self.aO, self.avT
        p(f"v_rcp_f32 v{T}, v{O+8}")
        for r in range(8):
            p(f"v_mul_f32 v{O+r}, v{T}, v{O+r}")
        for i in range(4):
            p(f"v_cvt_pk_bf16_f32 v{T+4+i}, v{O+2*i}, v{O+2*i+1}")
        p(f"s_lshl_b32 s{sA0}, s{sQC}, 3")
        p(f"s_add_u32 s{sA0}, s{sA0}, s{sW}")
        p(f"s_lshl_b32 s{sA0}, s{sA0}, 5")
        p(f"s_add_u32 s{sA0}, s{sA0}, s{sH}")
        p(f"s_lshl_b32 s{sA0}, s{sA0}, 10")
        p(f"s_add_u32 s{sA0}, s{sA0}, {WS_OF:#x}")
        p(f"buffer_store_dwordx4 {V4(T+4)}, v{self.avL16}, {S4(SRD_WS)}, s{sA0} offen sc1")
        self.q = VMQ()
        self.q.push("ost")

    def att_slow_code(self):
        p = self.p
        T = self.avT
        self.q = self.q_slow
        p("L_att_slow0:")
        p(f"v_mov_b32 v{T+8}, 0xff800000")
        for r in range(self.aO, self.aO + 16):
            p(f"v_mov_b32 v{r}, 0")
        sd = self.att_sides()
        def run(n):
            k = uid()
            p(f"s_mov_b32 s{sA3}, 0")
            p(f"L_att_slow_loop{k}:")
            self.att_slow_tile()
            p(f"s_add_u32 s{sA3}, s{sA3}, 1")
            p(f"s_cmp_lt_u32 s{sA3}, {n}")
            p(f"s_cbranch_scc1 L_att_slow_loop{k}")
        for t in range(0, 16):
            for f in sd[t]: f()
        run(16)
        self.att_b1()
        for t in range(16, 32):
            for f in sd[t]: f()
        run(16)
        self.att_b2()
        for t in range(32, 64):
            for f in sd[t]: f()
        run(32)
        p("s_branch L_att_fin")

    pWB = (16, 24)
    pB, pA = 32, 64
    pvD = 112
    pvR = (6, 7, 8, 9)
    pG = 10
    pOF = 128
    pT = 100

    P3SLOT = (1, 3, 0, 2, 4, 1, 3, 0, 2)

    def p3_slot(self, g):
        return 32768 * self.P3SLOT[g]

    def p3_setup_dma(self):
        p = self.p
        L, T = self.vLANE, self.avT
        srd(p, SRD_W2, sWD, 1792 * 1024)
        srd(p, SRD_X, sWO, 512 * 1024)
        p(f"v_bfe_u32 v{T}, v{L}, 4, 1")
        p(f"v_lshlrev_b32 v{T}, 2, v{T}")
        p(f"v_and_b32 v{T+1}, 7, v{L}")
        p(f"v_xor_b32 v{T}, v{T}, v{T+1}")
        p(f"v_lshlrev_b32 v{T}, 4, v{T}")
        p(f"s_lshl_b32 s{sA0}, s{sCB}, 7")
        p(f"v_add_u32 v{T}, s{sA0}, v{T}")
        p(f"v_lshrrev_b32 v{T+1}, 3, v{L}")
        p(f"s_lshl_b32 s{sA1}, s{sTR}, 5")
        p(f"v_add_u32 v{T+1}, s{sA1}, v{T+1}          ; 32*(w&1) + (l>>3)")
        p(f"s_mul_i32 s{sA0}, s{sKQ}, 448")
        p(f"v_add_u32 v{T+2}, s{sA0}, v{T+1}")
        p(f"v_lshl_add_u32 v{self.pvD}, v{T+2}, 10, v{T}")
        p(f"s_lshl_b32 s{sA0}, s{sKQ}, 7")
        p(f"v_add_u32 v{T+2}, s{sA0}, v{T+1}")
        p(f"v_lshl_add_u32 v{self.pvD+1}, v{T+2}, 10, v{T}")

    def p3_piece(self, g, e):
        p, q = self.p, self.q
        sl = self.p3_slot(g)
        if g < 7:
            srd_r, v, row0 = SRD_W2, self.pvD, 64 * g
        else:
            srd_r, v, row0 = SRD_X, self.pvD + 1, 64 * (g - 7)
        p(f"s_add_u32 m0, s{sM0K}, {sl + 1024*e}")
        p(f"s_mov_b32 s{sA1}, {(row0 + 8*e) * 1024}")
        p(f"buffer_load_dwordx4 v{v}, {S4(srd_r)}, s{sA1} offen lds")
        q.push(f"p3s{g}")

    def p3_emit(self, t, maxn):
        n = 0
        while self.pending3 and n < maxn:
            g, e = self.pending3[0]
            if g >= 5 and t < 4 * (g - 4) + 2:
                break
            self.pending3.pop(0)
            self.p3_piece(g, e)
            n += 1

    def p3_reads(self, t, cts=(0, 1)):
        p = self.p
        g, sp = t >> 2, t & 3
        sl = self.p3_slot(g)
        hi = 1 if sl >= 65536 else 0
        off = sl - 65536 * hi
        if sl >= 131072:
            hi, off = 2, sl - 131072
        wb = self.pWB[t & 1]
        for ct in cts:
            base = self.pvR[ct] if hi == 0 else self.pvR[2 + ct] if hi == 1 else self.pT + 8 + ct
            for j in range(2):
                p(f"ds_read_b64_tr_b16 {V2(wb + 4*ct + 2*j)}, v{base} offset:{off + (16*sp + 4*j) * 128}")
        return 2 * len(cts)

    def p3(self):
        p, q = self.p, self.q
        L, T = self.vLANE, self.pT
        p("s_waitcnt vmcnt(1)")
        p("s_barrier")
        self.pending3 = [(g, e) for g in range(2, 9) for e in range(4)]
        self.p3_emit(0, 4)
        p(f"v_lshrrev_b32 v{T}, 5, v{L}")
        p(f"v_lshlrev_b32 v{T}, 3, v{T}")
        p(f"v_bfe_u32 v{T+1}, v{L}, 2, 2")
        p(f"v_add_u32 v{T}, v{T}, v{T+1}             ; row")
        p(f"v_lshlrev_b32 v{T}, 7, v{T}              ; *128")
        p(f"v_and_b32 v{T+1}, 1, v{L}")
        p(f"v_lshlrev_b32 v{T+1}, 2, v{T+1}")
        p(f"v_bfe_u32 v{T+2}, v{L}, 4, 1")
        p(f"v_lshl_add_u32 v{T+1}, v{T+2}, 1, v{T+1}")
        p(f"v_bfe_u32 v{T+2}, v{L}, 1, 1")
        p(f"v_add_u32 v{T+1}, v{T+1}, v{T+2}          ; cg")
        p(f"v_lshl_add_u32 v{T}, v{T+1}, 3, v{T}")
        p(f"s_lshl_b32 s{sA0}, s{sKQ}, 13")
        p(f"v_add_u32 v{T}, s{sA0}, v{T}")
        p(f"v_bfe_u32 v{T+2}, v{L}, 3, 1")
        p(f"v_lshlrev_b32 v{T+2}, 6, v{T+2}           ; 64*b")
        p(f"v_add_u32 v{self.pvR[0]}, v{T}, v{T+2}     ; ct0: 64*b")
        p(f"v_xor_b32 v{T+2}, 64, v{T+2}")
        p(f"v_add_u32 v{self.pvR[1]}, v{T}, v{T+2}     ; ct1: 64*(1-b)")
        for ct in range(2):
            p(f"v_add_u32 v{self.pvR[2+ct]}, 0x10000, v{self.pvR[ct]}")
            p(f"v_add_u32 v{T+8+ct}, 0x20000, v{self.pvR[ct]}")
        self.stamp("p3st0")
        self.lgq = []
        for ct in range(2):
            self.lg_issue((0, ct), self.p3_reads(0, (ct,)))
        G = self.pG
        wA, rA0, rA1, oA = 114, 115, 116, 117
        B, A = self.pB, self.pA

        def gate():
            lg = self.LGR
            for i in range(1, 8):
                p(f"v_add_f32 v{lg}, v{lg}, v{lg+i}")
            p(f"v_mov_b32 v{lg+1}, v{lg}")
            p(f"v_permlane32_swap_b32 v{lg}, v{lg+1}")
            p(f"v_add_f32 v{lg}, v{lg}, v{lg+1}")
            p(f"v_mul_f32 v{lg}, {f2u(-1.4426950408889634):#x}, v{lg}")
            p(f"v_exp_f32 v{lg}, v{lg}")
            p(f"v_add_f32 v{lg}, 1.0, v{lg}")
            p(f"v_rcp_f32 v{G}, v{lg}")
            p(f"v_sub_f32 v{G+1}, 1.0, v{G}")

        def addr1():
            p(f"v_and_b32 v{T}, 31, v{L}                 ; n")
            p(f"v_and_b32 v{T+1}, 15, v{L}")
            p(f"v_lshrrev_b32 v{T+2}, 5, v{L}")
            p(f"v_lshlrev_b32 v{T+2}, 2, v{T+2}           ; 4hi")
            p(f"v_xor_b32 v{T+1}, v{T+1}, v{T+2}          ; (n&15) ^ 4hi")
            p(f"v_lshlrev_b32 v{T+1}, 4, v{T+1}")
            p(f"v_lshl_add_u32 v{T}, v{T}, 8, v{T+1}")
            p(f"s_lshl_b32 s{sA0}, s{sW}, 13")
            p(f"v_add_u32 v{wA}, s{sA0}, v{T}")

        def addr2():
            p(f"v_lshrrev_b32 v{T}, 3, v{L}")
            p(f"s_lshl_b32 s{sA0}, s{sKQ}, 3")
            p(f"v_add_u32 v{T}, s{sA0}, v{T}             ; rho")
            p(f"v_and_b32 v{T+1}, 7, v{L}")
            p(f"v_lshlrev_b32 v{T+1}, 1, v{T+1}           ; 2*(l&7)")
            p(f"v_and_b32 v{T+2}, 15, v{T}")
            p(f"v_xor_b32 v{T+1}, v{T+1}, v{T+2}")
            p(f"v_lshlrev_b32 v{T+1}, 4, v{T+1}")
            p(f"v_lshl_add_u32 v{T+1}, v{T}, 8, v{T+1}")
            p(f"s_lshl_b32 s{sA0}, s{sTR}, 13")
            p(f"v_add_u32 v{rA0}, s{sA0}, v{T+1}")
            p(f"v_xor_b32 v{rA1}, 16, v{rA0}              ; e=1")
            p(f"s_lshl_b32 s{sA0}, s{sT32}, 5")
            p(f"v_add_u32 v{T}, s{sA0}, v{T}")
            p(f"v_and_b32 v{T+3}, 7, v{L}")
            p(f"v_lshlrev_b32 v{T+3}, 4, v{T+3}")
            p(f"v_lshl_add_u32 v{T}, v{T}, 10, v{T+3}")
            p(f"s_lshl_b32 s{sA0}, s{sCB}, 7")
            p(f"v_add_u32 v{oA}, s{sA0}, v{T}")
            srd(p, SRD_T, sOUT, 2048 * 1024)

        def f3addr():
            p(f"s_add_u32 s{sA0}, s{sXCD}, {F3}")
            p(f"s_lshl_b32 s{sA0}, s{sA0}, 8")
            p(f"v_mov_b32 v{T+7}, s{sA0}")

        extra = {4: gate, 8: addr1, 9: f3addr, 12: addr2}
        for t in range(36):
            g = t >> 2
            if (t & 3) == 2:
                tags = [f"p3s{g+1}"] if 1 <= g < 8 else []
                if g == 0:
                    tags.append("ost")
                if g == 5:
                    tags.append("f3ld")
                self.stamp(f"qpre{g}")
                if tags:
                    q.wait(p, tags)
                if g == 5:
                    poll(p, q, T + 6, T + 7, SRD_WS, 32, "F3")
                self.stamp(f"qwait{g}")
                p("s_barrier")
                self.stamp(f"qbar{g}")
                if g == 0:
                    p(f"s_add_u32 s{sA0}, s{sQC}, {F3}")
                    p(f"s_lshl_b32 s{sA0}, s{sA0}, 8")
                    p(f"v_mov_b32 v{T}, {OOB:#x}")
                    p(f"v_mov_b32 v{T+1}, s{sA0}")
                    p(f"v_cmp_eq_u32 vcc, 0, v0")
                    p(f"v_cndmask_b32 v{T}, v{T}, v{T+1}, vcc")
                    p(f"v_mov_b32 v{T+1}, 1")
                    p(f"buffer_atomic_add v{T+1}, v{T}, {S4(SRD_WS)}, 0 offen sc1")
                    q.push("f3add")
                    self.stamp("f3")
                if g == 4:
                    p(f"buffer_load_dword v{T+6}, v{T+7}, {S4(SRD_WS)}, 0 offen sc1")
                    q.push("f3ld")
                if g == 5:
                    p(f"s_lshl_b32 s{sA2}, s{sT32}, 5")
                    p(f"s_lshl_b32 s{sA1}, s{sKQ}, 3")
                    p(f"s_add_u32 s{sA2}, s{sA2}, s{sA1}")
                    p(f"s_lshl_b32 s{sA2}, s{sA2}, 10")
                    p(f"s_add_u32 s{sA2}, s{sA2}, {WS_OF:#x}")
                    for j in range(8):
                        o = f" offset:{1024*(j&3)}" if j & 3 else ""
                        p(f"buffer_load_dwordx4 {V4(self.pOF + 4*j)}, v{self.avL16}, {S4(SRD_WS)}, s{sA2} offen{o} sc1")
                        q.push("ofr")
                        if j == 3:
                            p(f"s_add_u32 s{sA2}, s{sA2}, 4096")
            wb = self.pWB[t & 1]
            if t < 28:
                acc, bfr, first = self.pB, self.HFR + 4*t, t == 0
            else:
                acc, bfr, first = self.pA, self.pOF + 4*(t - 28), t == 28
            if t == 28:
                q.wait(p, "ofr")
            for ct in range(2):
                self.lg_wait((t, ct))
                mfma(p, acc + 16*ct, wb + 4*ct, bfr, None if first else acc + 16*ct)
                if t < 35:
                    self.lg_issue((t + 1, ct), self.p3_reads(t + 1, (ct,)))
                if ct == 0:
                    self.p3_emit(t, 2 if t < 4 else 1)
                    if t in extra:
                        extra[t]()
                if t >= 30 and t < 34:
                    k = 2*(t - 30) + ct
                    for r in range(4*k, 4*k + 4):
                        p(f"v_mul_f32 v{B+r}, v{G+1}, v{B+r}")
            if t == 27:
                self.stamp("p3a")
        self.stamp("p3b")
        for ct in range(2):
            for qq in range(4):
                r0 = 16*ct + 4*qq
                for r in range(r0, r0 + 4):
                    p(f"v_fmac_f32 v{B+r}, v{G}, v{A+r}")
                c = 8*ct + qq
                p(f"v_xor_b32 v{T+1+(qq&1)}, {16*c}, v{wA}")
                p(f"ds_write_b128 v{T+1+(qq&1)}, {V4(B + r0)}")
        p("s_waitcnt lgkmcnt(0)")
        p("s_barrier")
        R = 16
        for k in range(4):
            p(f"ds_read_b128 {V4(R + 8*k)}, v{rA0} offset:{16384*k}")
            p(f"ds_read_b128 {V4(R + 8*k + 4)}, v{rA1} offset:{16384*k}")
        p("s_waitcnt lgkmcnt(4)")
        for r in range(8):
            p(f"v_add_f32 v{R+r}, v{R+r}, v{R+8+r}")
        p("s_waitcnt lgkmcnt(0)")
        for r in range(8):
            p(f"v_add_f32 v{R+16+r}, v{R+16+r}, v{R+24+r}")
        for r in range(8):
            p(f"v_add_f32 v{R+r}, v{R+r}, v{R+16+r}")
        for i in range(4):
            p(f"v_cvt_pk_bf16_f32 v{R+8+i}, v{R+2*i}, v{R+2*i+1}")
        p(f"buffer_store_dwordx4 {V4(R+8)}, v{oA}, {S4(SRD_T)}, 0 offen" + (" sc1" if self.o.get("outsc1") else "") + (" nt" if self.o.get("outnt") else ""))

    def finish(self):
        p = self.p
        if self.o.get("twice"):
            p("s_waitcnt vmcnt(0) lgkmcnt(0)")
            p("s_barrier")
            p("s_cmp_eq_u32 s0, 0")
            p("s_mov_b32 s0, 1")
            p("s_cbranch_scc1 L_restart")
        if self.o.get("stamps"):
            p("s_waitcnt vmcnt(0)")
            self.stamp("end")
            self.dump_stamps()
        p("L_end:")
        p("s_endpgm")

    def build(self):
        self.prologue()
        self.p1()
        if self.stop_after != "p1":
            self.attention()
            if self.stop_after != "att":
                self.p3()
        self.finish()
        if self.stop_after != "p1":
            self.att_slow_code()
        self.p("L_codeend:")
        n = self.p.fix_hazards()
        return self.p.text(), n


HEADER = """; Kernarg layout (88 bytes): A_x, A_wqkv, A_wo, B_x, B_W_gate, B_W_up, B_W_down, gate_w, out, debug, ws
; @launch grid=(256,1,1) block=(512,1,1) lds=163840
.amdgcn_target "amdgcn-amd-amdhsa--gfx950"
.text
.globl {name}_kernel
.p2align 8
.type {name}_kernel,@function
{name}_kernel:
"""
FOOTER = """.section .rodata,"a"
.p2align 6
.amdhsa_kernel {name}_kernel
  .amdhsa_next_free_vgpr 256
  .amdhsa_next_free_sgpr 102
  .amdhsa_accum_offset 256
  .amdhsa_group_segment_fixed_size 0
  .amdhsa_kernarg_size 88
  .amdhsa_user_sgpr_count 2
  .amdhsa_user_sgpr_kernarg_segment_ptr 1
  .amdhsa_system_sgpr_workgroup_id_x 1
  .amdhsa_float_denorm_mode_32 3
.end_amdhsa_kernel
"""

def generate(stop_after=None, opts=None):
    opts = opts or {}
    POLLOPT["w0"] = opts.get("pollw0", 1)
    POLLOPT["sleep"] = opts.get("pollsleep", 0)
    g = Gen(stop_after, opts)
    body, n = g.build()
    return HEADER.format(name=NAME) + body + FOOTER.format(name=NAME), n, g.p.count()

if __name__ == "__main__":
    import argparse
    ap = argparse.ArgumentParser()
    ap.add_argument("--stop", default=None)
    ap.add_argument("-o", default="cdna_kernels/" + NAME + ".s")
    ap.add_argument("--opt", action="append", default=[])
    ap.add_argument("--stamps", default="")
    a = ap.parse_args()
    opts = {}
    for o in a.opt:
        k, _, v = o.partition("=")
        opts[k] = int(v) if v else 1
    names = a.stamps.split(",") if a.stamps else []
    if names:
        opts["stamps"] = 1
        opts["stampmap"] = {"start": 0, "end": 11}
        for i, nm in enumerate(names):
            opts["stampmap"][nm] = i + 1
    txt, n, cnt = generate(a.stop, opts)
    open(a.o, "w").write(txt)
    print(f"wrote {a.o}: {cnt} instructions, {n} nop pads")
```

```python
import sys, os
sys.path.insert(0, os.path.dirname(os.path.abspath(__file__)))
from asmlib import Prog, VMQ

NAME = "gated_mix__mha_block__glu_gated_reglu__prompt"

WS_CNT = 0x0
WS_NRMQ = 0x4000
WS_NRMK = 0x6000
WS_LG = 0x10000
WS_QF = 0x200000
WS_KF = 0x400000
WS_VF = 0x600000
WS_OF = 0x800000
WS_HF = 0xA00000
WS_SIZE = 0x1100000
OOB = 0x7FFF0000
F1, F2, F3 = 0, 16, 32

CSCALE = 0.25 * 1.4426950408889634
import struct
def f2u(x): return struct.unpack("<I", struct.pack("<f", x))[0]

sX, sWQKV, sWO, sWG, sWU, sWD, sGW, sOUT, sDBG, sWS = 4, 6, 8, 12, 14, 16, 18, 20, 22, 24
SRD_X, SRD_WS, SRD_G, SRD_DBG, SRD_T, SRD_W1, SRD_U = 28, 32, 36, 40, 44, 96, 4
SRD_W2 = SRD_G
sD1, sD2, sM0K, sM0X, sD0, sM0P, sCB2 = 0, 1, 3, 10, 11, 26, 27
sM0X2 = 26
sW, sRB, sAB, sRT, sCH, sTILE, sXCD, sSLOT = 48, 49, 50, 51, 52, 53, 54, 55
sT0, sT1, sT2, sT3, sT4, sT5 = 56, 57, 58, 59, 60, 61
sADV = 62
sH, sQC = 63, 64
sCS = 65
sPOLL = 66
sTYP = 67
sHFB = 68
sW1OFF, sKVB = 100, 101
sQB, sLGO, sHB1 = 18, 19, 22
sNB, sCS2 = 13, 14
sEXP, sLOC = 23, 12
sTYPC, sHLD, sLGL = 23, 24, 25
sA0, sA1, sA2, sA3 = 56, 57, 58, 59
sI, sMODE, sT32, sRT64, sCB, sKQ, sTR = 60, 61, 62, 67, 68, 10, 11

def srd(p, dst, ptr, size):
    p(f"s_mov_b32 s{dst}, s{ptr}")
    p(f"s_mov_b32 s{dst+1}, s{ptr+1}")
    p(f"s_mov_b32 s{dst+2}, {size:#x}")
    p(f"s_mov_b32 s{dst+3}, 0x20000")

def S4(r): return f"s[{r}:{r+3}]"
def V4(r): return f"v[{r}:{r+3}]"
def V2(r): return f"v[{r}:{r+1}]"
def V16(r): return f"v[{r}:{r+15}]"

def mfma(p, d, a, b, c):
    cs = "0" if c is None else V16(c)
    p(f"v_mfma_f32_32x32x16_bf16 {V16(d)}, {V4(a)}, {V4(b)}, {cs}")

_uid = [0]
def uid():
    _uid[0] += 1
    return _uid[0]

POLLOPT = {"w0": 1, "sleep": 1}
def poll(p, q, vflag, vaddr, srd_reg, target, what):
    n = uid()
    if POLLOPT["w0"]:
        p(f"s_cmp_eq_u32 s{sW}, 0")
        p(f"s_cbranch_scc0 L_ok{n}")
    p(f"v_readfirstlane_b32 s{sT0}, v{vflag}")
    p(f"s_cmp_ge_u32 s{sT0}, {target}")
    p(f"s_cbranch_scc1 L_ok{n}")
    p(f"s_mov_b32 s{sPOLL}, 0")
    p(f"L_poll{n}:")
    if POLLOPT["sleep"]:
        p(f"s_sleep {POLLOPT['sleep']}")
    p(f"buffer_load_dword v{vflag}, v{vaddr}, {S4(srd_reg)}, 0 offen sc1")
    p("s_waitcnt vmcnt(0)")
    p(f"v_readfirstlane_b32 s{sT0}, v{vflag}")
    p(f"s_add_u32 s{sPOLL}, s{sPOLL}, 1")
    p(f"s_cmp_ge_u32 s{sPOLL}, 0x80000")
    p(f"s_cbranch_scc1 L_ok{n}")
    p(f"s_cmp_lt_u32 s{sT0}, {target}")
    p(f"s_cbranch_scc1 L_poll{n}")
    p(f"L_ok{n}:")


class Gen:
    def __init__(self, stop_after=None, opts=None):
        self.p = Prog()
        self.q = VMQ()
        self.stop_after = stop_after
        self.o = opts or {}

    def stamp(self, name):
        if self.o.get("stamps"):
            i = self.o["stampmap"].get(name)
            if i is not None:
                ins = "s_memrealtime" if self.o.get("rt") else "s_memtime"
                self.p(f"{ins} s[{72+2*i}:{73+2*i}] ; stamp {name}")

    def dump_stamps(self):
        if not self.o.get("stamps"):
            return
        p = self.p
        p("s_memrealtime s[70:71]")
        p("s_waitcnt lgkmcnt(0)")
        p(f"s_lshl_b32 s{sT0}, s2, 3")
        p(f"s_add_u32 s{sT0}, s{sT0}, s{sW}")
        p(f"s_lshl_b32 s{sT0}, s{sT0}, 6")
        p(f"s_add_u32 s{sT0}, s{sT0}, 0x80000")
        for i in range(12):
            p(f"v_mov_b32 v{16+i}, s{72+2*i}")
        p("v_mov_b32 v28, s69")
        p("v_mov_b32 v29, s70")
        p("v_mov_b32 v30, 0")
        p("v_mov_b32 v31, 0")
        p("v_mov_b32 v32, 0")
        p("s_mov_b64 exec, 1")
        for i in range(4):
            p(f"buffer_store_dwordx4 {V4(16+4*i)}, v32, {S4(SRD_WS)}, s{sT0} offen offset:{16*i}")
        p("s_mov_b64 exec, -1")

    def prologue(self):
        p = self.p
        p("s_cmp_ge_u32 s2, 256")
        p("s_cbranch_scc1 L_end")
        if self.o.get("stamps"):
            p("s_memrealtime s[70:71]")
        p(f"s_load_dwordx4 s[4:7], s[0:1], 0")
        p(f"s_load_dwordx2 s[8:9], s[0:1], 16")
        p(f"s_load_dwordx4 s[12:15], s[0:1], 32")
        p(f"s_load_dwordx4 s[16:19], s[0:1], 48")
        p(f"s_load_dwordx4 s[20:23], s[0:1], 64")
        p(f"s_load_dwordx2 s[24:25], s[0:1], 80")
        if self.o.get("pf", 1):
            p("s_getpc_b64 s[26:27]")
            p("L_pfbase:")
            p("s_lshr_b32 s3, s2, 3")
            p("v_lshrrev_b32 v1, 6, v0")
            p("v_lshl_add_u32 v1, s3, 3, v1")
            p("v_and_b32 v2, 3, v0")
            p("v_lshl_add_u32 v1, v1, 2, v2")
            p("v_min_u32 v1, (L_codeend-L_pfbase)/64-1, v1")
            p("v_lshlrev_b32 v1, 6, v1")
            p("global_load_dword v127, v1, s[26:27]")
            self.q.push("pf")
        for i in range(self.o.get("padk", 0) * 128):
            p("s_mov_b32 s69, 0x12345678")
        p("v_lshrrev_b32 v1, 6, v0")
        p("v_and_b32 v2, 63, v0            ; v2 = lane")
        p(f"v_readfirstlane_b32 s{sW}, v1")
        p(f"s_and_b32 s{sXCD}, s2, 7")
        p(f"s_lshr_b32 s{sSLOT}, s2, 3")
        if self.o.get("local", 1):
            p(f"s_and_b32 s{sRB}, s{sSLOT}, 15")
            p(f"s_lshr_b32 s{sTYP}, s{sSLOT}, 4")
            p(f"s_mov_b32 s{sAB}, s{sXCD}")
        else:
            p(f"s_and_b32 s{sT0}, s{sXCD}, 1")
            p(f"s_lshl_b32 s{sT0}, s{sT0}, 3")
            p(f"s_and_b32 s{sT1}, s{sSLOT}, 7")
            p(f"s_add_u32 s{sRB}, s{sT0}, s{sT1}")
            p(f"s_lshr_b32 s{sTYP}, s{sSLOT}, 4")
            p(f"s_and_b32 s{sT0}, s{sXCD}, 6              ; 2*(xcd>>1)")
            p(f"s_bfe_u32 s{sT1}, s{sSLOT}, 0x10003       ; (slot>>3)&1")
            p(f"s_add_u32 s{sAB}, s{sT0}, s{sT1}          ; a / b = 0..7")
        p(f"s_and_b32 s{sRT}, s{sW}, 3")
        p(f"s_lshr_b32 s{sCH}, s{sW}, 2")
        p(f"s_lshl_b32 s{sT0}, s{sRB}, 2")
        p(f"s_add_u32 s{sTILE}, s{sT0}, s{sRT}")
        p(f"s_lshl_b32 s{sT0}, s{sXCD}, 2")
        p(f"s_and_b32 s{sT1}, s{sSLOT}, 3")
        p(f"s_add_u32 s{sH}, s{sT0}, s{sT1}           ; attention head")
        p(f"s_lshr_b32 s{sQC}, s{sSLOT}, 2           ; attention q chunk")
        p(f"s_mov_b32 s{sCS}, {f2u(CSCALE):#x}")
        if self.o.get("twice"):
            p("s_waitcnt lgkmcnt(0)")
            p("s_mov_b32 s0, 0")
            p("s_waitcnt lgkmcnt(0)")
            p("L_restart:")
        self.p1_setup_early()
        p("s_waitcnt lgkmcnt(0)")
        if self.o.get("stamps"):
            p("s_mov_b32 s69, s70")
            for i in range(12):
                p(f"s_mov_b32 s{72+2*i}, 0")
        self.stamp("start")
        srd(p, SRD_X, sX, 2048 * 1024)
        self.p1_setup_srd()

    vLANE = 2
    vXD = (3, 4)
    vW1 = (5, 6, 7)
    vW2 = (8, 9)
    vB = (10, 11, 12)
    vL16 = 13
    vP = (14, 15)
    WB = (16, 28)
    vXR = (40, 41, 42, 43)
    vFLAG, vFADDR, vONE, vDBGA = 44, 45, 46, 47
    TMP = 48
    ACC = 64
    TMP2 = 112
    X = 128
    SLOT1 = 40960
    AREA2 = {8: 0, 9: 16384, 10: 40960, 11: 57344, 12: 98304, 13: 81920, 14: 131072, 15: 147456}
    KVAREA = {16+j: 32768 + 16384*j for j in range(4)}
    KVAREA.update({20+j: 98304 + 16384*j for j in range(4)})
    ONES = 0
    F1G = 14

    def area(self, g):
        if g < 8:
            return self.SLOT1 * (g % 4)
        if g < 16:
            return self.AREA2[g]
        return self.KVAREA[g]

    def ovl(self):
        return self.o.get("ovl", 0)

    def acc2(self):
        return 96 if self.ovl() else self.ACC

    def window(self, g):
        if g < 8:
            return 81920 if (g % 4) >= 2 else 0
        return 131072 if self.AREA2[g] >= 131072 else 81920 if self.AREA2[g] >= 81920 else 0

    def p1_setup_early(self):
        p = self.p
        L = self.vLANE
        t0, t1, t2, t3 = 48, 49, 50, 51
        p(f"v_lshlrev_b32 v{self.vL16}, 4, v{L}")
        p(f"s_lshl_b32 s{sT0}, s{sRB}, 7")
        p(f"s_lshl_b32 s{sT1}, s{sW}, 4")
        p(f"s_add_u32 s{sT0}, s{sT0}, s{sT1}")
        p(f"v_lshrrev_b32 v{t1}, 3, v{L}             ; l>>3")
        p(f"v_add_u32 v{t2}, s{sT0}, v{t1}           ; row (e=0)")
        p(f"v_lshrrev_b32 v{t0}, 4, v{L}")
        p(f"v_and_b32 v{t3}, 7, v{L}                 ; l&7")
        p(f"v_xor_b32 v{t0}, v{t0}, v{t3}            ; piece (e=0)")
        p(f"v_lshlrev_b32 v{t0}, 4, v{t0}")
        p(f"v_lshl_add_u32 v{self.vXD[0]}, v{t2}, 10, v{t0}")
        p(f"v_xor_b32 v{t0}, 64, v{self.vXD[0]}        ; piece ^ 4")
        p(f"v_add_u32 v{self.vXD[1]}, 8192, v{t0}      ; +8 rows")
        p(f"v_bfe_u32 v{t0}, v{L}, 4, 1")
        p(f"v_lshlrev_b32 v{t0}, 2, v{t0}")
        p(f"v_xor_b32 v{t3}, v{t3}, v{t0}")
        p(f"v_lshlrev_b32 v{t3}, 4, v{t3}")
        p(f"s_lshl_b32 s{sT0}, s{sW}, 3")
        p(f"v_add_u32 v{t1}, s{sT0}, v{t1}           ; 8w + (l>>3)")
        p(f"s_mul_i32 s{sT0}, s{sAB}, 320")
        p(f"s_add_u32 s{sT0}, s{sT0}, 1024")
        p(f"s_and_b32 s{sT1}, s{sAB}, 1")
        p(f"s_mul_i32 s{sT2}, s{sT1}, 192")
        p(f"s_add_u32 s{sCB2}, s{sT0}, s{sT2}")
        p(f"s_xor_b32 s{sT1}, s{sT1}, 1")
        p(f"s_lshl_b32 s{sT1}, s{sT1}, 7")
        p(f"s_add_u32 s{sT4}, s{sT0}, s{sT1}")
        p(f"s_lshl_b32 s{sT0}, s{sAB}, 7")
        p(f"s_cmp_eq_u32 s{sTYP}, 0")
        p(f"s_cselect_b32 s{sCB2}, s{sT0}, s{sCB2}")
        p(f"v_mul_u32_u24 v{t0}, 3584, v{t1}")
        p(f"v_add3_u32 v{self.vW2[0]}, v{t0}, v{t3}, s{sCB2}")
        p(f"v_xor_b32 v{t2}, 32, v{t3}")
        p(f"v_add3_u32 v{self.vW2[1]}, v{t0}, v{t2}, s{sCB2}")
        p(f"s_cbranch_scc0 L_setupB")
        p(f"v_mul_u32_u24 v{t0}, 3072, v{t1}")
        p(f"v_add3_u32 v{self.vW1[0]}, v{t0}, v{t3}, s{sT0}")
        p(f"v_add3_u32 v{t2}, v{t0}, v{t2}, s{sT0}")
        p(f"v_add_u32 v{self.vW1[1]}, 1024, v{t2}")
        p(f"v_add_u32 v{self.vW1[2]}, 2048, v{self.vW1[0]}")
        p(f"s_lshl_b32 s{sD0}, s{sW}, 10")
        p(f"s_add_u32 s{sD0}, s{sD0}, 16384")
        p(f"s_movk_i32 s{sT5}, 8192")
        p(f"s_mov_b32 s{sADV}, {64*3072}")
        p("s_branch L_setupJ")
        p("L_setupB:")
        p(f"s_and_b32 s{sT0}, s{sW}, 3")
        p(f"s_lshl_b32 s{sT1}, s{sT0}, 4             ; 16*wq")
        p(f"s_mov_b32 s{sT2}, 43691")
        p(f"s_lshl_b32 s{sT3}, s{sCH}, 1")
        for e in range(3):
            r = self.vW1[e]
            p(f"v_add_u32 v{t0}, {64*e}, v{L}           ; j")
            p(f"v_mul_u32_u24 v{t1}, s{sT2}, v{t0}")
            p(f"v_lshrrev_b32 v{t1}, 19, v{t1}          ; j/12")
            p(f"v_mul_u32_u24 v{t2}, 12, v{t1}")
            p(f"v_sub_u32 v{t2}, v{t0}, v{t2}           ; j%12")
            p(f"v_xor_b32 v{t2}, s{sT3}, v{t2}")
            p(f"v_add_u32 v{t1}, s{sT1}, v{t1}")
            p(f"v_mul_u32_u24 v{t1}, 3584, v{t1}")
            p(f"v_lshl_add_u32 v{t1}, v{t2}, 4, v{t1}")
            p(f"v_add_u32 v{r}, s{sT4}, v{t1}")
        p(f"s_mul_i32 s{sD0}, s{sT0}, 3072")
        p(f"s_mul_i32 s{sT1}, s{sCH}, 12288")
        p(f"s_add_u32 s{sD0}, s{sD0}, s{sT1}")
        p(f"s_add_u32 s{sD0}, s{sD0}, 16384")
        p(f"s_movk_i32 s{sT5}, 1024")
        p(f"s_mov_b32 s{sADV}, {64*3584}")
        p(f"s_lshr_b32 s{sHFB}, s{sT4}, 5")
        p("L_setupJ:")
        p(f"s_lshl_b32 s{sM0X}, s{sW}, 11")
        p(f"s_lshl_b32 s{sM0K}, s{sW}, 12")
        p(f"s_lshl_b32 s{sM0P}, s{sW}, 10")
        p(f"s_mov_b32 s{sW1OFF}, 0")

    def p1_setup_srd(self):
        p = self.p
        p(f"s_add_u32 s{sD1}, s{sD0}, s{sT5}")
        p(f"s_add_u32 s{sD2}, s{sD1}, s{sT5}")
        p(f"s_cmp_eq_u32 s{sCH}, 0")
        p(f"s_cselect_b32 s{SRD_W1}, s{sWG}, s{sWU}")
        p(f"s_cselect_b32 s{SRD_W1+1}, s{sWG+1}, s{sWU+1}")
        p(f"s_mov_b32 s{SRD_W1+2}, {512*3584:#x}")
        p(f"s_cmp_eq_u32 s{sTYP}, 0")
        p(f"s_cselect_b32 s{SRD_W1}, s{sWQKV}, s{SRD_W1}")
        p(f"s_cselect_b32 s{SRD_W1+1}, s{sWQKV+1}, s{SRD_W1+1}")
        p(f"s_cselect_b32 s{SRD_W1+2}, {512*3072:#x}, s{SRD_W1+2}")
        p(f"s_mov_b32 s{SRD_W1+3}, 0x20000")

    def p1_setup_late(self):
        p, q = self.p, self.q
        L = self.vLANE
        t0, t1, t2, t3 = 48, 49, 50, 51
        srd(p, SRD_G, sWG, 512 * 3584)
        srd(p, SRD_U, sWU, 512 * 3584)
        srd(p, SRD_T, sGW, 1024)
        p(f"s_lshl_b32 s{sT0}, s{sTYP}, 3")
        p(f"s_add_u32 s{sT0}, s{sT0}, s{sAB}")
        p(f"s_lshl_b32 s{sT1}, s{sT0}, 6            ; *64 bytes")
        p(f"v_lshrrev_b32 v{t0}, 5, v{L}             ; hh")
        p(f"v_lshlrev_b32 v{t0}, 4, v{t0}            ; hh*16")
        p(f"v_add_u32 v{t0}, s{sT1}, v{t0}")
        p(f"buffer_load_dwordx4 {V4(112)}, v{t0}, {S4(SRD_T)}, 0 offen")
        p(f"buffer_load_dwordx4 {V4(116)}, v{t0}, {S4(SRD_T)}, 0 offen offset:32")
        q.push("lgld", 2)
        rowl, sig, grp = 52, 53, 54
        p(f"v_lshrrev_b32 v{t0}, 5, v{L}")
        p(f"v_lshlrev_b32 v{t0}, 3, v{t0}")
        p(f"v_bfe_u32 v{t1}, v{L}, 2, 2")
        p(f"v_add_u32 v{rowl}, v{t0}, v{t1}")
        p(f"v_and_b32 v{t0}, 1, v{L}")
        p(f"v_lshlrev_b32 v{t0}, 4, v{t0}            ; (g&1)*16")
        p(f"v_bfe_u32 v{t1}, v{L}, 1, 1")
        p(f"v_lshl_add_u32 v{sig}, v{t1}, 3, v{t0}    ; 8*sigma")
        p(f"v_bfe_u32 v{grp}, v{L}, 4, 1")
        p(f"v_bfe_u32 v{t0}, v{L}, 3, 1")
        p(f"v_xor_b32 v{t0}, s{sCH}, v{t0}")
        p(f"v_lshlrev_b32 v{t0}, 6, v{t0}")
        p(f"v_lshl_add_u32 v{t0}, v{rowl}, 7, v{t0}")
        p(f"v_add_u32 v{t0}, v{t0}, v{sig}            ; c128")
        p(f"v_mul_u32_u24 v{t1}, {8192+32}, v{grp}")
        p(f"v_add_u32 v{self.vP[0]}, v{t0}, v{t1}")
        p(f"v_xor_b32 v{self.vP[1]}, 32, v{self.vP[0]}")
        p(f"s_cmp_eq_u32 s{sTYP}, 0")
        p(f"s_cbranch_scc0 L_lateB")
        p(f"v_add_u32 v{self.vB[0]}, 16384, v{self.vP[0]}")
        p(f"v_add_u32 v{self.vB[1]}, 16384, v{self.vP[1]}")
        p(f"v_lshl_add_u32 v{t1}, v{grp}, 5, v{t0}")
        p(f"v_add_u32 v{self.vB[2]}, 32768, v{t1}")
        p("s_branch L_lateJ")
        p("L_lateB:")
        p(f"s_mul_i32 s{sT0}, s{sCH}, 96")
        p(f"s_add_u32 s{sT0}, s{sT0}, 16384")
        p(f"v_mul_u32_u24 v{t1}, 192, v{rowl}")
        p(f"v_add3_u32 v{t1}, v{t1}, v{sig}, s{sT0}")
        p(f"s_lshl_b32 s{sT1}, s{sCH}, 6")
        p(f"s_sub_u32 s{sT1}, {12288+32}, s{sT1}")
        p(f"s_sub_u32 s{sT2}, {2*12288}, s{sT1}")
        p(f"v_mul_u32_u24 v{t2}, s{sT1}, v{grp}")
        p(f"v_add_u32 v{self.vB[0]}, v{t1}, v{t2}")
        p(f"v_mul_u32_u24 v{t2}, s{sT2}, v{grp}")
        p(f"v_add_u32 v{self.vB[1]}, v{t1}, v{t2}")
        p(f"v_mov_b32 v{self.vB[2]}, v{self.vB[0]}")
        p("L_lateJ:")
        p(f"v_and_b32 v{t0}, 31, v{L}")
        p(f"s_lshl_b32 s{sT0}, s{sRT}, 5")
        p(f"v_add_u32 v{t1}, s{sT0}, v{t0}")
        p(f"v_lshlrev_b32 v{t1}, 7, v{t1}            ; row*128")
        p(f"v_bfe_u32 v{t0}, v{L}, 1, 3")
        p(f"v_lshrrev_b32 v{t2}, 5, v{L}")
        p(f"v_xor_b32 v{t0}, v{t0}, v{t2}            ; hh ^ f")
        p(f"v_lshl_add_u32 v{t1}, v{t0}, 4, v{t1}")
        for k in range(4):
            p(f"v_xor_b32 v{self.vXR[k]}, {32*k}, v{t1}")
        p(f"v_mov_b32 v{self.vONE}, 1")
        p(f"v_mov_b32 v{self.vDBGA}, 0")
        self.win1 = 0
        self.win2 = 0

    def counter_zero(self):
        p = self.p
        L = self.vLANE
        t0, t1 = 48, 49
        p("s_add_u32 s%d, s2, s%d" % (sT0, sW))
        p(f"s_cmp_eq_u32 s{sT0}, 0")
        p(f"s_cselect_b32 s{sT0}, 0, {OOB:#x}")
        p(f"v_lshlrev_b32 v{t0}, 8, v{L}")
        p(f"v_add_u32 v{t0}, s{sT0}, v{t0}")
        p(f"v_mov_b32 v{t1}, 0")
        p(f"buffer_store_dword v{t1}, v{t0}, {S4(SRD_WS)}, 0 offen sc1")
        self.q.push("cz")

    def census_add(self):
        p = self.p
        t0, t1 = 48, 49
        p(f"v_readfirstlane_b32 s{sT3}, v{self.vFLAG}")
        p(f"s_getreg_b32 s{sT0}, hwreg(HW_REG_XCC_ID, 0, 4)")
        p(f"s_mul_i32 s{sT1}, s{sT0}, s{sT0}")
        p(f"s_lshl_b32 s{sT1}, s{sT1}, 16")
        p(f"s_lshl_b32 s{sT2}, s{sT0}, 8")
        p(f"s_add_u32 s{sT1}, s{sT1}, s{sT2}")
        p(f"s_add_u32 s{sT1}, s{sT1}, 1")
        p(f"s_lshl_b32 s{sEXP}, s{sT1}, 5")
        p(f"s_add_u32 s{sT2}, s{sXCD}, 48")
        p(f"s_lshl_b32 s{sT2}, s{sT2}, 8")
        p(f"s_cmp_ge_u32 s{sT3}, 1")
        p(f"s_cselect_b32 s{sT2}, s{sT2}, {OOB:#x}")
        p(f"s_cselect_b32 s{sLOC}, 1, 0")
        p(f"v_mov_b32 v{t0}, {OOB:#x}")
        p(f"v_mov_b32 v{t1}, s{sT2}")
        p(f"v_cmp_eq_u32 vcc, 0, v0")
        p(f"v_cndmask_b32 v{t0}, v{t0}, v{t1}, vcc")
        p(f"v_mov_b32 v{t1}, s{sT1}")
        p(f"buffer_atomic_add v{t1}, v{t0}, {S4(SRD_WS)}, 0 offen sc1")
        self.q.push("cadd")

    def census_load(self):
        p = self.p
        p(f"s_add_u32 s{sT2}, s{sXCD}, 48")
        p(f"s_lshl_b32 s{sT2}, s{sT2}, 8")
        p(f"v_mov_b32 v{self.vFADDR}, s{sT2}")
        p(f"buffer_load_dword v{self.vFLAG}, v{self.vFADDR}, {S4(SRD_WS)}, 0 offen sc1")
        self.q.push("cld")

    def census_check(self):
        p = self.p
        self.q.wait(p, "cld")
        p(f"v_readfirstlane_b32 s{sT0}, v{self.vFLAG}")
        p(f"s_cmp_eq_u32 s{sT0}, s{sEXP}")
        p(f"s_cselect_b32 s{sLOC}, s{sLOC}, 0")
        if self.o.get("nolocal"):
            p(f"s_mov_b32 s{sLOC}, 0")

    def counter_flag(self):
        p = self.p
        t0, t1 = 48, 49
        p(f"s_cmp_eq_u32 s2, 0")
        p(f"s_cselect_b32 s{sT0}, 0, {OOB:#x}")
        p(f"v_mov_b32 v{t0}, {OOB:#x}")
        p(f"v_mov_b32 v{t1}, s{sT0}")
        p(f"v_cmp_eq_u32 vcc, 0, v0")
        p(f"v_cndmask_b32 v{t0}, v{t0}, v{t1}, vcc")
        p(f"v_mov_b32 v{t1}, 1")
        p(f"buffer_store_dword v{t1}, v{t0}, {S4(SRD_DBG)}, 0 offen sc1")
        self.q.push("cf")

    def p1_piece(self, g, e):
        p, q = self.p, self.q
        ar = self.area(g)
        if g < 8:
            if e < 2:
                p(f"s_add_u32 m0, s{sM0X}, {ar + 1024*e}")
                p(f"s_movk_i32 s{sT1}, {128*g}")
                p(f"buffer_load_dwordx4 v{self.vXD[e]}, {S4(SRD_X)}, s{sT1} offen lds")
            else:
                d = (sD0, sD1, sD2)[e - 2]
                p(f"s_add_u32 m0, s{d}, {ar}")
                if e == 2 and g > 0:
                    p(f"s_add_u32 s{sW1OFF}, s{sW1OFF}, s{sADV}")
                else:
                    p("s_nop 0")
                p(f"buffer_load_dwordx4 v{self.vW1[e-2]}, {S4(SRD_W1)}, s{sW1OFF} offen lds")
        elif g < 16:
            p(f"s_add_u32 m0, s{sM0P}, {ar + 8192*e}")
            p(f"s_mov_b32 s{sT1}, {229376*(g-8)}")
            p(f"buffer_load_dwordx4 v{self.vW2[e]}, {S4(SRD_G if e == 0 else SRD_U)}, s{sT1} offen lds")
        else:
            j = (g - 16) & 3
            src = (WS_KF if g < 20 else WS_VF) + 16384 * j + 1024 * e
            p(f"s_add_u32 m0, s{sM0X2}, {ar + 1024*e}")
            p(f"s_add_u32 s{sT1}, s{sKVB}, {src:#x}")
            p(f"buffer_load_dwordx4 v{self.avL16}, {S4(SRD_WS)}, s{sT1} offen sc1 lds")
        q.push(f"st{g}")

    def earliest(self, g):
        if g >= 8:
            return {8: 22, 9: 22, 10: 26, 11: 26, 12: 30, 13: 30, 14: 36, 15: 36}[g]
        return 4 * (g - 3) + 2

    def npieces(self, g):
        return 5 if g < 8 else 2

    def emit_pieces(self, step, maxn):
        n = 0
        while self.pending and n < maxn:
            g, e = self.pending[0]
            if g == "aq":
                if step < 4 * self.F1G + 2:
                    break
                self.pending.pop(0)
                if self.stop_after != "p1":
                    self.att_loads()
                n += 1
                continue
            if 4 <= g < 16 and step < self.earliest(g):
                break
            if g >= 16 and step < 4 * self.F1G + 2:
                break
            if g >= 16 and self.stop_after == "p1":
                self.pending.pop(0)
                continue
            self.pending.pop(0)
            self.p1_piece(g, e)
            n += 1

    def rebase(self, regs, cur, want):
        if want != cur:
            d = want - cur
            for r in regs:
                if d > 0:
                    self.p(f"v_add_u32 v{r}, {d:#x}, v{r}")
                else:
                    self.p(f"v_subrev_u32 v{r}, {-d:#x}, v{r}")
        return want

    def p1_reads(self, ps, s, typ, part=None):
        p = self.p
        g = (s >> 2) + (0 if ps == 1 else 8)
        sp = s & 3
        wb = self.WB[s & 1]
        n = 0
        nt = 3 if ps == 1 else 2
        parts = range(nt) if part is None else [part]
        for t in parts:
            if t >= nt:
                continue
            if ps == 1:
                if t == 0:
                    self.win1 = self.rebase(list(self.vXR) + list(self.vB), self.win1, self.window(g))
                off = self.area(g) - self.win1
                if t == 0:
                    p(f"ds_read_b128 {V4(self.X + 4*s)}, v{self.vXR[sp]} offset:{off}")
                    n += 1
                for j in range(2):
                    if typ == 0:
                        p(f"ds_read_b64_tr_b16 {V2(wb + 4*t + 2*j)}, v{self.vB[t]} offset:{off + (16*sp + 4*j)*128}")
                    else:
                        p(f"ds_read_b64_tr_b16 {V2(wb + 4*t + 2*j)}, v{self.vB[t]} offset:{off + (16*sp + 4*j)*192 + 32*t}")
                    n += 1
            else:
                if t == 0:
                    self.win2 = self.rebase(list(self.vP), self.win2, self.window(g))
                off = self.area(g) - self.win2
                for j in range(2):
                    p(f"ds_read_b64_tr_b16 {V2(wb + 4*t + 2*j)}, v{self.vP[t]} offset:{off + (16*sp + 4*j)*128}")
                    n += 1
        return n

    def p1_midstage(self, g):
        p, q = self.p, self.q
        T = 116 if (g < 8 or not self.ovl()) else 44 + 16
        garr = (11 if self.o.get("ovlper", 2) == 1 else 10) if self.ovl() else 10
        tags = [f"st{g+1}"] if g + 1 < 16 else []
        if g == 1:
            tags += ["cz"]
        if g == 4 and self.o.get("local", 1):
            tags += ["dbg0"]
        if g == garr:
            tags += ["e1st", "dbg"]
        if g == self.F1G:
            tags += ["f1"]
        self.stamp(f"pre{g}")
        if tags:
            q.wait(p, tags)
        if g == self.F1G:
            poll(p, q, self.vFLAG, self.vFADDR, SRD_WS, 16, "F1")
        self.stamp(f"wait{g}")
        p("s_barrier")
        self.stamp(f"bar{g}")
        if g == 1:
            self.counter_flag()
        if g == garr:
            poll(p, q, self.vFLAG, self.vDBGA, SRD_DBG, 1, "init")
            if self.cur_typ == 0:
                p(f"s_lshl_b32 s{sT0}, s{sAB}, 8")
                p(f"v_mov_b32 v{self.vFADDR}, {OOB:#x}")
                p(f"v_mov_b32 v{T}, s{sT0}")
                p(f"v_cmp_eq_u32 vcc, 0, v0")
                p(f"v_cndmask_b32 v{self.vFADDR}, v{self.vFADDR}, v{T}, vcc")
                self.stamp("f1iss")
                p(f"buffer_atomic_add v{self.vONE}, v{self.vFADDR}, {S4(SRD_WS)}, 0 offen sc1")
                q.push("f1add")
                if self.o.get("diagf1"):
                    p("s_waitcnt vmcnt(0)")
                    self.stamp("f1done")
        if self.o.get("local", 1):
            if g == 2:
                p(f"buffer_load_dword v{self.vFLAG}, v{self.vDBGA}, {S4(SRD_DBG)}, 0 offen sc1")
                q.push("dbg0")
            if g == 4:
                self.census_add()
            if g == 7 and self.cur_typ == 0:
                self.census_load()
        if g == 8:
            p(f"buffer_load_dword v{self.vFLAG}, v{self.vDBGA}, {S4(SRD_DBG)}, 0 offen sc1")
            q.push("dbg")
        if g == 13:
            p(f"v_bfe_u32 v{T+2}, v0, 1, 4")
            p(f"v_and_b32 v{T+2}, 11, v{T+2}")
            p(f"v_cmp_eq_u32 vcc, 0, v{T+2}")
            p(f"v_mov_b32 v{T+1}, 0x3f803f80")
            p(f"v_cndmask_b32 v{T}, 0, v{T+1}, vcc")
            p(f"v_lshlrev_b32 v{T+2}, 3, v0")
            p(f"v_mov_b32 v{T+1}, v{T}")
            p(f"ds_write_b64 v{T+2}, {V2(T)} offset:{self.ONES}")
            self.lg_issue("ones", 1)
        if g == self.F1G - 1:
            p(f"s_lshr_b32 s{sT0}, s{sH}, 2")
            p(f"s_lshl_b32 s{sT0}, s{sT0}, 8")
            p(f"v_mov_b32 v{self.vFADDR}, s{sT0}")
            p(f"buffer_load_dword v{self.vFLAG}, v{self.vFADDR}, {S4(SRD_WS)}, 0 offen sc1")
            q.push("f1")
            p(f"v_lshlrev_b32 v{self.avL16}, 4, v{self.vLANE}")
            p(f"s_lshl_b32 s{sM0X2}, s{sW}, 11")
            p(f"s_lshl_b32 s{sKVB}, s{sH}, 16")
            p(f"s_add_u32 s{sKVB}, s{sKVB}, s{sM0X2}")
        if g == 14 and self.F1G == 14 and not self.o.get("nodma"):
            self.emit_pieces(58, 6)

    def lg_issue(self, tag, n):
        self.lgq += [tag] * n

    def lg_wait(self, tag):
        last = max((i for i, t in enumerate(self.lgq) if t == tag), default=-1)
        if last < 0:
            return
        n = len(self.lgq) - 1 - last
        self.p(f"s_waitcnt lgkmcnt({min(n, 15)})")
        self.lgq = self.lgq[last + 1:]

    def p1_pass(self, ps, typ):
        p, q = self.p, self.q
        nt = 3 if ps == 1 else 2
        acc = [self.ACC + 16*t for t in range(nt)] if ps == 1 else [self.acc2() + 16*t for t in range(nt)]
        comp = not self.o.get("nocompute")
        for s in range(32):
            gs = s + (0 if ps == 1 else 32)
            g = gs >> 2
            if (s & 3) == 2:
                self.p1_midstage(g)
            nxt = None
            if s < 31:
                nxt = (ps, s + 1)
            elif ps == 1:
                nxt = (2, 0)
            wb = self.WB[s & 1]
            xs = self.X + 4*s
            for t in range(nt):
                c = None if s == 0 else acc[t]
                if comp:
                    self.lg_wait((ps, s, t))
                    if self.o.get("nomfma"):
                        pass
                    elif ps == 1 and t == 2 and typ == 0:
                        mfma(p, acc[t], xs, wb + 4*t, c)
                    else:
                        mfma(p, acc[t], wb + 4*t, xs, c)
                    if nxt and not self.o.get("nolds"):
                        n = self.p1_reads(nxt[0], nxt[1], typ, t)
                        self.lg_issue((nxt[0], nxt[1], t), n)
                if not self.o.get("nodma"):
                    if t == 0:
                        self.emit_pieces(gs, 1)
                    elif t == 1 and (ps == 1 or gs < 46):
                        self.emit_pieces(gs, 1)
                if ps == 2 and (s, t) in self.deferred:
                    self.deferred.pop((s, t))()

    def p1_first_reads(self, typ):
        self.lgq = []
        for t in range(3):
            n = self.p1_reads(1, 0, typ, t)
            self.lg_issue((1, 0, t), n)

    def store_ws(self, vdata, voff, soff_reg, tag, offset=0):
        o = f" offset:{offset}" if offset else ""
        self.p(f"buffer_store_dwordx4 {V4(vdata)}, v{voff}, {S4(SRD_WS)}, s{soff_reg} offen{o} sc1")
        self.q.push(tag)

    def relu_mul_store(self, a, tmp, unit, tag):
        p = self.p
        for r in range(8):
            p(f"v_max_f32 v{a+r}, 0, v{a+r}")
        for r in range(8):
            p(f"v_mul_f32 v{a+r}, v{a+r}, v{a+8+r}")
        for i in range(4):
            p(f"v_cvt_pk_bf16_f32 v{tmp+i}, v{a+2*i}, v{a+2*i+1}")
        p(f"s_add_u32 s{sT1}, s{sHFB}, {unit * 1024}")
        self.store_ws(tmp, self.vL16, sT1, tag)

    def hf_base(self, unit_reg_expr_lines):
        p = self.p
        for l in unit_reg_expr_lines:
            p(l)
        p(f"s_mul_i32 s{sT1}, s{sTILE}, 112")
        p(f"s_add_u32 s{sHFB}, s{sT0}, s{sT1}")
        p(f"s_lshl_b32 s{sHFB}, s{sHFB}, 10")
        p(f"s_add_u32 s{sHFB}, s{sHFB}, {WS_HF:#x}")

    def p1_logit(self, step):
        p, q = self.p, self.q
        L = self.vLANE
        p(f"s_lshl_b32 s{sT0}, s{sTYP}, 3")
        p(f"s_add_u32 s{sT0}, s{sT0}, s{sAB}          ; j")
        p(f"s_lshl_b32 s{sT1}, s{sT0}, 3")
        p(f"s_set_gpr_idx_on s{sT1}, 0x1")
        for i in range(8):
            p(f"v_mov_b32 v{120+i}, v{self.X+i}")
        p("s_set_gpr_idx_off")
        q.wait(p, "lgld")
        mfma(p, 48, 112, 120, None)
        mfma(p, 48, 116, 124, 48)
        p(f"s_lshl_b32 s{sT1}, s{sT0}, 13")
        p(f"s_add_u32 s{sT1}, s{sT1}, {WS_LG:#x}")
        p(f"s_lshl_b32 s{sT2}, s{sTILE}, 7")
        p(f"s_add_u32 s{sLGO}, s{sT1}, s{sT2}")
        p(f"s_cmp_eq_u32 s{sCH}, 0")
        p(f"s_cselect_b32 s{sT1}, 32, 0")
        p(f"v_lshlrev_b32 v43, 2, v{L}")
        p(f"v_mov_b32 v42, {OOB:#x}")
        p(f"v_cmp_gt_u32 vcc, s{sT1}, v{L}")
        p(f"v_cndmask_b32 v43, v42, v43, vcc")
        def fin():
            p(f"v_mov_b32 v42, v48")
        def f():
            p(f"buffer_store_dword v42, v43, {S4(SRD_WS)}, s{sLGO} offen sc1")
            self.q.push("lgst")
        self.deferred[step] = f
        return fin

    def p1_epi1(self, typ):
        p, q = self.p, self.q
        L = self.vLANE
        self.deferred = {}
        local = self.o.get("local", 1) and typ == 0
        if local:
            self.census_check()
        def two_flavours(emit):
            if not local:
                emit(" sc1")
                return
            n = uid()
            p(f"s_cmp_eq_u32 s{sLOC}, 0")
            p(f"s_cbranch_scc1 L_wt{n}")
            emit("")
            p(f"s_branch L_st{n}")
            p(f"L_wt{n}:")
            emit(" sc1")
            p(f"L_st{n}:")
        self.two_flavours = two_flavours
        def dstore(step, vdata, voff, const, tag, base, offset=0):
            def f():
                p(f"s_add_u32 s{sT1}, s{base}, {const:#x}")
                o = f" offset:{offset}" if offset else ""
                two_flavours(lambda fl: p(f"buffer_store_dwordx4 {V4(vdata)}, v{voff}, {S4(SRD_WS)}, s{sT1} offen{o}{fl}"))
                self.q.push(tag)
            if step is None:
                self.late_stores.append(f)
            else:
                self.deferred[step] = f
        self.late_stores = []
        lg_fin = self.p1_logit((12, 1))
        if typ == 0:
            A = (self.ACC, self.ACC + 16)
            B = self.ACC + 32
            T = self.TMP
            V = 120
            p(f"s_lshl_b32 s{sT0}, s{sAB}, 2")
            p(f"s_lshl_b32 s{sT1}, s{sCH}, 1")
            p(f"s_add_u32 s{sT0}, s{sT0}, s{sT1}          ; head")
            p(f"s_lshl_b32 s{sT1}, s{sT0}, 6")
            p(f"s_add_u32 s{sT1}, s{sT1}, s{sTILE}        ; h*64+tile")
            p(f"s_lshl_b32 s{sQB}, s{sT1}, 10")
            p(f"s_lshl_b32 s{sT5}, s{sAB}, 4")
            p(f"s_add_u32 s{sT5}, s{sT5}, s{sRB}")
            p(f"s_lshl_b32 s{sT5}, s{sT5}, 7          ; (a*16+rb)*128")
            p(f"s_lshl_b32 s{sT0}, s{sCH}, 6")
            p(f"s_add_u32 s{sT5}, s{sT5}, s{sT0}")
            p(f"s_lshl_b32 s{sT0}, s{sRT}, 3")
            p(f"s_add_u32 s{sT5}, s{sT5}, s{sT0}")
            p(f"s_mov_b32 s{sT0}, s{sCS}")
            p(f"s_mov_b32 s{sT1}, s{sCS}")
            for t in range(2):
                for i in range(4):
                    p(f"v_pk_mul_f32 {V2(A[t]+2*i)}, {V2(A[t]+2*i)}, s[{sT0}:{sT1}]")
            lg_fin()
            for t in range(2):
                for i in range(4):
                    p(f"v_cvt_pk_bf16_f32 v{T+8*t+4+i}, v{A[t]+8+2*i}, v{A[t]+8+2*i+1}")
            for i in range(8):
                p(f"v_cvt_pk_bf16_f32 v{V+i}, v{B+2*i}, v{B+2*i+1}")
            for t in range(2):
                for i in range(4):
                    p(f"v_cvt_pk_bf16_f32 v{T+8*t+i}, v{A[t]+2*i}, v{A[t]+2*i+1}")
            a = 40
            p(f"v_bfe_u32 v{a}, v{L}, 4, 1")
            p(f"v_lshlrev_b32 v{a}, 16, v{a}")
            p(f"v_lshrrev_b32 v{a+1}, 5, v{L}")
            p(f"v_lshl_add_u32 v{a}, v{a+1}, 8, v{a}")
            p(f"v_and_b32 v{a+1}, 15, v{L}")
            p(f"v_lshl_add_u32 v{a}, v{a+1}, 4, v{a}")
            dstore((0, 0), T + 4, self.vL16, WS_KF, "e1st", sQB)
            dstore((0, 1), T + 12, self.vL16, WS_KF + 65536, "e1st", sQB)
            dstore((1, 0), V, a, WS_VF, "e1st", sQB)
            dstore((1, 1), V + 4, a, WS_VF, "e1st", sQB, 512)
            dstore((2, 0), T, self.vL16, WS_QF, "e1st", sQB)
            dstore((2, 1), T + 8, self.vL16, WS_QF + 65536, "e1st", sQB)
            N = B
            for t in range(2):
                for h in range(2):
                    r = N + 4*t + 2*h
                    src = A[t] + 8*h
                    p(f"v_pk_mul_f32 {V2(r)}, {V2(src)}, {V2(src)}")
            for i in range(1, 4):
                for t in range(2):
                    for h in range(2):
                        r = N + 4*t + 2*h
                        src = A[t] + 8*h + 2*i
                        p(f"v_pk_fma_f32 {V2(r)}, {V2(src)}, {V2(src)}, {V2(r)}")
            for t in range(2):
                for h in range(2):
                    r = N + 4*t + 2*h
                    p(f"v_add_f32 v{r}, v{r}, v{r+1}")
            for t in range(2):
                p(f"v_permlane32_swap_b32 v{N+4*t}, v{N+4*t+2}")
            for t in range(2):
                p(f"v_add_f32 v{N+4*t}, v{N+4*t}, v{N+4*t+2}")
            na = 104
            p(f"s_add_u32 s{sT0}, s{sT5}, {WS_NRMQ:#x}")
            p(f"s_add_u32 s{sT1}, s{sT5}, {WS_NRMQ + 4:#x}")
            p(f"v_mov_b32 v{na}, {OOB:#x}")
            p(f"v_mov_b32 v{na+1}, s{sT0}")
            p(f"v_cmp_eq_u32 vcc, 31, v{L}")
            for sh in (1, 2):
                for t in range(2):
                    p(f"v_max_f32_dpp v{N+4*t}, v{N+4*t}, v{N+4*t} row_shr:{sh} row_mask:0xf bank_mask:0xf")
                if sh == 1:
                    p(f"v_cndmask_b32 v{na}, v{na}, v{na+1}, vcc")
                    p(f"v_mov_b32 v{na+1}, s{sT1}")
                else:
                    p(f"v_cmp_eq_u32 vcc, 63, v{L}")
            for sh in (4, 8):
                for t in range(2):
                    p(f"v_max_f32_dpp v{N+4*t}, v{N+4*t}, v{N+4*t} row_shr:{sh} row_mask:0xf bank_mask:0xf")
                if sh == 4:
                    p(f"v_cndmask_b32 v{na}, v{na}, v{na+1}, vcc")
            for t in range(2):
                p(f"v_max_f32_dpp v{N+4*t}, v{N+4*t}, v{N+4*t} row_bcast:15 row_mask:0xa bank_mask:0xf")
            def nstore(t):
                def f():
                    o = " offset:32" if t else ""
                    two_flavours(lambda fl: p(f"buffer_store_dword v{N+4*t}, v{na}, {S4(SRD_WS)}, 0 offen{o}{fl}"))
                    q = self.q
                    q.push("e1st")
                return f
            self.deferred[(3, 0)] = nstore(0)
            self.deferred[(3, 1)] = nstore(1)
        else:
            p(f"s_mul_i32 s{sT0}, s{sCH}, 3")
            p(f"s_add_u32 s{sT0}, s{sT0}, s{sHFB}")
            p(f"s_mul_i32 s{sT1}, s{sTILE}, 112")
            p(f"s_add_u32 s{sHB1}, s{sT0}, s{sT1}")
            p(f"s_lshl_b32 s{sHB1}, s{sHB1}, 10")
            for t in range(3):
                a0 = self.ACC + 16*t
                for r in range(8):
                    p(f"v_max_f32 v{a0+r}, 0, v{a0+r}")
                for r in range(8):
                    p(f"v_mul_f32 v{a0+r}, v{a0+r}, v{a0+8+r}")
                if t == 0:
                    lg_fin()
                for i in range(4):
                    p(f"v_cvt_pk_bf16_f32 v{self.TMP+4*t+i}, v{a0+2*i}, v{a0+2*i+1}")
        self.stamp("e1b")

    def p1_epi1_ovl(self, typ):
        p, q = self.p, self.q
        L = self.vLANE
        self.deferred = {}
        local = self.o.get("local", 1) and typ == 0
        if local:
            self.census_check()
        def two_flavours(emit):
            if not local:
                emit(" sc1")
                return
            n = uid()
            p(f"s_cmp_eq_u32 s{sLOC}, 0")
            p(f"s_cbranch_scc1 L_wt{n}")
            emit("")
            p(f"s_branch L_st{n}")
            p(f"L_wt{n}:")
            emit(" sc1")
            p(f"L_st{n}:")
        def store4(vdata, voff, const, offset=0):
            p(f"s_add_u32 s{sT1}, s{sQB}, {const:#x}")
            o = f" offset:{offset}" if offset else ""
            two_flavours(lambda fl: p(f"buffer_store_dwordx4 {V4(vdata)}, v{voff}, {S4(SRD_WS)}, s{sT1} offen{o}{fl}"))
            self.q.push("e1st")
        T = self.TMP
        xc = 96 if typ == 0 else 120
        if typ == 0:
            B = self.ACC + 32
            Vq = (24, 36)
            for i in range(8):
                p(f"v_cvt_pk_bf16_f32 v{Vq[i >> 2] + (i & 3)}, v{B+2*i}, v{B+2*i+1}")
        p(f"s_lshl_b32 s{sT0}, s{sTYP}, 3")
        p(f"s_add_u32 s{sT0}, s{sT0}, s{sAB}          ; j")
        p(f"s_lshl_b32 s{sT1}, s{sT0}, 3")
        p(f"s_set_gpr_idx_on s{sT1}, 0x1")
        for i in range(8):
            p(f"v_mov_b32 v{xc+i}, v{self.X+i}")
        p("s_set_gpr_idx_off")
        q.wait(p, "lgld")
        mfma(p, 48, 112, xc, None)
        mfma(p, 48, 116, xc + 4, 48)
        p(f"s_lshl_b32 s{sT1}, s{sT0}, 13")
        p(f"s_add_u32 s{sT1}, s{sT1}, {WS_LG:#x}")
        p(f"s_lshl_b32 s{sT2}, s{sTILE}, 7")
        p(f"s_add_u32 s{sLGO}, s{sT1}, s{sT2}")
        p(f"s_cmp_eq_u32 s{sCH}, 0")
        p(f"s_cselect_b32 s{sT1}, 32, 0")
        p(f"v_lshlrev_b32 v43, 2, v{L}")
        p(f"v_mov_b32 v42, {OOB:#x}")
        p(f"v_cmp_gt_u32 vcc, s{sT1}, v{L}")
        p(f"v_cndmask_b32 v43, v42, v43, vcc")
        def lgstore():
            p(f"buffer_store_dword v42, v43, {S4(SRD_WS)}, s{sLGO} offen sc1")
            self.q.push("lgst")
        side = []
        if typ == 0:
            A = (self.ACC, self.ACC + 16)
            p(f"s_lshl_b32 s{sT0}, s{sAB}, 2")
            p(f"s_lshl_b32 s{sT1}, s{sCH}, 1")
            p(f"s_add_u32 s{sT0}, s{sT0}, s{sT1}          ; head")
            p(f"s_lshl_b32 s{sT1}, s{sT0}, 6")
            p(f"s_add_u32 s{sT1}, s{sT1}, s{sTILE}        ; h*64+tile")
            p(f"s_lshl_b32 s{sQB}, s{sT1}, 10")
            p(f"s_lshl_b32 s{sNB}, s{sAB}, 4")
            p(f"s_add_u32 s{sNB}, s{sNB}, s{sRB}")
            p(f"s_lshl_b32 s{sNB}, s{sNB}, 7          ; (a*16+rb)*128")
            p(f"s_lshl_b32 s{sT0}, s{sCH}, 6")
            p(f"s_add_u32 s{sNB}, s{sNB}, s{sT0}")
            p(f"s_lshl_b32 s{sT0}, s{sRT}, 3")
            p(f"s_add_u32 s{sNB}, s{sNB}, s{sT0}")
            p(f"s_add_u32 s{sNB}, s{sNB}, {WS_NRMQ:#x}")
            p(f"s_mov_b32 s{sCS2}, s{sCS}")
            p(f"s_mov_b32 s{sCS2+1}, s{sCS}")
            a = 40
            def vaddr():
                p(f"v_bfe_u32 v{a}, v{L}, 4, 1")
                p(f"v_lshlrev_b32 v{a}, 16, v{a}")
                p(f"v_lshrrev_b32 v{a+1}, 5, v{L}")
                p(f"v_lshl_add_u32 v{a}, v{a+1}, 8, v{a}")
                p(f"v_and_b32 v{a+1}, 15, v{L}")
                p(f"v_lshl_add_u32 v{a}, v{a+1}, 4, v{a}")
            def cvt4(dst, src):
                for i in range(4):
                    p(f"v_cvt_pk_bf16_f32 v{dst+i}, v{src+2*i}, v{src+2*i+1}")
            def scale(t):
                for i in range(4):
                    p(f"v_pk_mul_f32 {V2(A[t]+2*i)}, {V2(A[t]+2*i)}, s[{sCS2}:{sCS2+1}]")
            R = [A[0], A[0] + 8, A[1], A[1] + 8]
            def nrm(i):
                for r in R:
                    if i == 0:
                        p(f"v_pk_mul_f32 {V2(r)}, {V2(r)}, {V2(r)}")
                    else:
                        p(f"v_pk_fma_f32 {V2(r)}, {V2(r+2*i)}, {V2(r+2*i)}, {V2(r)}")
            def nrm_fold():
                for r in R:
                    p(f"v_add_f32 v{r}, v{r}, v{r+1}")
            def nrm_swap():
                p(f"v_permlane32_swap_b32 v{R[0]}, v{R[1]}")
                p(f"v_permlane32_swap_b32 v{R[2]}, v{R[3]}")
                p(f"v_add_f32 v{R[0]}, v{R[0]}, v{R[1]}")
                p(f"v_add_f32 v{R[2]}, v{R[2]}, v{R[3]}")
            na = A[0] + 2
            def naddr():
                p(f"s_add_u32 s{sT1}, s{sNB}, 4")
                p(f"v_mov_b32 v{na}, {OOB:#x}")
                p(f"v_mov_b32 v{na+1}, s{sNB}")
                p(f"v_cmp_eq_u32 vcc, 31, v{L}")
                p(f"v_mov_b32 v{na+2}, s{sT1}")
                p(f"v_cndmask_b32 v{na}, v{na}, v{na+1}, vcc")
                p(f"v_cmp_eq_u32 vcc, 63, v{L}")
            def dpp(shs):
                def f():
                    for sh in shs:
                        for r in (R[0], R[2]):
                            if sh == 16:
                                p(f"v_max_f32_dpp v{r}, v{r}, v{r} row_bcast:15 row_mask:0xa bank_mask:0xf")
                            else:
                                p(f"v_max_f32_dpp v{r}, v{r}, v{r} row_shr:{sh} row_mask:0xf bank_mask:0xf")
                return f
            def nstores():
                p(f"v_cndmask_b32 v{na}, v{na}, v{na+2}, vcc")
                for t in range(2):
                    o = " offset:32" if t else ""
                    two_flavours(lambda fl: p(f"buffer_store_dword v{R[2*t]}, v{na}, {S4(SRD_WS)}, 0 offen{o}{fl}"))
                    self.q.push("e1st")
            side = [
                lambda: (vaddr(),),
                lambda: (p("v_mov_b32 v42, v48"), cvt4(T + 4, A[0] + 8), store4(Vq[0], a, WS_VF)),
                lambda: (cvt4(T + 12, A[1] + 8), store4(Vq[1], a, WS_VF, 512)),
                lambda: (scale(0), store4(T + 4, self.vL16, WS_KF)),
                lambda: (scale(1), store4(T + 12, self.vL16, WS_KF + 65536)),
                lambda: (cvt4(T, A[0]),),
                lambda: (cvt4(T + 8, A[1]), store4(T, self.vL16, WS_QF)),
                lambda: (nrm(0), store4(T + 8, self.vL16, WS_QF + 65536)),
                lambda: (nrm(1),), lambda: (nrm(2),), lambda: (nrm(3),),
                lambda: (nrm_fold(),), lambda: (nrm_swap(),),
                lambda: (dpp((1,))(), naddr()),
                dpp((2,)), dpp((4,)), dpp((8,)), dpp((16,)),
                nstores,
                lgstore,
            ]
        else:
            p(f"s_mul_i32 s{sT0}, s{sCH}, 3")
            p(f"s_add_u32 s{sT0}, s{sT0}, s{sHFB}")
            p(f"s_mul_i32 s{sT1}, s{sTILE}, 112")
            p(f"s_add_u32 s{sHB1}, s{sT0}, s{sT1}")
            p(f"s_lshl_b32 s{sHB1}, s{sHB1}, 10")
            def relu(a0, lo, hi):
                for r in range(lo, hi):
                    p(f"v_max_f32 v{a0+r}, 0, v{a0+r}")
            def mul(a0, lo, hi):
                for r in range(lo, hi):
                    p(f"v_mul_f32 v{a0+r}, v{a0+r}, v{a0+8+r}")
            def cvt(a0, dst):
                for i in range(4):
                    p(f"v_cvt_pk_bf16_f32 v{dst+i}, v{a0+2*i}, v{a0+2*i+1}")
            a2 = self.ACC + 32
            relu(a2, 0, 8); mul(a2, 0, 8)
            p("v_mov_b32 v42, v48")
            cvt(a2, T + 8)
            for t in range(2):
                a0 = self.ACC + 16*t
                side += [lambda a0=a0: relu(a0, 0, 5), lambda a0=a0: (relu(a0, 5, 8), mul(a0, 0, 2)), lambda a0=a0: mul(a0, 2, 8),
                         lambda a0=a0, t=t: cvt(a0, T + 4*t)]
            side += [lgstore]
        per = self.o.get("ovlper", 2) if typ == 0 else 1
        groups = [side[i:i + per] for i in range(0, len(side), per)]
        for k, fs in enumerate(groups):
            self.deferred[(k >> 1, k & 1)] = (lambda fs=fs: [f() for f in fs])
        self.stamp("e1b")

    def p1_epi2(self, typ):
        p = self.p
        p(f"s_lshr_b32 s{sT2}, s{sCB2}, 5")
        p(f"s_lshl_b32 s{sT0}, s{sCH}, 1")
        p(f"s_add_u32 s{sT0}, s{sT0}, s{sT2}")
        p(f"s_mul_i32 s{sT1}, s{sTILE}, 112")
        p(f"s_add_u32 s{sHFB}, s{sT0}, s{sT1}")
        p(f"s_lshl_b32 s{sQB}, s{sHFB}, 10")
        for t in range(2):
            a0 = self.acc2() + 16*t
            for r in range(8):
                p(f"v_max_f32 v{a0+r}, 0, v{a0+r}")
            for r in range(8):
                p(f"v_mul_f32 v{a0+r}, v{a0+r}, v{a0+8+r}")
            for i in range(4):
                p(f"v_cvt_pk_bf16_f32 v{128+4*t+i}, v{a0+2*i}, v{a0+2*i+1}")
        if typ == 1:
            for i in range(12):
                p(f"v_mov_b32 v{136+i}, v{self.TMP+i}")

    def late_h_stores(self):
        p = self.p
        for t in range(2):
            p(f"s_add_u32 s{sT1}, s{sQB}, {WS_HF + 1024*t:#x}")
            self.store_ws(128 + 4*t, self.avL16, sT1, "hst")
        n = uid()
        p(f"s_cmp_eq_u32 s{sA3}, 0")
        p(f"s_cbranch_scc1 L_noh_{n}")
        for t in range(3):
            p(f"s_add_u32 s{sT1}, s{sHB1}, {WS_HF + 1024*t:#x}")
            self.store_ws(136 + 4*t, self.avL16, sT1, "hst")
        p(f"L_noh_{n}:")

    def p1(self):
        p, q = self.p, self.q
        self.stamp("predma")
        for g in range(2):
            for e in range(5):
                self.p1_piece(g, e)
        self.stamp("dma0")
        self.pending = [(g, e) for g in list(range(2, 16)) for e in range(self.npieces(g))]
        self.pending += [(16, 0), (16, 1), (20, 0), (20, 1), ("aq", 0), (17, 0), (17, 1), (21, 0), (21, 1)]
        srd(p, SRD_WS, sWS, WS_SIZE)
        srd(p, SRD_DBG, sDBG, 256)
        self.p1_setup_late()
        self.counter_zero()
        if not self.o.get("nodma"):
            self.emit_pieces(0, self.o.get("upfront", 0))
        self.stamp("setup")
        q.wait(p, ["st0"])
        p("s_barrier")
        self.stamp("st0")
        p(f"s_cmp_eq_u32 s{sTYP}, 0")
        p("s_cbranch_scc0 L_p1_B")
        q0, w0, pend0 = q.fork(), (self.win1, self.win2), list(self.pending)
        ends = []
        for typ in range(2):
            if typ == 1:
                p("L_p1_B:")
                self.q = q0
                self.win1, self.win2 = w0
                self.pending = pend0
            self.cur_typ = typ
            self.p1_first_reads(typ)
            self.p1_pass(1, typ)
            self.stamp("pass1")
            if self.ovl():
                self.p1_epi1_ovl(typ)
            else:
                self.p1_epi1(typ)
            self.stamp("epi1")
            self.p1_pass(2, typ)
            assert not self.deferred
            self.stamp("pass2")
            if not self.o.get("nodma"):
                self.emit_pieces(99, 99)
            self.p1_epi2(typ)
            self.stamp("epi2")
            ends.append(self.q)
            if typ == 0:
                p("s_branch L_p1_join")
        p("L_p1_join:")
        self.q = VMQ.join(ends)

    aQ, aK, aV, aS, aP, aO = 4, (8, 12), (16, 24), (32, 48), (64, 72), 80
    avK, avV, avVinc, avL16 = 96, 97, 98, 3
    avT = 100
    HFR = 128
    LGR = 240

    def nrmT(self):
        return 64 if self.ovl() else self.avT

    def att_loads(self):
        p, q = self.p, self.q
        L, T = self.vLANE, self.nrmT()
        p(f"s_lshl_b32 s{sA0}, s{sQC}, 3")
        p(f"s_add_u32 s{sA0}, s{sA0}, s{sW}          ; q tile")
        p(f"s_lshl_b32 s{sA1}, s{sH}, 6")
        p(f"s_add_u32 s{sA1}, s{sA1}, s{sA0}         ; h*64+tile")
        p(f"s_lshl_b32 s{sA2}, s{sA1}, 10")
        p(f"s_add_u32 s{sA2}, s{sA2}, {WS_QF:#x}")
        p(f"buffer_load_dwordx4 {V4(self.aQ)}, v{self.vL16}, {S4(SRD_WS)}, s{sA2} offen sc1")
        p(f"s_lshr_b32 s{sA2}, s{sH}, 2")
        p(f"s_lshl_b32 s{sA2}, s{sA2}, 11")
        p(f"s_and_b32 s{sA1}, s{sH}, 3")
        p(f"s_lshl_b32 s{sA1}, s{sA1}, 5")
        p(f"s_add_u32 s{sA2}, s{sA2}, s{sA1}")
        p(f"s_add_u32 s{sA2}, s{sA2}, {WS_NRMQ:#x}")
        p(f"v_lshrrev_b32 v{T}, 2, v{L}")
        p(f"v_lshlrev_b32 v{T}, 7, v{T}")
        p(f"v_and_b32 v{T+3}, 3, v{L}")
        p(f"v_lshl_add_u32 v{T}, v{T+3}, 3, v{T}")
        p(f"buffer_load_dword v{T+1}, v{T}, {S4(SRD_WS)}, s{sA2} offen offset:4 sc1")
        p(f"s_lshr_b32 s{sA1}, s{sA0}, 2")
        p(f"s_lshl_b32 s{sA1}, s{sA1}, 7")
        p(f"s_and_b32 s{sA0}, s{sA0}, 3")
        p(f"s_lshl_b32 s{sA0}, s{sA0}, 3")
        p(f"s_add_u32 s{sA2}, s{sA2}, s{sA1}")
        p(f"s_add_u32 s{sA2}, s{sA2}, s{sA0}")
        p(f"v_mov_b32 v{T+3}, 0")
        p(f"buffer_load_dword v{T+2}, v{T+3}, {S4(SRD_WS)}, s{sA2} offen sc1")
        q.push("aq", 3)

    def att_setup(self):
        p, q = self.p, self.q
        L, T = self.vLANE, self.avT
        p(f"v_lshlrev_b32 v{self.avL16}, 4, v{L}")
        p(f"v_add_u32 v{self.avK}, 32768, v{self.avL16}")
        p(f"v_and_b32 v{T+4}, 31, v{L}               ; m")
        p(f"v_lshrrev_b32 v{T+5}, 5, v{L}")
        p(f"v_lshlrev_b32 v{T+5}, 8, v{T+5}")
        p(f"v_and_b32 v{T+6}, 15, v{L}")
        p(f"v_lshl_add_u32 v{T+5}, v{T+6}, 4, v{T+5}")
        p(f"v_add_u32 v{T+5}, 98304, v{T+5}")
        p(f"v_subrev_u32 v{T+6}, 20, v{T+4}")
        p(f"v_mov_b32 v{T+7}, {self.ONES+16}")
        p(f"v_mov_b32 v{T+8}, {self.ONES+80}")
        p(f"v_cmp_gt_u32 vcc, 8, v{T+6}")
        p(f"v_cndmask_b32 v{T+7}, v{T+7}, v{T+8}, vcc")
        p(f"v_and_b32 v{T+6}, 27, v{T+4}")
        p(f"v_subrev_u32 v{T+8}, 16, v{T+7}")
        p(f"v_cmp_eq_u32 vcc, 16, v{T+6}")
        p(f"v_cndmask_b32 v{T+7}, v{T+7}, v{T+8}, vcc")
        p(f"v_cmp_gt_u32 vcc, 16, v{T+4}")
        p(f"v_cndmask_b32 v{self.avV}, v{T+7}, v{T+5}, vcc")
        p(f"v_mov_b32 v{T+7}, 0")
        p(f"v_mov_b32 v{T+8}, 4096")
        p(f"v_cndmask_b32 v{self.avVinc}, v{T+7}, v{T+8}, vcc")
        self.P3COORD = True
        p(f"s_mov_b32 s{sTYPC}, s{sTYP}")
        p(f"s_lshl_b32 s{sRT64}, s{sXCD}, 2")
        p(f"s_and_b32 s{sA0}, s{sSLOT}, 3")
        p(f"s_add_u32 s{sRT64}, s{sRT64}, s{sA0}")
        p(f"s_lshr_b32 s{sCB}, s{sSLOT}, 2")
        p(f"s_lshr_b32 s{sKQ}, s{sW}, 1")
        p(f"s_and_b32 s{sTR}, s{sW}, 1")
        p(f"s_lshl_b32 s{sT32}, s{sRT64}, 1")
        p(f"s_add_u32 s{sT32}, s{sT32}, s{sTR}")
        q.wait(p, ["st16", "st17", "st20", "aq"])
        p("s_barrier")
        self.stamp("kv")
        N = self.nrmT()
        for sh in (1, 2, 4, 8):
            p(f"v_max_f32_dpp v{N+1}, v{N+1}, v{N+1} row_shr:{sh} row_mask:0xf bank_mask:0xf")
        p(f"v_max_f32_dpp v{N+1}, v{N+1}, v{N+1} row_bcast:15 row_mask:0xa bank_mask:0xf")
        p(f"v_max_f32_dpp v{N+1}, v{N+1}, v{N+1} row_bcast:31 row_mask:0xc bank_mask:0xf")
        p(f"v_readlane_b32 s{sA0}, v{N+1}, 63")
        p(f"v_mul_f32 v{N+2}, s{sA0}, v{N+2}")
        p(f"v_mov_b32 v{N+3}, {f2u(3600.0):#x}")
        p(f"v_cmp_le_f32 vcc, v{N+2}, v{N+3}")
        p(f"s_cmp_eq_u64 vcc, exec")
        p(f"s_cselect_b32 s{sMODE}, 0, 1")
        if self.o.get("force_slow"):
            p(f"s_mov_b32 s{sMODE}, 1")

    def att_tile(self, t, side):
        p = self.p
        tb = t & 3
        Sc, Sn = self.aS[t & 1], self.aS[(t + 1) & 1]
        Kn, Kl = self.aK[(t + 1) & 1], self.aK[t & 1]
        Vc, Vp = self.aV[t & 1], self.aV[(t + 1) & 1]
        Pc, Pp = self.aP[t & 1], self.aP[(t + 1) & 1]
        O, Q = self.aO, self.aQ
        ex = lambda i: p(f"v_exp_f32 v{Sc+i}, v{Sc+i}")
        cv = lambda i: p(f"v_cvt_pk_bf16_f32 v{Pc+i}, v{Sc+2*i}, v{Sc+2*i+1}")
        p("s_waitcnt lgkmcnt(0)")
        if t < 63:
            mfma(p, Sn, Kn, Q, None)
        if t < 62:
            p(f"ds_read_b128 {V4(Kl)}, v{self.avK} offset:{1024*(t+2)}")
        p(f"ds_read_b128 {V4(Vc)}, v{self.avV} offset:{1024*tb}")
        p(f"ds_read_b128 {V4(Vc+4)}, v{self.avV} offset:{1024*tb+512}")
        ex(0); ex(1); ex(2); cv(0); ex(3)
        if t > 0:
            mfma(p, O, Vp, Pp, None if t == 1 else O)
        if side:
            side[0]()
        ex(4); cv(1); ex(5); ex(6); cv(2); ex(7); ex(8); cv(3); ex(9)
        if t > 0:
            mfma(p, O, Vp + 4, Pp + 4, O)
        for f in side[1:]:
            f()
        ex(10); cv(4); ex(11); ex(12); cv(5); ex(13); ex(14); cv(6); ex(15)
        if tb == 3 and t < 63:
            p(f"v_add_u32 v{self.avV}, v{self.avVinc}, v{self.avV}")
        else:
            p("s_nop 0")
        cv(7)

    def side_hstore(self, i):
        p = self.p
        def f():
            if i < 2:
                p(f"s_add_u32 s{sT1}, s{sQB}, {WS_HF + 1024*i:#x}")
                self.store_ws(128 + 4*i, self.avL16, sT1, "hst")
            else:
                n = uid()
                p(f"s_cmp_eq_u32 s{sTYPC}, 0")
                p(f"s_cbranch_scc1 L_noh_{n}")
                p(f"s_add_u32 s{sT1}, s{sHB1}, {WS_HF + 1024*(i-2):#x}")
                qa = self.q.fork()
                self.store_ws(136 + 4*(i-2), self.avL16, sT1, "hst")
                p(f"L_noh_{n}:")
                self.q = VMQ.join([qa, self.q])
                self.q.dedup()
        return f

    def side_kv(self, g, e):
        return lambda: self.p1_piece(g, e)

    def side_warm(self):
        p = self.p
        L, T = self.vLANE, self.avT
        def f():
            srd(p, SRD_T, sWD, 1792 * 1024)
            p(f"s_mul_i32 s{sA0}, s{sSLOT}, 57344")
            p(f"s_mul_i32 s{sA1}, s{sW}, 7168")
            p(f"s_add_u32 s{sA0}, s{sA0}, s{sA1}")
            p(f"v_lshlrev_b32 v{T}, 6, v{L}")
            p(f"buffer_load_dword v{T+3}, v{T}, {S4(SRD_T)}, s{sA0} offen")
            p(f"s_add_u32 s{sA0}, s{sA0}, 3072")
            p(f"buffer_load_dword v{T+4}, v{T}, {S4(SRD_T)}, s{sA0} offen")
            srd(p, SRD_T, sWO, 512 * 1024)
            p(f"s_lshl_b32 s{sA0}, s{sSLOT}, 14")
            p(f"s_lshl_b32 s{sA1}, s{sW}, 11")
            p(f"s_add_u32 s{sA0}, s{sA0}, s{sA1}")
            p(f"v_and_b32 v{T+6}, 31, v{L}")
            p(f"v_lshlrev_b32 v{T+6}, 6, v{T+6}")
            p(f"buffer_load_dword v{T+5}, v{T+6}, {S4(SRD_T)}, s{sA0} offen")
            self.q.push("warm", 3)
        return f

    def side_f2load(self):
        p, T = self.p, self.avT
        def f():
            p(f"s_lshr_b32 s{sA0}, s{sRT64}, 1")
            p(f"s_add_u32 s{sA0}, s{sA0}, {F2}")
            p(f"s_lshl_b32 s{sA0}, s{sA0}, 8")
            p(f"v_mov_b32 v{T}, s{sA0}")
            p(f"buffer_load_dword v{T+1}, v{T}, {S4(SRD_WS)}, 0 offen sc1")
            self.q.push("f2ld")
        return f

    def side_hload(self, j):
        p = self.p
        def f():
            if j == 0:
                p(f"s_mul_i32 s{sHLD}, s{sT32}, 112")
                p(f"s_mul_i32 s{sA1}, s{sKQ}, 28")
                p(f"s_add_u32 s{sHLD}, s{sHLD}, s{sA1}")
                p(f"s_lshl_b32 s{sHLD}, s{sHLD}, 10")
                p(f"s_add_u32 s{sHLD}, s{sHLD}, {WS_HF:#x}")
            o = f" offset:{1024*(j&3)}" if j & 3 else ""
            p(f"buffer_load_dwordx4 {V4(self.HFR + 4*j)}, v{self.avL16}, {S4(SRD_WS)}, s{sHLD} offen{o} sc1")
            self.q.push("hld")
            if (j & 3) == 3:
                p(f"s_add_u32 s{sHLD}, s{sHLD}, 4096")
        return f

    def side_lgload(self, i):
        p, L, T = self.p, self.vLANE, self.avT
        def f():
            if i == 0:
                p(f"v_lshrrev_b32 v{T+7}, 5, v{L}")
                p(f"v_lshlrev_b32 v{T+7}, 16, v{T+7}")
                p(f"v_and_b32 v{T+6}, 31, v{L}")
                p(f"v_lshl_add_u32 v{T+7}, v{T+6}, 2, v{T+7}")
                p(f"s_lshl_b32 s{sLGL}, s{sT32}, 7")
                p(f"s_add_u32 s{sLGL}, s{sLGL}, {WS_LG:#x}")
            p(f"buffer_load_dword v{self.LGR+i}, v{T+7}, {S4(SRD_WS)}, s{sLGL} offen sc1")
            self.q.push("lgl")
            if i < 7:
                p(f"s_add_u32 s{sLGL}, s{sLGL}, 8192")
        return f

    def att_b1(self):
        p, T = self.p, self.avT
        self.q.wait(p, ["hst", "st21", "st18", "lgst"])
        p("s_barrier")
        p(f"s_add_u32 s{sA0}, s{sRB}, {F2}")
        p(f"s_lshl_b32 s{sA0}, s{sA0}, 8")
        p(f"v_mov_b32 v{T+4}, {OOB:#x}")
        p(f"v_mov_b32 v{T+5}, s{sA0}")
        p(f"v_cmp_eq_u32 vcc, 0, v0")
        p(f"v_cndmask_b32 v{T+4}, v{T+4}, v{T+5}, vcc")
        p(f"v_mov_b32 v{T+5}, 1")
        p(f"buffer_atomic_add v{T+5}, v{T+4}, {S4(SRD_WS)}, 0 offen sc1")
        self.q.push("f2add")

    def att_b2(self):
        p, T = self.p, self.avT
        self.q.wait(p, ["st19", "st22", "st23", "f2ld"])
        poll(p, self.q, T + 1, T, SRD_WS, 16, "F2")
        p("s_waitcnt lgkmcnt(0)")
        p("s_barrier")
        self.p3_setup_dma()

    def att_sides(self):
        sd = {t: [] for t in range(64)}
        for i in range(5):
            sd[i].append(self.side_hstore(i))
        order = [(18, 0), (18, 1), (22, 0), (22, 1), (19, 0), (19, 1), (23, 0), (23, 1)]
        for k, (g, e) in enumerate(order):
            sd[5 + k].append(self.side_kv(g, e))
        if self.o.get("warm", 1):
            sd[18].append(self.side_warm())
        if self.o.get("wb"):
            def wb():
                n = uid()
                p = self.p
                p(f"s_add_u32 s{sA0}, s{sSLOT}, s{sW}")
                p(f"s_cmp_eq_u32 s{sA0}, 0")
                p(f"s_cbranch_scc0 L_nowb{n}")
                qa = self.q.fork()
                p("buffer_wbl2 sc1")
                self.q.push("wb")
                p(f"L_nowb{n}:")
                self.q = VMQ.join([qa, self.q]); self.q.dedup()
            sd[self.o["wb"]].append(wb)
        sd[28].append(self.side_f2load())
        ops = [(lambda g=g, e=e: self.p3_piece(g, e)) for g in range(2) for e in range(4)]
        ops2 = [self.side_hload(j) for j in range(28)] + [self.side_lgload(i) for i in range(8)]
        seq = []
        while ops or ops2:
            if ops:
                seq.append(ops.pop(0))
            if ops2:
                seq.append(ops2.pop(0))
        t = 32
        n2 = len(seq) - 31
        k = 0
        while k < len(seq):
            sd[t].append(seq[k]); k += 1
            if n2 > 0 and k < len(seq):
                sd[t].append(seq[k]); k += 1; n2 -= 1
            t += 1
        assert t <= 63, t
        return sd

    def att_slow_tile(self):
        p = self.p
        S, P, O, K, V, Q = self.aS[0], self.aP[0], self.aO, self.aK[0], self.aV[0], self.aQ
        T = self.avT
        m_old, m_new, al = T + 8, T + 9, T + 10
        p(f"ds_read_b128 {V4(K)}, v{self.avK}")
        p(f"ds_read_b128 {V4(V)}, v{self.avV}")
        p(f"ds_read_b128 {V4(V+4)}, v{self.avV} offset:512")
        p("s_waitcnt lgkmcnt(0)")
        mfma(p, S, K, Q, None)
        p(f"v_max3_f32 v{m_new}, v{S}, v{S+1}, v{S+2}")
        for r in range(3, 15, 2):
            p(f"v_max3_f32 v{m_new}, v{m_new}, v{S+r}, v{S+r+1}")
        p(f"v_max_f32 v{m_new}, v{m_new}, v{S+15}")
        p(f"v_mov_b32 v{al}, v{m_new}")
        p(f"v_permlane32_swap_b32 v{m_new}, v{al}")
        p(f"v_max3_f32 v{m_new}, v{m_new}, v{al}, v{m_old}")
        p(f"v_sub_f32 v{al}, v{m_old}, v{m_new}")
        p(f"v_exp_f32 v{al}, v{al}")
        p(f"v_mov_b32 v{m_old}, v{m_new}")
        for r in range(16):
            p(f"v_sub_f32 v{S+r}, v{S+r}, v{m_new}")
        for r in range(16):
            p(f"v_exp_f32 v{S+r}, v{S+r}")
        for r in range(16):
            p(f"v_mul_f32 v{O+r}, v{al}, v{O+r}")
        for i in range(8):
            p(f"v_cvt_pk_bf16_f32 v{P+i}, v{S+2*i}, v{S+2*i+1}")
        mfma(p, O, V, P, O)
        mfma(p, O, V + 4, P + 4, O)
        p(f"v_add_u32 v{self.avK}, 1024, v{self.avK}")
        p(f"v_lshrrev_b32 v{al}, 2, v{self.avVinc}")
        p(f"v_add_u32 v{self.avV}, v{al}, v{self.avV}")

    def attention(self):
        p, q = self.p, self.q
        self.att_setup()
        p(f"s_cmp_eq_u32 s{sMODE}, 0")
        p("s_cbranch_scc0 L_att_slow0")
        self.q_slow = self.q.fork()
        p(f"ds_read_b128 {V4(self.aK[0])}, v{self.avK}")
        p(f"ds_read_b128 {V4(self.aK[1])}, v{self.avK} offset:1024")
        p("s_waitcnt lgkmcnt(1)")
        mfma(p, self.aS[0], self.aK[0], self.aQ, None)
        prio = self.o.get("prio", 2)
        def ladder(t):
            if prio == 1:
                return 3 - t // 16
            return 3 - (t % 16) // 4 if t < 32 else 3 - (t - 32) // 8
        sd = self.att_sides()
        for t in range(64):
            if prio and (t == 0 or ladder(t) != ladder(t - 1)) and t not in (16, 32):
                p(f"s_setprio {ladder(t)}")
            if t in (16, 32, 48):
                self.stamp(f"seg{t//16}")
                if prio and t in (16, 32):
                    p(f"s_setprio {ladder(t)}")
                if t == 16:
                    self.att_b1()
                if t == 32:
                    self.att_b2()
                self.stamp(f"seg{t//16}e")
            self.att_tile(t, [] if self.o.get("noseg") else sd[t])
        p("s_waitcnt lgkmcnt(0)")
        mfma(p, self.aO, self.aV[1], self.aP[1], self.aO)
        mfma(p, self.aO, self.aV[1] + 4, self.aP[1] + 4, self.aO)
        p("L_att_fin:")
        self.stamp("att")
        O, T = self.aO, self.avT
        p(f"v_rcp_f32 v{T}, v{O+8}")
        for r in range(8):
            p(f"v_mul_f32 v{O+r}, v{T}, v{O+r}")
        for i in range(4):
            p(f"v_cvt_pk_bf16_f32 v{T+4+i}, v{O+2*i}, v{O+2*i+1}")
        p(f"s_lshl_b32 s{sA0}, s{sQC}, 3")
        p(f"s_add_u32 s{sA0}, s{sA0}, s{sW}")
        p(f"s_lshl_b32 s{sA0}, s{sA0}, 5")
        p(f"s_add_u32 s{sA0}, s{sA0}, s{sH}")
        p(f"s_lshl_b32 s{sA0}, s{sA0}, 10")
        p(f"s_add_u32 s{sA0}, s{sA0}, {WS_OF:#x}")
        p(f"buffer_store_dwordx4 {V4(T+4)}, v{self.avL16}, {S4(SRD_WS)}, s{sA0} offen sc1")
        self.q = VMQ()
        self.q.push("ost")

    def att_slow_code(self):
        p = self.p
        T = self.avT
        self.q = self.q_slow
        p("L_att_slow0:")
        p(f"v_mov_b32 v{T+8}, 0xff800000")
        for r in range(self.aO, self.aO + 16):
            p(f"v_mov_b32 v{r}, 0")
        sd = self.att_sides()
        def run(n):
            k = uid()
            p(f"s_mov_b32 s{sA3}, 0")
            p(f"L_att_slow_loop{k}:")
            self.att_slow_tile()
            p(f"s_add_u32 s{sA3}, s{sA3}, 1")
            p(f"s_cmp_lt_u32 s{sA3}, {n}")
            p(f"s_cbranch_scc1 L_att_slow_loop{k}")
        for t in range(0, 16):
            for f in sd[t]: f()
        run(16)
        self.att_b1()
        for t in range(16, 32):
            for f in sd[t]: f()
        run(16)
        self.att_b2()
        for t in range(32, 64):
            for f in sd[t]: f()
        run(32)
        p("s_branch L_att_fin")

    pWB = (16, 24)
    pB, pA = 32, 64
    pvD = 112
    pvR = (6, 7, 8, 9)
    pG = 10
    pOF = 128
    pT = 100

    P3SLOT = (1, 3, 0, 2, 4, 1, 3, 0, 2)

    def p3_slot(self, g):
        return 32768 * self.P3SLOT[g]

    def p3_setup_dma(self):
        p = self.p
        L, T = self.vLANE, self.avT
        srd(p, SRD_W2, sWD, 1792 * 1024)
        srd(p, SRD_X, sWO, 512 * 1024)
        p(f"v_bfe_u32 v{T}, v{L}, 4, 1")
        p(f"v_lshlrev_b32 v{T}, 2, v{T}")
        p(f"v_and_b32 v{T+1}, 7, v{L}")
        p(f"v_xor_b32 v{T}, v{T}, v{T+1}")
        p(f"v_lshlrev_b32 v{T}, 4, v{T}")
        p(f"s_lshl_b32 s{sA0}, s{sCB}, 7")
        p(f"v_add_u32 v{T}, s{sA0}, v{T}")
        p(f"v_lshrrev_b32 v{T+1}, 3, v{L}")
        p(f"s_lshl_b32 s{sA1}, s{sTR}, 5")
        p(f"v_add_u32 v{T+1}, s{sA1}, v{T+1}          ; 32*(w&1) + (l>>3)")
        p(f"s_mul_i32 s{sA0}, s{sKQ}, 448")
        p(f"v_add_u32 v{T+2}, s{sA0}, v{T+1}")
        p(f"v_lshl_add_u32 v{self.pvD}, v{T+2}, 10, v{T}")
        p(f"s_lshl_b32 s{sA0}, s{sKQ}, 7")
        p(f"v_add_u32 v{T+2}, s{sA0}, v{T+1}")
        p(f"v_lshl_add_u32 v{self.pvD+1}, v{T+2}, 10, v{T}")

    def p3_piece(self, g, e):
        p, q = self.p, self.q
        sl = self.p3_slot(g)
        if g < 7:
            srd_r, v, row0 = SRD_W2, self.pvD, 64 * g
        else:
            srd_r, v, row0 = SRD_X, self.pvD + 1, 64 * (g - 7)
        p(f"s_add_u32 m0, s{sM0K}, {sl + 1024*e}")
        p(f"s_mov_b32 s{sA1}, {(row0 + 8*e) * 1024}")
        p(f"buffer_load_dwordx4 v{v}, {S4(srd_r)}, s{sA1} offen lds")
        q.push(f"p3s{g}")

    def p3_emit(self, t, maxn):
        n = 0
        while self.pending3 and n < maxn:
            g, e = self.pending3[0]
            if g >= 5 and t < 4 * (g - 4) + 2:
                break
            self.pending3.pop(0)
            self.p3_piece(g, e)
            n += 1

    def p3_reads(self, t, cts=(0, 1)):
        p = self.p
        g, sp = t >> 2, t & 3
        sl = self.p3_slot(g)
        hi = 1 if sl >= 65536 else 0
        off = sl - 65536 * hi
        if sl >= 131072:
            hi, off = 2, sl - 131072
        wb = self.pWB[t & 1]
        for ct in cts:
            base = self.pvR[ct] if hi == 0 else self.pvR[2 + ct] if hi == 1 else self.pT + 8 + ct
            for j in range(2):
                p(f"ds_read_b64_tr_b16 {V2(wb + 4*ct + 2*j)}, v{base} offset:{off + (16*sp + 4*j) * 128}")
        return 2 * len(cts)

    def p3(self):
        p, q = self.p, self.q
        L, T = self.vLANE, self.pT
        p("s_waitcnt vmcnt(1)")
        p("s_barrier")
        self.pending3 = [(g, e) for g in range(2, 9) for e in range(4)]
        self.p3_emit(0, 4)
        p(f"v_lshrrev_b32 v{T}, 5, v{L}")
        p(f"v_lshlrev_b32 v{T}, 3, v{T}")
        p(f"v_bfe_u32 v{T+1}, v{L}, 2, 2")
        p(f"v_add_u32 v{T}, v{T}, v{T+1}             ; row")
        p(f"v_lshlrev_b32 v{T}, 7, v{T}              ; *128")
        p(f"v_and_b32 v{T+1}, 1, v{L}")
        p(f"v_lshlrev_b32 v{T+1}, 2, v{T+1}")
        p(f"v_bfe_u32 v{T+2}, v{L}, 4, 1")
        p(f"v_lshl_add_u32 v{T+1}, v{T+2}, 1, v{T+1}")
        p(f"v_bfe_u32 v{T+2}, v{L}, 1, 1")
        p(f"v_add_u32 v{T+1}, v{T+1}, v{T+2}          ; cg")
        p(f"v_lshl_add_u32 v{T}, v{T+1}, 3, v{T}")
        p(f"s_lshl_b32 s{sA0}, s{sKQ}, 13")
        p(f"v_add_u32 v{T}, s{sA0}, v{T}")
        p(f"v_bfe_u32 v{T+2}, v{L}, 3, 1")
        p(f"v_lshlrev_b32 v{T+2}, 6, v{T+2}           ; 64*b")
        p(f"v_add_u32 v{self.pvR[0]}, v{T}, v{T+2}     ; ct0: 64*b")
        p(f"v_xor_b32 v{T+2}, 64, v{T+2}")
        p(f"v_add_u32 v{self.pvR[1]}, v{T}, v{T+2}     ; ct1: 64*(1-b)")
        for ct in range(2):
            p(f"v_add_u32 v{self.pvR[2+ct]}, 0x10000, v{self.pvR[ct]}")
            p(f"v_add_u32 v{T+8+ct}, 0x20000, v{self.pvR[ct]}")
        self.stamp("p3st0")
        self.lgq = []
        for ct in range(2):
            self.lg_issue((0, ct), self.p3_reads(0, (ct,)))
        G = self.pG
        wA, rA0, rA1, oA = 114, 115, 116, 117
        B, A = self.pB, self.pA

        def gate():
            lg = self.LGR
            for i in range(1, 8):
                p(f"v_add_f32 v{lg}, v{lg}, v{lg+i}")
            p(f"v_mov_b32 v{lg+1}, v{lg}")
            p(f"v_permlane32_swap_b32 v{lg}, v{lg+1}")
            p(f"v_add_f32 v{lg}, v{lg}, v{lg+1}")
            p(f"v_mul_f32 v{lg}, {f2u(-1.4426950408889634):#x}, v{lg}")
            p(f"v_exp_f32 v{lg}, v{lg}")
            p(f"v_add_f32 v{lg}, 1.0, v{lg}")
            p(f"v_rcp_f32 v{G}, v{lg}")
            p(f"v_sub_f32 v{G+1}, 1.0, v{G}")

        def addr1():
            p(f"v_and_b32 v{T}, 31, v{L}                 ; n")
            p(f"v_and_b32 v{T+1}, 15, v{L}")
            p(f"v_lshrrev_b32 v{T+2}, 5, v{L}")
            p(f"v_lshlrev_b32 v{T+2}, 2, v{T+2}           ; 4hi")
            p(f"v_xor_b32 v{T+1}, v{T+1}, v{T+2}          ; (n&15) ^ 4hi")
            p(f"v_lshlrev_b32 v{T+1}, 4, v{T+1}")
            p(f"v_lshl_add_u32 v{T}, v{T}, 8, v{T+1}")
            p(f"s_lshl_b32 s{sA0}, s{sW}, 13")
            p(f"v_add_u32 v{wA}, s{sA0}, v{T}")

        def addr2():
            p(f"v_lshrrev_b32 v{T}, 3, v{L}")
            p(f"s_lshl_b32 s{sA0}, s{sKQ}, 3")
            p(f"v_add_u32 v{T}, s{sA0}, v{T}             ; rho")
            p(f"v_and_b32 v{T+1}, 7, v{L}")
            p(f"v_lshlrev_b32 v{T+1}, 1, v{T+1}           ; 2*(l&7)")
            p(f"v_and_b32 v{T+2}, 15, v{T}")
            p(f"v_xor_b32 v{T+1}, v{T+1}, v{T+2}")
            p(f"v_lshlrev_b32 v{T+1}, 4, v{T+1}")
            p(f"v_lshl_add_u32 v{T+1}, v{T}, 8, v{T+1}")
            p(f"s_lshl_b32 s{sA0}, s{sTR}, 13")
            p(f"v_add_u32 v{rA0}, s{sA0}, v{T+1}")
            p(f"v_xor_b32 v{rA1}, 16, v{rA0}              ; e=1")
            p(f"s_lshl_b32 s{sA0}, s{sT32}, 5")
            p(f"v_add_u32 v{T}, s{sA0}, v{T}")
            p(f"v_and_b32 v{T+3}, 7, v{L}")
            p(f"v_lshlrev_b32 v{T+3}, 4, v{T+3}")
            p(f"v_lshl_add_u32 v{T}, v{T}, 10, v{T+3}")
            p(f"s_lshl_b32 s{sA0}, s{sCB}, 7")
            p(f"v_add_u32 v{oA}, s{sA0}, v{T}")
            srd(p, SRD_T, sOUT, 2048 * 1024)

        def f3addr():
            p(f"s_add_u32 s{sA0}, s{sXCD}, {F3}")
            p(f"s_lshl_b32 s{sA0}, s{sA0}, 8")
            p(f"v_mov_b32 v{T+7}, s{sA0}")

        extra = {4: gate, 8: addr1, 9: f3addr, 12: addr2}
        for t in range(36):
            g = t >> 2
            if (t & 3) == 2:
                tags = [f"p3s{g+1}"] if 1 <= g < 8 else []
                if g == 0:
                    tags.append("ost")
                if g == 5:
                    tags.append("f3ld")
                self.stamp(f"qpre{g}")
                if tags:
                    q.wait(p, tags)
                if g == 5:
                    poll(p, q, T + 6, T + 7, SRD_WS, 32, "F3")
                self.stamp(f"qwait{g}")
                p("s_barrier")
                self.stamp(f"qbar{g}")
                if g == 0:
                    p(f"s_add_u32 s{sA0}, s{sQC}, {F3}")
                    p(f"s_lshl_b32 s{sA0}, s{sA0}, 8")
                    p(f"v_mov_b32 v{T}, {OOB:#x}")
                    p(f"v_mov_b32 v{T+1}, s{sA0}")
                    p(f"v_cmp_eq_u32 vcc, 0, v0")
                    p(f"v_cndmask_b32 v{T}, v{T}, v{T+1}, vcc")
                    p(f"v_mov_b32 v{T+1}, 1")
                    p(f"buffer_atomic_add v{T+1}, v{T}, {S4(SRD_WS)}, 0 offen sc1")
                    q.push("f3add")
                    self.stamp("f3")
                if g == 4:
                    p(f"buffer_load_dword v{T+6}, v{T+7}, {S4(SRD_WS)}, 0 offen sc1")
                    q.push("f3ld")
                if g == 5:
                    p(f"s_lshl_b32 s{sA2}, s{sT32}, 5")
                    p(f"s_lshl_b32 s{sA1}, s{sKQ}, 3")
                    p(f"s_add_u32 s{sA2}, s{sA2}, s{sA1}")
                    p(f"s_lshl_b32 s{sA2}, s{sA2}, 10")
                    p(f"s_add_u32 s{sA2}, s{sA2}, {WS_OF:#x}")
                    for j in range(8):
                        o = f" offset:{1024*(j&3)}" if j & 3 else ""
                        p(f"buffer_load_dwordx4 {V4(self.pOF + 4*j)}, v{self.avL16}, {S4(SRD_WS)}, s{sA2} offen{o} sc1")
                        q.push("ofr")
                        if j == 3:
                            p(f"s_add_u32 s{sA2}, s{sA2}, 4096")
            wb = self.pWB[t & 1]
            if t < 28:
                acc, bfr, first = self.pB, self.HFR + 4*t, t == 0
            else:
                acc, bfr, first = self.pA, self.pOF + 4*(t - 28), t == 28
            if t == 28:
                q.wait(p, "ofr")
            for ct in range(2):
                self.lg_wait((t, ct))
                mfma(p, acc + 16*ct, wb + 4*ct, bfr, None if first else acc + 16*ct)
                if t < 35:
                    self.lg_issue((t + 1, ct), self.p3_reads(t + 1, (ct,)))
                if ct == 0:
                    self.p3_emit(t, 2 if t < 4 else 1)
                    if t in extra:
                        extra[t]()
                if t >= 30 and t < 34:
                    k = 2*(t - 30) + ct
                    for r in range(4*k, 4*k + 4):
                        p(f"v_mul_f32 v{B+r}, v{G+1}, v{B+r}")
            if t == 27:
                self.stamp("p3a")
        self.stamp("p3b")
        for ct in range(2):
            for qq in range(4):
                r0 = 16*ct + 4*qq
                for r in range(r0, r0 + 4):
                    p(f"v_fmac_f32 v{B+r}, v{G}, v{A+r}")
                c = 8*ct + qq
                p(f"v_xor_b32 v{T+1+(qq&1)}, {16*c}, v{wA}")
                p(f"ds_write_b128 v{T+1+(qq&1)}, {V4(B + r0)}")
        p("s_waitcnt lgkmcnt(0)")
        p("s_barrier")
        R = 16
        for k in range(4):
            p(f"ds_read_b128 {V4(R + 8*k)}, v{rA0} offset:{16384*k}")
            p(f"ds_read_b128 {V4(R + 8*k + 4)}, v{rA1} offset:{16384*k}")
        p("s_waitcnt lgkmcnt(4)")
        for r in range(8):
            p(f"v_add_f32 v{R+r}, v{R+r}, v{R+8+r}")
        p("s_waitcnt lgkmcnt(0)")
        for r in range(8):
            p(f"v_add_f32 v{R+16+r}, v{R+16+r}, v{R+24+r}")
        for r in range(8):
            p(f"v_add_f32 v{R+r}, v{R+r}, v{R+16+r}")
        for i in range(4):
            p(f"v_cvt_pk_bf16_f32 v{R+8+i}, v{R+2*i}, v{R+2*i+1}")
        p(f"buffer_store_dwordx4 {V4(R+8)}, v{oA}, {S4(SRD_T)}, 0 offen" + (" sc1" if self.o.get("outsc1") else "") + (" nt" if self.o.get("outnt") else ""))

    def finish(self):
        p = self.p
        if self.o.get("twice"):
            p("s_waitcnt vmcnt(0) lgkmcnt(0)")
            p("s_barrier")
            p("s_cmp_eq_u32 s0, 0")
            p("s_mov_b32 s0, 1")
            p("s_cbranch_scc1 L_restart")
        if self.o.get("stamps"):
            p("s_waitcnt vmcnt(0)")
            self.stamp("end")
            self.dump_stamps()
        p("L_end:")
        p("s_endpgm")

    def build(self):
        self.prologue()
        self.p1()
        if self.stop_after != "p1":
            self.attention()
            if self.stop_after != "att":
                self.p3()
        self.finish()
        if self.stop_after != "p1":
            self.att_slow_code()
        self.p("L_codeend:")
        n = self.p.fix_hazards()
        return self.p.text(), n


HEADER = """; Kernarg layout (88 bytes): A_x, A_wqkv, A_wo, B_x, B_W_gate, B_W_up, B_W_down, gate_w, out, debug, ws
; @launch grid=(256,1,1) block=(512,1,1) lds=163840
.amdgcn_target "amdgcn-amd-amdhsa--gfx950"
.text
.globl {name}_kernel
.p2align 8
.type {name}_kernel,@function
{name}_kernel:
"""
FOOTER = """.section .rodata,"a"
.p2align 6
.amdhsa_kernel {name}_kernel
  .amdhsa_next_free_vgpr 256
  .amdhsa_next_free_sgpr 102
  .amdhsa_accum_offset 256
  .amdhsa_group_segment_fixed_size 0
  .amdhsa_kernarg_size 88
  .amdhsa_user_sgpr_count 2
  .amdhsa_user_sgpr_kernarg_segment_ptr 1
  .amdhsa_system_sgpr_workgroup_id_x 1
  .amdhsa_float_denorm_mode_32 3
.end_amdhsa_kernel
"""

def generate(stop_after=None, opts=None):
    opts = opts or {}
    POLLOPT["w0"] = opts.get("pollw0", 1)
    POLLOPT["sleep"] = opts.get("pollsleep", 0)
    g = Gen(stop_after, opts)
    body, n = g.build()
    return HEADER.format(name=NAME) + body + FOOTER.format(name=NAME), n, g.p.count()

if __name__ == "__main__":
    import argparse
    ap = argparse.ArgumentParser()
    ap.add_argument("--stop", default=None)
    ap.add_argument("-o", default="cdna_kernels/" + NAME + ".s")
    ap.add_argument("--opt", action="append", default=[])
    ap.add_argument("--stamps", default="")
    a = ap.parse_args()
    opts = {}
    for o in a.opt:
        k, _, v = o.partition("=")
        opts[k] = int(v) if v else 1
    names = a.stamps.split(",") if a.stamps else []
    if names:
        opts["stamps"] = 1
        opts["stampmap"] = {"start": 0, "end": 11}
        for i, nm in enumerate(names):
            opts["stampmap"][nm] = i + 1
    txt, n, cnt = generate(a.stop, opts)
    open(a.o, "w").write(txt)
    print(f"wrote {a.o}: {cnt} instructions, {n} nop pads")
```

```python
import sys, os
sys.path.insert(0, os.path.dirname(os.path.abspath(__file__)))
from asmlib import Prog, VMQ

NAME = "gated_mix__mha_block__glu_gated_reglu__prompt"

WS_CNT = 0x0
WS_NRMQ = 0x4000
WS_NRMK = 0x6000
WS_LG = 0x10000
WS_QF = 0x200000
WS_KF = 0x400000
WS_VF = 0x600000
WS_OF = 0x800000
WS_HF = 0xA00000
WS_SIZE = 0x1100000
OOB = 0x7FFF0000
F1, F2, F3 = 0, 16, 32

CSCALE = 0.25 * 1.4426950408889634
import struct
def f2u(x): return struct.unpack("<I", struct.pack("<f", x))[0]

sX, sWQKV, sWO, sWG, sWU, sWD, sGW, sOUT, sDBG, sWS = 4, 6, 8, 12, 14, 16, 18, 20, 22, 24
SRD_X, SRD_WS, SRD_G, SRD_DBG, SRD_T, SRD_W1, SRD_U = 28, 32, 36, 40, 44, 96, 4
SRD_W2 = SRD_G
sD1, sD2, sM0K, sM0X, sD0, sM0P, sCB2 = 0, 1, 3, 10, 11, 26, 27
sM0X2 = 26
sW, sRB, sAB, sRT, sCH, sTILE, sXCD, sSLOT = 48, 49, 50, 51, 52, 53, 54, 55
sT0, sT1, sT2, sT3, sT4, sT5 = 56, 57, 58, 59, 60, 61
sADV = 62
sH, sQC = 63, 64
sCS = 65
sPOLL = 66
sTYP = 67
sHFB = 68
sW1OFF, sKVB = 100, 101
sQB, sLGO, sHB1 = 18, 19, 22
sNB, sCS2 = 13, 14
sEXP, sLOC = 23, 12
sTYPC, sHLD, sLGL = 23, 24, 25
sA0, sA1, sA2, sA3 = 56, 57, 58, 59
sI, sMODE, sT32, sRT64, sCB, sKQ, sTR = 60, 61, 62, 67, 68, 10, 11

def srd(p, dst, ptr, size):
    p(f"s_mov_b32 s{dst}, s{ptr}")
    p(f"s_mov_b32 s{dst+1}, s{ptr+1}")
    p(f"s_mov_b32 s{dst+2}, {size:#x}")
    p(f"s_mov_b32 s{dst+3}, 0x20000")

def S4(r): return f"s[{r}:{r+3}]"
def V4(r): return f"v[{r}:{r+3}]"
def V2(r): return f"v[{r}:{r+1}]"
def V16(r): return f"v[{r}:{r+15}]"

def mfma(p, d, a, b, c):
    cs = "0" if c is None else V16(c)
    p(f"v_mfma_f32_32x32x16_bf16 {V16(d)}, {V4(a)}, {V4(b)}, {cs}")

_uid = [0]
def uid():
    _uid[0] += 1
    return _uid[0]

POLLOPT = {"w0": 1, "sleep": 1}
def poll(p, q, vflag, vaddr, srd_reg, target, what):
    n = uid()
    if POLLOPT["w0"]:
        p(f"s_cmp_eq_u32 s{sW}, 0")
        p(f"s_cbranch_scc0 L_ok{n}")
    p(f"v_readfirstlane_b32 s{sT0}, v{vflag}")
    p(f"s_cmp_ge_u32 s{sT0}, {target}")
    p(f"s_cbranch_scc1 L_ok{n}")
    p(f"s_mov_b32 s{sPOLL}, 0")
    p(f"L_poll{n}:")
    if POLLOPT["sleep"]:
        p(f"s_sleep {POLLOPT['sleep']}")
    p(f"buffer_load_dword v{vflag}, v{vaddr}, {S4(srd_reg)}, 0 offen sc1")
    p("s_waitcnt vmcnt(0)")
    p(f"v_readfirstlane_b32 s{sT0}, v{vflag}")
    p(f"s_add_u32 s{sPOLL}, s{sPOLL}, 1")
    p(f"s_cmp_ge_u32 s{sPOLL}, 0x80000")
    p(f"s_cbranch_scc1 L_ok{n}")
    p(f"s_cmp_lt_u32 s{sT0}, {target}")
    p(f"s_cbranch_scc1 L_poll{n}")
    p(f"L_ok{n}:")


class Gen:
    def __init__(self, stop_after=None, opts=None):
        self.p = Prog()
        self.q = VMQ()
        self.stop_after = stop_after
        self.o = opts or {}

    def stamp(self, name):
        if self.o.get("stamps"):
            i = self.o["stampmap"].get(name)
            if i is not None:
                ins = "s_memrealtime" if self.o.get("rt") else "s_memtime"
                self.p(f"{ins} s[{72+2*i}:{73+2*i}] ; stamp {name}")

    def dump_stamps(self):
        if not self.o.get("stamps"):
            return
        p = self.p
        p("s_memrealtime s[70:71]")
        p("s_waitcnt lgkmcnt(0)")
        p(f"s_lshl_b32 s{sT0}, s2, 3")
        p(f"s_add_u32 s{sT0}, s{sT0}, s{sW}")
        p(f"s_lshl_b32 s{sT0}, s{sT0}, 6")
        p(f"s_add_u32 s{sT0}, s{sT0}, 0x80000")
        for i in range(12):
            p(f"v_mov_b32 v{16+i}, s{72+2*i}")
        p("v_mov_b32 v28, s69")
        p("v_mov_b32 v29, s70")
        p("v_mov_b32 v30, 0")
        p("v_mov_b32 v31, 0")
        p("v_mov_b32 v32, 0")
        p("s_mov_b64 exec, 1")
        for i in range(4):
            p(f"buffer_store_dwordx4 {V4(16+4*i)}, v32, {S4(SRD_WS)}, s{sT0} offen offset:{16*i}")
        p("s_mov_b64 exec, -1")

    def prologue(self):
        p = self.p
        p("s_cmp_ge_u32 s2, 256")
        p("s_cbranch_scc1 L_end")
        if self.o.get("perm"):
            p("s_lshl_b32 s3, s2, 3")
            p("s_lshr_b32 s2, s2, 5")
            p("s_or_b32 s2, s2, s3")
            p("s_and_b32 s2, s2, 255")
        if self.o.get("stamps"):
            p("s_memrealtime s[70:71]")
        p(f"s_load_dwordx4 s[4:7], s[0:1], 0")
        p(f"s_load_dwordx2 s[8:9], s[0:1], 16")
        p(f"s_load_dwordx4 s[12:15], s[0:1], 32")
        p(f"s_load_dwordx4 s[16:19], s[0:1], 48")
        p(f"s_load_dwordx4 s[20:23], s[0:1], 64")
        p(f"s_load_dwordx2 s[24:25], s[0:1], 80")
        if self.o.get("pf", 1):
            p("s_getpc_b64 s[26:27]")
            p("L_pfbase:")
            p("s_lshr_b32 s3, s2, 3")
            p("v_lshrrev_b32 v1, 6, v0")
            p("v_lshl_add_u32 v1, s3, 3, v1")
            p("v_and_b32 v2, 3, v0")
            p("v_lshl_add_u32 v1, v1, 2, v2")
            p("v_min_u32 v1, (L_codeend-L_pfbase)/64-1, v1")
            p("v_lshlrev_b32 v1, 6, v1")
            p("global_load_dword v127, v1, s[26:27]")
            self.q.push("pf")
        for i in range(self.o.get("padk", 0) * 128):
            p("s_mov_b32 s69, 0x12345678")
        p("v_lshrrev_b32 v1, 6, v0")
        p("v_and_b32 v2, 63, v0            ; v2 = lane")
        p(f"v_readfirstlane_b32 s{sW}, v1")
        p(f"s_and_b32 s{sXCD}, s2, 7")
        p(f"s_lshr_b32 s{sSLOT}, s2, 3")
        if self.o.get("local", 1):
            p(f"s_and_b32 s{sRB}, s{sSLOT}, 15")
            p(f"s_lshr_b32 s{sTYP}, s{sSLOT}, 4")
            p(f"s_mov_b32 s{sAB}, s{sXCD}")
        else:
            p(f"s_and_b32 s{sT0}, s{sXCD}, 1")
            p(f"s_lshl_b32 s{sT0}, s{sT0}, 3")
            p(f"s_and_b32 s{sT1}, s{sSLOT}, 7")
            p(f"s_add_u32 s{sRB}, s{sT0}, s{sT1}")
            p(f"s_lshr_b32 s{sTYP}, s{sSLOT}, 4")
            p(f"s_and_b32 s{sT0}, s{sXCD}, 6              ; 2*(xcd>>1)")
            p(f"s_bfe_u32 s{sT1}, s{sSLOT}, 0x10003       ; (slot>>3)&1")
            p(f"s_add_u32 s{sAB}, s{sT0}, s{sT1}          ; a / b = 0..7")
        p(f"s_and_b32 s{sRT}, s{sW}, 3")
        p(f"s_lshr_b32 s{sCH}, s{sW}, 2")
        p(f"s_lshl_b32 s{sT0}, s{sRB}, 2")
        p(f"s_add_u32 s{sTILE}, s{sT0}, s{sRT}")
        p(f"s_lshl_b32 s{sT0}, s{sXCD}, 2")
        p(f"s_and_b32 s{sT1}, s{sSLOT}, 3")
        p(f"s_add_u32 s{sH}, s{sT0}, s{sT1}           ; attention head")
        p(f"s_lshr_b32 s{sQC}, s{sSLOT}, 2           ; attention q chunk")
        p(f"s_mov_b32 s{sCS}, {f2u(CSCALE):#x}")
        if self.o.get("twice"):
            p("s_waitcnt lgkmcnt(0)")
            p("s_mov_b32 s0, 0")
            p("s_waitcnt lgkmcnt(0)")
            p("L_restart:")
        self.p1_setup_early()
        p("s_waitcnt lgkmcnt(0)")
        if self.o.get("stamps"):
            p("s_mov_b32 s69, s70")
            for i in range(12):
                p(f"s_mov_b32 s{72+2*i}, 0")
        self.stamp("start")
        srd(p, SRD_X, sX, 2048 * 1024)
        self.p1_setup_srd()

    vLANE = 2
    vXD = (3, 4)
    vW1 = (5, 6, 7)
    vW2 = (8, 9)
    vB = (10, 11, 12)
    vL16 = 13
    vP = (14, 15)
    WB = (16, 28)
    vXR = (40, 41, 42, 43)
    vFLAG, vFADDR, vONE, vDBGA = 44, 45, 46, 47
    TMP = 48
    ACC = 64
    TMP2 = 112
    X = 128
    SLOT1 = 40960
    AREA2 = {8: 0, 9: 16384, 10: 40960, 11: 57344, 12: 98304, 13: 81920, 14: 131072, 15: 147456}
    KVAREA = {16+j: 32768 + 16384*j for j in range(4)}
    KVAREA.update({20+j: 98304 + 16384*j for j in range(4)})
    ONES = 0
    F1G = 14

    def area(self, g):
        if g < 8:
            return self.SLOT1 * (g % 4)
        if g < 16:
            return self.AREA2[g]
        return self.KVAREA[g]

    def ovl(self):
        return self.o.get("ovl", 0)

    def acc2(self):
        return 96 if self.ovl() else self.ACC

    def window(self, g):
        if g < 8:
            return 81920 if (g % 4) >= 2 else 0
        return 131072 if self.AREA2[g] >= 131072 else 81920 if self.AREA2[g] >= 81920 else 0

    def p1_setup_early(self):
        p = self.p
        L = self.vLANE
        t0, t1, t2, t3 = 48, 49, 50, 51
        p(f"v_lshlrev_b32 v{self.vL16}, 4, v{L}")
        p(f"s_lshl_b32 s{sT0}, s{sRB}, 7")
        p(f"s_lshl_b32 s{sT1}, s{sW}, 4")
        p(f"s_add_u32 s{sT0}, s{sT0}, s{sT1}")
        p(f"v_lshrrev_b32 v{t1}, 3, v{L}             ; l>>3")
        p(f"v_add_u32 v{t2}, s{sT0}, v{t1}           ; row (e=0)")
        p(f"v_lshrrev_b32 v{t0}, 4, v{L}")
        p(f"v_and_b32 v{t3}, 7, v{L}                 ; l&7")
        p(f"v_xor_b32 v{t0}, v{t0}, v{t3}            ; piece (e=0)")
        p(f"v_lshlrev_b32 v{t0}, 4, v{t0}")
        p(f"v_lshl_add_u32 v{self.vXD[0]}, v{t2}, 10, v{t0}")
        p(f"v_xor_b32 v{t0}, 64, v{self.vXD[0]}        ; piece ^ 4")
        p(f"v_add_u32 v{self.vXD[1]}, 8192, v{t0}      ; +8 rows")
        p(f"v_bfe_u32 v{t0}, v{L}, 4, 1")
        p(f"v_lshlrev_b32 v{t0}, 2, v{t0}")
        p(f"v_xor_b32 v{t3}, v{t3}, v{t0}")
        p(f"v_lshlrev_b32 v{t3}, 4, v{t3}")
        p(f"s_lshl_b32 s{sT0}, s{sW}, 3")
        p(f"v_add_u32 v{t1}, s{sT0}, v{t1}           ; 8w + (l>>3)")
        p(f"s_mul_i32 s{sT0}, s{sAB}, 320")
        p(f"s_add_u32 s{sT0}, s{sT0}, 1024")
        p(f"s_and_b32 s{sT1}, s{sAB}, 1")
        p(f"s_mul_i32 s{sT2}, s{sT1}, 192")
        p(f"s_add_u32 s{sCB2}, s{sT0}, s{sT2}")
        p(f"s_xor_b32 s{sT1}, s{sT1}, 1")
        p(f"s_lshl_b32 s{sT1}, s{sT1}, 7")
        p(f"s_add_u32 s{sT4}, s{sT0}, s{sT1}")
        p(f"s_lshl_b32 s{sT0}, s{sAB}, 7")
        p(f"s_cmp_eq_u32 s{sTYP}, 0")
        p(f"s_cselect_b32 s{sCB2}, s{sT0}, s{sCB2}")
        p(f"v_mul_u32_u24 v{t0}, 3584, v{t1}")
        p(f"v_add3_u32 v{self.vW2[0]}, v{t0}, v{t3}, s{sCB2}")
        p(f"v_xor_b32 v{t2}, 32, v{t3}")
        p(f"v_add3_u32 v{self.vW2[1]}, v{t0}, v{t2}, s{sCB2}")
        p(f"s_cbranch_scc0 L_setupB")
        p(f"v_mul_u32_u24 v{t0}, 3072, v{t1}")
        p(f"v_add3_u32 v{self.vW1[0]}, v{t0}, v{t3}, s{sT0}")
        p(f"v_add3_u32 v{t2}, v{t0}, v{t2}, s{sT0}")
        p(f"v_add_u32 v{self.vW1[1]}, 1024, v{t2}")
        p(f"v_add_u32 v{self.vW1[2]}, 2048, v{self.vW1[0]}")
        p(f"s_lshl_b32 s{sD0}, s{sW}, 10")
        p(f"s_add_u32 s{sD0}, s{sD0}, 16384")
        p(f"s_movk_i32 s{sT5}, 8192")
        p(f"s_mov_b32 s{sADV}, {64*3072}")
        p("s_branch L_setupJ")
        p("L_setupB:")
        p(f"s_and_b32 s{sT0}, s{sW}, 3")
        p(f"s_lshl_b32 s{sT1}, s{sT0}, 4             ; 16*wq")
        p(f"s_mov_b32 s{sT2}, 43691")
        p(f"s_lshl_b32 s{sT3}, s{sCH}, 1")
        for e in range(3):
            r = self.vW1[e]
            p(f"v_add_u32 v{t0}, {64*e}, v{L}           ; j")
            p(f"v_mul_u32_u24 v{t1}, s{sT2}, v{t0}")
            p(f"v_lshrrev_b32 v{t1}, 19, v{t1}          ; j/12")
            p(f"v_mul_u32_u24 v{t2}, 12, v{t1}")
            p(f"v_sub_u32 v{t2}, v{t0}, v{t2}           ; j%12")
            p(f"v_xor_b32 v{t2}, s{sT3}, v{t2}")
            p(f"v_add_u32 v{t1}, s{sT1}, v{t1}")
            p(f"v_mul_u32_u24 v{t1}, 3584, v{t1}")
            p(f"v_lshl_add_u32 v{t1}, v{t2}, 4, v{t1}")
            p(f"v_add_u32 v{r}, s{sT4}, v{t1}")
        p(f"s_mul_i32 s{sD0}, s{sT0}, 3072")
        p(f"s_mul_i32 s{sT1}, s{sCH}, 12288")
        p(f"s_add_u32 s{sD0}, s{sD0}, s{sT1}")
        p(f"s_add_u32 s{sD0}, s{sD0}, 16384")
        p(f"s_movk_i32 s{sT5}, 1024")
        p(f"s_mov_b32 s{sADV}, {64*3584}")
        p(f"s_lshr_b32 s{sHFB}, s{sT4}, 5")
        p("L_setupJ:")
        p(f"s_lshl_b32 s{sM0X}, s{sW}, 11")
        p(f"s_lshl_b32 s{sM0K}, s{sW}, 12")
        p(f"s_lshl_b32 s{sM0P}, s{sW}, 10")
        p(f"s_mov_b32 s{sW1OFF}, 0")

    def p1_setup_srd(self):
        p = self.p
        p(f"s_add_u32 s{sD1}, s{sD0}, s{sT5}")
        p(f"s_add_u32 s{sD2}, s{sD1}, s{sT5}")
        p(f"s_cmp_eq_u32 s{sCH}, 0")
        p(f"s_cselect_b32 s{SRD_W1}, s{sWG}, s{sWU}")
        p(f"s_cselect_b32 s{SRD_W1+1}, s{sWG+1}, s{sWU+1}")
        p(f"s_mov_b32 s{SRD_W1+2}, {512*3584:#x}")
        p(f"s_cmp_eq_u32 s{sTYP}, 0")
        p(f"s_cselect_b32 s{SRD_W1}, s{sWQKV}, s{SRD_W1}")
        p(f"s_cselect_b32 s{SRD_W1+1}, s{sWQKV+1}, s{SRD_W1+1}")
        p(f"s_cselect_b32 s{SRD_W1+2}, {512*3072:#x}, s{SRD_W1+2}")
        p(f"s_mov_b32 s{SRD_W1+3}, 0x20000")

    def p1_setup_late(self):
        p, q = self.p, self.q
        L = self.vLANE
        t0, t1, t2, t3 = 48, 49, 50, 51
        srd(p, SRD_G, sWG, 512 * 3584)
        srd(p, SRD_U, sWU, 512 * 3584)
        srd(p, SRD_T, sGW, 1024)
        p(f"s_lshl_b32 s{sT0}, s{sTYP}, 3")
        p(f"s_add_u32 s{sT0}, s{sT0}, s{sAB}")
        p(f"s_lshl_b32 s{sT1}, s{sT0}, 6            ; *64 bytes")
        p(f"v_lshrrev_b32 v{t0}, 5, v{L}             ; hh")
        p(f"v_lshlrev_b32 v{t0}, 4, v{t0}            ; hh*16")
        p(f"v_add_u32 v{t0}, s{sT1}, v{t0}")
        p(f"buffer_load_dwordx4 {V4(112)}, v{t0}, {S4(SRD_T)}, 0 offen")
        p(f"buffer_load_dwordx4 {V4(116)}, v{t0}, {S4(SRD_T)}, 0 offen offset:32")
        q.push("lgld", 2)
        rowl, sig, grp = 52, 53, 54
        p(f"v_lshrrev_b32 v{t0}, 5, v{L}")
        p(f"v_lshlrev_b32 v{t0}, 3, v{t0}")
        p(f"v_bfe_u32 v{t1}, v{L}, 2, 2")
        p(f"v_add_u32 v{rowl}, v{t0}, v{t1}")
        p(f"v_and_b32 v{t0}, 1, v{L}")
        p(f"v_lshlrev_b32 v{t0}, 4, v{t0}            ; (g&1)*16")
        p(f"v_bfe_u32 v{t1}, v{L}, 1, 1")
        p(f"v_lshl_add_u32 v{sig}, v{t1}, 3, v{t0}    ; 8*sigma")
        p(f"v_bfe_u32 v{grp}, v{L}, 4, 1")
        p(f"v_bfe_u32 v{t0}, v{L}, 3, 1")
        p(f"v_xor_b32 v{t0}, s{sCH}, v{t0}")
        p(f"v_lshlrev_b32 v{t0}, 6, v{t0}")
        p(f"v_lshl_add_u32 v{t0}, v{rowl}, 7, v{t0}")
        p(f"v_add_u32 v{t0}, v{t0}, v{sig}            ; c128")
        p(f"v_mul_u32_u24 v{t1}, {8192+32}, v{grp}")
        p(f"v_add_u32 v{self.vP[0]}, v{t0}, v{t1}")
        p(f"v_xor_b32 v{self.vP[1]}, 32, v{self.vP[0]}")
        p(f"s_cmp_eq_u32 s{sTYP}, 0")
        p(f"s_cbranch_scc0 L_lateB")
        p(f"v_add_u32 v{self.vB[0]}, 16384, v{self.vP[0]}")
        p(f"v_add_u32 v{self.vB[1]}, 16384, v{self.vP[1]}")
        p(f"v_lshl_add_u32 v{t1}, v{grp}, 5, v{t0}")
        p(f"v_add_u32 v{self.vB[2]}, 32768, v{t1}")
        p("s_branch L_lateJ")
        p("L_lateB:")
        p(f"s_mul_i32 s{sT0}, s{sCH}, 96")
        p(f"s_add_u32 s{sT0}, s{sT0}, 16384")
        p(f"v_mul_u32_u24 v{t1}, 192, v{rowl}")
        p(f"v_add3_u32 v{t1}, v{t1}, v{sig}, s{sT0}")
        p(f"s_lshl_b32 s{sT1}, s{sCH}, 6")
        p(f"s_sub_u32 s{sT1}, {12288+32}, s{sT1}")
        p(f"s_sub_u32 s{sT2}, {2*12288}, s{sT1}")
        p(f"v_mul_u32_u24 v{t2}, s{sT1}, v{grp}")
        p(f"v_add_u32 v{self.vB[0]}, v{t1}, v{t2}")
        p(f"v_mul_u32_u24 v{t2}, s{sT2}, v{grp}")
        p(f"v_add_u32 v{self.vB[1]}, v{t1}, v{t2}")
        p(f"v_mov_b32 v{self.vB[2]}, v{self.vB[0]}")
        p("L_lateJ:")
        p(f"v_and_b32 v{t0}, 31, v{L}")
        p(f"s_lshl_b32 s{sT0}, s{sRT}, 5")
        p(f"v_add_u32 v{t1}, s{sT0}, v{t0}")
        p(f"v_lshlrev_b32 v{t1}, 7, v{t1}            ; row*128")
        p(f"v_bfe_u32 v{t0}, v{L}, 1, 3")
        p(f"v_lshrrev_b32 v{t2}, 5, v{L}")
        p(f"v_xor_b32 v{t0}, v{t0}, v{t2}            ; hh ^ f")
        p(f"v_lshl_add_u32 v{t1}, v{t0}, 4, v{t1}")
        for k in range(4):
            p(f"v_xor_b32 v{self.vXR[k]}, {32*k}, v{t1}")
        p(f"v_mov_b32 v{self.vONE}, 1")
        p(f"v_mov_b32 v{self.vDBGA}, 0")
        self.win1 = 0
        self.win2 = 0

    def counter_zero(self):
        p = self.p
        L = self.vLANE
        t0, t1 = 48, 49
        p("s_add_u32 s%d, s2, s%d" % (sT0, sW))
        p(f"s_cmp_eq_u32 s{sT0}, 0")
        p(f"s_cselect_b32 s{sT0}, 0, {OOB:#x}")
        p(f"v_lshlrev_b32 v{t0}, 8, v{L}")
        p(f"v_add_u32 v{t0}, s{sT0}, v{t0}")
        p(f"v_mov_b32 v{t1}, 0")
        p(f"buffer_store_dword v{t1}, v{t0}, {S4(SRD_WS)}, 0 offen sc1")
        self.q.push("cz")

    def census_add(self):
        p = self.p
        t0, t1 = 48, 49
        p(f"v_readfirstlane_b32 s{sT3}, v{self.vFLAG}")
        p(f"s_getreg_b32 s{sT0}, hwreg(HW_REG_XCC_ID, 0, 4)")
        p(f"s_mul_i32 s{sT1}, s{sT0}, s{sT0}")
        p(f"s_lshl_b32 s{sT1}, s{sT1}, 16")
        p(f"s_lshl_b32 s{sT2}, s{sT0}, 8")
        p(f"s_add_u32 s{sT1}, s{sT1}, s{sT2}")
        p(f"s_add_u32 s{sT1}, s{sT1}, 1")
        p(f"s_lshl_b32 s{sEXP}, s{sT1}, 5")
        p(f"s_add_u32 s{sT2}, s{sXCD}, 48")
        p(f"s_lshl_b32 s{sT2}, s{sT2}, 8")
        p(f"s_cmp_ge_u32 s{sT3}, 1")
        p(f"s_cselect_b32 s{sT2}, s{sT2}, {OOB:#x}")
        p(f"s_cselect_b32 s{sLOC}, 1, 0")
        p(f"v_mov_b32 v{t0}, {OOB:#x}")
        p(f"v_mov_b32 v{t1}, s{sT2}")
        p(f"v_cmp_eq_u32 vcc, 0, v0")
        p(f"v_cndmask_b32 v{t0}, v{t0}, v{t1}, vcc")
        p(f"v_mov_b32 v{t1}, s{sT1}")
        p(f"buffer_atomic_add v{t1}, v{t0}, {S4(SRD_WS)}, 0 offen sc1")
        self.q.push("cadd")

    def census_load(self):
        p = self.p
        p(f"s_add_u32 s{sT2}, s{sXCD}, 48")
        p(f"s_lshl_b32 s{sT2}, s{sT2}, 8")
        p(f"v_mov_b32 v{self.vFADDR}, s{sT2}")
        p(f"buffer_load_dword v{self.vFLAG}, v{self.vFADDR}, {S4(SRD_WS)}, 0 offen sc1")
        self.q.push("cld")

    def census_check(self):
        p = self.p
        self.q.wait(p, "cld")
        p(f"v_readfirstlane_b32 s{sT0}, v{self.vFLAG}")
        p(f"s_cmp_eq_u32 s{sT0}, s{sEXP}")
        p(f"s_cselect_b32 s{sLOC}, s{sLOC}, 0")
        if self.o.get("nolocal"):
            p(f"s_mov_b32 s{sLOC}, 0")

    def counter_flag(self):
        p = self.p
        t0, t1 = 48, 49
        p(f"s_cmp_eq_u32 s2, 0")
        p(f"s_cselect_b32 s{sT0}, 0, {OOB:#x}")
        p(f"v_mov_b32 v{t0}, {OOB:#x}")
        p(f"v_mov_b32 v{t1}, s{sT0}")
        p(f"v_cmp_eq_u32 vcc, 0, v0")
        p(f"v_cndmask_b32 v{t0}, v{t0}, v{t1}, vcc")
        p(f"v_mov_b32 v{t1}, 1")
        p(f"buffer_store_dword v{t1}, v{t0}, {S4(SRD_DBG)}, 0 offen sc1")
        self.q.push("cf")

    def p1_piece(self, g, e):
        p, q = self.p, self.q
        ar = self.area(g)
        if g < 8:
            if e < 2:
                p(f"s_add_u32 m0, s{sM0X}, {ar + 1024*e}")
                p(f"s_movk_i32 s{sT1}, {128*g}")
                p(f"buffer_load_dwordx4 v{self.vXD[e]}, {S4(SRD_X)}, s{sT1} offen lds")
            else:
                d = (sD0, sD1, sD2)[e - 2]
                p(f"s_add_u32 m0, s{d}, {ar}")
                if e == 2 and g > 0:
                    p(f"s_add_u32 s{sW1OFF}, s{sW1OFF}, s{sADV}")
                else:
                    p("s_nop 0")
                p(f"buffer_load_dwordx4 v{self.vW1[e-2]}, {S4(SRD_W1)}, s{sW1OFF} offen lds")
        elif g < 16:
            p(f"s_add_u32 m0, s{sM0P}, {ar + 8192*e}")
            p(f"s_mov_b32 s{sT1}, {229376*(g-8)}")
            p(f"buffer_load_dwordx4 v{self.vW2[e]}, {S4(SRD_G if e == 0 else SRD_U)}, s{sT1} offen lds")
        else:
            j = (g - 16) & 3
            src = (WS_KF if g < 20 else WS_VF) + 16384 * j + 1024 * e
            p(f"s_add_u32 m0, s{sM0X2}, {ar + 1024*e}")
            p(f"s_add_u32 s{sT1}, s{sKVB}, {src:#x}")
            p(f"buffer_load_dwordx4 v{self.avL16}, {S4(SRD_WS)}, s{sT1} offen sc1 lds")
        q.push(f"st{g}")

    def earliest(self, g):
        if g >= 8:
            return {8: 22, 9: 22, 10: 26, 11: 26, 12: 30, 13: 30, 14: 36, 15: 36}[g]
        return 4 * (g - 3) + 2

    def npieces(self, g):
        return 5 if g < 8 else 2

    def emit_pieces(self, step, maxn):
        n = 0
        while self.pending and n < maxn:
            g, e = self.pending[0]
            if g == "aq":
                if step < 4 * self.F1G + 2:
                    break
                self.pending.pop(0)
                if self.stop_after != "p1":
                    self.att_loads()
                n += 1
                continue
            if 4 <= g < 16 and step < self.earliest(g):
                break
            if g >= 16 and step < 4 * self.F1G + 2:
                break
            if g >= 16 and self.stop_after == "p1":
                self.pending.pop(0)
                continue
            self.pending.pop(0)
            self.p1_piece(g, e)
            n += 1

    def rebase(self, regs, cur, want):
        if want != cur:
            d = want - cur
            for r in regs:
                if d > 0:
                    self.p(f"v_add_u32 v{r}, {d:#x}, v{r}")
                else:
                    self.p(f"v_subrev_u32 v{r}, {-d:#x}, v{r}")
        return want

    def p1_reads(self, ps, s, typ, part=None):
        p = self.p
        g = (s >> 2) + (0 if ps == 1 else 8)
        sp = s & 3
        wb = self.WB[s & 1]
        n = 0
        nt = 3 if ps == 1 else 2
        parts = range(nt) if part is None else [part]
        for t in parts:
            if t >= nt:
                continue
            if ps == 1:
                if t == 0:
                    self.win1 = self.rebase(list(self.vXR) + list(self.vB), self.win1, self.window(g))
                off = self.area(g) - self.win1
                if t == 0:
                    p(f"ds_read_b128 {V4(self.X + 4*s)}, v{self.vXR[sp]} offset:{off}")
                    n += 1
                for j in range(2):
                    if typ == 0:
                        p(f"ds_read_b64_tr_b16 {V2(wb + 4*t + 2*j)}, v{self.vB[t]} offset:{off + (16*sp + 4*j)*128}")
                    else:
                        p(f"ds_read_b64_tr_b16 {V2(wb + 4*t + 2*j)}, v{self.vB[t]} offset:{off + (16*sp + 4*j)*192 + 32*t}")
                    n += 1
            else:
                if t == 0:
                    self.win2 = self.rebase(list(self.vP), self.win2, self.window(g))
                off = self.area(g) - self.win2
                for j in range(2):
                    p(f"ds_read_b64_tr_b16 {V2(wb + 4*t + 2*j)}, v{self.vP[t]} offset:{off + (16*sp + 4*j)*128}")
                    n += 1
        return n

    def p1_midstage(self, g):
        p, q = self.p, self.q
        T = 116 if (g < 8 or not self.ovl()) else 44 + 16
        garr = (11 if self.o.get("ovlper", 2) == 1 else 10) if self.ovl() else 10
        tags = [f"st{g+1}"] if g + 1 < 16 else []
        if g == 1:
            tags += ["cz"]
        if g == 4 and self.o.get("local", 1):
            tags += ["dbg0"]
        if g == garr:
            tags += ["e1st", "dbg"]
        if g == self.F1G:
            tags += ["f1"]
        self.stamp(f"pre{g}")
        if tags:
            q.wait(p, tags)
        if g == self.F1G:
            poll(p, q, self.vFLAG, self.vFADDR, SRD_WS, 16, "F1")
        self.stamp(f"wait{g}")
        p("s_barrier")
        self.stamp(f"bar{g}")
        if g == 1:
            self.counter_flag()
        if g == garr:
            poll(p, q, self.vFLAG, self.vDBGA, SRD_DBG, 1, "init")
            if self.cur_typ == 0:
                p(f"s_lshl_b32 s{sT0}, s{sAB}, 8")
                p(f"v_mov_b32 v{self.vFADDR}, {OOB:#x}")
                p(f"v_mov_b32 v{T}, s{sT0}")
                p(f"v_cmp_eq_u32 vcc, 0, v0")
                p(f"v_cndmask_b32 v{self.vFADDR}, v{self.vFADDR}, v{T}, vcc")
                self.stamp("f1iss")
                p(f"buffer_atomic_add v{self.vONE}, v{self.vFADDR}, {S4(SRD_WS)}, 0 offen sc1")
                q.push("f1add")
                if self.o.get("diagf1"):
                    p("s_waitcnt vmcnt(0)")
                    self.stamp("f1done")
        if self.o.get("local", 1):
            if g == 2:
                p(f"buffer_load_dword v{self.vFLAG}, v{self.vDBGA}, {S4(SRD_DBG)}, 0 offen sc1")
                q.push("dbg0")
            if g == 4:
                self.census_add()
            if g == 7 and self.cur_typ == 0:
                self.census_load()
        if g == 8:
            p(f"buffer_load_dword v{self.vFLAG}, v{self.vDBGA}, {S4(SRD_DBG)}, 0 offen sc1")
            q.push("dbg")
        if g == 13:
            p(f"v_bfe_u32 v{T+2}, v0, 1, 4")
            p(f"v_and_b32 v{T+2}, 11, v{T+2}")
            p(f"v_cmp_eq_u32 vcc, 0, v{T+2}")
            p(f"v_mov_b32 v{T+1}, 0x3f803f80")
            p(f"v_cndmask_b32 v{T}, 0, v{T+1}, vcc")
            if self.o.get("allones"):
                p(f"v_mov_b32 v{T}, v{T+1}")
            p(f"v_lshlrev_b32 v{T+2}, 3, v0")
            p(f"v_mov_b32 v{T+1}, v{T}")
            p(f"ds_write_b64 v{T+2}, {V2(T)} offset:{self.ONES}")
            self.lg_issue("ones", 1)
        if g == self.F1G - 1:
            p(f"s_lshr_b32 s{sT0}, s{sH}, 2")
            p(f"s_lshl_b32 s{sT0}, s{sT0}, 8")
            p(f"v_mov_b32 v{self.vFADDR}, s{sT0}")
            p(f"buffer_load_dword v{self.vFLAG}, v{self.vFADDR}, {S4(SRD_WS)}, 0 offen sc1")
            q.push("f1")
            p(f"v_lshlrev_b32 v{self.avL16}, 4, v{self.vLANE}")
            p(f"s_lshl_b32 s{sM0X2}, s{sW}, 11")
            p(f"s_lshl_b32 s{sKVB}, s{sH}, 16")
            p(f"s_add_u32 s{sKVB}, s{sKVB}, s{sM0X2}")
        if g == 14 and self.F1G == 14 and not self.o.get("nodma"):
            self.emit_pieces(58, 6)

    def lg_issue(self, tag, n):
        self.lgq += [tag] * n

    def lg_wait(self, tag):
        last = max((i for i, t in enumerate(self.lgq) if t == tag), default=-1)
        if last < 0:
            return
        n = len(self.lgq) - 1 - last
        self.p(f"s_waitcnt lgkmcnt({min(n, 15)})")
        self.lgq = self.lgq[last + 1:]

    def p1_pass(self, ps, typ):
        p, q = self.p, self.q
        nt = 3 if ps == 1 else 2
        acc = [self.ACC + 16*t for t in range(nt)] if ps == 1 else [self.acc2() + 16*t for t in range(nt)]
        comp = not self.o.get("nocompute")
        for s in range(32):
            gs = s + (0 if ps == 1 else 32)
            g = gs >> 2
            if (s & 3) == 2:
                self.p1_midstage(g)
            nxt = None
            if s < 31:
                nxt = (ps, s + 1)
            elif ps == 1:
                nxt = (2, 0)
            wb = self.WB[s & 1]
            xs = self.X + 4*s
            for t in range(nt):
                c = None if s == 0 else acc[t]
                if comp:
                    self.lg_wait((ps, s, t))
                    if self.o.get("nomfma"):
                        pass
                    elif ps == 1 and t == 2 and typ == 0:
                        mfma(p, acc[t], xs, wb + 4*t, c)
                    else:
                        mfma(p, acc[t], wb + 4*t, xs, c)
                    if nxt and not self.o.get("nolds"):
                        n = self.p1_reads(nxt[0], nxt[1], typ, t)
                        self.lg_issue((nxt[0], nxt[1], t), n)
                if not self.o.get("nodma"):
                    if t == 0:
                        self.emit_pieces(gs, 1)
                    elif t == 1 and (ps == 1 or gs < 46):
                        self.emit_pieces(gs, 1)
                if ps == 2 and (s, t) in self.deferred:
                    self.deferred.pop((s, t))()

    def p1_first_reads(self, typ):
        self.lgq = []
        for t in range(3):
            n = self.p1_reads(1, 0, typ, t)
            self.lg_issue((1, 0, t), n)

    def store_ws(self, vdata, voff, soff_reg, tag, offset=0):
        o = f" offset:{offset}" if offset else ""
        self.p(f"buffer_store_dwordx4 {V4(vdata)}, v{voff}, {S4(SRD_WS)}, s{soff_reg} offen{o} sc1")
        self.q.push(tag)

    def relu_mul_store(self, a, tmp, unit, tag):
        p = self.p
        for r in range(8):
            p(f"v_max_f32 v{a+r}, 0, v{a+r}")
        for r in range(8):
            p(f"v_mul_f32 v{a+r}, v{a+r}, v{a+8+r}")
        for i in range(4):
            p(f"v_cvt_pk_bf16_f32 v{tmp+i}, v{a+2*i}, v{a+2*i+1}")
        p(f"s_add_u32 s{sT1}, s{sHFB}, {unit * 1024}")
        self.store_ws(tmp, self.vL16, sT1, tag)

    def hf_base(self, unit_reg_expr_lines):
        p = self.p
        for l in unit_reg_expr_lines:
            p(l)
        p(f"s_mul_i32 s{sT1}, s{sTILE}, 112")
        p(f"s_add_u32 s{sHFB}, s{sT0}, s{sT1}")
        p(f"s_lshl_b32 s{sHFB}, s{sHFB}, 10")
        p(f"s_add_u32 s{sHFB}, s{sHFB}, {WS_HF:#x}")

    def p1_logit(self, step):
        p, q = self.p, self.q
        L = self.vLANE
        p(f"s_lshl_b32 s{sT0}, s{sTYP}, 3")
        p(f"s_add_u32 s{sT0}, s{sT0}, s{sAB}          ; j")
        p(f"s_lshl_b32 s{sT1}, s{sT0}, 3")
        p(f"s_set_gpr_idx_on s{sT1}, 0x1")
        for i in range(8):
            p(f"v_mov_b32 v{120+i}, v{self.X+i}")
        p("s_set_gpr_idx_off")
        q.wait(p, "lgld")
        mfma(p, 48, 112, 120, None)
        mfma(p, 48, 116, 124, 48)
        p(f"s_lshl_b32 s{sT1}, s{sT0}, 13")
        p(f"s_add_u32 s{sT1}, s{sT1}, {WS_LG:#x}")
        p(f"s_lshl_b32 s{sT2}, s{sTILE}, 7")
        p(f"s_add_u32 s{sLGO}, s{sT1}, s{sT2}")
        p(f"s_cmp_eq_u32 s{sCH}, 0")
        p(f"s_cselect_b32 s{sT1}, 32, 0")
        p(f"v_lshlrev_b32 v43, 2, v{L}")
        p(f"v_mov_b32 v42, {OOB:#x}")
        p(f"v_cmp_gt_u32 vcc, s{sT1}, v{L}")
        p(f"v_cndmask_b32 v43, v42, v43, vcc")
        def fin():
            p(f"v_mov_b32 v42, v48")
        def f():
            p(f"buffer_store_dword v42, v43, {S4(SRD_WS)}, s{sLGO} offen sc1")
            self.q.push("lgst")
        self.deferred[step] = f
        return fin

    def p1_epi1(self, typ):
        p, q = self.p, self.q
        L = self.vLANE
        self.deferred = {}
        local = self.o.get("local", 1) and typ == 0
        if local:
            self.census_check()
        def two_flavours(emit):
            if not local:
                emit(" sc1")
                return
            n = uid()
            p(f"s_cmp_eq_u32 s{sLOC}, 0")
            p(f"s_cbranch_scc1 L_wt{n}")
            emit("")
            p(f"s_branch L_st{n}")
            p(f"L_wt{n}:")
            emit(" sc1")
            p(f"L_st{n}:")
        self.two_flavours = two_flavours
        def dstore(step, vdata, voff, const, tag, base, offset=0):
            def f():
                p(f"s_add_u32 s{sT1}, s{base}, {const:#x}")
                o = f" offset:{offset}" if offset else ""
                two_flavours(lambda fl: p(f"buffer_store_dwordx4 {V4(vdata)}, v{voff}, {S4(SRD_WS)}, s{sT1} offen{o}{fl}"))
                self.q.push(tag)
            if step is None:
                self.late_stores.append(f)
            else:
                self.deferred[step] = f
        self.late_stores = []
        lg_fin = self.p1_logit((12, 1))
        if typ == 0:
            A = (self.ACC, self.ACC + 16)
            B = self.ACC + 32
            T = self.TMP
            V = 120
            p(f"s_lshl_b32 s{sT0}, s{sAB}, 2")
            p(f"s_lshl_b32 s{sT1}, s{sCH}, 1")
            p(f"s_add_u32 s{sT0}, s{sT0}, s{sT1}          ; head")
            p(f"s_lshl_b32 s{sT1}, s{sT0}, 6")
            p(f"s_add_u32 s{sT1}, s{sT1}, s{sTILE}        ; h*64+tile")
            p(f"s_lshl_b32 s{sQB}, s{sT1}, 10")
            p(f"s_lshl_b32 s{sT5}, s{sAB}, 4")
            p(f"s_add_u32 s{sT5}, s{sT5}, s{sRB}")
            p(f"s_lshl_b32 s{sT5}, s{sT5}, 7          ; (a*16+rb)*128")
            p(f"s_lshl_b32 s{sT0}, s{sCH}, 6")
            p(f"s_add_u32 s{sT5}, s{sT5}, s{sT0}")
            p(f"s_lshl_b32 s{sT0}, s{sRT}, 3")
            p(f"s_add_u32 s{sT5}, s{sT5}, s{sT0}")
            p(f"s_mov_b32 s{sT0}, s{sCS}")
            p(f"s_mov_b32 s{sT1}, s{sCS}")
            for t in range(2):
                for i in range(4):
                    p(f"v_pk_mul_f32 {V2(A[t]+2*i)}, {V2(A[t]+2*i)}, s[{sT0}:{sT1}]")
            lg_fin()
            for t in range(2):
                for i in range(4):
                    p(f"v_cvt_pk_bf16_f32 v{T+8*t+4+i}, v{A[t]+8+2*i}, v{A[t]+8+2*i+1}")
            for i in range(8):
                p(f"v_cvt_pk_bf16_f32 v{V+i}, v{B+2*i}, v{B+2*i+1}")
            for t in range(2):
                for i in range(4):
                    p(f"v_cvt_pk_bf16_f32 v{T+8*t+i}, v{A[t]+2*i}, v{A[t]+2*i+1}")
            a = 40
            p(f"v_bfe_u32 v{a}, v{L}, 4, 1")
            p(f"v_lshlrev_b32 v{a}, 16, v{a}")
            p(f"v_lshrrev_b32 v{a+1}, 5, v{L}")
            p(f"v_lshl_add_u32 v{a}, v{a+1}, 8, v{a}")
            p(f"v_and_b32 v{a+1}, 15, v{L}")
            p(f"v_lshl_add_u32 v{a}, v{a+1}, 4, v{a}")
            dstore((0, 0), T + 4, self.vL16, WS_KF, "e1st", sQB)
            dstore((0, 1), T + 12, self.vL16, WS_KF + 65536, "e1st", sQB)
            dstore((1, 0), V, a, WS_VF, "e1st", sQB)
            dstore((1, 1), V + 4, a, WS_VF, "e1st", sQB, 512)
            dstore((2, 0), T, self.vL16, WS_QF, "e1st", sQB)
            dstore((2, 1), T + 8, self.vL16, WS_QF + 65536, "e1st", sQB)
            N = B
            for t in range(2):
                for h in range(2):
                    r = N + 4*t + 2*h
                    src = A[t] + 8*h
                    p(f"v_pk_mul_f32 {V2(r)}, {V2(src)}, {V2(src)}")
            for i in range(1, 4):
                for t in range(2):
                    for h in range(2):
                        r = N + 4*t + 2*h
                        src = A[t] + 8*h + 2*i
                        p(f"v_pk_fma_f32 {V2(r)}, {V2(src)}, {V2(src)}, {V2(r)}")
            for t in range(2):
                for h in range(2):
                    r = N + 4*t + 2*h
                    p(f"v_add_f32 v{r}, v{r}, v{r+1}")
            for t in range(2):
                p(f"v_permlane32_swap_b32 v{N+4*t}, v{N+4*t+2}")
            for t in range(2):
                p(f"v_add_f32 v{N+4*t}, v{N+4*t}, v{N+4*t+2}")
            na = 104
            p(f"s_add_u32 s{sT0}, s{sT5}, {WS_NRMQ:#x}")
            p(f"s_add_u32 s{sT1}, s{sT5}, {WS_NRMQ + 4:#x}")
            p(f"v_mov_b32 v{na}, {OOB:#x}")
            p(f"v_mov_b32 v{na+1}, s{sT0}")
            p(f"v_cmp_eq_u32 vcc, 31, v{L}")
            for sh in (1, 2):
                for t in range(2):
                    p(f"v_max_f32_dpp v{N+4*t}, v{N+4*t}, v{N+4*t} row_shr:{sh} row_mask:0xf bank_mask:0xf")
                if sh == 1:
                    p(f"v_cndmask_b32 v{na}, v{na}, v{na+1}, vcc")
                    p(f"v_mov_b32 v{na+1}, s{sT1}")
                else:
                    p(f"v_cmp_eq_u32 vcc, 63, v{L}")
            for sh in (4, 8):
                for t in range(2):
                    p(f"v_max_f32_dpp v{N+4*t}, v{N+4*t}, v{N+4*t} row_shr:{sh} row_mask:0xf bank_mask:0xf")
                if sh == 4:
                    p(f"v_cndmask_b32 v{na}, v{na}, v{na+1}, vcc")
            for t in range(2):
                p(f"v_max_f32_dpp v{N+4*t}, v{N+4*t}, v{N+4*t} row_bcast:15 row_mask:0xa bank_mask:0xf")
            def nstore(t):
                def f():
                    o = " offset:32" if t else ""
                    two_flavours(lambda fl: p(f"buffer_store_dword v{N+4*t}, v{na}, {S4(SRD_WS)}, 0 offen{o}{fl}"))
                    q = self.q
                    q.push("e1st")
                return f
            self.deferred[(3, 0)] = nstore(0)
            self.deferred[(3, 1)] = nstore(1)
        else:
            p(f"s_mul_i32 s{sT0}, s{sCH}, 3")
            p(f"s_add_u32 s{sT0}, s{sT0}, s{sHFB}")
            p(f"s_mul_i32 s{sT1}, s{sTILE}, 112")
            p(f"s_add_u32 s{sHB1}, s{sT0}, s{sT1}")
            p(f"s_lshl_b32 s{sHB1}, s{sHB1}, 10")
            for t in range(3):
                a0 = self.ACC + 16*t
                for r in range(8):
                    p(f"v_max_f32 v{a0+r}, 0, v{a0+r}")
                for r in range(8):
                    p(f"v_mul_f32 v{a0+r}, v{a0+r}, v{a0+8+r}")
                if t == 0:
                    lg_fin()
                for i in range(4):
                    p(f"v_cvt_pk_bf16_f32 v{self.TMP+4*t+i}, v{a0+2*i}, v{a0+2*i+1}")
        self.stamp("e1b")

    def p1_epi1_ovl(self, typ):
        p, q = self.p, self.q
        L = self.vLANE
        self.deferred = {}
        local = self.o.get("local", 1) and typ == 0
        if local:
            self.census_check()
        def two_flavours(emit):
            if not local:
                emit(" sc1")
                return
            n = uid()
            p(f"s_cmp_eq_u32 s{sLOC}, 0")
            p(f"s_cbranch_scc1 L_wt{n}")
            emit("")
            p(f"s_branch L_st{n}")
            p(f"L_wt{n}:")
            emit(" sc1")
            p(f"L_st{n}:")
        def store4(vdata, voff, const, offset=0):
            p(f"s_add_u32 s{sT1}, s{sQB}, {const:#x}")
            o = f" offset:{offset}" if offset else ""
            two_flavours(lambda fl: p(f"buffer_store_dwordx4 {V4(vdata)}, v{voff}, {S4(SRD_WS)}, s{sT1} offen{o}{fl}"))
            self.q.push("e1st")
        T = self.TMP
        xc = 96 if typ == 0 else 120
        if typ == 0:
            B = self.ACC + 32
            Vq = (24, 36)
            for i in range(8):
                p(f"v_cvt_pk_bf16_f32 v{Vq[i >> 2] + (i & 3)}, v{B+2*i}, v{B+2*i+1}")
        p(f"s_lshl_b32 s{sT0}, s{sTYP}, 3")
        p(f"s_add_u32 s{sT0}, s{sT0}, s{sAB}          ; j")
        p(f"s_lshl_b32 s{sT1}, s{sT0}, 3")
        p(f"s_set_gpr_idx_on s{sT1}, 0x1")
        for i in range(8):
            p(f"v_mov_b32 v{xc+i}, v{self.X+i}")
        p("s_set_gpr_idx_off")
        q.wait(p, "lgld")
        mfma(p, 48, 112, xc, None)
        mfma(p, 48, 116, xc + 4, 48)
        p(f"s_lshl_b32 s{sT1}, s{sT0}, 13")
        p(f"s_add_u32 s{sT1}, s{sT1}, {WS_LG:#x}")
        p(f"s_lshl_b32 s{sT2}, s{sTILE}, 7")
        p(f"s_add_u32 s{sLGO}, s{sT1}, s{sT2}")
        p(f"s_cmp_eq_u32 s{sCH}, 0")
        p(f"s_cselect_b32 s{sT1}, 32, 0")
        p(f"v_lshlrev_b32 v43, 2, v{L}")
        p(f"v_mov_b32 v42, {OOB:#x}")
        p(f"v_cmp_gt_u32 vcc, s{sT1}, v{L}")
        p(f"v_cndmask_b32 v43, v42, v43, vcc")
        def lgstore():
            p(f"buffer_store_dword v42, v43, {S4(SRD_WS)}, s{sLGO} offen sc1")
            self.q.push("lgst")
        side = []
        if typ == 0:
            A = (self.ACC, self.ACC + 16)
            p(f"s_lshl_b32 s{sT0}, s{sAB}, 2")
            p(f"s_lshl_b32 s{sT1}, s{sCH}, 1")
            p(f"s_add_u32 s{sT0}, s{sT0}, s{sT1}          ; head")
            p(f"s_lshl_b32 s{sT1}, s{sT0}, 6")
            p(f"s_add_u32 s{sT1}, s{sT1}, s{sTILE}        ; h*64+tile")
            p(f"s_lshl_b32 s{sQB}, s{sT1}, 10")
            p(f"s_lshl_b32 s{sNB}, s{sAB}, 4")
            p(f"s_add_u32 s{sNB}, s{sNB}, s{sRB}")
            p(f"s_lshl_b32 s{sNB}, s{sNB}, 7          ; (a*16+rb)*128")
            p(f"s_lshl_b32 s{sT0}, s{sCH}, 6")
            p(f"s_add_u32 s{sNB}, s{sNB}, s{sT0}")
            p(f"s_lshl_b32 s{sT0}, s{sRT}, 3")
            p(f"s_add_u32 s{sNB}, s{sNB}, s{sT0}")
            p(f"s_add_u32 s{sNB}, s{sNB}, {WS_NRMQ:#x}")
            p(f"s_mov_b32 s{sCS2}, s{sCS}")
            p(f"s_mov_b32 s{sCS2+1}, s{sCS}")
            a = 40
            def vaddr():
                p(f"v_bfe_u32 v{a}, v{L}, 4, 1")
                p(f"v_lshlrev_b32 v{a}, 16, v{a}")
                p(f"v_lshrrev_b32 v{a+1}, 5, v{L}")
                p(f"v_lshl_add_u32 v{a}, v{a+1}, 8, v{a}")
                p(f"v_and_b32 v{a+1}, 15, v{L}")
                p(f"v_lshl_add_u32 v{a}, v{a+1}, 4, v{a}")
            def cvt4(dst, src):
                for i in range(4):
                    p(f"v_cvt_pk_bf16_f32 v{dst+i}, v{src+2*i}, v{src+2*i+1}")
            def scale(t):
                for i in range(4):
                    p(f"v_pk_mul_f32 {V2(A[t]+2*i)}, {V2(A[t]+2*i)}, s[{sCS2}:{sCS2+1}]")
            R = [A[0], A[0] + 8, A[1], A[1] + 8]
            def nrm(i):
                for r in R:
                    if i == 0:
                        p(f"v_pk_mul_f32 {V2(r)}, {V2(r)}, {V2(r)}")
                    else:
                        p(f"v_pk_fma_f32 {V2(r)}, {V2(r+2*i)}, {V2(r+2*i)}, {V2(r)}")
            def nrm_fold():
                for r in R:
                    p(f"v_add_f32 v{r}, v{r}, v{r+1}")
            def nrm_swap():
                p(f"v_permlane32_swap_b32 v{R[0]}, v{R[1]}")
                p(f"v_permlane32_swap_b32 v{R[2]}, v{R[3]}")
                p(f"v_add_f32 v{R[0]}, v{R[0]}, v{R[1]}")
                p(f"v_add_f32 v{R[2]}, v{R[2]}, v{R[3]}")
            na = A[0] + 2
            def naddr():
                p(f"s_add_u32 s{sT1}, s{sNB}, 4")
                p(f"v_mov_b32 v{na}, {OOB:#x}")
                p(f"v_mov_b32 v{na+1}, s{sNB}")
                p(f"v_cmp_eq_u32 vcc, 31, v{L}")
                p(f"v_mov_b32 v{na+2}, s{sT1}")
                p(f"v_cndmask_b32 v{na}, v{na}, v{na+1}, vcc")
                p(f"v_cmp_eq_u32 vcc, 63, v{L}")
            def dpp(shs):
                def f():
                    for sh in shs:
                        for r in (R[0], R[2]):
                            if sh == 16:
                                p(f"v_max_f32_dpp v{r}, v{r}, v{r} row_bcast:15 row_mask:0xa bank_mask:0xf")
                            else:
                                p(f"v_max_f32_dpp v{r}, v{r}, v{r} row_shr:{sh} row_mask:0xf bank_mask:0xf")
                return f
            def nstores():
                p(f"v_cndmask_b32 v{na}, v{na}, v{na+2}, vcc")
                for t in range(2):
                    o = " offset:32" if t else ""
                    two_flavours(lambda fl: p(f"buffer_store_dword v{R[2*t]}, v{na}, {S4(SRD_WS)}, 0 offen{o}{fl}"))
                    self.q.push("e1st")
            side = [
                lambda: (vaddr(),),
                lambda: (p("v_mov_b32 v42, v48"), cvt4(T + 4, A[0] + 8), store4(Vq[0], a, WS_VF)),
                lambda: (cvt4(T + 12, A[1] + 8), store4(Vq[1], a, WS_VF, 512)),
                lambda: (scale(0), store4(T + 4, self.vL16, WS_KF)),
                lambda: (scale(1), store4(T + 12, self.vL16, WS_KF + 65536)),
                lambda: (cvt4(T, A[0]),),
                lambda: (cvt4(T + 8, A[1]), store4(T, self.vL16, WS_QF)),
                lambda: (nrm(0), store4(T + 8, self.vL16, WS_QF + 65536)),
                lambda: (nrm(1),), lambda: (nrm(2),), lambda: (nrm(3),),
                lambda: (nrm_fold(),), lambda: (nrm_swap(),),
                lambda: (dpp((1,))(), naddr()),
                dpp((2,)), dpp((4,)), dpp((8,)), dpp((16,)),
                nstores,
                lgstore,
            ]
        else:
            p(f"s_mul_i32 s{sT0}, s{sCH}, 3")
            p(f"s_add_u32 s{sT0}, s{sT0}, s{sHFB}")
            p(f"s_mul_i32 s{sT1}, s{sTILE}, 112")
            p(f"s_add_u32 s{sHB1}, s{sT0}, s{sT1}")
            p(f"s_lshl_b32 s{sHB1}, s{sHB1}, 10")
            def relu(a0, lo, hi):
                for r in range(lo, hi):
                    p(f"v_max_f32 v{a0+r}, 0, v{a0+r}")
            def mul(a0, lo, hi):
                for r in range(lo, hi):
                    p(f"v_mul_f32 v{a0+r}, v{a0+r}, v{a0+8+r}")
            def cvt(a0, dst):
                for i in range(4):
                    p(f"v_cvt_pk_bf16_f32 v{dst+i}, v{a0+2*i}, v{a0+2*i+1}")
            a2 = self.ACC + 32
            relu(a2, 0, 8); mul(a2, 0, 8)
            p("v_mov_b32 v42, v48")
            cvt(a2, T + 8)
            for t in range(2):
                a0 = self.ACC + 16*t
                side += [lambda a0=a0: relu(a0, 0, 5), lambda a0=a0: (relu(a0, 5, 8), mul(a0, 0, 2)), lambda a0=a0: mul(a0, 2, 8),
                         lambda a0=a0, t=t: cvt(a0, T + 4*t)]
            side += [lgstore]
        per = self.o.get("ovlper", 2) if typ == 0 else 1
        groups = [side[i:i + per] for i in range(0, len(side), per)]
        for k, fs in enumerate(groups):
            self.deferred[(k >> 1, k & 1)] = (lambda fs=fs: [f() for f in fs])
        self.stamp("e1b")

    def p1_epi2(self, typ):
        p = self.p
        p(f"s_lshr_b32 s{sT2}, s{sCB2}, 5")
        p(f"s_lshl_b32 s{sT0}, s{sCH}, 1")
        p(f"s_add_u32 s{sT0}, s{sT0}, s{sT2}")
        p(f"s_mul_i32 s{sT1}, s{sTILE}, 112")
        p(f"s_add_u32 s{sHFB}, s{sT0}, s{sT1}")
        p(f"s_lshl_b32 s{sQB}, s{sHFB}, 10")
        for t in range(2):
            a0 = self.acc2() + 16*t
            for r in range(8):
                p(f"v_max_f32 v{a0+r}, 0, v{a0+r}")
            for r in range(8):
                p(f"v_mul_f32 v{a0+r}, v{a0+r}, v{a0+8+r}")
            for i in range(4):
                p(f"v_cvt_pk_bf16_f32 v{128+4*t+i}, v{a0+2*i}, v{a0+2*i+1}")
        if typ == 1:
            for i in range(12):
                p(f"v_mov_b32 v{136+i}, v{self.TMP+i}")

    def late_h_stores(self):
        p = self.p
        for t in range(2):
            p(f"s_add_u32 s{sT1}, s{sQB}, {WS_HF + 1024*t:#x}")
            self.store_ws(128 + 4*t, self.avL16, sT1, "hst")
        n = uid()
        p(f"s_cmp_eq_u32 s{sA3}, 0")
        p(f"s_cbranch_scc1 L_noh_{n}")
        for t in range(3):
            p(f"s_add_u32 s{sT1}, s{sHB1}, {WS_HF + 1024*t:#x}")
            self.store_ws(136 + 4*t, self.avL16, sT1, "hst")
        p(f"L_noh_{n}:")

    def p1(self):
        p, q = self.p, self.q
        self.stamp("predma")
        for g in range(2):
            for e in range(5):
                self.p1_piece(g, e)
        self.stamp("dma0")
        self.pending = [(g, e) for g in list(range(2, 16)) for e in range(self.npieces(g))]
        self.pending += [(16, 0), (16, 1), (20, 0), (20, 1), ("aq", 0), (17, 0), (17, 1), (21, 0), (21, 1)]
        srd(p, SRD_WS, sWS, WS_SIZE)
        srd(p, SRD_DBG, sDBG, 256)
        self.p1_setup_late()
        self.counter_zero()
        if not self.o.get("nodma"):
            self.emit_pieces(0, self.o.get("upfront", 0))
        self.stamp("setup")
        q.wait(p, ["st0"])
        p("s_barrier")
        self.stamp("st0")
        p(f"s_cmp_eq_u32 s{sTYP}, 0")
        p("s_cbranch_scc0 L_p1_B")
        q0, w0, pend0 = q.fork(), (self.win1, self.win2), list(self.pending)
        ends = []
        for typ in range(2):
            if typ == 1:
                p("L_p1_B:")
                self.q = q0
                self.win1, self.win2 = w0
                self.pending = pend0
            self.cur_typ = typ
            self.p1_first_reads(typ)
            self.p1_pass(1, typ)
            self.stamp("pass1")
            if self.ovl():
                self.p1_epi1_ovl(typ)
            else:
                self.p1_epi1(typ)
            self.stamp("epi1")
            self.p1_pass(2, typ)
            assert not self.deferred
            self.stamp("pass2")
            if not self.o.get("nodma"):
                self.emit_pieces(99, 99)
            self.p1_epi2(typ)
            self.stamp("epi2")
            ends.append(self.q)
            if typ == 0:
                p("s_branch L_p1_join")
        p("L_p1_join:")
        self.q = VMQ.join(ends)

    aQ, aK, aV, aS, aP, aO = 4, (8, 12), (16, 24), (32, 48), (64, 72), 80
    avK, avV, avVinc, avL16 = 96, 97, 98, 3
    avT = 100
    HFR = 128
    LGR = 240

    def nrmT(self):
        return 64 if self.ovl() else self.avT

    def att_loads(self):
        p, q = self.p, self.q
        L, T = self.vLANE, self.nrmT()
        p(f"s_lshl_b32 s{sA0}, s{sQC}, 3")
        p(f"s_add_u32 s{sA0}, s{sA0}, s{sW}          ; q tile")
        p(f"s_lshl_b32 s{sA1}, s{sH}, 6")
        p(f"s_add_u32 s{sA1}, s{sA1}, s{sA0}         ; h*64+tile")
        p(f"s_lshl_b32 s{sA2}, s{sA1}, 10")
        p(f"s_add_u32 s{sA2}, s{sA2}, {WS_QF:#x}")
        p(f"buffer_load_dwordx4 {V4(self.aQ)}, v{self.vL16}, {S4(SRD_WS)}, s{sA2} offen sc1")
        p(f"s_lshr_b32 s{sA2}, s{sH}, 2")
        p(f"s_lshl_b32 s{sA2}, s{sA2}, 11")
        p(f"s_and_b32 s{sA1}, s{sH}, 3")
        p(f"s_lshl_b32 s{sA1}, s{sA1}, 5")
        p(f"s_add_u32 s{sA2}, s{sA2}, s{sA1}")
        p(f"s_add_u32 s{sA2}, s{sA2}, {WS_NRMQ:#x}")
        p(f"v_lshrrev_b32 v{T}, 2, v{L}")
        p(f"v_lshlrev_b32 v{T}, 7, v{T}")
        p(f"v_and_b32 v{T+3}, 3, v{L}")
        p(f"v_lshl_add_u32 v{T}, v{T+3}, 3, v{T}")
        p(f"buffer_load_dword v{T+1}, v{T}, {S4(SRD_WS)}, s{sA2} offen offset:4 sc1")
        p(f"s_lshr_b32 s{sA1}, s{sA0}, 2")
        p(f"s_lshl_b32 s{sA1}, s{sA1}, 7")
        p(f"s_and_b32 s{sA0}, s{sA0}, 3")
        p(f"s_lshl_b32 s{sA0}, s{sA0}, 3")
        p(f"s_add_u32 s{sA2}, s{sA2}, s{sA1}")
        p(f"s_add_u32 s{sA2}, s{sA2}, s{sA0}")
        p(f"v_mov_b32 v{T+3}, 0")
        p(f"buffer_load_dword v{T+2}, v{T+3}, {S4(SRD_WS)}, s{sA2} offen sc1")
        q.push("aq", 3)

    def att_setup(self):
        p, q = self.p, self.q
        L, T = self.vLANE, self.avT
        p(f"v_lshlrev_b32 v{self.avL16}, 4, v{L}")
        p(f"v_add_u32 v{self.avK}, 32768, v{self.avL16}")
        p(f"v_and_b32 v{T+4}, 31, v{L}               ; m")
        p(f"v_lshrrev_b32 v{T+5}, 5, v{L}")
        p(f"v_lshlrev_b32 v{T+5}, 8, v{T+5}")
        p(f"v_and_b32 v{T+6}, 15, v{L}")
        p(f"v_lshl_add_u32 v{T+5}, v{T+6}, 4, v{T+5}")
        p(f"v_add_u32 v{T+5}, 98304, v{T+5}")
        p(f"v_subrev_u32 v{T+6}, 20, v{T+4}")
        p(f"v_mov_b32 v{T+7}, {self.ONES+16}")
        p(f"v_mov_b32 v{T+8}, {self.ONES+80}")
        p(f"v_cmp_gt_u32 vcc, 8, v{T+6}")
        p(f"v_cndmask_b32 v{T+7}, v{T+7}, v{T+8}, vcc")
        p(f"v_and_b32 v{T+6}, 27, v{T+4}")
        p(f"v_subrev_u32 v{T+8}, 16, v{T+7}")
        p(f"v_cmp_eq_u32 vcc, 16, v{T+6}")
        p(f"v_cndmask_b32 v{T+7}, v{T+7}, v{T+8}, vcc")
        p(f"v_cmp_gt_u32 vcc, 16, v{T+4}")
        p(f"v_cndmask_b32 v{self.avV}, v{T+7}, v{T+5}, vcc")
        p(f"v_mov_b32 v{T+7}, 0")
        p(f"v_mov_b32 v{T+8}, 4096")
        p(f"v_cndmask_b32 v{self.avVinc}, v{T+7}, v{T+8}, vcc")
        self.P3COORD = True
        p(f"s_mov_b32 s{sTYPC}, s{sTYP}")
        p(f"s_lshl_b32 s{sRT64}, s{sXCD}, 2")
        p(f"s_and_b32 s{sA0}, s{sSLOT}, 3")
        p(f"s_add_u32 s{sRT64}, s{sRT64}, s{sA0}")
        p(f"s_lshr_b32 s{sCB}, s{sSLOT}, 2")
        p(f"s_lshr_b32 s{sKQ}, s{sW}, 1")
        p(f"s_and_b32 s{sTR}, s{sW}, 1")
        p(f"s_lshl_b32 s{sT32}, s{sRT64}, 1")
        p(f"s_add_u32 s{sT32}, s{sT32}, s{sTR}")
        q.wait(p, ["st16", "st17", "st20", "aq"])
        p("s_barrier")
        self.stamp("kv")
        N = self.nrmT()
        for sh in (1, 2, 4, 8):
            p(f"v_max_f32_dpp v{N+1}, v{N+1}, v{N+1} row_shr:{sh} row_mask:0xf bank_mask:0xf")
        p(f"v_max_f32_dpp v{N+1}, v{N+1}, v{N+1} row_bcast:15 row_mask:0xa bank_mask:0xf")
        p(f"v_max_f32_dpp v{N+1}, v{N+1}, v{N+1} row_bcast:31 row_mask:0xc bank_mask:0xf")
        p(f"v_readlane_b32 s{sA0}, v{N+1}, 63")
        p(f"v_mul_f32 v{N+2}, s{sA0}, v{N+2}")
        p(f"v_mov_b32 v{N+3}, {f2u(3600.0):#x}")
        p(f"v_cmp_le_f32 vcc, v{N+2}, v{N+3}")
        p(f"s_cmp_eq_u64 vcc, exec")
        p(f"s_cselect_b32 s{sMODE}, 0, 1")
        if self.o.get("force_slow"):
            p(f"s_mov_b32 s{sMODE}, 1")

    def att_tile(self, t, side):
        p = self.p
        tb = t & 3
        Sc, Sn = self.aS[t & 1], self.aS[(t + 1) & 1]
        Kn, Kl = self.aK[(t + 1) & 1], self.aK[t & 1]
        Vc, Vp = self.aV[t & 1], self.aV[(t + 1) & 1]
        Pc, Pp = self.aP[t & 1], self.aP[(t + 1) & 1]
        O, Q = self.aO, self.aQ
        ex = lambda i: p(f"v_exp_f32 v{Sc+i}, v{Sc+i}")
        cv = lambda i: p(f"v_cvt_pk_bf16_f32 v{Pc+i}, v{Sc+2*i}, v{Sc+2*i+1}")
        p("s_waitcnt lgkmcnt(0)")
        if t < 63:
            mfma(p, Sn, Kn, Q, None)
        if t < 62:
            p(f"ds_read_b128 {V4(Kl)}, v{self.avK} offset:{1024*(t+2)}")
        p(f"ds_read_b128 {V4(Vc)}, v{self.avV} offset:{1024*tb}")
        p(f"ds_read_b128 {V4(Vc+4)}, v{self.avV} offset:{1024*tb+512}")
        ex(0); ex(1); ex(2); cv(0); ex(3)
        if t > 0:
            mfma(p, O, Vp, Pp, None if t == 1 else O)
        if side:
            side[0]()
        ex(4); cv(1); ex(5); ex(6); cv(2); ex(7); ex(8); cv(3); ex(9)
        if t > 0:
            mfma(p, O, Vp + 4, Pp + 4, O)
        for f in side[1:]:
            f()
        ex(10); cv(4); ex(11); ex(12); cv(5); ex(13); ex(14); ex(15); cv(6)
        if tb == 3 and t < 63:
            p(f"v_add_u32 v{self.avV}, v{self.avVinc}, v{self.avV}")
        cv(7)

    def side_hstore(self, i):
        p = self.p
        def f():
            if i < 2:
                p(f"s_add_u32 s{sT1}, s{sQB}, {WS_HF + 1024*i:#x}")
                self.store_ws(128 + 4*i, self.avL16, sT1, "hst")
            else:
                n = uid()
                p(f"s_cmp_eq_u32 s{sTYPC}, 0")
                p(f"s_cbranch_scc1 L_noh_{n}")
                p(f"s_add_u32 s{sT1}, s{sHB1}, {WS_HF + 1024*(i-2):#x}")
                qa = self.q.fork()
                self.store_ws(136 + 4*(i-2), self.avL16, sT1, "hst")
                p(f"L_noh_{n}:")
                self.q = VMQ.join([qa, self.q])
                self.q.dedup()
        return f

    def side_kv(self, g, e):
        return lambda: self.p1_piece(g, e)

    def side_warm(self):
        p = self.p
        L, T = self.vLANE, self.avT
        def f():
            srd(p, SRD_T, sWD, 1792 * 1024)
            p(f"s_mul_i32 s{sA0}, s{sSLOT}, 57344")
            p(f"s_mul_i32 s{sA1}, s{sW}, 7168")
            p(f"s_add_u32 s{sA0}, s{sA0}, s{sA1}")
            p(f"v_lshlrev_b32 v{T}, 6, v{L}")
            p(f"buffer_load_dword v{T+3}, v{T}, {S4(SRD_T)}, s{sA0} offen")
            p(f"s_add_u32 s{sA0}, s{sA0}, 3072")
            p(f"buffer_load_dword v{T+4}, v{T}, {S4(SRD_T)}, s{sA0} offen")
            srd(p, SRD_T, sWO, 512 * 1024)
            p(f"s_lshl_b32 s{sA0}, s{sSLOT}, 14")
            p(f"s_lshl_b32 s{sA1}, s{sW}, 11")
            p(f"s_add_u32 s{sA0}, s{sA0}, s{sA1}")
            p(f"v_and_b32 v{T+6}, 31, v{L}")
            p(f"v_lshlrev_b32 v{T+6}, 6, v{T+6}")
            p(f"buffer_load_dword v{T+5}, v{T+6}, {S4(SRD_T)}, s{sA0} offen")
            self.q.push("warm", 3)
        return f

    def side_f2load(self):
        p, T = self.p, self.avT
        def f():
            p(f"s_lshr_b32 s{sA0}, s{sRT64}, 1")
            p(f"s_add_u32 s{sA0}, s{sA0}, {F2}")
            p(f"s_lshl_b32 s{sA0}, s{sA0}, 8")
            p(f"v_mov_b32 v{T}, s{sA0}")
            p(f"buffer_load_dword v{T+1}, v{T}, {S4(SRD_WS)}, 0 offen sc1")
            self.q.push("f2ld")
        return f

    def side_hload(self, j):
        p = self.p
        def f():
            if j == 0:
                p(f"s_mul_i32 s{sHLD}, s{sT32}, 112")
                p(f"s_mul_i32 s{sA1}, s{sKQ}, 28")
                p(f"s_add_u32 s{sHLD}, s{sHLD}, s{sA1}")
                p(f"s_lshl_b32 s{sHLD}, s{sHLD}, 10")
                p(f"s_add_u32 s{sHLD}, s{sHLD}, {WS_HF:#x}")
            o = f" offset:{1024*(j&3)}" if j & 3 else ""
            p(f"buffer_load_dwordx4 {V4(self.HFR + 4*j)}, v{self.avL16}, {S4(SRD_WS)}, s{sHLD} offen{o} sc1")
            self.q.push("hld")
            if (j & 3) == 3:
                p(f"s_add_u32 s{sHLD}, s{sHLD}, 4096")
        return f

    def side_lgload(self, i):
        p, L, T = self.p, self.vLANE, self.avT
        def f():
            if i == 0:
                p(f"v_lshrrev_b32 v{T+7}, 5, v{L}")
                p(f"v_lshlrev_b32 v{T+7}, 16, v{T+7}")
                p(f"v_and_b32 v{T+6}, 31, v{L}")
                p(f"v_lshl_add_u32 v{T+7}, v{T+6}, 2, v{T+7}")
                p(f"s_lshl_b32 s{sLGL}, s{sT32}, 7")
                p(f"s_add_u32 s{sLGL}, s{sLGL}, {WS_LG:#x}")
            p(f"buffer_load_dword v{self.LGR+i}, v{T+7}, {S4(SRD_WS)}, s{sLGL} offen sc1")
            self.q.push("lgl")
            if i < 7:
                p(f"s_add_u32 s{sLGL}, s{sLGL}, 8192")
        return f

    def att_b1(self):
        p, T = self.p, self.avT
        self.q.wait(p, ["hst", "st21", "st18", "lgst"])
        p("s_barrier")
        p(f"s_add_u32 s{sA0}, s{sRB}, {F2}")
        p(f"s_lshl_b32 s{sA0}, s{sA0}, 8")
        p(f"v_mov_b32 v{T+4}, {OOB:#x}")
        p(f"v_mov_b32 v{T+5}, s{sA0}")
        p(f"v_cmp_eq_u32 vcc, 0, v0")
        p(f"v_cndmask_b32 v{T+4}, v{T+4}, v{T+5}, vcc")
        p(f"v_mov_b32 v{T+5}, 1")
        p(f"buffer_atomic_add v{T+5}, v{T+4}, {S4(SRD_WS)}, 0 offen sc1")
        self.q.push("f2add")

    def att_b2(self):
        p, T = self.p, self.avT
        self.q.wait(p, ["st19", "st22", "st23", "f2ld"])
        poll(p, self.q, T + 1, T, SRD_WS, 16, "F2")
        p("s_waitcnt lgkmcnt(0)")
        p("s_barrier")
        self.p3_setup_dma()

    def att_sides(self):
        sd = {t: [] for t in range(64)}
        for i in range(5):
            sd[i].append(self.side_hstore(i))
        order = [(18, 0), (18, 1), (22, 0), (22, 1), (19, 0), (19, 1), (23, 0), (23, 1)]
        for k, (g, e) in enumerate(order):
            sd[5 + k].append(self.side_kv(g, e))
        if self.o.get("warm", 1):
            sd[18].append(self.side_warm())
        if self.o.get("wb"):
            def wb():
                n = uid()
                p = self.p
                p(f"s_add_u32 s{sA0}, s{sSLOT}, s{sW}")
                p(f"s_cmp_eq_u32 s{sA0}, 0")
                p(f"s_cbranch_scc0 L_nowb{n}")
                qa = self.q.fork()
                p("buffer_wbl2 sc1")
                self.q.push("wb")
                p(f"L_nowb{n}:")
                self.q = VMQ.join([qa, self.q]); self.q.dedup()
            sd[self.o["wb"]].append(wb)
        sd[28].append(self.side_f2load())
        ops = [(lambda g=g, e=e: self.p3_piece(g, e)) for g in range(2) for e in range(4)]
        ops2 = [self.side_hload(j) for j in range(28)] + [self.side_lgload(i) for i in range(8)]
        seq = []
        while ops or ops2:
            if ops:
                seq.append(ops.pop(0))
            if ops2:
                seq.append(ops2.pop(0))
        t = 32
        n2 = len(seq) - 31
        k = 0
        while k < len(seq):
            sd[t].append(seq[k]); k += 1
            if n2 > 0 and k < len(seq):
                sd[t].append(seq[k]); k += 1; n2 -= 1
            t += 1
        assert t <= 63, t
        return sd

    def att_slow_tile(self):
        p = self.p
        S, P, O, K, V, Q = self.aS[0], self.aP[0], self.aO, self.aK[0], self.aV[0], self.aQ
        T = self.avT
        m_old, m_new, al = T + 8, T + 9, T + 10
        p(f"ds_read_b128 {V4(K)}, v{self.avK}")
        p(f"ds_read_b128 {V4(V)}, v{self.avV}")
        p(f"ds_read_b128 {V4(V+4)}, v{self.avV} offset:512")
        p("s_waitcnt lgkmcnt(0)")
        mfma(p, S, K, Q, None)
        p(f"v_max3_f32 v{m_new}, v{S}, v{S+1}, v{S+2}")
        for r in range(3, 15, 2):
            p(f"v_max3_f32 v{m_new}, v{m_new}, v{S+r}, v{S+r+1}")
        p(f"v_max_f32 v{m_new}, v{m_new}, v{S+15}")
        p(f"v_mov_b32 v{al}, v{m_new}")
        p(f"v_permlane32_swap_b32 v{m_new}, v{al}")
        p(f"v_max3_f32 v{m_new}, v{m_new}, v{al}, v{m_old}")
        p(f"v_sub_f32 v{al}, v{m_old}, v{m_new}")
        p(f"v_exp_f32 v{al}, v{al}")
        p(f"v_mov_b32 v{m_old}, v{m_new}")
        for r in range(16):
            p(f"v_sub_f32 v{S+r}, v{S+r}, v{m_new}")
        for r in range(16):
            p(f"v_exp_f32 v{S+r}, v{S+r}")
        for r in range(16):
            p(f"v_mul_f32 v{O+r}, v{al}, v{O+r}")
        for i in range(8):
            p(f"v_cvt_pk_bf16_f32 v{P+i}, v{S+2*i}, v{S+2*i+1}")
        mfma(p, O, V, P, O)
        mfma(p, O, V + 4, P + 4, O)
        p(f"v_add_u32 v{self.avK}, 1024, v{self.avK}")
        p(f"v_lshrrev_b32 v{al}, 2, v{self.avVinc}")
        p(f"v_add_u32 v{self.avV}, v{al}, v{self.avV}")

    def attention(self):
        p, q = self.p, self.q
        self.att_setup()
        p(f"s_cmp_eq_u32 s{sMODE}, 0")
        p("s_cbranch_scc0 L_att_slow0")
        self.q_slow = self.q.fork()
        p(f"ds_read_b128 {V4(self.aK[0])}, v{self.avK}")
        p(f"ds_read_b128 {V4(self.aK[1])}, v{self.avK} offset:1024")
        p("s_waitcnt lgkmcnt(1)")
        mfma(p, self.aS[0], self.aK[0], self.aQ, None)
        prio = self.o.get("prio", 2)
        def ladder(t):
            if prio == 1:
                return 3 - t // 16
            return 3 - (t % 16) // 4 if t < 32 else 3 - (t - 32) // 8
        sd = self.att_sides()
        for t in range(64):
            if prio and (t == 0 or ladder(t) != ladder(t - 1)) and t not in (16, 32):
                p(f"s_setprio {ladder(t)}")
            if t in (16, 32, 48):
                self.stamp(f"seg{t//16}")
                if prio and t in (16, 32):
                    p(f"s_setprio {ladder(t)}")
                if t == 16:
                    self.att_b1()
                if t == 32:
                    self.att_b2()
                self.stamp(f"seg{t//16}e")
            self.att_tile(t, [] if self.o.get("noseg") else sd[t])
        p("s_waitcnt lgkmcnt(0)")
        mfma(p, self.aO, self.aV[1], self.aP[1], self.aO)
        mfma(p, self.aO, self.aV[1] + 4, self.aP[1] + 4, self.aO)
        p("L_att_fin:")
        self.stamp("att")
        O, T = self.aO, self.avT
        p(f"v_rcp_f32 v{T}, v{O+8}")
        for r in range(8):
            p(f"v_mul_f32 v{O+r}, v{T}, v{O+r}")
        for i in range(4):
            p(f"v_cvt_pk_bf16_f32 v{T+4+i}, v{O+2*i}, v{O+2*i+1}")
        p(f"s_lshl_b32 s{sA0}, s{sQC}, 3")
        p(f"s_add_u32 s{sA0}, s{sA0}, s{sW}")
        p(f"s_lshl_b32 s{sA0}, s{sA0}, 5")
        p(f"s_add_u32 s{sA0}, s{sA0}, s{sH}")
        p(f"s_lshl_b32 s{sA0}, s{sA0}, 10")
        p(f"s_add_u32 s{sA0}, s{sA0}, {WS_OF:#x}")
        p(f"buffer_store_dwordx4 {V4(T+4)}, v{self.avL16}, {S4(SRD_WS)}, s{sA0} offen sc1")
        self.q = VMQ()
        self.q.push("ost")

    def att_slow_code(self):
        p = self.p
        T = self.avT
        self.q = self.q_slow
        p("L_att_slow0:")
        p(f"v_mov_b32 v{T+8}, 0xff800000")
        for r in range(self.aO, self.aO + 16):
            p(f"v_mov_b32 v{r}, 0")
        sd = self.att_sides()
        def run(n):
            k = uid()
            p(f"s_mov_b32 s{sA3}, 0")
            p(f"L_att_slow_loop{k}:")
            self.att_slow_tile()
            p(f"s_add_u32 s{sA3}, s{sA3}, 1")
            p(f"s_cmp_lt_u32 s{sA3}, {n}")
            p(f"s_cbranch_scc1 L_att_slow_loop{k}")
        for t in range(0, 16):
            for f in sd[t]: f()
        run(16)
        self.att_b1()
        for t in range(16, 32):
            for f in sd[t]: f()
        run(16)
        self.att_b2()
        for t in range(32, 64):
            for f in sd[t]: f()
        run(32)
        p("s_branch L_att_fin")

    pWB = (16, 24)
    pB, pA = 32, 64
    pvD = 112
    pvR = (6, 7, 8, 9)
    pG = 10
    pOF = 128
    pT = 100

    P3SLOT = (1, 3, 0, 2, 4, 1, 3, 0, 2)

    def p3_slot(self, g):
        return 32768 * self.P3SLOT[g]

    def p3_setup_dma(self):
        p = self.p
        L, T = self.vLANE, self.avT
        srd(p, SRD_W2, sWD, 1792 * 1024)
        srd(p, SRD_X, sWO, 512 * 1024)
        p(f"v_bfe_u32 v{T}, v{L}, 4, 1")
        p(f"v_lshlrev_b32 v{T}, 2, v{T}")
        p(f"v_and_b32 v{T+1}, 7, v{L}")
        p(f"v_xor_b32 v{T}, v{T}, v{T+1}")
        p(f"v_lshlrev_b32 v{T}, 4, v{T}")
        p(f"s_lshl_b32 s{sA0}, s{sCB}, 7")
        p(f"v_add_u32 v{T}, s{sA0}, v{T}")
        p(f"v_lshrrev_b32 v{T+1}, 3, v{L}")
        p(f"s_lshl_b32 s{sA1}, s{sTR}, 5")
        p(f"v_add_u32 v{T+1}, s{sA1}, v{T+1}          ; 32*(w&1) + (l>>3)")
        p(f"s_mul_i32 s{sA0}, s{sKQ}, 448")
        p(f"v_add_u32 v{T+2}, s{sA0}, v{T+1}")
        p(f"v_lshl_add_u32 v{self.pvD}, v{T+2}, 10, v{T}")
        p(f"s_lshl_b32 s{sA0}, s{sKQ}, 7")
        p(f"v_add_u32 v{T+2}, s{sA0}, v{T+1}")
        p(f"v_lshl_add_u32 v{self.pvD+1}, v{T+2}, 10, v{T}")

    def p3_piece(self, g, e):
        p, q = self.p, self.q
        sl = self.p3_slot(g)
        if g < 7:
            srd_r, v, row0 = SRD_W2, self.pvD, 64 * g
        else:
            srd_r, v, row0 = SRD_X, self.pvD + 1, 64 * (g - 7)
        p(f"s_add_u32 m0, s{sM0K}, {sl + 1024*e}")
        p(f"s_mov_b32 s{sA1}, {(row0 + 8*e) * 1024}")
        p(f"buffer_load_dwordx4 v{v}, {S4(srd_r)}, s{sA1} offen lds")
        q.push(f"p3s{g}")

    def p3_emit(self, t, maxn):
        n = 0
        while self.pending3 and n < maxn:
            g, e = self.pending3[0]
            if g >= 5 and t < 4 * (g - 4) + 2:
                break
            self.pending3.pop(0)
            self.p3_piece(g, e)
            n += 1

    def p3_reads(self, t, cts=(0, 1)):
        p = self.p
        g, sp = t >> 2, t & 3
        sl = self.p3_slot(g)
        hi = 1 if sl >= 65536 else 0
        off = sl - 65536 * hi
        if sl >= 131072:
            hi, off = 2, sl - 131072
        wb = self.pWB[t & 1]
        for ct in cts:
            base = self.pvR[ct] if hi == 0 else self.pvR[2 + ct] if hi == 1 else self.pT + 8 + ct
            for j in range(2):
                p(f"ds_read_b64_tr_b16 {V2(wb + 4*ct + 2*j)}, v{base} offset:{off + (16*sp + 4*j) * 128}")
        return 2 * len(cts)

    def p3(self):
        p, q = self.p, self.q
        L, T = self.vLANE, self.pT
        p("s_waitcnt vmcnt(1)")
        p("s_barrier")
        self.pending3 = [(g, e) for g in range(2, 9) for e in range(4)]
        self.p3_emit(0, 4)
        p(f"v_lshrrev_b32 v{T}, 5, v{L}")
        p(f"v_lshlrev_b32 v{T}, 3, v{T}")
        p(f"v_bfe_u32 v{T+1}, v{L}, 2, 2")
        p(f"v_add_u32 v{T}, v{T}, v{T+1}             ; row")
        p(f"v_lshlrev_b32 v{T}, 7, v{T}              ; *128")
        p(f"v_and_b32 v{T+1}, 1, v{L}")
        p(f"v_lshlrev_b32 v{T+1}, 2, v{T+1}")
        p(f"v_bfe_u32 v{T+2}, v{L}, 4, 1")
        p(f"v_lshl_add_u32 v{T+1}, v{T+2}, 1, v{T+1}")
        p(f"v_bfe_u32 v{T+2}, v{L}, 1, 1")
        p(f"v_add_u32 v{T+1}, v{T+1}, v{T+2}          ; cg")
        p(f"v_lshl_add_u32 v{T}, v{T+1}, 3, v{T}")
        p(f"s_lshl_b32 s{sA0}, s{sKQ}, 13")
        p(f"v_add_u32 v{T}, s{sA0}, v{T}")
        p(f"v_bfe_u32 v{T+2}, v{L}, 3, 1")
        p(f"v_lshlrev_b32 v{T+2}, 6, v{T+2}           ; 64*b")
        p(f"v_add_u32 v{self.pvR[0]}, v{T}, v{T+2}     ; ct0: 64*b")
        p(f"v_xor_b32 v{T+2}, 64, v{T+2}")
        p(f"v_add_u32 v{self.pvR[1]}, v{T}, v{T+2}     ; ct1: 64*(1-b)")
        for ct in range(2):
            p(f"v_add_u32 v{self.pvR[2+ct]}, 0x10000, v{self.pvR[ct]}")
            p(f"v_add_u32 v{T+8+ct}, 0x20000, v{self.pvR[ct]}")
        self.stamp("p3st0")
        self.lgq = []
        for ct in range(2):
            self.lg_issue((0, ct), self.p3_reads(0, (ct,)))
        G = self.pG
        wA, rA0, rA1, oA = 114, 115, 116, 117
        B, A = self.pB, self.pA

        def gate():
            lg = self.LGR
            for i in range(1, 8):
                p(f"v_add_f32 v{lg}, v{lg}, v{lg+i}")
            p(f"v_mov_b32 v{lg+1}, v{lg}")
            p(f"v_permlane32_swap_b32 v{lg}, v{lg+1}")
            p(f"v_add_f32 v{lg}, v{lg}, v{lg+1}")
            p(f"v_mul_f32 v{lg}, {f2u(-1.4426950408889634):#x}, v{lg}")
            p(f"v_exp_f32 v{lg}, v{lg}")
            p(f"v_add_f32 v{lg}, 1.0, v{lg}")
            p(f"v_rcp_f32 v{G}, v{lg}")
            p(f"v_sub_f32 v{G+1}, 1.0, v{G}")

        def addr1():
            p(f"v_and_b32 v{T}, 31, v{L}                 ; n")
            p(f"v_and_b32 v{T+1}, 15, v{L}")
            p(f"v_lshrrev_b32 v{T+2}, 5, v{L}")
            p(f"v_lshlrev_b32 v{T+2}, 2, v{T+2}           ; 4hi")
            p(f"v_xor_b32 v{T+1}, v{T+1}, v{T+2}          ; (n&15) ^ 4hi")
            p(f"v_lshlrev_b32 v{T+1}, 4, v{T+1}")
            p(f"v_lshl_add_u32 v{T}, v{T}, 8, v{T+1}")
            p(f"s_lshl_b32 s{sA0}, s{sW}, 13")
            p(f"v_add_u32 v{wA}, s{sA0}, v{T}")

        def addr2():
            p(f"v_lshrrev_b32 v{T}, 3, v{L}")
            p(f"s_lshl_b32 s{sA0}, s{sKQ}, 3")
            p(f"v_add_u32 v{T}, s{sA0}, v{T}             ; rho")
            p(f"v_and_b32 v{T+1}, 7, v{L}")
            p(f"v_lshlrev_b32 v{T+1}, 1, v{T+1}           ; 2*(l&7)")
            p(f"v_and_b32 v{T+2}, 15, v{T}")
            p(f"v_xor_b32 v{T+1}, v{T+1}, v{T+2}")
            p(f"v_lshlrev_b32 v{T+1}, 4, v{T+1}")
            p(f"v_lshl_add_u32 v{T+1}, v{T}, 8, v{T+1}")
            p(f"s_lshl_b32 s{sA0}, s{sTR}, 13")
            p(f"v_add_u32 v{rA0}, s{sA0}, v{T+1}")
            p(f"v_xor_b32 v{rA1}, 16, v{rA0}              ; e=1")
            p(f"s_lshl_b32 s{sA0}, s{sT32}, 5")
            p(f"v_add_u32 v{T}, s{sA0}, v{T}")
            p(f"v_and_b32 v{T+3}, 7, v{L}")
            p(f"v_lshlrev_b32 v{T+3}, 4, v{T+3}")
            p(f"v_lshl_add_u32 v{T}, v{T}, 10, v{T+3}")
            p(f"s_lshl_b32 s{sA0}, s{sCB}, 7")
            p(f"v_add_u32 v{oA}, s{sA0}, v{T}")
            srd(p, SRD_T, sOUT, 2048 * 1024)

        def f3addr():
            p(f"s_add_u32 s{sA0}, s{sXCD}, {F3}")
            p(f"s_lshl_b32 s{sA0}, s{sA0}, 8")
            p(f"v_mov_b32 v{T+7}, s{sA0}")

        extra = {4: gate, 8: addr1, 9: f3addr, 12: addr2}
        for t in range(36):
            g = t >> 2
            if (t & 3) == 2:
                tags = [f"p3s{g+1}"] if 1 <= g < 8 else []
                if g == 0:
                    tags.append("ost")
                if g == 5:
                    tags.append("f3ld")
                self.stamp(f"qpre{g}")
                if tags:
                    q.wait(p, tags)
                if g == 5:
                    poll(p, q, T + 6, T + 7, SRD_WS, 32, "F3")
                self.stamp(f"qwait{g}")
                p("s_barrier")
                self.stamp(f"qbar{g}")
                if g == 0:
                    p(f"s_add_u32 s{sA0}, s{sQC}, {F3}")
                    p(f"s_lshl_b32 s{sA0}, s{sA0}, 8")
                    p(f"v_mov_b32 v{T}, {OOB:#x}")
                    p(f"v_mov_b32 v{T+1}, s{sA0}")
                    p(f"v_cmp_eq_u32 vcc, 0, v0")
                    p(f"v_cndmask_b32 v{T}, v{T}, v{T+1}, vcc")
                    p(f"v_mov_b32 v{T+1}, 1")
                    p(f"buffer_atomic_add v{T+1}, v{T}, {S4(SRD_WS)}, 0 offen sc1")
                    q.push("f3add")
                    self.stamp("f3")
                if g == 4:
                    p(f"buffer_load_dword v{T+6}, v{T+7}, {S4(SRD_WS)}, 0 offen sc1")
                    q.push("f3ld")
                if g == 5:
                    p(f"s_lshl_b32 s{sA2}, s{sT32}, 5")
                    p(f"s_lshl_b32 s{sA1}, s{sKQ}, 3")
                    p(f"s_add_u32 s{sA2}, s{sA2}, s{sA1}")
                    p(f"s_lshl_b32 s{sA2}, s{sA2}, 10")
                    p(f"s_add_u32 s{sA2}, s{sA2}, {WS_OF:#x}")
                    for j in range(8):
                        o = f" offset:{1024*(j&3)}" if j & 3 else ""
                        p(f"buffer_load_dwordx4 {V4(self.pOF + 4*j)}, v{self.avL16}, {S4(SRD_WS)}, s{sA2} offen{o} sc1")
                        q.push("ofr")
                        if j == 3:
                            p(f"s_add_u32 s{sA2}, s{sA2}, 4096")
            wb = self.pWB[t & 1]
            if t < 28:
                acc, bfr, first = self.pB, self.HFR + 4*t, t == 0
            else:
                acc, bfr, first = self.pA, self.pOF + 4*(t - 28), t == 28
            if t == 28:
                q.wait(p, "ofr")
            for ct in range(2):
                self.lg_wait((t, ct))
                mfma(p, acc + 16*ct, wb + 4*ct, bfr, None if first else acc + 16*ct)
                if t < 35:
                    self.lg_issue((t + 1, ct), self.p3_reads(t + 1, (ct,)))
                if ct == 0:
                    self.p3_emit(t, 2 if t < 4 else 1)
                    if t in extra:
                        extra[t]()
                if t >= 30 and t < 34:
                    k = 2*(t - 30) + ct
                    for r in range(4*k, 4*k + 4):
                        p(f"v_mul_f32 v{B+r}, v{G+1}, v{B+r}")
            if t == 27:
                self.stamp("p3a")
        self.stamp("p3b")
        for ct in range(2):
            for qq in range(4):
                r0 = 16*ct + 4*qq
                for r in range(r0, r0 + 4):
                    p(f"v_fmac_f32 v{B+r}, v{G}, v{A+r}")
                c = 8*ct + qq
                p(f"v_xor_b32 v{T+1+(qq&1)}, {16*c}, v{wA}")
                p(f"ds_write_b128 v{T+1+(qq&1)}, {V4(B + r0)}")
        p("s_waitcnt lgkmcnt(0)")
        p("s_barrier")
        R = 16
        for k in range(4):
            p(f"ds_read_b128 {V4(R + 8*k)}, v{rA0} offset:{16384*k}")
            p(f"ds_read_b128 {V4(R + 8*k + 4)}, v{rA1} offset:{16384*k}")
        p("s_waitcnt lgkmcnt(4)")
        for r in range(8):
            p(f"v_add_f32 v{R+r}, v{R+r}, v{R+8+r}")
        p("s_waitcnt lgkmcnt(0)")
        for r in range(8):
            p(f"v_add_f32 v{R+16+r}, v{R+16+r}, v{R+24+r}")
        for r in range(8):
            p(f"v_add_f32 v{R+r}, v{R+r}, v{R+16+r}")
        for i in range(4):
            p(f"v_cvt_pk_bf16_f32 v{R+8+i}, v{R+2*i}, v{R+2*i+1}")
        p(f"buffer_store_dwordx4 {V4(R+8)}, v{oA}, {S4(SRD_T)}, 0 offen" + (" sc1" if self.o.get("outsc1") else "") + (" nt" if self.o.get("outnt") else ""))

    def finish(self):
        p = self.p
        if self.o.get("twice"):
            p("s_waitcnt vmcnt(0) lgkmcnt(0)")
            p("s_barrier")
            p("s_cmp_eq_u32 s0, 0")
            p("s_mov_b32 s0, 1")
            p("s_cbranch_scc1 L_restart")
        if self.o.get("stamps"):
            p("s_waitcnt vmcnt(0)")
            self.stamp("end")
            self.dump_stamps()
        p("L_end:")
        p("s_endpgm")

    def build(self):
        self.prologue()
        self.p1()
        if self.stop_after != "p1":
            self.attention()
            if self.stop_after != "att":
                self.p3()
        self.finish()
        if self.stop_after != "p1":
            self.att_slow_code()
        self.p("L_codeend:")
        n = self.p.fix_hazards()
        return self.p.text(), n


HEADER = """; Kernarg layout (88 bytes): A_x, A_wqkv, A_wo, B_x, B_W_gate, B_W_up, B_W_down, gate_w, out, debug, ws
; @launch grid=(256,1,1) block=(512,1,1) lds=163840
.amdgcn_target "amdgcn-amd-amdhsa--gfx950"
.text
.globl {name}_kernel
.p2align 8
.type {name}_kernel,@function
{name}_kernel:
"""
FOOTER = """.section .rodata,"a"
.p2align 6
.amdhsa_kernel {name}_kernel
  .amdhsa_next_free_vgpr 256
  .amdhsa_next_free_sgpr 102
  .amdhsa_accum_offset 256
  .amdhsa_group_segment_fixed_size 0
  .amdhsa_kernarg_size 88
  .amdhsa_user_sgpr_count 2
  .amdhsa_user_sgpr_kernarg_segment_ptr 1
  .amdhsa_system_sgpr_workgroup_id_x 1
  .amdhsa_float_denorm_mode_32 3
.end_amdhsa_kernel
"""

def generate(stop_after=None, opts=None):
    opts = opts or {}
    POLLOPT["w0"] = opts.get("pollw0", 1)
    POLLOPT["sleep"] = opts.get("pollsleep", 0)
    g = Gen(stop_after, opts)
    body, n = g.build()
    return HEADER.format(name=NAME) + body + FOOTER.format(name=NAME), n, g.p.count()

if __name__ == "__main__":
    import argparse
    ap = argparse.ArgumentParser()
    ap.add_argument("--stop", default=None)
    ap.add_argument("-o", default="cdna_kernels/" + NAME + ".s")
    ap.add_argument("--opt", action="append", default=[])
    ap.add_argument("--stamps", default="")
    a = ap.parse_args()
    opts = {}
    for o in a.opt:
        k, _, v = o.partition("=")
        opts[k] = int(v) if v else 1
    names = a.stamps.split(",") if a.stamps else []
    if names:
        opts["stamps"] = 1
        opts["stampmap"] = {"start": 0, "end": 11}
        for i, nm in enumerate(names):
            opts["stampmap"][nm] = i + 1
    txt, n, cnt = generate(a.stop, opts)
    open(a.o, "w").write(txt)
    print(f"wrote {a.o}: {cnt} instructions, {n} nop pads")
```

```python
import sys, os
sys.path.insert(0, os.path.dirname(os.path.abspath(__file__)))
from asmlib import Prog, VMQ

NAME = "gated_mix__mha_block__glu_gated_reglu__prompt"

WS_CNT = 0x0
WS_NRMQ = 0x4000
WS_NRMK = 0x6000
WS_LG = 0x10000
WS_QF = 0x200000
WS_KF = 0x400000
WS_VF = 0x600000
WS_OF = 0x800000
WS_HF = 0xA00000
WS_SIZE = 0x1100000
OOB = 0x7FFF0000
F1, F2, F3 = 0, 16, 32

CSCALE = 0.25 * 1.4426950408889634
import struct
def f2u(x): return struct.unpack("<I", struct.pack("<f", x))[0]

sX, sWQKV, sWO, sWG, sWU, sWD, sGW, sOUT, sDBG, sWS = 4, 6, 8, 12, 14, 16, 18, 20, 22, 24
SRD_X, SRD_WS, SRD_G, SRD_DBG, SRD_T, SRD_W1, SRD_U = 28, 32, 36, 40, 44, 96, 4
SRD_W2 = SRD_G
sD1, sD2, sM0K, sM0X, sD0, sM0P, sCB2 = 0, 1, 3, 10, 11, 26, 27
sM0X2 = 26
sW, sRB, sAB, sRT, sCH, sTILE, sXCD, sSLOT = 48, 49, 50, 51, 52, 53, 54, 55
sT0, sT1, sT2, sT3, sT4, sT5 = 56, 57, 58, 59, 60, 61
sADV = 62
sH, sQC = 63, 64
sCS = 65
sPOLL = 66
sTYP = 67
sHFB = 68
sW1OFF, sKVB = 100, 101
sQB, sLGO, sHB1 = 18, 19, 22
sVM = 14
sNB, sCS2 = 13, 14
sEXP, sLOC = 23, 12
sTYPC, sHLD, sLGL = 23, 24, 25
sA0, sA1, sA2, sA3 = 56, 57, 58, 59
sI, sMODE, sT32, sRT64, sCB, sKQ, sTR = 60, 61, 62, 67, 68, 10, 11

def srd(p, dst, ptr, size):
    p(f"s_mov_b32 s{dst}, s{ptr}")
    p(f"s_mov_b32 s{dst+1}, s{ptr+1}")
    p(f"s_mov_b32 s{dst+2}, {size:#x}")
    p(f"s_mov_b32 s{dst+3}, 0x20000")

def S4(r): return f"s[{r}:{r+3}]"
def V4(r): return f"v[{r}:{r+3}]"
def V2(r): return f"v[{r}:{r+1}]"
def V16(r): return f"v[{r}:{r+15}]"

def mfma(p, d, a, b, c):
    cs = "0" if c is None else V16(c)
    p(f"v_mfma_f32_32x32x16_bf16 {V16(d)}, {V4(a)}, {V4(b)}, {cs}")

_uid = [0]
def uid():
    _uid[0] += 1
    return _uid[0]

POLLOPT = {"w0": 1, "sleep": 1}
def poll(p, q, vflag, vaddr, srd_reg, target, what):
    n = uid()
    if POLLOPT["w0"]:
        p(f"s_cmp_eq_u32 s{sW}, 0")
        p(f"s_cbranch_scc0 L_ok{n}")
    p(f"v_readfirstlane_b32 s{sT0}, v{vflag}")
    p(f"s_cmp_ge_u32 s{sT0}, {target}")
    p(f"s_cbranch_scc1 L_ok{n}")
    p(f"s_mov_b32 s{sPOLL}, 0")
    p(f"L_poll{n}:")
    if POLLOPT["sleep"]:
        p(f"s_sleep {POLLOPT['sleep']}")
    p(f"buffer_load_dword v{vflag}, v{vaddr}, {S4(srd_reg)}, 0 offen sc1")
    p("s_waitcnt vmcnt(0)")
    p(f"v_readfirstlane_b32 s{sT0}, v{vflag}")
    p(f"s_add_u32 s{sPOLL}, s{sPOLL}, 1")
    p(f"s_cmp_ge_u32 s{sPOLL}, 0x80000")
    p(f"s_cbranch_scc1 L_ok{n}")
    p(f"s_cmp_lt_u32 s{sT0}, {target}")
    p(f"s_cbranch_scc1 L_poll{n}")
    p(f"L_ok{n}:")


class Gen:
    def __init__(self, stop_after=None, opts=None):
        self.p = Prog()
        self.q = VMQ()
        self.stop_after = stop_after
        self.o = opts or {}

    def stamp(self, name):
        if self.o.get("stamps"):
            i = self.o["stampmap"].get(name)
            if i is not None:
                ins = "s_memrealtime" if self.o.get("rt") else "s_memtime"
                self.p(f"{ins} s[{72+2*i}:{73+2*i}] ; stamp {name}")

    def dump_stamps(self):
        if not self.o.get("stamps"):
            return
        p = self.p
        p("s_memrealtime s[70:71]")
        p("s_waitcnt lgkmcnt(0)")
        p(f"s_lshl_b32 s{sT0}, s2, 3")
        p(f"s_add_u32 s{sT0}, s{sT0}, s{sW}")
        p(f"s_lshl_b32 s{sT0}, s{sT0}, 6")
        p(f"s_add_u32 s{sT0}, s{sT0}, 0x80000")
        for i in range(12):
            p(f"v_mov_b32 v{16+i}, s{72+2*i}")
        p("v_mov_b32 v28, s69")
        p("v_mov_b32 v29, s70")
        p("v_mov_b32 v30, 0")
        p("v_mov_b32 v31, 0")
        p("v_mov_b32 v32, 0")
        p("s_mov_b64 exec, 1")
        for i in range(4):
            p(f"buffer_store_dwordx4 {V4(16+4*i)}, v32, {S4(SRD_WS)}, s{sT0} offen offset:{16*i}")
        p("s_mov_b64 exec, -1")

    def prologue(self):
        p = self.p
        p("s_cmp_ge_u32 s2, 256")
        p("s_cbranch_scc1 L_end")
        if self.o.get("perm"):
            p("s_lshl_b32 s3, s2, 3")
            p("s_lshr_b32 s2, s2, 5")
            p("s_or_b32 s2, s2, s3")
            p("s_and_b32 s2, s2, 255")
        if self.o.get("stamps"):
            p("s_memrealtime s[70:71]")
        p(f"s_load_dwordx4 s[4:7], s[0:1], 0")
        p(f"s_load_dwordx2 s[8:9], s[0:1], 16")
        p(f"s_load_dwordx4 s[12:15], s[0:1], 32")
        p(f"s_load_dwordx4 s[16:19], s[0:1], 48")
        p(f"s_load_dwordx4 s[20:23], s[0:1], 64")
        p(f"s_load_dwordx2 s[24:25], s[0:1], 80")
        if self.o.get("pf", 1):
            p("s_getpc_b64 s[26:27]")
            p("L_pfbase:")
            p("s_lshr_b32 s3, s2, 3")
            p("v_lshrrev_b32 v1, 6, v0")
            p("v_lshl_add_u32 v1, s3, 3, v1")
            p("v_and_b32 v2, 3, v0")
            p("v_lshl_add_u32 v1, v1, 2, v2")
            p("v_min_u32 v1, (L_codeend-L_pfbase)/64-1, v1")
            p("v_lshlrev_b32 v1, 6, v1")
            p("global_load_dword v127, v1, s[26:27]")
            self.q.push("pf")
        for i in range(self.o.get("padk", 0) * 128):
            p("s_mov_b32 s69, 0x12345678")
        p("v_lshrrev_b32 v1, 6, v0")
        p("v_and_b32 v2, 63, v0            ; v2 = lane")
        p(f"v_readfirstlane_b32 s{sW}, v1")
        p(f"s_and_b32 s{sXCD}, s2, 7")
        p(f"s_lshr_b32 s{sSLOT}, s2, 3")
        if self.o.get("local", 1):
            p(f"s_and_b32 s{sRB}, s{sSLOT}, 15")
            p(f"s_lshr_b32 s{sTYP}, s{sSLOT}, 4")
            p(f"s_mov_b32 s{sAB}, s{sXCD}")
        else:
            p(f"s_and_b32 s{sT0}, s{sXCD}, 1")
            p(f"s_lshl_b32 s{sT0}, s{sT0}, 3")
            p(f"s_and_b32 s{sT1}, s{sSLOT}, 7")
            p(f"s_add_u32 s{sRB}, s{sT0}, s{sT1}")
            p(f"s_lshr_b32 s{sTYP}, s{sSLOT}, 4")
            p(f"s_and_b32 s{sT0}, s{sXCD}, 6              ; 2*(xcd>>1)")
            p(f"s_bfe_u32 s{sT1}, s{sSLOT}, 0x10003       ; (slot>>3)&1")
            p(f"s_add_u32 s{sAB}, s{sT0}, s{sT1}          ; a / b = 0..7")
        p(f"s_and_b32 s{sRT}, s{sW}, 3")
        p(f"s_lshr_b32 s{sCH}, s{sW}, 2")
        p(f"s_lshl_b32 s{sT0}, s{sRB}, 2")
        p(f"s_add_u32 s{sTILE}, s{sT0}, s{sRT}")
        p(f"s_lshl_b32 s{sT0}, s{sXCD}, 2")
        p(f"s_and_b32 s{sT1}, s{sSLOT}, 3")
        p(f"s_add_u32 s{sH}, s{sT0}, s{sT1}           ; attention head")
        p(f"s_lshr_b32 s{sQC}, s{sSLOT}, 2           ; attention q chunk")
        p(f"s_mov_b32 s{sCS}, {f2u(CSCALE):#x}")
        if self.o.get("twice"):
            p("s_waitcnt lgkmcnt(0)")
            p("s_mov_b32 s0, 0")
            p("s_waitcnt lgkmcnt(0)")
            p("L_restart:")
        self.p1_setup_early()
        p("s_waitcnt lgkmcnt(0)")
        if self.o.get("stamps"):
            p("s_mov_b32 s69, s70")
            for i in range(12):
                p(f"s_mov_b32 s{72+2*i}, 0")
        self.stamp("start")
        srd(p, SRD_X, sX, 2048 * 1024)
        self.p1_setup_srd()

    vLANE = 2
    vXD = (3, 4)
    vW1 = (5, 6, 7)
    vW2 = (8, 9)
    vB = (10, 11, 12)
    vL16 = 13
    vP = (14, 15)
    WB = (16, 28)
    vXR = (40, 41, 42, 43)
    vFLAG, vFADDR, vONE, vDBGA = 44, 45, 46, 47
    TMP = 48
    ACC = 64
    TMP2 = 112
    X = 128
    SLOT1 = 40960
    AREA2 = {8: 0, 9: 16384, 10: 40960, 11: 57344, 12: 98304, 13: 81920, 14: 131072, 15: 147456}
    KVAREA = {16+j: 32768 + 16384*j for j in range(4)}
    KVAREA.update({20+j: 98304 + 16384*j for j in range(4)})
    ONES = 0
    F1G = 14

    def area(self, g):
        if g < 8:
            return self.SLOT1 * (g % 4)
        if g < 16:
            return self.AREA2[g]
        return self.KVAREA[g]

    def ovl(self):
        return self.o.get("ovl", 0)

    def acc2(self):
        return 96 if self.ovl() else self.ACC

    def window(self, g):
        if g < 8:
            return 81920 if (g % 4) >= 2 else 0
        return 131072 if self.AREA2[g] >= 131072 else 81920 if self.AREA2[g] >= 81920 else 0

    def p1_setup_early(self):
        p = self.p
        L = self.vLANE
        t0, t1, t2, t3 = 48, 49, 50, 51
        p(f"v_lshlrev_b32 v{self.vL16}, 4, v{L}")
        p(f"s_lshl_b32 s{sT0}, s{sRB}, 7")
        p(f"s_lshl_b32 s{sT1}, s{sW}, 4")
        p(f"s_add_u32 s{sT0}, s{sT0}, s{sT1}")
        p(f"v_lshrrev_b32 v{t1}, 3, v{L}             ; l>>3")
        p(f"v_add_u32 v{t2}, s{sT0}, v{t1}           ; row (e=0)")
        p(f"v_lshrrev_b32 v{t0}, 4, v{L}")
        p(f"v_and_b32 v{t3}, 7, v{L}                 ; l&7")
        p(f"v_xor_b32 v{t0}, v{t0}, v{t3}            ; piece (e=0)")
        p(f"v_lshlrev_b32 v{t0}, 4, v{t0}")
        p(f"v_lshl_add_u32 v{self.vXD[0]}, v{t2}, 10, v{t0}")
        p(f"v_xor_b32 v{t0}, 64, v{self.vXD[0]}        ; piece ^ 4")
        p(f"v_add_u32 v{self.vXD[1]}, 8192, v{t0}      ; +8 rows")
        p(f"v_bfe_u32 v{t0}, v{L}, 4, 1")
        p(f"v_lshlrev_b32 v{t0}, 2, v{t0}")
        p(f"v_xor_b32 v{t3}, v{t3}, v{t0}")
        p(f"v_lshlrev_b32 v{t3}, 4, v{t3}")
        p(f"s_lshl_b32 s{sT0}, s{sW}, 3")
        p(f"v_add_u32 v{t1}, s{sT0}, v{t1}           ; 8w + (l>>3)")
        p(f"s_mul_i32 s{sT0}, s{sAB}, 320")
        p(f"s_add_u32 s{sT0}, s{sT0}, 1024")
        p(f"s_and_b32 s{sT1}, s{sAB}, 1")
        p(f"s_mul_i32 s{sT2}, s{sT1}, 192")
        p(f"s_add_u32 s{sCB2}, s{sT0}, s{sT2}")
        p(f"s_xor_b32 s{sT1}, s{sT1}, 1")
        p(f"s_lshl_b32 s{sT1}, s{sT1}, 7")
        p(f"s_add_u32 s{sT4}, s{sT0}, s{sT1}")
        p(f"s_lshl_b32 s{sT0}, s{sAB}, 7")
        p(f"s_cmp_eq_u32 s{sTYP}, 0")
        p(f"s_cselect_b32 s{sCB2}, s{sT0}, s{sCB2}")
        p(f"v_mul_u32_u24 v{t0}, 3584, v{t1}")
        p(f"v_add3_u32 v{self.vW2[0]}, v{t0}, v{t3}, s{sCB2}")
        p(f"v_xor_b32 v{t2}, 32, v{t3}")
        p(f"v_add3_u32 v{self.vW2[1]}, v{t0}, v{t2}, s{sCB2}")
        p(f"s_cbranch_scc0 L_setupB")
        p(f"v_mul_u32_u24 v{t0}, 3072, v{t1}")
        p(f"v_add3_u32 v{self.vW1[0]}, v{t0}, v{t3}, s{sT0}")
        p(f"v_add3_u32 v{t2}, v{t0}, v{t2}, s{sT0}")
        p(f"v_add_u32 v{self.vW1[1]}, 1024, v{t2}")
        p(f"v_add_u32 v{self.vW1[2]}, 2048, v{self.vW1[0]}")
        p(f"s_lshl_b32 s{sD0}, s{sW}, 10")
        p(f"s_add_u32 s{sD0}, s{sD0}, 16384")
        p(f"s_movk_i32 s{sT5}, 8192")
        p(f"s_mov_b32 s{sADV}, {64*3072}")
        p("s_branch L_setupJ")
        p("L_setupB:")
        p(f"s_and_b32 s{sT0}, s{sW}, 3")
        p(f"s_lshl_b32 s{sT1}, s{sT0}, 4             ; 16*wq")
        p(f"s_mov_b32 s{sT2}, 43691")
        p(f"s_lshl_b32 s{sT3}, s{sCH}, 1")
        for e in range(3):
            r = self.vW1[e]
            p(f"v_add_u32 v{t0}, {64*e}, v{L}           ; j")
            p(f"v_mul_u32_u24 v{t1}, s{sT2}, v{t0}")
            p(f"v_lshrrev_b32 v{t1}, 19, v{t1}          ; j/12")
            p(f"v_mul_u32_u24 v{t2}, 12, v{t1}")
            p(f"v_sub_u32 v{t2}, v{t0}, v{t2}           ; j%12")
            p(f"v_xor_b32 v{t2}, s{sT3}, v{t2}")
            p(f"v_add_u32 v{t1}, s{sT1}, v{t1}")
            p(f"v_mul_u32_u24 v{t1}, 3584, v{t1}")
            p(f"v_lshl_add_u32 v{t1}, v{t2}, 4, v{t1}")
            p(f"v_add_u32 v{r}, s{sT4}, v{t1}")
        p(f"s_mul_i32 s{sD0}, s{sT0}, 3072")
        p(f"s_mul_i32 s{sT1}, s{sCH}, 12288")
        p(f"s_add_u32 s{sD0}, s{sD0}, s{sT1}")
        p(f"s_add_u32 s{sD0}, s{sD0}, 16384")
        p(f"s_movk_i32 s{sT5}, 1024")
        p(f"s_mov_b32 s{sADV}, {64*3584}")
        p(f"s_lshr_b32 s{sHFB}, s{sT4}, 5")
        p("L_setupJ:")
        p(f"s_lshl_b32 s{sM0X}, s{sW}, 11")
        p(f"s_lshl_b32 s{sM0K}, s{sW}, 12")
        p(f"s_lshl_b32 s{sM0P}, s{sW}, 10")
        p(f"s_mov_b32 s{sW1OFF}, 0")

    def p1_setup_srd(self):
        p = self.p
        p(f"s_add_u32 s{sD1}, s{sD0}, s{sT5}")
        p(f"s_add_u32 s{sD2}, s{sD1}, s{sT5}")
        p(f"s_cmp_eq_u32 s{sCH}, 0")
        p(f"s_cselect_b32 s{SRD_W1}, s{sWG}, s{sWU}")
        p(f"s_cselect_b32 s{SRD_W1+1}, s{sWG+1}, s{sWU+1}")
        p(f"s_mov_b32 s{SRD_W1+2}, {512*3584:#x}")
        p(f"s_cmp_eq_u32 s{sTYP}, 0")
        p(f"s_cselect_b32 s{SRD_W1}, s{sWQKV}, s{SRD_W1}")
        p(f"s_cselect_b32 s{SRD_W1+1}, s{sWQKV+1}, s{SRD_W1+1}")
        p(f"s_cselect_b32 s{SRD_W1+2}, {512*3072:#x}, s{SRD_W1+2}")
        p(f"s_mov_b32 s{SRD_W1+3}, 0x20000")

    def p1_setup_late(self):
        p, q = self.p, self.q
        L = self.vLANE
        t0, t1, t2, t3 = 48, 49, 50, 51
        srd(p, SRD_G, sWG, 512 * 3584)
        srd(p, SRD_U, sWU, 512 * 3584)
        srd(p, SRD_T, sGW, 1024)
        p(f"s_lshl_b32 s{sT0}, s{sTYP}, 3")
        p(f"s_add_u32 s{sT0}, s{sT0}, s{sAB}")
        p(f"s_lshl_b32 s{sT1}, s{sT0}, 6            ; *64 bytes")
        p(f"v_lshrrev_b32 v{t0}, 5, v{L}             ; hh")
        p(f"v_lshlrev_b32 v{t0}, 4, v{t0}            ; hh*16")
        p(f"v_add_u32 v{t0}, s{sT1}, v{t0}")
        p(f"buffer_load_dwordx4 {V4(112)}, v{t0}, {S4(SRD_T)}, 0 offen")
        p(f"buffer_load_dwordx4 {V4(116)}, v{t0}, {S4(SRD_T)}, 0 offen offset:32")
        q.push("lgld", 2)
        rowl, sig, grp = 52, 53, 54
        p(f"v_lshrrev_b32 v{t0}, 5, v{L}")
        p(f"v_lshlrev_b32 v{t0}, 3, v{t0}")
        p(f"v_bfe_u32 v{t1}, v{L}, 2, 2")
        p(f"v_add_u32 v{rowl}, v{t0}, v{t1}")
        p(f"v_and_b32 v{t0}, 1, v{L}")
        p(f"v_lshlrev_b32 v{t0}, 4, v{t0}            ; (g&1)*16")
        p(f"v_bfe_u32 v{t1}, v{L}, 1, 1")
        p(f"v_lshl_add_u32 v{sig}, v{t1}, 3, v{t0}    ; 8*sigma")
        p(f"v_bfe_u32 v{grp}, v{L}, 4, 1")
        p(f"v_bfe_u32 v{t0}, v{L}, 3, 1")
        p(f"v_xor_b32 v{t0}, s{sCH}, v{t0}")
        p(f"v_lshlrev_b32 v{t0}, 6, v{t0}")
        p(f"v_lshl_add_u32 v{t0}, v{rowl}, 7, v{t0}")
        p(f"v_add_u32 v{t0}, v{t0}, v{sig}            ; c128")
        p(f"v_mul_u32_u24 v{t1}, {8192+32}, v{grp}")
        p(f"v_add_u32 v{self.vP[0]}, v{t0}, v{t1}")
        p(f"v_xor_b32 v{self.vP[1]}, 32, v{self.vP[0]}")
        p(f"s_cmp_eq_u32 s{sTYP}, 0")
        p(f"s_cbranch_scc0 L_lateB")
        p(f"v_add_u32 v{self.vB[0]}, 16384, v{self.vP[0]}")
        p(f"v_add_u32 v{self.vB[1]}, 16384, v{self.vP[1]}")
        p(f"v_lshl_add_u32 v{t1}, v{grp}, 5, v{t0}")
        p(f"v_add_u32 v{self.vB[2]}, 32768, v{t1}")
        p("s_branch L_lateJ")
        p("L_lateB:")
        p(f"s_mul_i32 s{sT0}, s{sCH}, 96")
        p(f"s_add_u32 s{sT0}, s{sT0}, 16384")
        p(f"v_mul_u32_u24 v{t1}, 192, v{rowl}")
        p(f"v_add3_u32 v{t1}, v{t1}, v{sig}, s{sT0}")
        p(f"s_lshl_b32 s{sT1}, s{sCH}, 6")
        p(f"s_sub_u32 s{sT1}, {12288+32}, s{sT1}")
        p(f"s_sub_u32 s{sT2}, {2*12288}, s{sT1}")
        p(f"v_mul_u32_u24 v{t2}, s{sT1}, v{grp}")
        p(f"v_add_u32 v{self.vB[0]}, v{t1}, v{t2}")
        p(f"v_mul_u32_u24 v{t2}, s{sT2}, v{grp}")
        p(f"v_add_u32 v{self.vB[1]}, v{t1}, v{t2}")
        p(f"v_mov_b32 v{self.vB[2]}, v{self.vB[0]}")
        p("L_lateJ:")
        p(f"v_and_b32 v{t0}, 31, v{L}")
        p(f"s_lshl_b32 s{sT0}, s{sRT}, 5")
        p(f"v_add_u32 v{t1}, s{sT0}, v{t0}")
        p(f"v_lshlrev_b32 v{t1}, 7, v{t1}            ; row*128")
        p(f"v_bfe_u32 v{t0}, v{L}, 1, 3")
        p(f"v_lshrrev_b32 v{t2}, 5, v{L}")
        p(f"v_xor_b32 v{t0}, v{t0}, v{t2}            ; hh ^ f")
        p(f"v_lshl_add_u32 v{t1}, v{t0}, 4, v{t1}")
        for k in range(4):
            p(f"v_xor_b32 v{self.vXR[k]}, {32*k}, v{t1}")
        p(f"v_mov_b32 v{self.vONE}, 1")
        p(f"v_mov_b32 v{self.vDBGA}, 0")
        self.win1 = 0
        self.win2 = 0

    def counter_zero(self):
        p = self.p
        L = self.vLANE
        t0, t1 = 48, 49
        p("s_add_u32 s%d, s2, s%d" % (sT0, sW))
        p(f"s_cmp_eq_u32 s{sT0}, 0")
        p(f"s_cselect_b32 s{sT0}, 0, {OOB:#x}")
        p(f"v_lshlrev_b32 v{t0}, 8, v{L}")
        p(f"v_add_u32 v{t0}, s{sT0}, v{t0}")
        p(f"v_mov_b32 v{t1}, 0")
        p(f"buffer_store_dword v{t1}, v{t0}, {S4(SRD_WS)}, 0 offen sc1")
        self.q.push("cz")

    def census_add(self):
        p = self.p
        t0, t1 = 48, 49
        p(f"v_readfirstlane_b32 s{sT3}, v{self.vFLAG}")
        p(f"s_getreg_b32 s{sT0}, hwreg(HW_REG_XCC_ID, 0, 4)")
        p(f"s_mul_i32 s{sT1}, s{sT0}, s{sT0}")
        p(f"s_lshl_b32 s{sT1}, s{sT1}, 16")
        p(f"s_lshl_b32 s{sT2}, s{sT0}, 8")
        p(f"s_add_u32 s{sT1}, s{sT1}, s{sT2}")
        p(f"s_add_u32 s{sT1}, s{sT1}, 1")
        p(f"s_lshl_b32 s{sEXP}, s{sT1}, 5")
        p(f"s_add_u32 s{sT2}, s{sXCD}, 48")
        p(f"s_lshl_b32 s{sT2}, s{sT2}, 8")
        p(f"s_cmp_ge_u32 s{sT3}, 1")
        p(f"s_cselect_b32 s{sT2}, s{sT2}, {OOB:#x}")
        p(f"s_cselect_b32 s{sLOC}, 1, 0")
        p(f"v_mov_b32 v{t0}, {OOB:#x}")
        p(f"v_mov_b32 v{t1}, s{sT2}")
        p(f"v_cmp_eq_u32 vcc, 0, v0")
        p(f"v_cndmask_b32 v{t0}, v{t0}, v{t1}, vcc")
        p(f"v_mov_b32 v{t1}, s{sT1}")
        p(f"buffer_atomic_add v{t1}, v{t0}, {S4(SRD_WS)}, 0 offen sc1")
        self.q.push("cadd")

    def census_load(self):
        p = self.p
        p(f"s_add_u32 s{sT2}, s{sXCD}, 48")
        p(f"s_lshl_b32 s{sT2}, s{sT2}, 8")
        p(f"v_mov_b32 v{self.vFADDR}, s{sT2}")
        p(f"buffer_load_dword v{self.vFLAG}, v{self.vFADDR}, {S4(SRD_WS)}, 0 offen sc1")
        self.q.push("cld")

    def census_check(self):
        p = self.p
        self.q.wait(p, "cld")
        p(f"v_readfirstlane_b32 s{sT0}, v{self.vFLAG}")
        p(f"s_cmp_eq_u32 s{sT0}, s{sEXP}")
        p(f"s_cselect_b32 s{sLOC}, s{sLOC}, 0")
        if self.o.get("nolocal"):
            p(f"s_mov_b32 s{sLOC}, 0")

    def counter_flag(self):
        p = self.p
        t0, t1 = 48, 49
        p(f"s_cmp_eq_u32 s2, 0")
        p(f"s_cselect_b32 s{sT0}, 0, {OOB:#x}")
        p(f"v_mov_b32 v{t0}, {OOB:#x}")
        p(f"v_mov_b32 v{t1}, s{sT0}")
        p(f"v_cmp_eq_u32 vcc, 0, v0")
        p(f"v_cndmask_b32 v{t0}, v{t0}, v{t1}, vcc")
        p(f"v_mov_b32 v{t1}, 1")
        p(f"buffer_store_dword v{t1}, v{t0}, {S4(SRD_DBG)}, 0 offen sc1")
        self.q.push("cf")

    def p1_piece(self, g, e):
        p, q = self.p, self.q
        ar = self.area(g)
        if g < 8:
            if e < 2:
                p(f"s_add_u32 m0, s{sM0X}, {ar + 1024*e}")
                p(f"s_movk_i32 s{sT1}, {128*g}")
                p(f"buffer_load_dwordx4 v{self.vXD[e]}, {S4(SRD_X)}, s{sT1} offen lds")
            else:
                d = (sD0, sD1, sD2)[e - 2]
                p(f"s_add_u32 m0, s{d}, {ar}")
                if e == 2 and g > 0:
                    p(f"s_add_u32 s{sW1OFF}, s{sW1OFF}, s{sADV}")
                else:
                    p("s_nop 0")
                p(f"buffer_load_dwordx4 v{self.vW1[e-2]}, {S4(SRD_W1)}, s{sW1OFF} offen lds")
        elif g < 16:
            p(f"s_add_u32 m0, s{sM0P}, {ar + 8192*e}")
            p(f"s_mov_b32 s{sT1}, {229376*(g-8)}")
            p(f"buffer_load_dwordx4 v{self.vW2[e]}, {S4(SRD_G if e == 0 else SRD_U)}, s{sT1} offen lds")
        else:
            j = (g - 16) & 3
            src = (WS_KF if g < 20 else WS_VF) + 16384 * j + 1024 * e
            p(f"s_add_u32 m0, s{sM0X2}, {ar + 1024*e}")
            p(f"s_add_u32 s{sT1}, s{sKVB}, {src:#x}")
            p(f"buffer_load_dwordx4 v{self.avL16}, {S4(SRD_WS)}, s{sT1} offen sc1 lds")
        q.push(f"st{g}")

    def earliest(self, g):
        if g >= 8:
            return {8: 22, 9: 22, 10: 26, 11: 26, 12: 30, 13: 30, 14: 36, 15: 36}[g]
        return 4 * (g - 3) + 2

    def npieces(self, g):
        return 5 if g < 8 else 2

    def emit_pieces(self, step, maxn):
        n = 0
        while self.pending and n < maxn:
            g, e = self.pending[0]
            if g == "aq":
                if step < 4 * self.F1G + 2:
                    break
                self.pending.pop(0)
                if self.stop_after != "p1":
                    self.att_loads()
                n += 1
                continue
            if 4 <= g < 16 and step < self.earliest(g):
                break
            if g >= 16 and step < 4 * self.F1G + 2:
                break
            if g >= 16 and self.stop_after == "p1":
                self.pending.pop(0)
                continue
            self.pending.pop(0)
            self.p1_piece(g, e)
            n += 1

    def rebase(self, regs, cur, want):
        if want != cur:
            d = want - cur
            for r in regs:
                if d > 0:
                    self.p(f"v_add_u32 v{r}, {d:#x}, v{r}")
                else:
                    self.p(f"v_subrev_u32 v{r}, {-d:#x}, v{r}")
        return want

    def p1_reads(self, ps, s, typ, part=None):
        p = self.p
        g = (s >> 2) + (0 if ps == 1 else 8)
        sp = s & 3
        wb = self.WB[s & 1]
        n = 0
        nt = 3 if ps == 1 else 2
        parts = range(nt) if part is None else [part]
        for t in parts:
            if t >= nt:
                continue
            if ps == 1:
                if t == 0:
                    self.win1 = self.rebase(list(self.vXR) + list(self.vB), self.win1, self.window(g))
                off = self.area(g) - self.win1
                if t == 0:
                    p(f"ds_read_b128 {V4(self.X + 4*s)}, v{self.vXR[sp]} offset:{off}")
                    n += 1
                for j in range(2):
                    if typ == 0:
                        p(f"ds_read_b64_tr_b16 {V2(wb + 4*t + 2*j)}, v{self.vB[t]} offset:{off + (16*sp + 4*j)*128}")
                    else:
                        p(f"ds_read_b64_tr_b16 {V2(wb + 4*t + 2*j)}, v{self.vB[t]} offset:{off + (16*sp + 4*j)*192 + 32*t}")
                    n += 1
            else:
                if t == 0:
                    self.win2 = self.rebase(list(self.vP), self.win2, self.window(g))
                off = self.area(g) - self.win2
                for j in range(2):
                    p(f"ds_read_b64_tr_b16 {V2(wb + 4*t + 2*j)}, v{self.vP[t]} offset:{off + (16*sp + 4*j)*128}")
                    n += 1
        return n

    def p1_midstage(self, g):
        p, q = self.p, self.q
        T = 116 if (g < 8 or not self.ovl()) else 44 + 16
        garr = (11 if self.o.get("ovlper", 2) == 1 else 10) if self.ovl() else 10
        tags = [f"st{g+1}"] if g + 1 < 16 else []
        if g == 1:
            tags += ["cz"]
        if g == 4 and self.o.get("local", 1):
            tags += ["dbg0"]
        if g == garr:
            tags += ["e1st", "dbg"]
        if g == self.F1G:
            tags += ["f1"]
        self.stamp(f"pre{g}")
        if tags:
            q.wait(p, tags)
        if g == self.F1G:
            poll(p, q, self.vFLAG, self.vFADDR, SRD_WS, 16, "F1")
        self.stamp(f"wait{g}")
        p("s_barrier")
        self.stamp(f"bar{g}")
        if g == 1:
            self.counter_flag()
        if g == garr:
            poll(p, q, self.vFLAG, self.vDBGA, SRD_DBG, 1, "init")
            if self.cur_typ == 0:
                p(f"s_lshl_b32 s{sT0}, s{sAB}, 8")
                p(f"v_mov_b32 v{self.vFADDR}, {OOB:#x}")
                p(f"v_mov_b32 v{T}, s{sT0}")
                p(f"v_cmp_eq_u32 vcc, 0, v0")
                p(f"v_cndmask_b32 v{self.vFADDR}, v{self.vFADDR}, v{T}, vcc")
                self.stamp("f1iss")
                p(f"buffer_atomic_add v{self.vONE}, v{self.vFADDR}, {S4(SRD_WS)}, 0 offen sc1")
                q.push("f1add")
                if self.o.get("diagf1"):
                    p("s_waitcnt vmcnt(0)")
                    self.stamp("f1done")
        if self.o.get("local", 1):
            if g == 2:
                p(f"buffer_load_dword v{self.vFLAG}, v{self.vDBGA}, {S4(SRD_DBG)}, 0 offen sc1")
                q.push("dbg0")
            if g == 4:
                self.census_add()
            if g == 7 and self.cur_typ == 0:
                self.census_load()
        if g == 8:
            p(f"buffer_load_dword v{self.vFLAG}, v{self.vDBGA}, {S4(SRD_DBG)}, 0 offen sc1")
            q.push("dbg")
        if g == 13 and not self.o.get("vmask", 1):
            p(f"v_bfe_u32 v{T+2}, v0, 1, 4")
            p(f"v_and_b32 v{T+2}, 11, v{T+2}")
            p(f"v_cmp_eq_u32 vcc, 0, v{T+2}")
            p(f"v_mov_b32 v{T+1}, 0x3f803f80")
            p(f"v_cndmask_b32 v{T}, 0, v{T+1}, vcc")
            if self.o.get("allones"):
                p(f"v_mov_b32 v{T}, v{T+1}")
            p(f"v_lshlrev_b32 v{T+2}, 3, v0")
            p(f"v_mov_b32 v{T+1}, v{T}")
            p(f"ds_write_b64 v{T+2}, {V2(T)} offset:{self.ONES}")
            self.lg_issue("ones", 1)
        if g == self.F1G - 1:
            p(f"s_lshr_b32 s{sT0}, s{sH}, 2")
            p(f"s_lshl_b32 s{sT0}, s{sT0}, 8")
            p(f"v_mov_b32 v{self.vFADDR}, s{sT0}")
            p(f"buffer_load_dword v{self.vFLAG}, v{self.vFADDR}, {S4(SRD_WS)}, 0 offen sc1")
            q.push("f1")
            p(f"v_lshlrev_b32 v{self.avL16}, 4, v{self.vLANE}")
            p(f"s_lshl_b32 s{sM0X2}, s{sW}, 11")
            p(f"s_lshl_b32 s{sKVB}, s{sH}, 16")
            p(f"s_add_u32 s{sKVB}, s{sKVB}, s{sM0X2}")
        if g == 14 and self.F1G == 14 and not self.o.get("nodma"):
            self.emit_pieces(58, 6)

    def lg_issue(self, tag, n):
        self.lgq += [tag] * n

    def lg_wait(self, tag):
        last = max((i for i, t in enumerate(self.lgq) if t == tag), default=-1)
        if last < 0:
            return
        n = len(self.lgq) - 1 - last
        self.p(f"s_waitcnt lgkmcnt({min(n, 15)})")
        self.lgq = self.lgq[last + 1:]

    def p1_pass(self, ps, typ):
        p, q = self.p, self.q
        nt = 3 if ps == 1 else 2
        acc = [self.ACC + 16*t for t in range(nt)] if ps == 1 else [self.acc2() + 16*t for t in range(nt)]
        comp = not self.o.get("nocompute")
        for s in range(32):
            gs = s + (0 if ps == 1 else 32)
            g = gs >> 2
            if (s & 3) == 2:
                self.p1_midstage(g)
            nxt = None
            if s < 31:
                nxt = (ps, s + 1)
            elif ps == 1:
                nxt = (2, 0)
            wb = self.WB[s & 1]
            xs = self.X + 4*s
            for t in range(nt):
                c = None if s == 0 else acc[t]
                if comp:
                    self.lg_wait((ps, s, t))
                    if self.o.get("nomfma"):
                        pass
                    elif ps == 1 and t == 2 and typ == 0:
                        mfma(p, acc[t], xs, wb + 4*t, c)
                    else:
                        mfma(p, acc[t], wb + 4*t, xs, c)
                    if nxt and not self.o.get("nolds"):
                        n = self.p1_reads(nxt[0], nxt[1], typ, t)
                        self.lg_issue((nxt[0], nxt[1], t), n)
                if not self.o.get("nodma"):
                    if t == 0:
                        self.emit_pieces(gs, 1)
                    elif t == 1 and (ps == 1 or gs < 46):
                        self.emit_pieces(gs, 1)
                if ps == 2 and (s, t) in self.deferred:
                    self.deferred.pop((s, t))()

    def p1_first_reads(self, typ):
        self.lgq = []
        for t in range(3):
            n = self.p1_reads(1, 0, typ, t)
            self.lg_issue((1, 0, t), n)

    def store_ws(self, vdata, voff, soff_reg, tag, offset=0):
        o = f" offset:{offset}" if offset else ""
        self.p(f"buffer_store_dwordx4 {V4(vdata)}, v{voff}, {S4(SRD_WS)}, s{soff_reg} offen{o} sc1")
        self.q.push(tag)

    def relu_mul_store(self, a, tmp, unit, tag):
        p = self.p
        for r in range(8):
            p(f"v_max_f32 v{a+r}, 0, v{a+r}")
        for r in range(8):
            p(f"v_mul_f32 v{a+r}, v{a+r}, v{a+8+r}")
        for i in range(4):
            p(f"v_cvt_pk_bf16_f32 v{tmp+i}, v{a+2*i}, v{a+2*i+1}")
        p(f"s_add_u32 s{sT1}, s{sHFB}, {unit * 1024}")
        self.store_ws(tmp, self.vL16, sT1, tag)

    def hf_base(self, unit_reg_expr_lines):
        p = self.p
        for l in unit_reg_expr_lines:
            p(l)
        p(f"s_mul_i32 s{sT1}, s{sTILE}, 112")
        p(f"s_add_u32 s{sHFB}, s{sT0}, s{sT1}")
        p(f"s_lshl_b32 s{sHFB}, s{sHFB}, 10")
        p(f"s_add_u32 s{sHFB}, s{sHFB}, {WS_HF:#x}")

    def p1_logit(self, step):
        p, q = self.p, self.q
        L = self.vLANE
        p(f"s_lshl_b32 s{sT0}, s{sTYP}, 3")
        p(f"s_add_u32 s{sT0}, s{sT0}, s{sAB}          ; j")
        p(f"s_lshl_b32 s{sT1}, s{sT0}, 3")
        p(f"s_set_gpr_idx_on s{sT1}, 0x1")
        for i in range(8):
            p(f"v_mov_b32 v{120+i}, v{self.X+i}")
        p("s_set_gpr_idx_off")
        q.wait(p, "lgld")
        mfma(p, 48, 112, 120, None)
        mfma(p, 48, 116, 124, 48)
        p(f"s_lshl_b32 s{sT1}, s{sT0}, 13")
        p(f"s_add_u32 s{sT1}, s{sT1}, {WS_LG:#x}")
        p(f"s_lshl_b32 s{sT2}, s{sTILE}, 7")
        p(f"s_add_u32 s{sLGO}, s{sT1}, s{sT2}")
        p(f"s_cmp_eq_u32 s{sCH}, 0")
        p(f"s_cselect_b32 s{sT1}, 32, 0")
        p(f"v_lshlrev_b32 v43, 2, v{L}")
        p(f"v_mov_b32 v42, {OOB:#x}")
        p(f"v_cmp_gt_u32 vcc, s{sT1}, v{L}")
        p(f"v_cndmask_b32 v43, v42, v43, vcc")
        def fin():
            p(f"v_mov_b32 v42, v48")
        def f():
            p(f"buffer_store_dword v42, v43, {S4(SRD_WS)}, s{sLGO} offen sc1")
            self.q.push("lgst")
        self.deferred[step] = f
        return fin

    def p1_epi1(self, typ):
        p, q = self.p, self.q
        L = self.vLANE
        self.deferred = {}
        local = self.o.get("local", 1) and typ == 0
        if local:
            self.census_check()
        def two_flavours(emit):
            if not local:
                emit(" sc1")
                return
            n = uid()
            p(f"s_cmp_eq_u32 s{sLOC}, 0")
            p(f"s_cbranch_scc1 L_wt{n}")
            emit("")
            p(f"s_branch L_st{n}")
            p(f"L_wt{n}:")
            emit(" sc1")
            p(f"L_st{n}:")
        self.two_flavours = two_flavours
        def dstore(step, vdata, voff, const, tag, base, offset=0):
            def f():
                p(f"s_add_u32 s{sT1}, s{base}, {const:#x}")
                o = f" offset:{offset}" if offset else ""
                two_flavours(lambda fl: p(f"buffer_store_dwordx4 {V4(vdata)}, v{voff}, {S4(SRD_WS)}, s{sT1} offen{o}{fl}"))
                self.q.push(tag)
            if step is None:
                self.late_stores.append(f)
            else:
                self.deferred[step] = f
        self.late_stores = []
        lg_fin = self.p1_logit((12, 1))
        if typ == 0:
            A = (self.ACC, self.ACC + 16)
            B = self.ACC + 32
            T = self.TMP
            V = 120
            p(f"s_lshl_b32 s{sT0}, s{sAB}, 2")
            p(f"s_lshl_b32 s{sT1}, s{sCH}, 1")
            p(f"s_add_u32 s{sT0}, s{sT0}, s{sT1}          ; head")
            p(f"s_lshl_b32 s{sT1}, s{sT0}, 6")
            p(f"s_add_u32 s{sT1}, s{sT1}, s{sTILE}        ; h*64+tile")
            p(f"s_lshl_b32 s{sQB}, s{sT1}, 10")
            p(f"s_lshl_b32 s{sT5}, s{sAB}, 4")
            p(f"s_add_u32 s{sT5}, s{sT5}, s{sRB}")
            p(f"s_lshl_b32 s{sT5}, s{sT5}, 7          ; (a*16+rb)*128")
            p(f"s_lshl_b32 s{sT0}, s{sCH}, 6")
            p(f"s_add_u32 s{sT5}, s{sT5}, s{sT0}")
            p(f"s_lshl_b32 s{sT0}, s{sRT}, 3")
            p(f"s_add_u32 s{sT5}, s{sT5}, s{sT0}")
            p(f"s_mov_b32 s{sT0}, s{sCS}")
            p(f"s_mov_b32 s{sT1}, s{sCS}")
            for t in range(2):
                for i in range(4):
                    p(f"v_pk_mul_f32 {V2(A[t]+2*i)}, {V2(A[t]+2*i)}, s[{sT0}:{sT1}]")
            lg_fin()
            for t in range(2):
                for i in range(4):
                    p(f"v_cvt_pk_bf16_f32 v{T+8*t+4+i}, v{A[t]+8+2*i}, v{A[t]+8+2*i+1}")
            for i in range(8):
                p(f"v_cvt_pk_bf16_f32 v{V+i}, v{B+2*i}, v{B+2*i+1}")
            for t in range(2):
                for i in range(4):
                    p(f"v_cvt_pk_bf16_f32 v{T+8*t+i}, v{A[t]+2*i}, v{A[t]+2*i+1}")
            a = 40
            p(f"v_bfe_u32 v{a}, v{L}, 4, 1")
            p(f"v_lshlrev_b32 v{a}, 16, v{a}")
            p(f"v_lshrrev_b32 v{a+1}, 5, v{L}")
            p(f"v_lshl_add_u32 v{a}, v{a+1}, 8, v{a}")
            p(f"v_and_b32 v{a+1}, 15, v{L}")
            p(f"v_lshl_add_u32 v{a}, v{a+1}, 4, v{a}")
            dstore((0, 0), T + 4, self.vL16, WS_KF, "e1st", sQB)
            dstore((0, 1), T + 12, self.vL16, WS_KF + 65536, "e1st", sQB)
            dstore((1, 0), V, a, WS_VF, "e1st", sQB)
            dstore((1, 1), V + 4, a, WS_VF, "e1st", sQB, 512)
            dstore((2, 0), T, self.vL16, WS_QF, "e1st", sQB)
            dstore((2, 1), T + 8, self.vL16, WS_QF + 65536, "e1st", sQB)
            N = B
            for t in range(2):
                for h in range(2):
                    r = N + 4*t + 2*h
                    src = A[t] + 8*h
                    p(f"v_pk_mul_f32 {V2(r)}, {V2(src)}, {V2(src)}")
            for i in range(1, 4):
                for t in range(2):
                    for h in range(2):
                        r = N + 4*t + 2*h
                        src = A[t] + 8*h + 2*i
                        p(f"v_pk_fma_f32 {V2(r)}, {V2(src)}, {V2(src)}, {V2(r)}")
            for t in range(2):
                for h in range(2):
                    r = N + 4*t + 2*h
                    p(f"v_add_f32 v{r}, v{r}, v{r+1}")
            for t in range(2):
                p(f"v_permlane32_swap_b32 v{N+4*t}, v{N+4*t+2}")
            for t in range(2):
                p(f"v_add_f32 v{N+4*t}, v{N+4*t}, v{N+4*t+2}")
            na = 104
            p(f"s_add_u32 s{sT0}, s{sT5}, {WS_NRMQ:#x}")
            p(f"s_add_u32 s{sT1}, s{sT5}, {WS_NRMQ + 4:#x}")
            p(f"v_mov_b32 v{na}, {OOB:#x}")
            p(f"v_mov_b32 v{na+1}, s{sT0}")
            p(f"v_cmp_eq_u32 vcc, 31, v{L}")
            for sh in (1, 2):
                for t in range(2):
                    p(f"v_max_f32_dpp v{N+4*t}, v{N+4*t}, v{N+4*t} row_shr:{sh} row_mask:0xf bank_mask:0xf")
                if sh == 1:
                    p(f"v_cndmask_b32 v{na}, v{na}, v{na+1}, vcc")
                    p(f"v_mov_b32 v{na+1}, s{sT1}")
                else:
                    p(f"v_cmp_eq_u32 vcc, 63, v{L}")
            for sh in (4, 8):
                for t in range(2):
                    p(f"v_max_f32_dpp v{N+4*t}, v{N+4*t}, v{N+4*t} row_shr:{sh} row_mask:0xf bank_mask:0xf")
                if sh == 4:
                    p(f"v_cndmask_b32 v{na}, v{na}, v{na+1}, vcc")
            for t in range(2):
                p(f"v_max_f32_dpp v{N+4*t}, v{N+4*t}, v{N+4*t} row_bcast:15 row_mask:0xa bank_mask:0xf")
            def nstore(t):
                def f():
                    o = " offset:32" if t else ""
                    two_flavours(lambda fl: p(f"buffer_store_dword v{N+4*t}, v{na}, {S4(SRD_WS)}, 0 offen{o}{fl}"))
                    q = self.q
                    q.push("e1st")
                return f
            self.deferred[(3, 0)] = nstore(0)
            self.deferred[(3, 1)] = nstore(1)
        else:
            p(f"s_mul_i32 s{sT0}, s{sCH}, 3")
            p(f"s_add_u32 s{sT0}, s{sT0}, s{sHFB}")
            p(f"s_mul_i32 s{sT1}, s{sTILE}, 112")
            p(f"s_add_u32 s{sHB1}, s{sT0}, s{sT1}")
            p(f"s_lshl_b32 s{sHB1}, s{sHB1}, 10")
            for t in range(3):
                a0 = self.ACC + 16*t
                for r in range(8):
                    p(f"v_max_f32 v{a0+r}, 0, v{a0+r}")
                for r in range(8):
                    p(f"v_mul_f32 v{a0+r}, v{a0+r}, v{a0+8+r}")
                if t == 0:
                    lg_fin()
                for i in range(4):
                    p(f"v_cvt_pk_bf16_f32 v{self.TMP+4*t+i}, v{a0+2*i}, v{a0+2*i+1}")
        self.stamp("e1b")

    def p1_epi1_ovl(self, typ):
        p, q = self.p, self.q
        L = self.vLANE
        self.deferred = {}
        local = self.o.get("local", 1) and typ == 0
        if local:
            self.census_check()
        def two_flavours(emit):
            if not local:
                emit(" sc1")
                return
            n = uid()
            p(f"s_cmp_eq_u32 s{sLOC}, 0")
            p(f"s_cbranch_scc1 L_wt{n}")
            emit("")
            p(f"s_branch L_st{n}")
            p(f"L_wt{n}:")
            emit(" sc1")
            p(f"L_st{n}:")
        def store4(vdata, voff, const, offset=0):
            p(f"s_add_u32 s{sT1}, s{sQB}, {const:#x}")
            o = f" offset:{offset}" if offset else ""
            two_flavours(lambda fl: p(f"buffer_store_dwordx4 {V4(vdata)}, v{voff}, {S4(SRD_WS)}, s{sT1} offen{o}{fl}"))
            self.q.push("e1st")
        T = self.TMP
        xc = 96 if typ == 0 else 120
        if typ == 0:
            B = self.ACC + 32
            Vq = (24, 36)
            for i in range(8):
                p(f"v_cvt_pk_bf16_f32 v{Vq[i >> 2] + (i & 3)}, v{B+2*i}, v{B+2*i+1}")
        p(f"s_lshl_b32 s{sT0}, s{sTYP}, 3")
        p(f"s_add_u32 s{sT0}, s{sT0}, s{sAB}          ; j")
        p(f"s_lshl_b32 s{sT1}, s{sT0}, 3")
        p(f"s_set_gpr_idx_on s{sT1}, 0x1")
        for i in range(8):
            p(f"v_mov_b32 v{xc+i}, v{self.X+i}")
        p("s_set_gpr_idx_off")
        q.wait(p, "lgld")
        mfma(p, 48, 112, xc, None)
        mfma(p, 48, 116, xc + 4, 48)
        p(f"s_lshl_b32 s{sT1}, s{sT0}, 13")
        p(f"s_add_u32 s{sT1}, s{sT1}, {WS_LG:#x}")
        p(f"s_lshl_b32 s{sT2}, s{sTILE}, 7")
        p(f"s_add_u32 s{sLGO}, s{sT1}, s{sT2}")
        p(f"s_cmp_eq_u32 s{sCH}, 0")
        p(f"s_cselect_b32 s{sT1}, 32, 0")
        p(f"v_lshlrev_b32 v43, 2, v{L}")
        p(f"v_mov_b32 v42, {OOB:#x}")
        p(f"v_cmp_gt_u32 vcc, s{sT1}, v{L}")
        p(f"v_cndmask_b32 v43, v42, v43, vcc")
        def lgstore():
            p(f"buffer_store_dword v42, v43, {S4(SRD_WS)}, s{sLGO} offen sc1")
            self.q.push("lgst")
        side = []
        if typ == 0:
            A = (self.ACC, self.ACC + 16)
            p(f"s_lshl_b32 s{sT0}, s{sAB}, 2")
            p(f"s_lshl_b32 s{sT1}, s{sCH}, 1")
            p(f"s_add_u32 s{sT0}, s{sT0}, s{sT1}          ; head")
            p(f"s_lshl_b32 s{sT1}, s{sT0}, 6")
            p(f"s_add_u32 s{sT1}, s{sT1}, s{sTILE}        ; h*64+tile")
            p(f"s_lshl_b32 s{sQB}, s{sT1}, 10")
            p(f"s_lshl_b32 s{sNB}, s{sAB}, 4")
            p(f"s_add_u32 s{sNB}, s{sNB}, s{sRB}")
            p(f"s_lshl_b32 s{sNB}, s{sNB}, 7          ; (a*16+rb)*128")
            p(f"s_lshl_b32 s{sT0}, s{sCH}, 6")
            p(f"s_add_u32 s{sNB}, s{sNB}, s{sT0}")
            p(f"s_lshl_b32 s{sT0}, s{sRT}, 3")
            p(f"s_add_u32 s{sNB}, s{sNB}, s{sT0}")
            p(f"s_add_u32 s{sNB}, s{sNB}, {WS_NRMQ:#x}")
            p(f"s_mov_b32 s{sCS2}, s{sCS}")
            p(f"s_mov_b32 s{sCS2+1}, s{sCS}")
            a = 40
            def vaddr():
                p(f"v_bfe_u32 v{a}, v{L}, 4, 1")
                p(f"v_lshlrev_b32 v{a}, 16, v{a}")
                p(f"v_lshrrev_b32 v{a+1}, 5, v{L}")
                p(f"v_lshl_add_u32 v{a}, v{a+1}, 8, v{a}")
                p(f"v_and_b32 v{a+1}, 15, v{L}")
                p(f"v_lshl_add_u32 v{a}, v{a+1}, 4, v{a}")
            def cvt4(dst, src):
                for i in range(4):
                    p(f"v_cvt_pk_bf16_f32 v{dst+i}, v{src+2*i}, v{src+2*i+1}")
            def scale(t):
                for i in range(4):
                    p(f"v_pk_mul_f32 {V2(A[t]+2*i)}, {V2(A[t]+2*i)}, s[{sCS2}:{sCS2+1}]")
            R = [A[0], A[0] + 8, A[1], A[1] + 8]
            def nrm(i):
                for r in R:
                    if i == 0:
                        p(f"v_pk_mul_f32 {V2(r)}, {V2(r)}, {V2(r)}")
                    else:
                        p(f"v_pk_fma_f32 {V2(r)}, {V2(r+2*i)}, {V2(r+2*i)}, {V2(r)}")
            def nrm_fold():
                for r in R:
                    p(f"v_add_f32 v{r}, v{r}, v{r+1}")
            def nrm_swap():
                p(f"v_permlane32_swap_b32 v{R[0]}, v{R[1]}")
                p(f"v_permlane32_swap_b32 v{R[2]}, v{R[3]}")
                p(f"v_add_f32 v{R[0]}, v{R[0]}, v{R[1]}")
                p(f"v_add_f32 v{R[2]}, v{R[2]}, v{R[3]}")
            na = A[0] + 2
            def naddr():
                p(f"s_add_u32 s{sT1}, s{sNB}, 4")
                p(f"v_mov_b32 v{na}, {OOB:#x}")
                p(f"v_mov_b32 v{na+1}, s{sNB}")
                p(f"v_cmp_eq_u32 vcc, 31, v{L}")
                p(f"v_mov_b32 v{na+2}, s{sT1}")
                p(f"v_cndmask_b32 v{na}, v{na}, v{na+1}, vcc")
                p(f"v_cmp_eq_u32 vcc, 63, v{L}")
            def dpp(shs):
                def f():
                    for sh in shs:
                        for r in (R[0], R[2]):
                            if sh == 16:
                                p(f"v_max_f32_dpp v{r}, v{r}, v{r} row_bcast:15 row_mask:0xa bank_mask:0xf")
                            else:
                                p(f"v_max_f32_dpp v{r}, v{r}, v{r} row_shr:{sh} row_mask:0xf bank_mask:0xf")
                return f
            def nstores():
                p(f"v_cndmask_b32 v{na}, v{na}, v{na+2}, vcc")
                for t in range(2):
                    o = " offset:32" if t else ""
                    two_flavours(lambda fl: p(f"buffer_store_dword v{R[2*t]}, v{na}, {S4(SRD_WS)}, 0 offen{o}{fl}"))
                    self.q.push("e1st")
            side = [
                lambda: (vaddr(),),
                lambda: (p("v_mov_b32 v42, v48"), cvt4(T + 4, A[0] + 8), store4(Vq[0], a, WS_VF)),
                lambda: (cvt4(T + 12, A[1] + 8), store4(Vq[1], a, WS_VF, 512)),
                lambda: (scale(0), store4(T + 4, self.vL16, WS_KF)),
                lambda: (scale(1), store4(T + 12, self.vL16, WS_KF + 65536)),
                lambda: (cvt4(T, A[0]),),
                lambda: (cvt4(T + 8, A[1]), store4(T, self.vL16, WS_QF)),
                lambda: (nrm(0), store4(T + 8, self.vL16, WS_QF + 65536)),
                lambda: (nrm(1),), lambda: (nrm(2),), lambda: (nrm(3),),
                lambda: (nrm_fold(),), lambda: (nrm_swap(),),
                lambda: (dpp((1,))(), naddr()),
                dpp((2,)), dpp((4,)), dpp((8,)), dpp((16,)),
                nstores,
                lgstore,
            ]
        else:
            p(f"s_mul_i32 s{sT0}, s{sCH}, 3")
            p(f"s_add_u32 s{sT0}, s{sT0}, s{sHFB}")
            p(f"s_mul_i32 s{sT1}, s{sTILE}, 112")
            p(f"s_add_u32 s{sHB1}, s{sT0}, s{sT1}")
            p(f"s_lshl_b32 s{sHB1}, s{sHB1}, 10")
            def relu(a0, lo, hi):
                for r in range(lo, hi):
                    p(f"v_max_f32 v{a0+r}, 0, v{a0+r}")
            def mul(a0, lo, hi):
                for r in range(lo, hi):
                    p(f"v_mul_f32 v{a0+r}, v{a0+r}, v{a0+8+r}")
            def cvt(a0, dst):
                for i in range(4):
                    p(f"v_cvt_pk_bf16_f32 v{dst+i}, v{a0+2*i}, v{a0+2*i+1}")
            a2 = self.ACC + 32
            relu(a2, 0, 8); mul(a2, 0, 8)
            p("v_mov_b32 v42, v48")
            cvt(a2, T + 8)
            for t in range(2):
                a0 = self.ACC + 16*t
                side += [lambda a0=a0: relu(a0, 0, 5), lambda a0=a0: (relu(a0, 5, 8), mul(a0, 0, 2)), lambda a0=a0: mul(a0, 2, 8),
                         lambda a0=a0, t=t: cvt(a0, T + 4*t)]
            side += [lgstore]
        per = self.o.get("ovlper", 2) if typ == 0 else 1
        groups = [side[i:i + per] for i in range(0, len(side), per)]
        for k, fs in enumerate(groups):
            self.deferred[(k >> 1, k & 1)] = (lambda fs=fs: [f() for f in fs])
        self.stamp("e1b")

    def p1_epi2(self, typ):
        p = self.p
        p(f"s_lshr_b32 s{sT2}, s{sCB2}, 5")
        p(f"s_lshl_b32 s{sT0}, s{sCH}, 1")
        p(f"s_add_u32 s{sT0}, s{sT0}, s{sT2}")
        p(f"s_mul_i32 s{sT1}, s{sTILE}, 112")
        p(f"s_add_u32 s{sHFB}, s{sT0}, s{sT1}")
        p(f"s_lshl_b32 s{sQB}, s{sHFB}, 10")
        for t in range(2):
            a0 = self.acc2() + 16*t
            for r in range(8):
                p(f"v_max_f32 v{a0+r}, 0, v{a0+r}")
            for r in range(8):
                p(f"v_mul_f32 v{a0+r}, v{a0+r}, v{a0+8+r}")
            for i in range(4):
                p(f"v_cvt_pk_bf16_f32 v{128+4*t+i}, v{a0+2*i}, v{a0+2*i+1}")
        if typ == 1:
            for i in range(12):
                p(f"v_mov_b32 v{136+i}, v{self.TMP+i}")

    def late_h_stores(self):
        p = self.p
        for t in range(2):
            p(f"s_add_u32 s{sT1}, s{sQB}, {WS_HF + 1024*t:#x}")
            self.store_ws(128 + 4*t, self.avL16, sT1, "hst")
        n = uid()
        p(f"s_cmp_eq_u32 s{sA3}, 0")
        p(f"s_cbranch_scc1 L_noh_{n}")
        for t in range(3):
            p(f"s_add_u32 s{sT1}, s{sHB1}, {WS_HF + 1024*t:#x}")
            self.store_ws(136 + 4*t, self.avL16, sT1, "hst")
        p(f"L_noh_{n}:")

    def p1(self):
        p, q = self.p, self.q
        self.stamp("predma")
        for g in range(2):
            for e in range(5):
                self.p1_piece(g, e)
        self.stamp("dma0")
        self.pending = [(g, e) for g in list(range(2, 16)) for e in range(self.npieces(g))]
        self.pending += [(16, 0), (16, 1), (20, 0), (20, 1), ("aq", 0), (17, 0), (17, 1), (21, 0), (21, 1)]
        srd(p, SRD_WS, sWS, WS_SIZE)
        srd(p, SRD_DBG, sDBG, 256)
        self.p1_setup_late()
        self.counter_zero()
        if not self.o.get("nodma"):
            self.emit_pieces(0, self.o.get("upfront", 0))
        self.stamp("setup")
        q.wait(p, ["st0"])
        p("s_barrier")
        self.stamp("st0")
        p(f"s_cmp_eq_u32 s{sTYP}, 0")
        p("s_cbranch_scc0 L_p1_B")
        q0, w0, pend0 = q.fork(), (self.win1, self.win2), list(self.pending)
        ends = []
        for typ in range(2):
            if typ == 1:
                p("L_p1_B:")
                self.q = q0
                self.win1, self.win2 = w0
                self.pending = pend0
            self.cur_typ = typ
            self.p1_first_reads(typ)
            self.p1_pass(1, typ)
            self.stamp("pass1")
            if self.ovl():
                self.p1_epi1_ovl(typ)
            else:
                self.p1_epi1(typ)
            self.stamp("epi1")
            self.p1_pass(2, typ)
            assert not self.deferred
            self.stamp("pass2")
            if not self.o.get("nodma"):
                self.emit_pieces(99, 99)
            self.p1_epi2(typ)
            self.stamp("epi2")
            ends.append(self.q)
            if typ == 0:
                p("s_branch L_p1_join")
        p("L_p1_join:")
        self.q = VMQ.join(ends)

    aQ, aK, aV, aS, aP, aO = 4, (8, 12), (16, 24), (32, 48), (64, 72), 80
    avK, avV, avVinc, avL16 = 96, 97, 98, 3
    avT = 100
    HFR = 128
    LGR = 240

    def nrmT(self):
        return 64 if self.ovl() else self.avT

    def att_loads(self):
        p, q = self.p, self.q
        L, T = self.vLANE, self.nrmT()
        p(f"s_lshl_b32 s{sA0}, s{sQC}, 3")
        p(f"s_add_u32 s{sA0}, s{sA0}, s{sW}          ; q tile")
        p(f"s_lshl_b32 s{sA1}, s{sH}, 6")
        p(f"s_add_u32 s{sA1}, s{sA1}, s{sA0}         ; h*64+tile")
        p(f"s_lshl_b32 s{sA2}, s{sA1}, 10")
        p(f"s_add_u32 s{sA2}, s{sA2}, {WS_QF:#x}")
        p(f"buffer_load_dwordx4 {V4(self.aQ)}, v{self.vL16}, {S4(SRD_WS)}, s{sA2} offen sc1")
        p(f"s_lshr_b32 s{sA2}, s{sH}, 2")
        p(f"s_lshl_b32 s{sA2}, s{sA2}, 11")
        p(f"s_and_b32 s{sA1}, s{sH}, 3")
        p(f"s_lshl_b32 s{sA1}, s{sA1}, 5")
        p(f"s_add_u32 s{sA2}, s{sA2}, s{sA1}")
        p(f"s_add_u32 s{sA2}, s{sA2}, {WS_NRMQ:#x}")
        p(f"v_lshrrev_b32 v{T}, 2, v{L}")
        p(f"v_lshlrev_b32 v{T}, 7, v{T}")
        p(f"v_and_b32 v{T+3}, 3, v{L}")
        p(f"v_lshl_add_u32 v{T}, v{T+3}, 3, v{T}")
        p(f"buffer_load_dword v{T+1}, v{T}, {S4(SRD_WS)}, s{sA2} offen offset:4 sc1")
        p(f"s_lshr_b32 s{sA1}, s{sA0}, 2")
        p(f"s_lshl_b32 s{sA1}, s{sA1}, 7")
        p(f"s_and_b32 s{sA0}, s{sA0}, 3")
        p(f"s_lshl_b32 s{sA0}, s{sA0}, 3")
        p(f"s_add_u32 s{sA2}, s{sA2}, s{sA1}")
        p(f"s_add_u32 s{sA2}, s{sA2}, s{sA0}")
        p(f"v_mov_b32 v{T+3}, 0")
        p(f"buffer_load_dword v{T+2}, v{T+3}, {S4(SRD_WS)}, s{sA2} offen sc1")
        q.push("aq", 3)

    def att_setup(self):
        p, q = self.p, self.q
        L, T = self.vLANE, self.avT
        p(f"v_lshlrev_b32 v{self.avL16}, 4, v{L}")
        p(f"v_add_u32 v{self.avK}, 32768, v{self.avL16}")
        if self.o.get("vmask", 1):
            p(f"v_lshrrev_b32 v{T+5}, 5, v{L}")
            p(f"v_lshlrev_b32 v{T+5}, 8, v{T+5}")
            p(f"v_and_b32 v{T+6}, 15, v{L}")
            p(f"v_lshl_add_u32 v{T+5}, v{T+6}, 4, v{T+5}")
            p(f"v_add_u32 v{self.avV}, 98304, v{T+5}")
            p(f"v_and_b32 v{T+6}, 27, v{L}")
            p(f"v_cmp_eq_u32 vcc, 16, v{T+6}")
            p(f"v_mov_b32 v{T+7}, 0x3f803f80")
            p(f"v_cndmask_b32 v{T+7}, 0, v{T+7}, vcc")
            for r in range(self.aV[0], self.aV[0] + 16):
                p(f"v_mov_b32 v{r}, v{T+7}")
            p(f"s_mov_b32 s{sVM}, 0xffff")
            p(f"s_mov_b32 s{sVM+1}, 0xffff")
        else:
            p(f"v_and_b32 v{T+4}, 31, v{L}               ; m")
            p(f"v_lshrrev_b32 v{T+5}, 5, v{L}")
            p(f"v_lshlrev_b32 v{T+5}, 8, v{T+5}")
            p(f"v_and_b32 v{T+6}, 15, v{L}")
            p(f"v_lshl_add_u32 v{T+5}, v{T+6}, 4, v{T+5}")
            p(f"v_add_u32 v{T+5}, 98304, v{T+5}")
            p(f"v_subrev_u32 v{T+6}, 20, v{T+4}")
            p(f"v_mov_b32 v{T+7}, {self.ONES+16}")
            p(f"v_mov_b32 v{T+8}, {self.ONES+80}")
            p(f"v_cmp_gt_u32 vcc, 8, v{T+6}")
            p(f"v_cndmask_b32 v{T+7}, v{T+7}, v{T+8}, vcc")
            p(f"v_and_b32 v{T+6}, 27, v{T+4}")
            p(f"v_subrev_u32 v{T+8}, 16, v{T+7}")
            p(f"v_cmp_eq_u32 vcc, 16, v{T+6}")
            p(f"v_cndmask_b32 v{T+7}, v{T+7}, v{T+8}, vcc")
            p(f"v_cmp_gt_u32 vcc, 16, v{T+4}")
            p(f"v_cndmask_b32 v{self.avV}, v{T+7}, v{T+5}, vcc")
            p(f"v_mov_b32 v{T+7}, 0")
            p(f"v_mov_b32 v{T+8}, 4096")
            p(f"v_cndmask_b32 v{self.avVinc}, v{T+7}, v{T+8}, vcc")
        self.P3COORD = True
        p(f"s_mov_b32 s{sTYPC}, s{sTYP}")
        p(f"s_lshl_b32 s{sRT64}, s{sXCD}, 2")
        p(f"s_and_b32 s{sA0}, s{sSLOT}, 3")
        p(f"s_add_u32 s{sRT64}, s{sRT64}, s{sA0}")
        p(f"s_lshr_b32 s{sCB}, s{sSLOT}, 2")
        p(f"s_lshr_b32 s{sKQ}, s{sW}, 1")
        p(f"s_and_b32 s{sTR}, s{sW}, 1")
        p(f"s_lshl_b32 s{sT32}, s{sRT64}, 1")
        p(f"s_add_u32 s{sT32}, s{sT32}, s{sTR}")
        q.wait(p, ["st16", "st17", "st20", "aq"])
        p("s_barrier")
        self.stamp("kv")
        N = self.nrmT()
        for sh in (1, 2, 4, 8):
            p(f"v_max_f32_dpp v{N+1}, v{N+1}, v{N+1} row_shr:{sh} row_mask:0xf bank_mask:0xf")
        p(f"v_max_f32_dpp v{N+1}, v{N+1}, v{N+1} row_bcast:15 row_mask:0xa bank_mask:0xf")
        p(f"v_max_f32_dpp v{N+1}, v{N+1}, v{N+1} row_bcast:31 row_mask:0xc bank_mask:0xf")
        p(f"v_readlane_b32 s{sA0}, v{N+1}, 63")
        p(f"v_mul_f32 v{N+2}, s{sA0}, v{N+2}")
        p(f"v_mov_b32 v{N+3}, {f2u(3600.0):#x}")
        p(f"v_cmp_le_f32 vcc, v{N+2}, v{N+3}")
        p(f"s_cmp_eq_u64 vcc, exec")
        p(f"s_cselect_b32 s{sMODE}, 0, 1")
        if self.o.get("force_slow"):
            p(f"s_mov_b32 s{sMODE}, 1")

    def att_tile(self, t, side):
        p = self.p
        tb = t & 3
        Sc, Sn = self.aS[t & 1], self.aS[(t + 1) & 1]
        Kn, Kl = self.aK[(t + 1) & 1], self.aK[t & 1]
        Vc, Vp = self.aV[t & 1], self.aV[(t + 1) & 1]
        Pc, Pp = self.aP[t & 1], self.aP[(t + 1) & 1]
        O, Q = self.aO, self.aQ
        ex = lambda i: p(f"v_exp_f32 v{Sc+i}, v{Sc+i}")
        cv = lambda i: p(f"v_cvt_pk_bf16_f32 v{Pc+i}, v{Sc+2*i}, v{Sc+2*i+1}")
        p("s_waitcnt lgkmcnt(0)")
        if t < 63:
            mfma(p, Sn, Kn, Q, None)
        if t < 62:
            p(f"ds_read_b128 {V4(Kl)}, v{self.avK} offset:{1024*(t+2)}")
        if self.o.get("vmask", 1):
            p(f"s_mov_b64 exec, s[{sVM}:{sVM+1}]")
            p(f"ds_read_b128 {V4(Vc)}, v{self.avV} offset:{1024*t}")
            p(f"ds_read_b128 {V4(Vc+4)}, v{self.avV} offset:{1024*t+512}")
            p("s_mov_b64 exec, -1")
        else:
            p(f"ds_read_b128 {V4(Vc)}, v{self.avV} offset:{1024*tb}")
            p(f"ds_read_b128 {V4(Vc+4)}, v{self.avV} offset:{1024*tb+512}")
        ex(0); ex(1); ex(2); cv(0); ex(3)
        if t > 0:
            mfma(p, O, Vp, Pp, None if t == 1 else O)
        if side:
            side[0]()
        ex(4); cv(1); ex(5); ex(6); cv(2); ex(7); ex(8); cv(3); ex(9)
        if t > 0:
            mfma(p, O, Vp + 4, Pp + 4, O)
        for f in side[1:]:
            f()
        ex(10); cv(4); ex(11); ex(12); cv(5); ex(13); ex(14); ex(15); cv(6)
        if tb == 3 and t < 63 and not self.o.get("vmask", 1):
            p(f"v_add_u32 v{self.avV}, v{self.avVinc}, v{self.avV}")
        cv(7)

    def side_hstore(self, i):
        p = self.p
        def f():
            if i < 2:
                p(f"s_add_u32 s{sT1}, s{sQB}, {WS_HF + 1024*i:#x}")
                self.store_ws(128 + 4*i, self.avL16, sT1, "hst")
            else:
                n = uid()
                p(f"s_cmp_eq_u32 s{sTYPC}, 0")
                p(f"s_cbranch_scc1 L_noh_{n}")
                p(f"s_add_u32 s{sT1}, s{sHB1}, {WS_HF + 1024*(i-2):#x}")
                qa = self.q.fork()
                self.store_ws(136 + 4*(i-2), self.avL16, sT1, "hst")
                p(f"L_noh_{n}:")
                self.q = VMQ.join([qa, self.q])
                self.q.dedup()
        return f

    def side_kv(self, g, e):
        return lambda: self.p1_piece(g, e)

    def side_warm(self):
        p = self.p
        L, T = self.vLANE, self.avT
        def f():
            srd(p, SRD_T, sWD, 1792 * 1024)
            p(f"s_mul_i32 s{sA0}, s{sSLOT}, 57344")
            p(f"s_mul_i32 s{sA1}, s{sW}, 7168")
            p(f"s_add_u32 s{sA0}, s{sA0}, s{sA1}")
            p(f"v_lshlrev_b32 v{T}, 6, v{L}")
            p(f"buffer_load_dword v{T+3}, v{T}, {S4(SRD_T)}, s{sA0} offen")
            p(f"s_add_u32 s{sA0}, s{sA0}, 3072")
            p(f"buffer_load_dword v{T+4}, v{T}, {S4(SRD_T)}, s{sA0} offen")
            srd(p, SRD_T, sWO, 512 * 1024)
            p(f"s_lshl_b32 s{sA0}, s{sSLOT}, 14")
            p(f"s_lshl_b32 s{sA1}, s{sW}, 11")
            p(f"s_add_u32 s{sA0}, s{sA0}, s{sA1}")
            p(f"v_and_b32 v{T+6}, 31, v{L}")
            p(f"v_lshlrev_b32 v{T+6}, 6, v{T+6}")
            p(f"buffer_load_dword v{T+5}, v{T+6}, {S4(SRD_T)}, s{sA0} offen")
            self.q.push("warm", 3)
        return f

    def side_f2load(self):
        p, T = self.p, self.avT
        def f():
            p(f"s_lshr_b32 s{sA0}, s{sRT64}, 1")
            p(f"s_add_u32 s{sA0}, s{sA0}, {F2}")
            p(f"s_lshl_b32 s{sA0}, s{sA0}, 8")
            p(f"v_mov_b32 v{T}, s{sA0}")
            p(f"buffer_load_dword v{T+1}, v{T}, {S4(SRD_WS)}, 0 offen sc1")
            self.q.push("f2ld")
        return f

    def side_hload(self, j):
        p = self.p
        def f():
            if j == 0:
                p(f"s_mul_i32 s{sHLD}, s{sT32}, 112")
                p(f"s_mul_i32 s{sA1}, s{sKQ}, 28")
                p(f"s_add_u32 s{sHLD}, s{sHLD}, s{sA1}")
                p(f"s_lshl_b32 s{sHLD}, s{sHLD}, 10")
                p(f"s_add_u32 s{sHLD}, s{sHLD}, {WS_HF:#x}")
            o = f" offset:{1024*(j&3)}" if j & 3 else ""
            p(f"buffer_load_dwordx4 {V4(self.HFR + 4*j)}, v{self.avL16}, {S4(SRD_WS)}, s{sHLD} offen{o} sc1")
            self.q.push("hld")
            if (j & 3) == 3:
                p(f"s_add_u32 s{sHLD}, s{sHLD}, 4096")
        return f

    def side_lgload(self, i):
        p, L, T = self.p, self.vLANE, self.avT
        def f():
            if i == 0:
                p(f"v_lshrrev_b32 v{T+7}, 5, v{L}")
                p(f"v_lshlrev_b32 v{T+7}, 16, v{T+7}")
                p(f"v_and_b32 v{T+6}, 31, v{L}")
                p(f"v_lshl_add_u32 v{T+7}, v{T+6}, 2, v{T+7}")
                p(f"s_lshl_b32 s{sLGL}, s{sT32}, 7")
                p(f"s_add_u32 s{sLGL}, s{sLGL}, {WS_LG:#x}")
            p(f"buffer_load_dword v{self.LGR+i}, v{T+7}, {S4(SRD_WS)}, s{sLGL} offen sc1")
            self.q.push("lgl")
            if i < 7:
                p(f"s_add_u32 s{sLGL}, s{sLGL}, 8192")
        return f

    def att_b1(self):
        p, T = self.p, self.avT
        self.q.wait(p, ["hst", "st21", "st18", "lgst"])
        p("s_barrier")
        p(f"s_add_u32 s{sA0}, s{sRB}, {F2}")
        p(f"s_lshl_b32 s{sA0}, s{sA0}, 8")
        p(f"v_mov_b32 v{T+4}, {OOB:#x}")
        p(f"v_mov_b32 v{T+5}, s{sA0}")
        p(f"v_cmp_eq_u32 vcc, 0, v0")
        p(f"v_cndmask_b32 v{T+4}, v{T+4}, v{T+5}, vcc")
        p(f"v_mov_b32 v{T+5}, 1")
        p(f"buffer_atomic_add v{T+5}, v{T+4}, {S4(SRD_WS)}, 0 offen sc1")
        self.q.push("f2add")

    def att_b2(self):
        p, T = self.p, self.avT
        self.q.wait(p, ["st19", "st22", "st23", "f2ld"])
        poll(p, self.q, T + 1, T, SRD_WS, 16, "F2")
        p("s_waitcnt lgkmcnt(0)")
        p("s_barrier")
        self.p3_setup_dma()

    def npre3(self):
        return self.o.get("pre3", 3) if self.o.get("vmask", 1) else 2

    def att_sides(self):
        sd = {t: [] for t in range(64)}
        for i in range(5):
            sd[i].append(self.side_hstore(i))
        order = [(18, 0), (18, 1), (22, 0), (22, 1), (19, 0), (19, 1), (23, 0), (23, 1)]
        for k, (g, e) in enumerate(order):
            sd[5 + k].append(self.side_kv(g, e))
        if self.o.get("warm", 1):
            sd[18].append(self.side_warm())
        if self.o.get("wb"):
            def wb():
                n = uid()
                p = self.p
                p(f"s_add_u32 s{sA0}, s{sSLOT}, s{sW}")
                p(f"s_cmp_eq_u32 s{sA0}, 0")
                p(f"s_cbranch_scc0 L_nowb{n}")
                qa = self.q.fork()
                p("buffer_wbl2 sc1")
                self.q.push("wb")
                p(f"L_nowb{n}:")
                self.q = VMQ.join([qa, self.q]); self.q.dedup()
            sd[self.o["wb"]].append(wb)
        sd[28].append(self.side_f2load())
        ops = [(lambda g=g, e=e: self.p3_piece(g, e)) for g in range(self.npre3()) for e in range(4)]
        ops2 = [self.side_hload(j) for j in range(28)] + [self.side_lgload(i) for i in range(8)]
        seq = []
        while ops or ops2:
            if ops:
                seq.append(ops.pop(0))
            if ops2:
                seq.append(ops2.pop(0))
        t = 32
        n2 = len(seq) - 31
        k = 0
        while k < len(seq):
            sd[t].append(seq[k]); k += 1
            if n2 > 0 and k < len(seq):
                sd[t].append(seq[k]); k += 1; n2 -= 1
            t += 1
        assert t <= 63, t
        return sd

    def att_slow_tile(self):
        p = self.p
        S, P, O, K, V, Q = self.aS[0], self.aP[0], self.aO, self.aK[0], self.aV[0], self.aQ
        T = self.avT
        m_old, m_new, al = T + 8, T + 9, T + 10
        p(f"ds_read_b128 {V4(K)}, v{self.avK}")
        if self.o.get("vmask", 1):
            p(f"s_mov_b64 exec, s[{sVM}:{sVM+1}]")
        p(f"ds_read_b128 {V4(V)}, v{self.avV}")
        p(f"ds_read_b128 {V4(V+4)}, v{self.avV} offset:512")
        if self.o.get("vmask", 1):
            p("s_mov_b64 exec, -1")
        p("s_waitcnt lgkmcnt(0)")
        mfma(p, S, K, Q, None)
        p(f"v_max3_f32 v{m_new}, v{S}, v{S+1}, v{S+2}")
        for r in range(3, 15, 2):
            p(f"v_max3_f32 v{m_new}, v{m_new}, v{S+r}, v{S+r+1}")
        p(f"v_max_f32 v{m_new}, v{m_new}, v{S+15}")
        p(f"v_mov_b32 v{al}, v{m_new}")
        p(f"v_permlane32_swap_b32 v{m_new}, v{al}")
        p(f"v_max3_f32 v{m_new}, v{m_new}, v{al}, v{m_old}")
        p(f"v_sub_f32 v{al}, v{m_old}, v{m_new}")
        p(f"v_exp_f32 v{al}, v{al}")
        p(f"v_mov_b32 v{m_old}, v{m_new}")
        for r in range(16):
            p(f"v_sub_f32 v{S+r}, v{S+r}, v{m_new}")
        for r in range(16):
            p(f"v_exp_f32 v{S+r}, v{S+r}")
        for r in range(16):
            p(f"v_mul_f32 v{O+r}, v{al}, v{O+r}")
        for i in range(8):
            p(f"v_cvt_pk_bf16_f32 v{P+i}, v{S+2*i}, v{S+2*i+1}")
        mfma(p, O, V, P, O)
        mfma(p, O, V + 4, P + 4, O)
        p(f"v_add_u32 v{self.avK}, 1024, v{self.avK}")
        if self.o.get("vmask", 1):
            p(f"v_add_u32 v{self.avV}, 1024, v{self.avV}")
        else:
            p(f"v_lshrrev_b32 v{al}, 2, v{self.avVinc}")
            p(f"v_add_u32 v{self.avV}, v{al}, v{self.avV}")

    def attention(self):
        p, q = self.p, self.q
        self.att_setup()
        p(f"s_cmp_eq_u32 s{sMODE}, 0")
        p("s_cbranch_scc0 L_att_slow0")
        self.q_slow = self.q.fork()
        p(f"ds_read_b128 {V4(self.aK[0])}, v{self.avK}")
        p(f"ds_read_b128 {V4(self.aK[1])}, v{self.avK} offset:1024")
        p("s_waitcnt lgkmcnt(1)")
        mfma(p, self.aS[0], self.aK[0], self.aQ, None)
        prio = self.o.get("prio", 2)
        def ladder(t):
            if prio == 1:
                return 3 - t // 16
            return 3 - (t % 16) // 4 if t < 32 else 3 - (t - 32) // 8
        sd = self.att_sides()
        for t in range(64):
            if prio and (t == 0 or ladder(t) != ladder(t - 1)) and t not in (16, 32):
                p(f"s_setprio {ladder(t)}")
            if t in (16, 32, 48):
                self.stamp(f"seg{t//16}")
                if prio and t in (16, 32):
                    p(f"s_setprio {ladder(t)}")
                if t == 16:
                    self.att_b1()
                if t == 32:
                    self.att_b2()
                self.stamp(f"seg{t//16}e")
            self.att_tile(t, [] if self.o.get("noseg") else sd[t])
        p("s_waitcnt lgkmcnt(0)")
        mfma(p, self.aO, self.aV[1], self.aP[1], self.aO)
        mfma(p, self.aO, self.aV[1] + 4, self.aP[1] + 4, self.aO)
        p("L_att_fin:")
        self.stamp("att")
        O, T = self.aO, self.avT
        p(f"v_rcp_f32 v{T}, v{O+8}")
        for r in range(8):
            p(f"v_mul_f32 v{O+r}, v{T}, v{O+r}")
        for i in range(4):
            p(f"v_cvt_pk_bf16_f32 v{T+4+i}, v{O+2*i}, v{O+2*i+1}")
        p(f"s_lshl_b32 s{sA0}, s{sQC}, 3")
        p(f"s_add_u32 s{sA0}, s{sA0}, s{sW}")
        p(f"s_lshl_b32 s{sA0}, s{sA0}, 5")
        p(f"s_add_u32 s{sA0}, s{sA0}, s{sH}")
        p(f"s_lshl_b32 s{sA0}, s{sA0}, 10")
        p(f"s_add_u32 s{sA0}, s{sA0}, {WS_OF:#x}")
        p(f"buffer_store_dwordx4 {V4(T+4)}, v{self.avL16}, {S4(SRD_WS)}, s{sA0} offen sc1")
        self.q = VMQ()
        self.q.push("ost")

    def att_slow_code(self):
        p = self.p
        T = self.avT
        self.q = self.q_slow
        p("L_att_slow0:")
        p(f"v_mov_b32 v{T+8}, 0xff800000")
        for r in range(self.aO, self.aO + 16):
            p(f"v_mov_b32 v{r}, 0")
        sd = self.att_sides()
        def run(n):
            k = uid()
            p(f"s_mov_b32 s{sA3}, 0")
            p(f"L_att_slow_loop{k}:")
            self.att_slow_tile()
            p(f"s_add_u32 s{sA3}, s{sA3}, 1")
            p(f"s_cmp_lt_u32 s{sA3}, {n}")
            p(f"s_cbranch_scc1 L_att_slow_loop{k}")
        for t in range(0, 16):
            for f in sd[t]: f()
        run(16)
        self.att_b1()
        for t in range(16, 32):
            for f in sd[t]: f()
        run(16)
        self.att_b2()
        for t in range(32, 64):
            for f in sd[t]: f()
        run(32)
        p("s_branch L_att_fin")

    pWB = (16, 24)
    pB, pA = 32, 64
    pvD = 112
    pvR = (6, 7, 8, 9)
    pG = 10
    pOF = 128
    pT = 100

    P3SLOT = (1, 3, 0, 2, 4, 1, 3, 0, 2)

    def p3_slot(self, g):
        return 32768 * self.P3SLOT[g]

    def p3_setup_dma(self):
        p = self.p
        L, T = self.vLANE, self.avT
        srd(p, SRD_W2, sWD, 1792 * 1024)
        srd(p, SRD_X, sWO, 512 * 1024)
        p(f"v_bfe_u32 v{T}, v{L}, 4, 1")
        p(f"v_lshlrev_b32 v{T}, 2, v{T}")
        p(f"v_and_b32 v{T+1}, 7, v{L}")
        p(f"v_xor_b32 v{T}, v{T}, v{T+1}")
        p(f"v_lshlrev_b32 v{T}, 4, v{T}")
        p(f"s_lshl_b32 s{sA0}, s{sCB}, 7")
        p(f"v_add_u32 v{T}, s{sA0}, v{T}")
        p(f"v_lshrrev_b32 v{T+1}, 3, v{L}")
        p(f"s_lshl_b32 s{sA1}, s{sTR}, 5")
        p(f"v_add_u32 v{T+1}, s{sA1}, v{T+1}          ; 32*(w&1) + (l>>3)")
        p(f"s_mul_i32 s{sA0}, s{sKQ}, 448")
        p(f"v_add_u32 v{T+2}, s{sA0}, v{T+1}")
        p(f"v_lshl_add_u32 v{self.pvD}, v{T+2}, 10, v{T}")
        p(f"s_lshl_b32 s{sA0}, s{sKQ}, 7")
        p(f"v_add_u32 v{T+2}, s{sA0}, v{T+1}")
        p(f"v_lshl_add_u32 v{self.pvD+1}, v{T+2}, 10, v{T}")

    def p3_piece(self, g, e):
        p, q = self.p, self.q
        sl = self.p3_slot(g)
        if g < 7:
            srd_r, v, row0 = SRD_W2, self.pvD, 64 * g
        else:
            srd_r, v, row0 = SRD_X, self.pvD + 1, 64 * (g - 7)
        p(f"s_add_u32 m0, s{sM0K}, {sl + 1024*e}")
        p(f"s_mov_b32 s{sA1}, {(row0 + 8*e) * 1024}")
        p(f"buffer_load_dwordx4 v{v}, {S4(srd_r)}, s{sA1} offen lds")
        q.push(f"p3s{g}")

    def p3_emit(self, t, maxn):
        n = 0
        while self.pending3 and n < maxn:
            g, e = self.pending3[0]
            if g >= 5 and t < 4 * (g - 4) + 2:
                break
            self.pending3.pop(0)
            self.p3_piece(g, e)
            n += 1

    def p3_reads(self, t, cts=(0, 1)):
        p = self.p
        g, sp = t >> 2, t & 3
        sl = self.p3_slot(g)
        hi = 1 if sl >= 65536 else 0
        off = sl - 65536 * hi
        if sl >= 131072:
            hi, off = 2, sl - 131072
        wb = self.pWB[t & 1]
        for ct in cts:
            base = self.pvR[ct] if hi == 0 else self.pvR[2 + ct] if hi == 1 else self.pT + 8 + ct
            for j in range(2):
                p(f"ds_read_b64_tr_b16 {V2(wb + 4*ct + 2*j)}, v{base} offset:{off + (16*sp + 4*j) * 128}")
        return 2 * len(cts)

    def p3(self):
        p, q = self.p, self.q
        L, T = self.vLANE, self.pT
        p("s_waitcnt vmcnt(1)")
        p("s_barrier")
        self.pending3 = [(g, e) for g in range(self.npre3(), 9) for e in range(4)]
        self.p3_emit(0, 4)
        p(f"v_lshrrev_b32 v{T}, 5, v{L}")
        p(f"v_lshlrev_b32 v{T}, 3, v{T}")
        p(f"v_bfe_u32 v{T+1}, v{L}, 2, 2")
        p(f"v_add_u32 v{T}, v{T}, v{T+1}             ; row")
        p(f"v_lshlrev_b32 v{T}, 7, v{T}              ; *128")
        p(f"v_and_b32 v{T+1}, 1, v{L}")
        p(f"v_lshlrev_b32 v{T+1}, 2, v{T+1}")
        p(f"v_bfe_u32 v{T+2}, v{L}, 4, 1")
        p(f"v_lshl_add_u32 v{T+1}, v{T+2}, 1, v{T+1}")
        p(f"v_bfe_u32 v{T+2}, v{L}, 1, 1")
        p(f"v_add_u32 v{T+1}, v{T+1}, v{T+2}          ; cg")
        p(f"v_lshl_add_u32 v{T}, v{T+1}, 3, v{T}")
        p(f"s_lshl_b32 s{sA0}, s{sKQ}, 13")
        p(f"v_add_u32 v{T}, s{sA0}, v{T}")
        p(f"v_bfe_u32 v{T+2}, v{L}, 3, 1")
        p(f"v_lshlrev_b32 v{T+2}, 6, v{T+2}           ; 64*b")
        p(f"v_add_u32 v{self.pvR[0]}, v{T}, v{T+2}     ; ct0: 64*b")
        p(f"v_xor_b32 v{T+2}, 64, v{T+2}")
        p(f"v_add_u32 v{self.pvR[1]}, v{T}, v{T+2}     ; ct1: 64*(1-b)")
        for ct in range(2):
            p(f"v_add_u32 v{self.pvR[2+ct]}, 0x10000, v{self.pvR[ct]}")
            p(f"v_add_u32 v{T+8+ct}, 0x20000, v{self.pvR[ct]}")
        self.stamp("p3st0")
        self.lgq = []
        for ct in range(2):
            self.lg_issue((0, ct), self.p3_reads(0, (ct,)))
        G = self.pG
        wA, rA0, rA1, oA = 114, 115, 116, 117
        B, A = self.pB, self.pA

        def gate():
            lg = self.LGR
            for i in range(1, 8):
                p(f"v_add_f32 v{lg}, v{lg}, v{lg+i}")
            p(f"v_mov_b32 v{lg+1}, v{lg}")
            p(f"v_permlane32_swap_b32 v{lg}, v{lg+1}")
            p(f"v_add_f32 v{lg}, v{lg}, v{lg+1}")
            p(f"v_mul_f32 v{lg}, {f2u(-1.4426950408889634):#x}, v{lg}")
            p(f"v_exp_f32 v{lg}, v{lg}")
            p(f"v_add_f32 v{lg}, 1.0, v{lg}")
            p(f"v_rcp_f32 v{G}, v{lg}")
            p(f"v_sub_f32 v{G+1}, 1.0, v{G}")

        def addr1():
            p(f"v_and_b32 v{T}, 31, v{L}                 ; n")
            p(f"v_and_b32 v{T+1}, 15, v{L}")
            p(f"v_lshrrev_b32 v{T+2}, 5, v{L}")
            p(f"v_lshlrev_b32 v{T+2}, 2, v{T+2}           ; 4hi")
            p(f"v_xor_b32 v{T+1}, v{T+1}, v{T+2}          ; (n&15) ^ 4hi")
            p(f"v_lshlrev_b32 v{T+1}, 4, v{T+1}")
            p(f"v_lshl_add_u32 v{T}, v{T}, 8, v{T+1}")
            p(f"s_lshl_b32 s{sA0}, s{sW}, 13")
            p(f"v_add_u32 v{wA}, s{sA0}, v{T}")

        def addr2():
            p(f"v_lshrrev_b32 v{T}, 3, v{L}")
            p(f"s_lshl_b32 s{sA0}, s{sKQ}, 3")
            p(f"v_add_u32 v{T}, s{sA0}, v{T}             ; rho")
            p(f"v_and_b32 v{T+1}, 7, v{L}")
            p(f"v_lshlrev_b32 v{T+1}, 1, v{T+1}           ; 2*(l&7)")
            p(f"v_and_b32 v{T+2}, 15, v{T}")
            p(f"v_xor_b32 v{T+1}, v{T+1}, v{T+2}")
            p(f"v_lshlrev_b32 v{T+1}, 4, v{T+1}")
            p(f"v_lshl_add_u32 v{T+1}, v{T}, 8, v{T+1}")
            p(f"s_lshl_b32 s{sA0}, s{sTR}, 13")
            p(f"v_add_u32 v{rA0}, s{sA0}, v{T+1}")
            p(f"v_xor_b32 v{rA1}, 16, v{rA0}              ; e=1")
            p(f"s_lshl_b32 s{sA0}, s{sT32}, 5")
            p(f"v_add_u32 v{T}, s{sA0}, v{T}")
            p(f"v_and_b32 v{T+3}, 7, v{L}")
            p(f"v_lshlrev_b32 v{T+3}, 4, v{T+3}")
            p(f"v_lshl_add_u32 v{T}, v{T}, 10, v{T+3}")
            p(f"s_lshl_b32 s{sA0}, s{sCB}, 7")
            p(f"v_add_u32 v{oA}, s{sA0}, v{T}")
            srd(p, SRD_T, sOUT, 2048 * 1024)

        def f3addr():
            p(f"s_add_u32 s{sA0}, s{sXCD}, {F3}")
            p(f"s_lshl_b32 s{sA0}, s{sA0}, 8")
            p(f"v_mov_b32 v{T+7}, s{sA0}")

        extra = {4: gate, 8: addr1, 9: f3addr, 12: addr2}
        for t in range(36):
            g = t >> 2
            if (t & 3) == 2:
                tags = [f"p3s{g+1}"] if self.npre3() - 1 <= g < 8 else []
                if g == 0:
                    tags.append("ost")
                if g == 5:
                    tags.append("f3ld")
                self.stamp(f"qpre{g}")
                if tags:
                    q.wait(p, tags)
                if g == 5:
                    poll(p, q, T + 6, T + 7, SRD_WS, 32, "F3")
                self.stamp(f"qwait{g}")
                p("s_barrier")
                self.stamp(f"qbar{g}")
                if g == 0:
                    p(f"s_add_u32 s{sA0}, s{sQC}, {F3}")
                    p(f"s_lshl_b32 s{sA0}, s{sA0}, 8")
                    p(f"v_mov_b32 v{T}, {OOB:#x}")
                    p(f"v_mov_b32 v{T+1}, s{sA0}")
                    p(f"v_cmp_eq_u32 vcc, 0, v0")
                    p(f"v_cndmask_b32 v{T}, v{T}, v{T+1}, vcc")
                    p(f"v_mov_b32 v{T+1}, 1")
                    p(f"buffer_atomic_add v{T+1}, v{T}, {S4(SRD_WS)}, 0 offen sc1")
                    q.push("f3add")
                    self.stamp("f3")
                if g == 4:
                    p(f"buffer_load_dword v{T+6}, v{T+7}, {S4(SRD_WS)}, 0 offen sc1")
                    q.push("f3ld")
                if g == 5:
                    p(f"s_lshl_b32 s{sA2}, s{sT32}, 5")
                    p(f"s_lshl_b32 s{sA1}, s{sKQ}, 3")
                    p(f"s_add_u32 s{sA2}, s{sA2}, s{sA1}")
                    p(f"s_lshl_b32 s{sA2}, s{sA2}, 10")
                    p(f"s_add_u32 s{sA2}, s{sA2}, {WS_OF:#x}")
                    for j in range(8):
                        o = f" offset:{1024*(j&3)}" if j & 3 else ""
                        p(f"buffer_load_dwordx4 {V4(self.pOF + 4*j)}, v{self.avL16}, {S4(SRD_WS)}, s{sA2} offen{o} sc1")
                        q.push("ofr")
                        if j == 3:
                            p(f"s_add_u32 s{sA2}, s{sA2}, 4096")
            wb = self.pWB[t & 1]
            if t < 28:
                acc, bfr, first = self.pB, self.HFR + 4*t, t == 0
            else:
                acc, bfr, first = self.pA, self.pOF + 4*(t - 28), t == 28
            if t == 28:
                q.wait(p, "ofr")
            for ct in range(2):
                self.lg_wait((t, ct))
                mfma(p, acc + 16*ct, wb + 4*ct, bfr, None if first else acc + 16*ct)
                if t < 35:
                    self.lg_issue((t + 1, ct), self.p3_reads(t + 1, (ct,)))
                if ct == 0:
                    self.p3_emit(t, 2 if t < 4 else 1)
                    if t in extra:
                        extra[t]()
                if t >= 30 and t < 34:
                    k = 2*(t - 30) + ct
                    for r in range(4*k, 4*k + 4):
                        p(f"v_mul_f32 v{B+r}, v{G+1}, v{B+r}")
            if t == 27:
                self.stamp("p3a")
        self.stamp("p3b")
        for ct in range(2):
            for qq in range(4):
                r0 = 16*ct + 4*qq
                for r in range(r0, r0 + 4):
                    p(f"v_fmac_f32 v{B+r}, v{G}, v{A+r}")
                c = 8*ct + qq
                p(f"v_xor_b32 v{T+1+(qq&1)}, {16*c}, v{wA}")
                p(f"ds_write_b128 v{T+1+(qq&1)}, {V4(B + r0)}")
        p("s_waitcnt lgkmcnt(0)")
        p("s_barrier")
        R = 16
        for k in range(4):
            p(f"ds_read_b128 {V4(R + 8*k)}, v{rA0} offset:{16384*k}")
            p(f"ds_read_b128 {V4(R + 8*k + 4)}, v{rA1} offset:{16384*k}")
        p("s_waitcnt lgkmcnt(4)")
        for r in range(8):
            p(f"v_add_f32 v{R+r}, v{R+r}, v{R+8+r}")
        p("s_waitcnt lgkmcnt(0)")
        for r in range(8):
            p(f"v_add_f32 v{R+16+r}, v{R+16+r}, v{R+24+r}")
        for r in range(8):
            p(f"v_add_f32 v{R+r}, v{R+r}, v{R+16+r}")
        for i in range(4):
            p(f"v_cvt_pk_bf16_f32 v{R+8+i}, v{R+2*i}, v{R+2*i+1}")
        p(f"buffer_store_dwordx4 {V4(R+8)}, v{oA}, {S4(SRD_T)}, 0 offen" + (" sc1" if self.o.get("outsc1") else "") + (" nt" if self.o.get("outnt") else ""))

    def finish(self):
        p = self.p
        if self.o.get("twice"):
            p("s_waitcnt vmcnt(0) lgkmcnt(0)")
            p("s_barrier")
            p("s_cmp_eq_u32 s0, 0")
            p("s_mov_b32 s0, 1")
            p("s_cbranch_scc1 L_restart")
        if self.o.get("stamps"):
            p("s_waitcnt vmcnt(0)")
            self.stamp("end")
            self.dump_stamps()
        p("L_end:")
        p("s_endpgm")

    def build(self):
        self.prologue()
        self.p1()
        if self.stop_after != "p1":
            self.attention()
            if self.stop_after != "att":
                self.p3()
        self.finish()
        if self.stop_after != "p1":
            self.att_slow_code()
        self.p("L_codeend:")
        n = self.p.fix_hazards()
        return self.p.text(), n


HEADER = """; Kernarg layout (88 bytes): A_x, A_wqkv, A_wo, B_x, B_W_gate, B_W_up, B_W_down, gate_w, out, debug, ws
; @launch grid=(256,1,1) block=(512,1,1) lds=163840
.amdgcn_target "amdgcn-amd-amdhsa--gfx950"
.text
.globl {name}_kernel
.p2align 8
.type {name}_kernel,@function
{name}_kernel:
"""
FOOTER = """.section .rodata,"a"
.p2align 6
.amdhsa_kernel {name}_kernel
  .amdhsa_next_free_vgpr 256
  .amdhsa_next_free_sgpr 102
  .amdhsa_accum_offset 256
  .amdhsa_group_segment_fixed_size 0
  .amdhsa_kernarg_size 88
  .amdhsa_user_sgpr_count 2
  .amdhsa_user_sgpr_kernarg_segment_ptr 1
  .amdhsa_system_sgpr_workgroup_id_x 1
  .amdhsa_float_denorm_mode_32 3
.end_amdhsa_kernel
"""

def generate(stop_after=None, opts=None):
    opts = opts or {}
    POLLOPT["w0"] = opts.get("pollw0", 1)
    POLLOPT["sleep"] = opts.get("pollsleep", 0)
    g = Gen(stop_after, opts)
    body, n = g.build()
    return HEADER.format(name=NAME) + body + FOOTER.format(name=NAME), n, g.p.count()

if __name__ == "__main__":
    import argparse
    ap = argparse.ArgumentParser()
    ap.add_argument("--stop", default=None)
    ap.add_argument("-o", default="cdna_kernels/" + NAME + ".s")
    ap.add_argument("--opt", action="append", default=[])
    ap.add_argument("--stamps", default="")
    a = ap.parse_args()
    opts = {}
    for o in a.opt:
        k, _, v = o.partition("=")
        opts[k] = int(v) if v else 1
    names = a.stamps.split(",") if a.stamps else []
    if names:
        opts["stamps"] = 1
        opts["stampmap"] = {"start": 0, "end": 11}
        for i, nm in enumerate(names):
            opts["stampmap"][nm] = i + 1
    txt, n, cnt = generate(a.stop, opts)
    open(a.o, "w").write(txt)
    print(f"wrote {a.o}: {cnt} instructions, {n} nop pads")
```

```python
import sys, os
sys.path.insert(0, os.path.dirname(os.path.abspath(__file__)))
from asmlib import Prog, VMQ

NAME = "gated_mix__mha_block__glu_gated_reglu__prompt"

WS_CNT = 0x0
WS_NRMQ = 0x4000
WS_NRMK = 0x6000
WS_LG = 0x10000
WS_QF = 0x200000
WS_KF = 0x400000
WS_VF = 0x600000
WS_OF = 0x800000
WS_HF = 0xA00000
WS_SIZE = 0x1100000
OOB = 0x7FFF0000
F1, F2, F3 = 0, 16, 32

CSCALE = 0.25 * 1.4426950408889634
import struct
def f2u(x): return struct.unpack("<I", struct.pack("<f", x))[0]

sX, sWQKV, sWO, sWG, sWU, sWD, sGW, sOUT, sDBG, sWS = 4, 6, 8, 12, 14, 16, 18, 20, 22, 24
SRD_X, SRD_WS, SRD_G, SRD_DBG, SRD_T, SRD_W1, SRD_U = 28, 32, 36, 40, 44, 96, 4
SRD_W2 = SRD_G
sD1, sD2, sM0K, sM0X, sD0, sM0P, sCB2 = 0, 1, 3, 10, 11, 26, 27
sM0X2 = 26
sW, sRB, sAB, sRT, sCH, sTILE, sXCD, sSLOT = 48, 49, 50, 51, 52, 53, 54, 55
sT0, sT1, sT2, sT3, sT4, sT5 = 56, 57, 58, 59, 60, 61
sADV = 62
sH, sQC = 63, 64
sCS = 65
sPOLL = 66
sTYP = 67
sHFB = 68
sW1OFF, sKVB = 100, 101
sQB, sLGO, sHB1 = 18, 19, 22
sVM = 14
sNB, sCS2 = 13, 14
sEXP, sLOC = 23, 12
sTYPC, sHLD, sLGL = 23, 24, 25
sA0, sA1, sA2, sA3 = 56, 57, 58, 59
sI, sMODE, sT32, sRT64, sCB, sKQ, sTR = 60, 61, 62, 67, 68, 10, 11

def srd(p, dst, ptr, size):
    p(f"s_mov_b32 s{dst}, s{ptr}")
    p(f"s_mov_b32 s{dst+1}, s{ptr+1}")
    p(f"s_mov_b32 s{dst+2}, {size:#x}")
    p(f"s_mov_b32 s{dst+3}, 0x20000")

def S4(r): return f"s[{r}:{r+3}]"
def V4(r): return f"v[{r}:{r+3}]"
def V2(r): return f"v[{r}:{r+1}]"
def V16(r): return f"v[{r}:{r+15}]"

def mfma(p, d, a, b, c):
    cs = "0" if c is None else V16(c)
    p(f"v_mfma_f32_32x32x16_bf16 {V16(d)}, {V4(a)}, {V4(b)}, {cs}")

_uid = [0]
def uid():
    _uid[0] += 1
    return _uid[0]

POLLOPT = {"w0": 1, "sleep": 1}
def poll(p, q, vflag, vaddr, srd_reg, target, what):
    n = uid()
    if POLLOPT["w0"]:
        p(f"s_cmp_eq_u32 s{sW}, 0")
        p(f"s_cbranch_scc0 L_ok{n}")
    p(f"v_readfirstlane_b32 s{sT0}, v{vflag}")
    p(f"s_cmp_ge_u32 s{sT0}, {target}")
    p(f"s_cbranch_scc1 L_ok{n}")
    p(f"s_mov_b32 s{sPOLL}, 0")
    p(f"L_poll{n}:")
    if POLLOPT["sleep"]:
        p(f"s_sleep {POLLOPT['sleep']}")
    p(f"buffer_load_dword v{vflag}, v{vaddr}, {S4(srd_reg)}, 0 offen sc1")
    p("s_waitcnt vmcnt(0)")
    p(f"v_readfirstlane_b32 s{sT0}, v{vflag}")
    p(f"s_add_u32 s{sPOLL}, s{sPOLL}, 1")
    p(f"s_cmp_ge_u32 s{sPOLL}, 0x80000")
    p(f"s_cbranch_scc1 L_ok{n}")
    p(f"s_cmp_lt_u32 s{sT0}, {target}")
    p(f"s_cbranch_scc1 L_poll{n}")
    p(f"L_ok{n}:")


class Gen:
    def __init__(self, stop_after=None, opts=None):
        self.p = Prog()
        self.q = VMQ()
        self.stop_after = stop_after
        self.o = opts or {}

    def stamp(self, name):
        if self.o.get("stamps"):
            i = self.o["stampmap"].get(name)
            if i is not None:
                ins = "s_memrealtime" if self.o.get("rt") else "s_memtime"
                self.p(f"{ins} s[{72+2*i}:{73+2*i}] ; stamp {name}")

    def dump_stamps(self):
        if not self.o.get("stamps"):
            return
        p = self.p
        p("s_memrealtime s[70:71]")
        p("s_waitcnt lgkmcnt(0)")
        p(f"s_lshl_b32 s{sT0}, s2, 3")
        p(f"s_add_u32 s{sT0}, s{sT0}, s{sW}")
        p(f"s_lshl_b32 s{sT0}, s{sT0}, 6")
        p(f"s_add_u32 s{sT0}, s{sT0}, 0x80000")
        for i in range(12):
            p(f"v_mov_b32 v{16+i}, s{72+2*i}")
        p("v_mov_b32 v28, s69")
        p("v_mov_b32 v29, s70")
        p("v_mov_b32 v30, 0")
        p("v_mov_b32 v31, 0")
        p("v_mov_b32 v32, 0")
        p("s_mov_b64 exec, 1")
        for i in range(4):
            p(f"buffer_store_dwordx4 {V4(16+4*i)}, v32, {S4(SRD_WS)}, s{sT0} offen offset:{16*i}")
        p("s_mov_b64 exec, -1")

    def prologue(self):
        p = self.p
        p("s_cmp_ge_u32 s2, 256")
        p("s_cbranch_scc1 L_end")
        if self.o.get("perm"):
            p("s_lshl_b32 s3, s2, 3")
            p("s_lshr_b32 s2, s2, 5")
            p("s_or_b32 s2, s2, s3")
            p("s_and_b32 s2, s2, 255")
        if self.o.get("stamps"):
            p("s_memrealtime s[70:71]")
        p(f"s_load_dwordx4 s[4:7], s[0:1], 0")
        p(f"s_load_dwordx2 s[8:9], s[0:1], 16")
        p(f"s_load_dwordx4 s[12:15], s[0:1], 32")
        p(f"s_load_dwordx4 s[16:19], s[0:1], 48")
        p(f"s_load_dwordx4 s[20:23], s[0:1], 64")
        p(f"s_load_dwordx2 s[24:25], s[0:1], 80")
        if self.o.get("pf", 1):
            p("s_getpc_b64 s[26:27]")
            p("L_pfbase:")
            p("s_lshr_b32 s3, s2, 3")
            p("v_lshrrev_b32 v1, 6, v0")
            p("v_lshl_add_u32 v1, s3, 3, v1")
            p("v_and_b32 v2, 3, v0")
            p("v_lshl_add_u32 v1, v1, 2, v2")
            p("v_min_u32 v1, (L_codeend-L_pfbase)/64-1, v1")
            p("v_lshlrev_b32 v1, 6, v1")
            p("global_load_dword v127, v1, s[26:27]")
            self.q.push("pf")
        for i in range(self.o.get("padk", 0) * 128):
            p("s_mov_b32 s69, 0x12345678")
        p("v_lshrrev_b32 v1, 6, v0")
        p("v_and_b32 v2, 63, v0            ; v2 = lane")
        p(f"v_readfirstlane_b32 s{sW}, v1")
        p(f"s_and_b32 s{sXCD}, s2, 7")
        p(f"s_lshr_b32 s{sSLOT}, s2, 3")
        if self.o.get("local", 1):
            p(f"s_and_b32 s{sRB}, s{sSLOT}, 15")
            p(f"s_lshr_b32 s{sTYP}, s{sSLOT}, 4")
            p(f"s_mov_b32 s{sAB}, s{sXCD}")
        else:
            p(f"s_and_b32 s{sT0}, s{sXCD}, 1")
            p(f"s_lshl_b32 s{sT0}, s{sT0}, 3")
            p(f"s_and_b32 s{sT1}, s{sSLOT}, 7")
            p(f"s_add_u32 s{sRB}, s{sT0}, s{sT1}")
            p(f"s_lshr_b32 s{sTYP}, s{sSLOT}, 4")
            p(f"s_and_b32 s{sT0}, s{sXCD}, 6              ; 2*(xcd>>1)")
            p(f"s_bfe_u32 s{sT1}, s{sSLOT}, 0x10003       ; (slot>>3)&1")
            p(f"s_add_u32 s{sAB}, s{sT0}, s{sT1}          ; a / b = 0..7")
        p(f"s_and_b32 s{sRT}, s{sW}, 3")
        p(f"s_lshr_b32 s{sCH}, s{sW}, 2")
        p(f"s_lshl_b32 s{sT0}, s{sRB}, 2")
        p(f"s_add_u32 s{sTILE}, s{sT0}, s{sRT}")
        p(f"s_lshl_b32 s{sT0}, s{sXCD}, 2")
        p(f"s_and_b32 s{sT1}, s{sSLOT}, 3")
        p(f"s_add_u32 s{sH}, s{sT0}, s{sT1}           ; attention head")
        p(f"s_lshr_b32 s{sQC}, s{sSLOT}, 2           ; attention q chunk")
        p(f"s_mov_b32 s{sCS}, {f2u(CSCALE):#x}")
        if self.o.get("twice"):
            p("s_waitcnt lgkmcnt(0)")
            p("s_mov_b32 s0, 0")
            p("s_waitcnt lgkmcnt(0)")
            p("L_restart:")
        self.p1_setup_early()
        p("s_waitcnt lgkmcnt(0)")
        if self.o.get("stamps"):
            p("s_mov_b32 s69, s70")
            for i in range(12):
                p(f"s_mov_b32 s{72+2*i}, 0")
        self.stamp("start")
        srd(p, SRD_X, sX, 2048 * 1024)
        self.p1_setup_srd()

    vLANE = 2
    vXD = (3, 4)
    vW1 = (5, 6, 7)
    vW2 = (8, 9)
    vB = (10, 11, 12)
    vL16 = 13
    vP = (14, 15)
    WB = (16, 28)
    vXR = (40, 41, 42, 43)
    vFLAG, vFADDR, vONE, vDBGA = 44, 45, 46, 47
    TMP = 48
    ACC = 64
    TMP2 = 112
    X = 128
    SLOT1 = 40960
    AREA2 = {8: 0, 9: 16384, 10: 40960, 11: 57344, 12: 98304, 13: 81920, 14: 131072, 15: 147456}
    KVAREA = {16+j: 32768 + 16384*j for j in range(4)}
    KVAREA.update({20+j: 98304 + 16384*j for j in range(4)})
    ONES = 0
    F1G = 14

    def area(self, g):
        if g < 8:
            return self.SLOT1 * (g % 4)
        if g < 16:
            return self.AREA2[g]
        return self.KVAREA[g]

    def ovl(self):
        return self.o.get("ovl", 0)

    def acc2(self):
        return 96 if self.ovl() else self.ACC

    def window(self, g):
        if g < 8:
            return 81920 if (g % 4) >= 2 else 0
        return 131072 if self.AREA2[g] >= 131072 else 81920 if self.AREA2[g] >= 81920 else 0

    def p1_setup_early(self):
        p = self.p
        L = self.vLANE
        t0, t1, t2, t3 = 48, 49, 50, 51
        p(f"v_lshlrev_b32 v{self.vL16}, 4, v{L}")
        p(f"s_lshl_b32 s{sT0}, s{sRB}, 7")
        p(f"s_lshl_b32 s{sT1}, s{sW}, 4")
        p(f"s_add_u32 s{sT0}, s{sT0}, s{sT1}")
        p(f"v_lshrrev_b32 v{t1}, 3, v{L}             ; l>>3")
        p(f"v_add_u32 v{t2}, s{sT0}, v{t1}           ; row (e=0)")
        p(f"v_lshrrev_b32 v{t0}, 4, v{L}")
        p(f"v_and_b32 v{t3}, 7, v{L}                 ; l&7")
        p(f"v_xor_b32 v{t0}, v{t0}, v{t3}            ; piece (e=0)")
        p(f"v_lshlrev_b32 v{t0}, 4, v{t0}")
        p(f"v_lshl_add_u32 v{self.vXD[0]}, v{t2}, 10, v{t0}")
        p(f"v_xor_b32 v{t0}, 64, v{self.vXD[0]}        ; piece ^ 4")
        p(f"v_add_u32 v{self.vXD[1]}, 8192, v{t0}      ; +8 rows")
        p(f"v_bfe_u32 v{t0}, v{L}, 4, 1")
        p(f"v_lshlrev_b32 v{t0}, 2, v{t0}")
        p(f"v_xor_b32 v{t3}, v{t3}, v{t0}")
        p(f"v_lshlrev_b32 v{t3}, 4, v{t3}")
        p(f"s_lshl_b32 s{sT0}, s{sW}, 3")
        p(f"v_add_u32 v{t1}, s{sT0}, v{t1}           ; 8w + (l>>3)")
        p(f"s_mul_i32 s{sT0}, s{sAB}, 320")
        p(f"s_add_u32 s{sT0}, s{sT0}, 1024")
        p(f"s_and_b32 s{sT1}, s{sAB}, 1")
        p(f"s_mul_i32 s{sT2}, s{sT1}, 192")
        p(f"s_add_u32 s{sCB2}, s{sT0}, s{sT2}")
        p(f"s_xor_b32 s{sT1}, s{sT1}, 1")
        p(f"s_lshl_b32 s{sT1}, s{sT1}, 7")
        p(f"s_add_u32 s{sT4}, s{sT0}, s{sT1}")
        p(f"s_lshl_b32 s{sT0}, s{sAB}, 7")
        p(f"s_cmp_eq_u32 s{sTYP}, 0")
        p(f"s_cselect_b32 s{sCB2}, s{sT0}, s{sCB2}")
        p(f"v_mul_u32_u24 v{t0}, 3584, v{t1}")
        p(f"v_add3_u32 v{self.vW2[0]}, v{t0}, v{t3}, s{sCB2}")
        p(f"v_xor_b32 v{t2}, 32, v{t3}")
        p(f"v_add3_u32 v{self.vW2[1]}, v{t0}, v{t2}, s{sCB2}")
        p(f"s_cbranch_scc0 L_setupB")
        p(f"v_mul_u32_u24 v{t0}, 3072, v{t1}")
        p(f"v_add3_u32 v{self.vW1[0]}, v{t0}, v{t3}, s{sT0}")
        p(f"v_add3_u32 v{t2}, v{t0}, v{t2}, s{sT0}")
        p(f"v_add_u32 v{self.vW1[1]}, 1024, v{t2}")
        p(f"v_add_u32 v{self.vW1[2]}, 2048, v{self.vW1[0]}")
        p(f"s_lshl_b32 s{sD0}, s{sW}, 10")
        p(f"s_add_u32 s{sD0}, s{sD0}, 16384")
        p(f"s_movk_i32 s{sT5}, 8192")
        p(f"s_mov_b32 s{sADV}, {64*3072}")
        p("s_branch L_setupJ")
        p("L_setupB:")
        p(f"s_and_b32 s{sT0}, s{sW}, 3")
        p(f"s_lshl_b32 s{sT1}, s{sT0}, 4             ; 16*wq")
        p(f"s_mov_b32 s{sT2}, 43691")
        p(f"s_lshl_b32 s{sT3}, s{sCH}, 1")
        for e in range(3):
            r = self.vW1[e]
            p(f"v_add_u32 v{t0}, {64*e}, v{L}           ; j")
            p(f"v_mul_u32_u24 v{t1}, s{sT2}, v{t0}")
            p(f"v_lshrrev_b32 v{t1}, 19, v{t1}          ; j/12")
            p(f"v_mul_u32_u24 v{t2}, 12, v{t1}")
            p(f"v_sub_u32 v{t2}, v{t0}, v{t2}           ; j%12")
            p(f"v_xor_b32 v{t2}, s{sT3}, v{t2}")
            p(f"v_add_u32 v{t1}, s{sT1}, v{t1}")
            p(f"v_mul_u32_u24 v{t1}, 3584, v{t1}")
            p(f"v_lshl_add_u32 v{t1}, v{t2}, 4, v{t1}")
            p(f"v_add_u32 v{r}, s{sT4}, v{t1}")
        p(f"s_mul_i32 s{sD0}, s{sT0}, 3072")
        p(f"s_mul_i32 s{sT1}, s{sCH}, 12288")
        p(f"s_add_u32 s{sD0}, s{sD0}, s{sT1}")
        p(f"s_add_u32 s{sD0}, s{sD0}, 16384")
        p(f"s_movk_i32 s{sT5}, 1024")
        p(f"s_mov_b32 s{sADV}, {64*3584}")
        p(f"s_lshr_b32 s{sHFB}, s{sT4}, 5")
        p("L_setupJ:")
        p(f"s_lshl_b32 s{sM0X}, s{sW}, 11")
        p(f"s_lshl_b32 s{sM0K}, s{sW}, 12")
        p(f"s_lshl_b32 s{sM0P}, s{sW}, 10")
        p(f"s_mov_b32 s{sW1OFF}, 0")

    def p1_setup_srd(self):
        p = self.p
        p(f"s_add_u32 s{sD1}, s{sD0}, s{sT5}")
        p(f"s_add_u32 s{sD2}, s{sD1}, s{sT5}")
        p(f"s_cmp_eq_u32 s{sCH}, 0")
        p(f"s_cselect_b32 s{SRD_W1}, s{sWG}, s{sWU}")
        p(f"s_cselect_b32 s{SRD_W1+1}, s{sWG+1}, s{sWU+1}")
        p(f"s_mov_b32 s{SRD_W1+2}, {512*3584:#x}")
        p(f"s_cmp_eq_u32 s{sTYP}, 0")
        p(f"s_cselect_b32 s{SRD_W1}, s{sWQKV}, s{SRD_W1}")
        p(f"s_cselect_b32 s{SRD_W1+1}, s{sWQKV+1}, s{SRD_W1+1}")
        p(f"s_cselect_b32 s{SRD_W1+2}, {512*3072:#x}, s{SRD_W1+2}")
        p(f"s_mov_b32 s{SRD_W1+3}, 0x20000")

    def p1_setup_late(self):
        p, q = self.p, self.q
        L = self.vLANE
        t0, t1, t2, t3 = 48, 49, 50, 51
        srd(p, SRD_G, sWG, 512 * 3584)
        srd(p, SRD_U, sWU, 512 * 3584)
        srd(p, SRD_T, sGW, 1024)
        p(f"s_lshl_b32 s{sT0}, s{sTYP}, 3")
        p(f"s_add_u32 s{sT0}, s{sT0}, s{sAB}")
        p(f"s_lshl_b32 s{sT1}, s{sT0}, 6            ; *64 bytes")
        p(f"v_lshrrev_b32 v{t0}, 5, v{L}             ; hh")
        p(f"v_lshlrev_b32 v{t0}, 4, v{t0}            ; hh*16")
        p(f"v_add_u32 v{t0}, s{sT1}, v{t0}")
        p(f"buffer_load_dwordx4 {V4(112)}, v{t0}, {S4(SRD_T)}, 0 offen")
        p(f"buffer_load_dwordx4 {V4(116)}, v{t0}, {S4(SRD_T)}, 0 offen offset:32")
        q.push("lgld", 2)
        rowl, sig, grp = 52, 53, 54
        p(f"v_lshrrev_b32 v{t0}, 5, v{L}")
        p(f"v_lshlrev_b32 v{t0}, 3, v{t0}")
        p(f"v_bfe_u32 v{t1}, v{L}, 2, 2")
        p(f"v_add_u32 v{rowl}, v{t0}, v{t1}")
        p(f"v_and_b32 v{t0}, 1, v{L}")
        p(f"v_lshlrev_b32 v{t0}, 4, v{t0}            ; (g&1)*16")
        p(f"v_bfe_u32 v{t1}, v{L}, 1, 1")
        p(f"v_lshl_add_u32 v{sig}, v{t1}, 3, v{t0}    ; 8*sigma")
        p(f"v_bfe_u32 v{grp}, v{L}, 4, 1")
        p(f"v_bfe_u32 v{t0}, v{L}, 3, 1")
        p(f"v_xor_b32 v{t0}, s{sCH}, v{t0}")
        p(f"v_lshlrev_b32 v{t0}, 6, v{t0}")
        p(f"v_lshl_add_u32 v{t0}, v{rowl}, 7, v{t0}")
        p(f"v_add_u32 v{t0}, v{t0}, v{sig}            ; c128")
        p(f"v_mul_u32_u24 v{t1}, {8192+32}, v{grp}")
        p(f"v_add_u32 v{self.vP[0]}, v{t0}, v{t1}")
        p(f"v_xor_b32 v{self.vP[1]}, 32, v{self.vP[0]}")
        p(f"s_cmp_eq_u32 s{sTYP}, 0")
        p(f"s_cbranch_scc0 L_lateB")
        p(f"v_add_u32 v{self.vB[0]}, 16384, v{self.vP[0]}")
        p(f"v_add_u32 v{self.vB[1]}, 16384, v{self.vP[1]}")
        p(f"v_lshl_add_u32 v{t1}, v{grp}, 5, v{t0}")
        p(f"v_add_u32 v{self.vB[2]}, 32768, v{t1}")
        p("s_branch L_lateJ")
        p("L_lateB:")
        p(f"s_mul_i32 s{sT0}, s{sCH}, 96")
        p(f"s_add_u32 s{sT0}, s{sT0}, 16384")
        p(f"v_mul_u32_u24 v{t1}, 192, v{rowl}")
        p(f"v_add3_u32 v{t1}, v{t1}, v{sig}, s{sT0}")
        p(f"s_lshl_b32 s{sT1}, s{sCH}, 6")
        p(f"s_sub_u32 s{sT1}, {12288+32}, s{sT1}")
        p(f"s_sub_u32 s{sT2}, {2*12288}, s{sT1}")
        p(f"v_mul_u32_u24 v{t2}, s{sT1}, v{grp}")
        p(f"v_add_u32 v{self.vB[0]}, v{t1}, v{t2}")
        p(f"v_mul_u32_u24 v{t2}, s{sT2}, v{grp}")
        p(f"v_add_u32 v{self.vB[1]}, v{t1}, v{t2}")
        p(f"v_mov_b32 v{self.vB[2]}, v{self.vB[0]}")
        p("L_lateJ:")
        p(f"v_and_b32 v{t0}, 31, v{L}")
        p(f"s_lshl_b32 s{sT0}, s{sRT}, 5")
        p(f"v_add_u32 v{t1}, s{sT0}, v{t0}")
        p(f"v_lshlrev_b32 v{t1}, 7, v{t1}            ; row*128")
        p(f"v_bfe_u32 v{t0}, v{L}, 1, 3")
        p(f"v_lshrrev_b32 v{t2}, 5, v{L}")
        p(f"v_xor_b32 v{t0}, v{t0}, v{t2}            ; hh ^ f")
        p(f"v_lshl_add_u32 v{t1}, v{t0}, 4, v{t1}")
        for k in range(4):
            p(f"v_xor_b32 v{self.vXR[k]}, {32*k}, v{t1}")
        p(f"v_mov_b32 v{self.vONE}, 1")
        p(f"v_mov_b32 v{self.vDBGA}, 0")
        self.win1 = 0
        self.win2 = 0

    def counter_zero(self):
        p = self.p
        L = self.vLANE
        t0, t1 = 48, 49
        p("s_add_u32 s%d, s2, s%d" % (sT0, sW))
        p(f"s_cmp_eq_u32 s{sT0}, 0")
        p(f"s_cselect_b32 s{sT0}, 0, {OOB:#x}")
        p(f"v_lshlrev_b32 v{t0}, 8, v{L}")
        p(f"v_add_u32 v{t0}, s{sT0}, v{t0}")
        p(f"v_mov_b32 v{t1}, 0")
        p(f"buffer_store_dword v{t1}, v{t0}, {S4(SRD_WS)}, 0 offen sc1")
        self.q.push("cz")

    def census_add(self):
        p = self.p
        t0, t1 = 48, 49
        p(f"v_readfirstlane_b32 s{sT3}, v{self.vFLAG}")
        p(f"s_getreg_b32 s{sT0}, hwreg(HW_REG_XCC_ID, 0, 4)")
        p(f"s_mul_i32 s{sT1}, s{sT0}, s{sT0}")
        p(f"s_lshl_b32 s{sT1}, s{sT1}, 16")
        p(f"s_lshl_b32 s{sT2}, s{sT0}, 8")
        p(f"s_add_u32 s{sT1}, s{sT1}, s{sT2}")
        p(f"s_add_u32 s{sT1}, s{sT1}, 1")
        p(f"s_lshl_b32 s{sEXP}, s{sT1}, 5")
        p(f"s_add_u32 s{sT2}, s{sXCD}, 48")
        p(f"s_lshl_b32 s{sT2}, s{sT2}, 8")
        p(f"s_cmp_ge_u32 s{sT3}, 1")
        p(f"s_cselect_b32 s{sT2}, s{sT2}, {OOB:#x}")
        p(f"s_cselect_b32 s{sLOC}, 1, 0")
        p(f"v_mov_b32 v{t0}, {OOB:#x}")
        p(f"v_mov_b32 v{t1}, s{sT2}")
        p(f"v_cmp_eq_u32 vcc, 0, v0")
        p(f"v_cndmask_b32 v{t0}, v{t0}, v{t1}, vcc")
        p(f"v_mov_b32 v{t1}, s{sT1}")
        p(f"buffer_atomic_add v{t1}, v{t0}, {S4(SRD_WS)}, 0 offen sc1")
        self.q.push("cadd")

    def census_load(self):
        p = self.p
        p(f"s_add_u32 s{sT2}, s{sXCD}, 48")
        p(f"s_lshl_b32 s{sT2}, s{sT2}, 8")
        p(f"v_mov_b32 v{self.vFADDR}, s{sT2}")
        p(f"buffer_load_dword v{self.vFLAG}, v{self.vFADDR}, {S4(SRD_WS)}, 0 offen sc1")
        self.q.push("cld")

    def census_check(self):
        p = self.p
        self.q.wait(p, "cld")
        p(f"v_readfirstlane_b32 s{sT0}, v{self.vFLAG}")
        p(f"s_cmp_eq_u32 s{sT0}, s{sEXP}")
        p(f"s_cselect_b32 s{sLOC}, s{sLOC}, 0")
        if self.o.get("nolocal"):
            p(f"s_mov_b32 s{sLOC}, 0")

    def counter_flag(self):
        p = self.p
        t0, t1 = 48, 49
        p(f"s_cmp_eq_u32 s2, 0")
        p(f"s_cselect_b32 s{sT0}, 0, {OOB:#x}")
        p(f"v_mov_b32 v{t0}, {OOB:#x}")
        p(f"v_mov_b32 v{t1}, s{sT0}")
        p(f"v_cmp_eq_u32 vcc, 0, v0")
        p(f"v_cndmask_b32 v{t0}, v{t0}, v{t1}, vcc")
        p(f"v_mov_b32 v{t1}, 1")
        p(f"buffer_store_dword v{t1}, v{t0}, {S4(SRD_DBG)}, 0 offen sc1")
        self.q.push("cf")

    def p1_piece(self, g, e):
        p, q = self.p, self.q
        ar = self.area(g)
        if g < 8:
            if e < 2:
                p(f"s_add_u32 m0, s{sM0X}, {ar + 1024*e}")
                p(f"s_movk_i32 s{sT1}, {128*g}")
                p(f"buffer_load_dwordx4 v{self.vXD[e]}, {S4(SRD_X)}, s{sT1} offen lds")
            else:
                d = (sD0, sD1, sD2)[e - 2]
                p(f"s_add_u32 m0, s{d}, {ar}")
                if e == 2 and g > 0:
                    p(f"s_add_u32 s{sW1OFF}, s{sW1OFF}, s{sADV}")
                else:
                    p("s_nop 0")
                p(f"buffer_load_dwordx4 v{self.vW1[e-2]}, {S4(SRD_W1)}, s{sW1OFF} offen lds")
        elif g < 16:
            p(f"s_add_u32 m0, s{sM0P}, {ar + 8192*e}")
            p(f"s_mov_b32 s{sT1}, {229376*(g-8)}")
            p(f"buffer_load_dwordx4 v{self.vW2[e]}, {S4(SRD_G if e == 0 else SRD_U)}, s{sT1} offen lds")
        else:
            j = (g - 16) & 3
            src = (WS_KF if g < 20 else WS_VF) + 16384 * j + 1024 * e
            p(f"s_add_u32 m0, s{sM0X2}, {ar + 1024*e}")
            p(f"s_add_u32 s{sT1}, s{sKVB}, {src:#x}")
            p(f"buffer_load_dwordx4 v{self.avL16}, {S4(SRD_WS)}, s{sT1} offen sc1 lds")
        q.push(f"st{g}")

    def earliest(self, g):
        if g >= 8:
            return {8: 22, 9: 22, 10: 26, 11: 26, 12: 30, 13: 30, 14: 36, 15: 36}[g]
        return 4 * (g - 3) + 2

    def npieces(self, g):
        return 5 if g < 8 else 2

    def emit_pieces(self, step, maxn):
        n = 0
        while self.pending and n < maxn:
            g, e = self.pending[0]
            if g == "aq":
                if step < 4 * self.F1G + 2:
                    break
                self.pending.pop(0)
                if self.stop_after != "p1":
                    self.att_loads()
                n += 1
                continue
            if 4 <= g < 16 and step < self.earliest(g):
                break
            if g >= 16 and step < 4 * self.F1G + 2:
                break
            if g >= 16 and self.stop_after == "p1":
                self.pending.pop(0)
                continue
            self.pending.pop(0)
            self.p1_piece(g, e)
            n += 1

    def rebase(self, regs, cur, want):
        if want != cur:
            d = want - cur
            for r in regs:
                if d > 0:
                    self.p(f"v_add_u32 v{r}, {d:#x}, v{r}")
                else:
                    self.p(f"v_subrev_u32 v{r}, {-d:#x}, v{r}")
        return want

    def p1_reads(self, ps, s, typ, part=None):
        p = self.p
        g = (s >> 2) + (0 if ps == 1 else 8)
        sp = s & 3
        wb = self.WB[s & 1]
        n = 0
        nt = 3 if ps == 1 else 2
        parts = range(nt) if part is None else [part]
        for t in parts:
            if t >= nt:
                continue
            if ps == 1:
                if t == 0:
                    self.win1 = self.rebase(list(self.vXR) + list(self.vB), self.win1, self.window(g))
                off = self.area(g) - self.win1
                if t == 0:
                    p(f"ds_read_b128 {V4(self.X + 4*s)}, v{self.vXR[sp]} offset:{off}")
                    n += 1
                for j in range(2):
                    if typ == 0:
                        p(f"ds_read_b64_tr_b16 {V2(wb + 4*t + 2*j)}, v{self.vB[t]} offset:{off + (16*sp + 4*j)*128}")
                    else:
                        p(f"ds_read_b64_tr_b16 {V2(wb + 4*t + 2*j)}, v{self.vB[t]} offset:{off + (16*sp + 4*j)*192 + 32*t}")
                    n += 1
            else:
                if t == 0:
                    self.win2 = self.rebase(list(self.vP), self.win2, self.window(g))
                off = self.area(g) - self.win2
                for j in range(2):
                    p(f"ds_read_b64_tr_b16 {V2(wb + 4*t + 2*j)}, v{self.vP[t]} offset:{off + (16*sp + 4*j)*128}")
                    n += 1
        return n

    def p1_midstage(self, g):
        p, q = self.p, self.q
        T = 116 if (g < 8 or not self.ovl()) else 44 + 16
        garr = (11 if self.o.get("ovlper", 2) == 1 else 10) if self.ovl() else 10
        tags = [f"st{g+1}"] if g + 1 < 16 else []
        if g == 1 and not self.o.get("earlyinit", 1):
            tags += ["cz"]
        if g == 4 and self.o.get("local", 1):
            tags += ["dbg0"]
        if g == garr:
            tags += ["e1st", "dbg"]
        if g == self.F1G:
            tags += ["f1"]
        self.stamp(f"pre{g}")
        if tags:
            q.wait(p, tags)
        if g == self.F1G:
            poll(p, q, self.vFLAG, self.vFADDR, SRD_WS, 16, "F1")
        self.stamp(f"wait{g}")
        p("s_barrier")
        self.stamp(f"bar{g}")
        if g == 1 and not self.o.get("earlyinit", 1):
            self.counter_flag()
        if g == garr:
            poll(p, q, self.vFLAG, self.vDBGA, SRD_DBG, 1, "init")
            if self.cur_typ == 0:
                p(f"s_lshl_b32 s{sT0}, s{sAB}, 8")
                p(f"v_mov_b32 v{self.vFADDR}, {OOB:#x}")
                p(f"v_mov_b32 v{T}, s{sT0}")
                p(f"v_cmp_eq_u32 vcc, 0, v0")
                p(f"v_cndmask_b32 v{self.vFADDR}, v{self.vFADDR}, v{T}, vcc")
                self.stamp("f1iss")
                p(f"buffer_atomic_add v{self.vONE}, v{self.vFADDR}, {S4(SRD_WS)}, 0 offen sc1")
                q.push("f1add")
                if self.o.get("diagf1"):
                    p("s_waitcnt vmcnt(0)")
                    self.stamp("f1done")
        if self.o.get("local", 1):
            if g == 2:
                p(f"buffer_load_dword v{self.vFLAG}, v{self.vDBGA}, {S4(SRD_DBG)}, 0 offen sc1")
                q.push("dbg0")
            if g == 4:
                self.census_add()
            if g == 7 and self.cur_typ == 0:
                self.census_load()
        if g == 8:
            p(f"buffer_load_dword v{self.vFLAG}, v{self.vDBGA}, {S4(SRD_DBG)}, 0 offen sc1")
            q.push("dbg")
        if g == 13 and not self.o.get("vmask", 1):
            p(f"v_bfe_u32 v{T+2}, v0, 1, 4")
            p(f"v_and_b32 v{T+2}, 11, v{T+2}")
            p(f"v_cmp_eq_u32 vcc, 0, v{T+2}")
            p(f"v_mov_b32 v{T+1}, 0x3f803f80")
            p(f"v_cndmask_b32 v{T}, 0, v{T+1}, vcc")
            if self.o.get("allones"):
                p(f"v_mov_b32 v{T}, v{T+1}")
            p(f"v_lshlrev_b32 v{T+2}, 3, v0")
            p(f"v_mov_b32 v{T+1}, v{T}")
            p(f"ds_write_b64 v{T+2}, {V2(T)} offset:{self.ONES}")
            self.lg_issue("ones", 1)
        if g == self.F1G - 1:
            p(f"s_lshr_b32 s{sT0}, s{sH}, 2")
            p(f"s_lshl_b32 s{sT0}, s{sT0}, 8")
            p(f"v_mov_b32 v{self.vFADDR}, s{sT0}")
            p(f"buffer_load_dword v{self.vFLAG}, v{self.vFADDR}, {S4(SRD_WS)}, 0 offen sc1")
            q.push("f1")
            p(f"v_lshlrev_b32 v{self.avL16}, 4, v{self.vLANE}")
            p(f"s_lshl_b32 s{sM0X2}, s{sW}, 11")
            p(f"s_lshl_b32 s{sKVB}, s{sH}, 16")
            p(f"s_add_u32 s{sKVB}, s{sKVB}, s{sM0X2}")
        if g == 14 and self.F1G == 14 and not self.o.get("nodma"):
            self.emit_pieces(58, 6)

    def lg_issue(self, tag, n):
        self.lgq += [tag] * n

    def lg_wait(self, tag):
        last = max((i for i, t in enumerate(self.lgq) if t == tag), default=-1)
        if last < 0:
            return
        n = len(self.lgq) - 1 - last
        self.p(f"s_waitcnt lgkmcnt({min(n, 15)})")
        self.lgq = self.lgq[last + 1:]

    def p1_pass(self, ps, typ):
        p, q = self.p, self.q
        nt = 3 if ps == 1 else 2
        acc = [self.ACC + 16*t for t in range(nt)] if ps == 1 else [self.acc2() + 16*t for t in range(nt)]
        comp = not self.o.get("nocompute")
        for s in range(32):
            gs = s + (0 if ps == 1 else 32)
            g = gs >> 2
            if (s & 3) == 2:
                self.p1_midstage(g)
            nxt = None
            if s < 31:
                nxt = (ps, s + 1)
            elif ps == 1:
                nxt = (2, 0)
            wb = self.WB[s & 1]
            xs = self.X + 4*s
            for t in range(nt):
                c = None if s == 0 else acc[t]
                if comp:
                    self.lg_wait((ps, s, t))
                    if self.o.get("nomfma"):
                        pass
                    elif ps == 1 and t == 2 and typ == 0:
                        mfma(p, acc[t], xs, wb + 4*t, c)
                    else:
                        mfma(p, acc[t], wb + 4*t, xs, c)
                    if nxt and not self.o.get("nolds"):
                        n = self.p1_reads(nxt[0], nxt[1], typ, t)
                        self.lg_issue((nxt[0], nxt[1], t), n)
                if not self.o.get("nodma"):
                    if t == 0:
                        self.emit_pieces(gs, 1)
                    elif t == 1 and (ps == 1 or gs < 46):
                        self.emit_pieces(gs, 1)
                if ps == 2 and (s, t) in self.deferred:
                    self.deferred.pop((s, t))()

    def p1_first_reads(self, typ):
        self.lgq = []
        for t in range(3):
            n = self.p1_reads(1, 0, typ, t)
            self.lg_issue((1, 0, t), n)

    def store_ws(self, vdata, voff, soff_reg, tag, offset=0):
        o = f" offset:{offset}" if offset else ""
        self.p(f"buffer_store_dwordx4 {V4(vdata)}, v{voff}, {S4(SRD_WS)}, s{soff_reg} offen{o} sc1")
        self.q.push(tag)

    def relu_mul_store(self, a, tmp, unit, tag):
        p = self.p
        for r in range(8):
            p(f"v_max_f32 v{a+r}, 0, v{a+r}")
        for r in range(8):
            p(f"v_mul_f32 v{a+r}, v{a+r}, v{a+8+r}")
        for i in range(4):
            p(f"v_cvt_pk_bf16_f32 v{tmp+i}, v{a+2*i}, v{a+2*i+1}")
        p(f"s_add_u32 s{sT1}, s{sHFB}, {unit * 1024}")
        self.store_ws(tmp, self.vL16, sT1, tag)

    def hf_base(self, unit_reg_expr_lines):
        p = self.p
        for l in unit_reg_expr_lines:
            p(l)
        p(f"s_mul_i32 s{sT1}, s{sTILE}, 112")
        p(f"s_add_u32 s{sHFB}, s{sT0}, s{sT1}")
        p(f"s_lshl_b32 s{sHFB}, s{sHFB}, 10")
        p(f"s_add_u32 s{sHFB}, s{sHFB}, {WS_HF:#x}")

    def p1_logit(self, step):
        p, q = self.p, self.q
        L = self.vLANE
        p(f"s_lshl_b32 s{sT0}, s{sTYP}, 3")
        p(f"s_add_u32 s{sT0}, s{sT0}, s{sAB}          ; j")
        p(f"s_lshl_b32 s{sT1}, s{sT0}, 3")
        p(f"s_set_gpr_idx_on s{sT1}, 0x1")
        for i in range(8):
            p(f"v_mov_b32 v{120+i}, v{self.X+i}")
        p("s_set_gpr_idx_off")
        q.wait(p, "lgld")
        mfma(p, 48, 112, 120, None)
        mfma(p, 48, 116, 124, 48)
        p(f"s_lshl_b32 s{sT1}, s{sT0}, 13")
        p(f"s_add_u32 s{sT1}, s{sT1}, {WS_LG:#x}")
        p(f"s_lshl_b32 s{sT2}, s{sTILE}, 7")
        p(f"s_add_u32 s{sLGO}, s{sT1}, s{sT2}")
        p(f"s_cmp_eq_u32 s{sCH}, 0")
        p(f"s_cselect_b32 s{sT1}, 32, 0")
        p(f"v_lshlrev_b32 v43, 2, v{L}")
        p(f"v_mov_b32 v42, {OOB:#x}")
        p(f"v_cmp_gt_u32 vcc, s{sT1}, v{L}")
        p(f"v_cndmask_b32 v43, v42, v43, vcc")
        def fin():
            p(f"v_mov_b32 v42, v48")
        def f():
            p(f"buffer_store_dword v42, v43, {S4(SRD_WS)}, s{sLGO} offen sc1")
            self.q.push("lgst")
        self.deferred[step] = f
        return fin

    def p1_epi1(self, typ):
        p, q = self.p, self.q
        L = self.vLANE
        self.deferred = {}
        local = self.o.get("local", 1) and typ == 0
        if local:
            self.census_check()
        def two_flavours(emit):
            if not local:
                emit(" sc1")
                return
            n = uid()
            p(f"s_cmp_eq_u32 s{sLOC}, 0")
            p(f"s_cbranch_scc1 L_wt{n}")
            emit("")
            p(f"s_branch L_st{n}")
            p(f"L_wt{n}:")
            emit(" sc1")
            p(f"L_st{n}:")
        self.two_flavours = two_flavours
        def dstore(step, vdata, voff, const, tag, base, offset=0):
            def f():
                p(f"s_add_u32 s{sT1}, s{base}, {const:#x}")
                o = f" offset:{offset}" if offset else ""
                two_flavours(lambda fl: p(f"buffer_store_dwordx4 {V4(vdata)}, v{voff}, {S4(SRD_WS)}, s{sT1} offen{o}{fl}"))
                self.q.push(tag)
            if step is None:
                self.late_stores.append(f)
            else:
                self.deferred[step] = f
        self.late_stores = []
        lg_fin = self.p1_logit((12, 1))
        if typ == 0:
            A = (self.ACC, self.ACC + 16)
            B = self.ACC + 32
            T = self.TMP
            V = 120
            p(f"s_lshl_b32 s{sT0}, s{sAB}, 2")
            p(f"s_lshl_b32 s{sT1}, s{sCH}, 1")
            p(f"s_add_u32 s{sT0}, s{sT0}, s{sT1}          ; head")
            p(f"s_lshl_b32 s{sT1}, s{sT0}, 6")
            p(f"s_add_u32 s{sT1}, s{sT1}, s{sTILE}        ; h*64+tile")
            p(f"s_lshl_b32 s{sQB}, s{sT1}, 10")
            p(f"s_lshl_b32 s{sT5}, s{sAB}, 4")
            p(f"s_add_u32 s{sT5}, s{sT5}, s{sRB}")
            p(f"s_lshl_b32 s{sT5}, s{sT5}, 7          ; (a*16+rb)*128")
            p(f"s_lshl_b32 s{sT0}, s{sCH}, 6")
            p(f"s_add_u32 s{sT5}, s{sT5}, s{sT0}")
            p(f"s_lshl_b32 s{sT0}, s{sRT}, 3")
            p(f"s_add_u32 s{sT5}, s{sT5}, s{sT0}")
            p(f"s_mov_b32 s{sT0}, s{sCS}")
            p(f"s_mov_b32 s{sT1}, s{sCS}")
            for t in range(2):
                for i in range(4):
                    p(f"v_pk_mul_f32 {V2(A[t]+2*i)}, {V2(A[t]+2*i)}, s[{sT0}:{sT1}]")
            lg_fin()
            for t in range(2):
                for i in range(4):
                    p(f"v_cvt_pk_bf16_f32 v{T+8*t+4+i}, v{A[t]+8+2*i}, v{A[t]+8+2*i+1}")
            for i in range(8):
                p(f"v_cvt_pk_bf16_f32 v{V+i}, v{B+2*i}, v{B+2*i+1}")
            for t in range(2):
                for i in range(4):
                    p(f"v_cvt_pk_bf16_f32 v{T+8*t+i}, v{A[t]+2*i}, v{A[t]+2*i+1}")
            a = 40
            p(f"v_bfe_u32 v{a}, v{L}, 4, 1")
            p(f"v_lshlrev_b32 v{a}, 16, v{a}")
            p(f"v_lshrrev_b32 v{a+1}, 5, v{L}")
            p(f"v_lshl_add_u32 v{a}, v{a+1}, 8, v{a}")
            p(f"v_and_b32 v{a+1}, 15, v{L}")
            p(f"v_lshl_add_u32 v{a}, v{a+1}, 4, v{a}")
            dstore((0, 0), T + 4, self.vL16, WS_KF, "e1st", sQB)
            dstore((0, 1), T + 12, self.vL16, WS_KF + 65536, "e1st", sQB)
            dstore((1, 0), V, a, WS_VF, "e1st", sQB)
            dstore((1, 1), V + 4, a, WS_VF, "e1st", sQB, 512)
            dstore((2, 0), T, self.vL16, WS_QF, "e1st", sQB)
            dstore((2, 1), T + 8, self.vL16, WS_QF + 65536, "e1st", sQB)
            N = B
            for t in range(2):
                for h in range(2):
                    r = N + 4*t + 2*h
                    src = A[t] + 8*h
                    p(f"v_pk_mul_f32 {V2(r)}, {V2(src)}, {V2(src)}")
            for i in range(1, 4):
                for t in range(2):
                    for h in range(2):
                        r = N + 4*t + 2*h
                        src = A[t] + 8*h + 2*i
                        p(f"v_pk_fma_f32 {V2(r)}, {V2(src)}, {V2(src)}, {V2(r)}")
            for t in range(2):
                for h in range(2):
                    r = N + 4*t + 2*h
                    p(f"v_add_f32 v{r}, v{r}, v{r+1}")
            for t in range(2):
                p(f"v_permlane32_swap_b32 v{N+4*t}, v{N+4*t+2}")
            for t in range(2):
                p(f"v_add_f32 v{N+4*t}, v{N+4*t}, v{N+4*t+2}")
            na = 104
            p(f"s_add_u32 s{sT0}, s{sT5}, {WS_NRMQ:#x}")
            p(f"s_add_u32 s{sT1}, s{sT5}, {WS_NRMQ + 4:#x}")
            p(f"v_mov_b32 v{na}, {OOB:#x}")
            p(f"v_mov_b32 v{na+1}, s{sT0}")
            p(f"v_cmp_eq_u32 vcc, 31, v{L}")
            for sh in (1, 2):
                for t in range(2):
                    p(f"v_max_f32_dpp v{N+4*t}, v{N+4*t}, v{N+4*t} row_shr:{sh} row_mask:0xf bank_mask:0xf")
                if sh == 1:
                    p(f"v_cndmask_b32 v{na}, v{na}, v{na+1}, vcc")
                    p(f"v_mov_b32 v{na+1}, s{sT1}")
                else:
                    p(f"v_cmp_eq_u32 vcc, 63, v{L}")
            for sh in (4, 8):
                for t in range(2):
                    p(f"v_max_f32_dpp v{N+4*t}, v{N+4*t}, v{N+4*t} row_shr:{sh} row_mask:0xf bank_mask:0xf")
                if sh == 4:
                    p(f"v_cndmask_b32 v{na}, v{na}, v{na+1}, vcc")
            for t in range(2):
                p(f"v_max_f32_dpp v{N+4*t}, v{N+4*t}, v{N+4*t} row_bcast:15 row_mask:0xa bank_mask:0xf")
            def nstore(t):
                def f():
                    o = " offset:32" if t else ""
                    two_flavours(lambda fl: p(f"buffer_store_dword v{N+4*t}, v{na}, {S4(SRD_WS)}, 0 offen{o}{fl}"))
                    q = self.q
                    q.push("e1st")
                return f
            self.deferred[(3, 0)] = nstore(0)
            self.deferred[(3, 1)] = nstore(1)
        else:
            p(f"s_mul_i32 s{sT0}, s{sCH}, 3")
            p(f"s_add_u32 s{sT0}, s{sT0}, s{sHFB}")
            p(f"s_mul_i32 s{sT1}, s{sTILE}, 112")
            p(f"s_add_u32 s{sHB1}, s{sT0}, s{sT1}")
            p(f"s_lshl_b32 s{sHB1}, s{sHB1}, 10")
            for t in range(3):
                a0 = self.ACC + 16*t
                for r in range(8):
                    p(f"v_max_f32 v{a0+r}, 0, v{a0+r}")
                for r in range(8):
                    p(f"v_mul_f32 v{a0+r}, v{a0+r}, v{a0+8+r}")
                if t == 0:
                    lg_fin()
                for i in range(4):
                    p(f"v_cvt_pk_bf16_f32 v{self.TMP+4*t+i}, v{a0+2*i}, v{a0+2*i+1}")
        self.stamp("e1b")

    def p1_epi1_ovl(self, typ):
        p, q = self.p, self.q
        L = self.vLANE
        self.deferred = {}
        local = self.o.get("local", 1) and typ == 0
        if local:
            self.census_check()
        def two_flavours(emit):
            if not local:
                emit(" sc1")
                return
            n = uid()
            p(f"s_cmp_eq_u32 s{sLOC}, 0")
            p(f"s_cbranch_scc1 L_wt{n}")
            emit("")
            p(f"s_branch L_st{n}")
            p(f"L_wt{n}:")
            emit(" sc1")
            p(f"L_st{n}:")
        def store4(vdata, voff, const, offset=0):
            p(f"s_add_u32 s{sT1}, s{sQB}, {const:#x}")
            o = f" offset:{offset}" if offset else ""
            two_flavours(lambda fl: p(f"buffer_store_dwordx4 {V4(vdata)}, v{voff}, {S4(SRD_WS)}, s{sT1} offen{o}{fl}"))
            self.q.push("e1st")
        T = self.TMP
        xc = 96 if typ == 0 else 120
        if typ == 0:
            B = self.ACC + 32
            Vq = (24, 36)
            for i in range(8):
                p(f"v_cvt_pk_bf16_f32 v{Vq[i >> 2] + (i & 3)}, v{B+2*i}, v{B+2*i+1}")
        p(f"s_lshl_b32 s{sT0}, s{sTYP}, 3")
        p(f"s_add_u32 s{sT0}, s{sT0}, s{sAB}          ; j")
        p(f"s_lshl_b32 s{sT1}, s{sT0}, 3")
        p(f"s_set_gpr_idx_on s{sT1}, 0x1")
        for i in range(8):
            p(f"v_mov_b32 v{xc+i}, v{self.X+i}")
        p("s_set_gpr_idx_off")
        q.wait(p, "lgld")
        mfma(p, 48, 112, xc, None)
        mfma(p, 48, 116, xc + 4, 48)
        p(f"s_lshl_b32 s{sT1}, s{sT0}, 13")
        p(f"s_add_u32 s{sT1}, s{sT1}, {WS_LG:#x}")
        p(f"s_lshl_b32 s{sT2}, s{sTILE}, 7")
        p(f"s_add_u32 s{sLGO}, s{sT1}, s{sT2}")
        p(f"s_cmp_eq_u32 s{sCH}, 0")
        p(f"s_cselect_b32 s{sT1}, 32, 0")
        p(f"v_lshlrev_b32 v43, 2, v{L}")
        p(f"v_mov_b32 v42, {OOB:#x}")
        p(f"v_cmp_gt_u32 vcc, s{sT1}, v{L}")
        p(f"v_cndmask_b32 v43, v42, v43, vcc")
        def lgstore():
            p(f"buffer_store_dword v42, v43, {S4(SRD_WS)}, s{sLGO} offen sc1")
            self.q.push("lgst")
        side = []
        if typ == 0:
            A = (self.ACC, self.ACC + 16)
            p(f"s_lshl_b32 s{sT0}, s{sAB}, 2")
            p(f"s_lshl_b32 s{sT1}, s{sCH}, 1")
            p(f"s_add_u32 s{sT0}, s{sT0}, s{sT1}          ; head")
            p(f"s_lshl_b32 s{sT1}, s{sT0}, 6")
            p(f"s_add_u32 s{sT1}, s{sT1}, s{sTILE}        ; h*64+tile")
            p(f"s_lshl_b32 s{sQB}, s{sT1}, 10")
            p(f"s_lshl_b32 s{sNB}, s{sAB}, 4")
            p(f"s_add_u32 s{sNB}, s{sNB}, s{sRB}")
            p(f"s_lshl_b32 s{sNB}, s{sNB}, 7          ; (a*16+rb)*128")
            p(f"s_lshl_b32 s{sT0}, s{sCH}, 6")
            p(f"s_add_u32 s{sNB}, s{sNB}, s{sT0}")
            p(f"s_lshl_b32 s{sT0}, s{sRT}, 3")
            p(f"s_add_u32 s{sNB}, s{sNB}, s{sT0}")
            p(f"s_add_u32 s{sNB}, s{sNB}, {WS_NRMQ:#x}")
            p(f"s_mov_b32 s{sCS2}, s{sCS}")
            p(f"s_mov_b32 s{sCS2+1}, s{sCS}")
            a = 40
            def vaddr():
                p(f"v_bfe_u32 v{a}, v{L}, 4, 1")
                p(f"v_lshlrev_b32 v{a}, 16, v{a}")
                p(f"v_lshrrev_b32 v{a+1}, 5, v{L}")
                p(f"v_lshl_add_u32 v{a}, v{a+1}, 8, v{a}")
                p(f"v_and_b32 v{a+1}, 15, v{L}")
                p(f"v_lshl_add_u32 v{a}, v{a+1}, 4, v{a}")
            def cvt4(dst, src):
                for i in range(4):
                    p(f"v_cvt_pk_bf16_f32 v{dst+i}, v{src+2*i}, v{src+2*i+1}")
            def scale(t):
                for i in range(4):
                    p(f"v_pk_mul_f32 {V2(A[t]+2*i)}, {V2(A[t]+2*i)}, s[{sCS2}:{sCS2+1}]")
            R = [A[0], A[0] + 8, A[1], A[1] + 8]
            def nrm(i):
                for r in R:
                    if i == 0:
                        p(f"v_pk_mul_f32 {V2(r)}, {V2(r)}, {V2(r)}")
                    else:
                        p(f"v_pk_fma_f32 {V2(r)}, {V2(r+2*i)}, {V2(r+2*i)}, {V2(r)}")
            def nrm_fold():
                for r in R:
                    p(f"v_add_f32 v{r}, v{r}, v{r+1}")
            def nrm_swap():
                p(f"v_permlane32_swap_b32 v{R[0]}, v{R[1]}")
                p(f"v_permlane32_swap_b32 v{R[2]}, v{R[3]}")
                p(f"v_add_f32 v{R[0]}, v{R[0]}, v{R[1]}")
                p(f"v_add_f32 v{R[2]}, v{R[2]}, v{R[3]}")
            na = A[0] + 2
            def naddr():
                p(f"s_add_u32 s{sT1}, s{sNB}, 4")
                p(f"v_mov_b32 v{na}, {OOB:#x}")
                p(f"v_mov_b32 v{na+1}, s{sNB}")
                p(f"v_cmp_eq_u32 vcc, 31, v{L}")
                p(f"v_mov_b32 v{na+2}, s{sT1}")
                p(f"v_cndmask_b32 v{na}, v{na}, v{na+1}, vcc")
                p(f"v_cmp_eq_u32 vcc, 63, v{L}")
            def dpp(shs):
                def f():
                    for sh in shs:
                        for r in (R[0], R[2]):
                            if sh == 16:
                                p(f"v_max_f32_dpp v{r}, v{r}, v{r} row_bcast:15 row_mask:0xa bank_mask:0xf")
                            else:
                                p(f"v_max_f32_dpp v{r}, v{r}, v{r} row_shr:{sh} row_mask:0xf bank_mask:0xf")
                return f
            def nstores():
                p(f"v_cndmask_b32 v{na}, v{na}, v{na+2}, vcc")
                for t in range(2):
                    o = " offset:32" if t else ""
                    two_flavours(lambda fl: p(f"buffer_store_dword v{R[2*t]}, v{na}, {S4(SRD_WS)}, 0 offen{o}{fl}"))
                    self.q.push("e1st")
            side = [
                lambda: (vaddr(),),
                lambda: (p("v_mov_b32 v42, v48"), cvt4(T + 4, A[0] + 8), store4(Vq[0], a, WS_VF)),
                lambda: (cvt4(T + 12, A[1] + 8), store4(Vq[1], a, WS_VF, 512)),
                lambda: (scale(0), store4(T + 4, self.vL16, WS_KF)),
                lambda: (scale(1), store4(T + 12, self.vL16, WS_KF + 65536)),
                lambda: (cvt4(T, A[0]),),
                lambda: (cvt4(T + 8, A[1]), store4(T, self.vL16, WS_QF)),
                lambda: (nrm(0), store4(T + 8, self.vL16, WS_QF + 65536)),
                lambda: (nrm(1),), lambda: (nrm(2),), lambda: (nrm(3),),
                lambda: (nrm_fold(),), lambda: (nrm_swap(),),
                lambda: (dpp((1,))(), naddr()),
                dpp((2,)), dpp((4,)), dpp((8,)), dpp((16,)),
                nstores,
                lgstore,
            ]
        else:
            p(f"s_mul_i32 s{sT0}, s{sCH}, 3")
            p(f"s_add_u32 s{sT0}, s{sT0}, s{sHFB}")
            p(f"s_mul_i32 s{sT1}, s{sTILE}, 112")
            p(f"s_add_u32 s{sHB1}, s{sT0}, s{sT1}")
            p(f"s_lshl_b32 s{sHB1}, s{sHB1}, 10")
            def relu(a0, lo, hi):
                for r in range(lo, hi):
                    p(f"v_max_f32 v{a0+r}, 0, v{a0+r}")
            def mul(a0, lo, hi):
                for r in range(lo, hi):
                    p(f"v_mul_f32 v{a0+r}, v{a0+r}, v{a0+8+r}")
            def cvt(a0, dst):
                for i in range(4):
                    p(f"v_cvt_pk_bf16_f32 v{dst+i}, v{a0+2*i}, v{a0+2*i+1}")
            a2 = self.ACC + 32
            relu(a2, 0, 8); mul(a2, 0, 8)
            p("v_mov_b32 v42, v48")
            cvt(a2, T + 8)
            for t in range(2):
                a0 = self.ACC + 16*t
                side += [lambda a0=a0: relu(a0, 0, 5), lambda a0=a0: (relu(a0, 5, 8), mul(a0, 0, 2)), lambda a0=a0: mul(a0, 2, 8),
                         lambda a0=a0, t=t: cvt(a0, T + 4*t)]
            side += [lgstore]
        per = self.o.get("ovlper", 2) if typ == 0 else 1
        groups = [side[i:i + per] for i in range(0, len(side), per)]
        for k, fs in enumerate(groups):
            self.deferred[(k >> 1, k & 1)] = (lambda fs=fs: [f() for f in fs])
        self.stamp("e1b")

    def p1_epi2(self, typ):
        p = self.p
        p(f"s_lshr_b32 s{sT2}, s{sCB2}, 5")
        p(f"s_lshl_b32 s{sT0}, s{sCH}, 1")
        p(f"s_add_u32 s{sT0}, s{sT0}, s{sT2}")
        p(f"s_mul_i32 s{sT1}, s{sTILE}, 112")
        p(f"s_add_u32 s{sHFB}, s{sT0}, s{sT1}")
        p(f"s_lshl_b32 s{sQB}, s{sHFB}, 10")
        for t in range(2):
            a0 = self.acc2() + 16*t
            for r in range(8):
                p(f"v_max_f32 v{a0+r}, 0, v{a0+r}")
            for r in range(8):
                p(f"v_mul_f32 v{a0+r}, v{a0+r}, v{a0+8+r}")
            for i in range(4):
                p(f"v_cvt_pk_bf16_f32 v{128+4*t+i}, v{a0+2*i}, v{a0+2*i+1}")
        if typ == 1:
            for i in range(12):
                p(f"v_mov_b32 v{136+i}, v{self.TMP+i}")

    def late_h_stores(self):
        p = self.p
        for t in range(2):
            p(f"s_add_u32 s{sT1}, s{sQB}, {WS_HF + 1024*t:#x}")
            self.store_ws(128 + 4*t, self.avL16, sT1, "hst")
        n = uid()
        p(f"s_cmp_eq_u32 s{sA3}, 0")
        p(f"s_cbranch_scc1 L_noh_{n}")
        for t in range(3):
            p(f"s_add_u32 s{sT1}, s{sHB1}, {WS_HF + 1024*t:#x}")
            self.store_ws(136 + 4*t, self.avL16, sT1, "hst")
        p(f"L_noh_{n}:")

    def p1(self):
        p, q = self.p, self.q
        early = self.o.get("earlyinit", 1)
        if early:
            srd(p, SRD_WS, sWS, WS_SIZE)
            self.counter_zero()
        self.stamp("predma")
        for g in range(2):
            for e in range(5):
                self.p1_piece(g, e)
        self.stamp("dma0")
        self.pending = [(g, e) for g in list(range(2, 16)) for e in range(self.npieces(g))]
        self.pending += [(16, 0), (16, 1), (20, 0), (20, 1), ("aq", 0), (17, 0), (17, 1), (21, 0), (21, 1)]
        if not early:
            srd(p, SRD_WS, sWS, WS_SIZE)
        srd(p, SRD_DBG, sDBG, 256)
        self.p1_setup_late()
        if not early:
            self.counter_zero()
        if not self.o.get("nodma"):
            self.emit_pieces(0, self.o.get("upfront", 0))
        self.stamp("setup")
        q.wait(p, ["st0", "cz"] if early else ["st0"])
        p("s_barrier")
        if early:
            self.counter_flag()
        self.stamp("st0")
        p(f"s_cmp_eq_u32 s{sTYP}, 0")
        p("s_cbranch_scc0 L_p1_B")
        q0, w0, pend0 = q.fork(), (self.win1, self.win2), list(self.pending)
        ends = []
        for typ in range(2):
            if typ == 1:
                p("L_p1_B:")
                self.q = q0
                self.win1, self.win2 = w0
                self.pending = pend0
            self.cur_typ = typ
            self.p1_first_reads(typ)
            self.p1_pass(1, typ)
            self.stamp("pass1")
            if self.ovl():
                self.p1_epi1_ovl(typ)
            else:
                self.p1_epi1(typ)
            self.stamp("epi1")
            self.p1_pass(2, typ)
            assert not self.deferred
            self.stamp("pass2")
            if not self.o.get("nodma"):
                self.emit_pieces(99, 99)
            self.p1_epi2(typ)
            self.stamp("epi2")
            ends.append(self.q)
            if typ == 0:
                p("s_branch L_p1_join")
        p("L_p1_join:")
        self.q = VMQ.join(ends)

    aQ, aK, aV, aS, aP, aO = 4, (8, 12), (16, 24), (32, 48), (64, 72), 80
    avK, avV, avVinc, avL16 = 96, 97, 98, 3
    avT = 100
    HFR = 128
    LGR = 240

    def nrmT(self):
        return 64 if self.ovl() else self.avT

    def att_loads(self):
        p, q = self.p, self.q
        L, T = self.vLANE, self.nrmT()
        p(f"s_lshl_b32 s{sA0}, s{sQC}, 3")
        p(f"s_add_u32 s{sA0}, s{sA0}, s{sW}          ; q tile")
        p(f"s_lshl_b32 s{sA1}, s{sH}, 6")
        p(f"s_add_u32 s{sA1}, s{sA1}, s{sA0}         ; h*64+tile")
        p(f"s_lshl_b32 s{sA2}, s{sA1}, 10")
        p(f"s_add_u32 s{sA2}, s{sA2}, {WS_QF:#x}")
        p(f"buffer_load_dwordx4 {V4(self.aQ)}, v{self.vL16}, {S4(SRD_WS)}, s{sA2} offen sc1")
        p(f"s_lshr_b32 s{sA2}, s{sH}, 2")
        p(f"s_lshl_b32 s{sA2}, s{sA2}, 11")
        p(f"s_and_b32 s{sA1}, s{sH}, 3")
        p(f"s_lshl_b32 s{sA1}, s{sA1}, 5")
        p(f"s_add_u32 s{sA2}, s{sA2}, s{sA1}")
        p(f"s_add_u32 s{sA2}, s{sA2}, {WS_NRMQ:#x}")
        p(f"v_lshrrev_b32 v{T}, 2, v{L}")
        p(f"v_lshlrev_b32 v{T}, 7, v{T}")
        p(f"v_and_b32 v{T+3}, 3, v{L}")
        p(f"v_lshl_add_u32 v{T}, v{T+3}, 3, v{T}")
        p(f"buffer_load_dword v{T+1}, v{T}, {S4(SRD_WS)}, s{sA2} offen offset:4 sc1")
        p(f"s_lshr_b32 s{sA1}, s{sA0}, 2")
        p(f"s_lshl_b32 s{sA1}, s{sA1}, 7")
        p(f"s_and_b32 s{sA0}, s{sA0}, 3")
        p(f"s_lshl_b32 s{sA0}, s{sA0}, 3")
        p(f"s_add_u32 s{sA2}, s{sA2}, s{sA1}")
        p(f"s_add_u32 s{sA2}, s{sA2}, s{sA0}")
        p(f"v_mov_b32 v{T+3}, 0")
        p(f"buffer_load_dword v{T+2}, v{T+3}, {S4(SRD_WS)}, s{sA2} offen sc1")
        q.push("aq", 3)

    def att_setup(self):
        p, q = self.p, self.q
        L, T = self.vLANE, self.avT
        p(f"v_lshlrev_b32 v{self.avL16}, 4, v{L}")
        p(f"v_add_u32 v{self.avK}, 32768, v{self.avL16}")
        if self.o.get("vmask", 1):
            p(f"v_lshrrev_b32 v{T+5}, 5, v{L}")
            p(f"v_lshlrev_b32 v{T+5}, 8, v{T+5}")
            p(f"v_and_b32 v{T+6}, 15, v{L}")
            p(f"v_lshl_add_u32 v{T+5}, v{T+6}, 4, v{T+5}")
            p(f"v_add_u32 v{self.avV}, 98304, v{T+5}")
            p(f"v_and_b32 v{T+6}, 27, v{L}")
            p(f"v_cmp_eq_u32 vcc, 16, v{T+6}")
            p(f"v_mov_b32 v{T+7}, 0x3f803f80")
            p(f"v_cndmask_b32 v{T+7}, 0, v{T+7}, vcc")
            for r in range(self.aV[0], self.aV[0] + 16):
                p(f"v_mov_b32 v{r}, v{T+7}")
            p(f"s_mov_b32 s{sVM}, 0xffff")
            p(f"s_mov_b32 s{sVM+1}, 0xffff")
        else:
            p(f"v_and_b32 v{T+4}, 31, v{L}               ; m")
            p(f"v_lshrrev_b32 v{T+5}, 5, v{L}")
            p(f"v_lshlrev_b32 v{T+5}, 8, v{T+5}")
            p(f"v_and_b32 v{T+6}, 15, v{L}")
            p(f"v_lshl_add_u32 v{T+5}, v{T+6}, 4, v{T+5}")
            p(f"v_add_u32 v{T+5}, 98304, v{T+5}")
            p(f"v_subrev_u32 v{T+6}, 20, v{T+4}")
            p(f"v_mov_b32 v{T+7}, {self.ONES+16}")
            p(f"v_mov_b32 v{T+8}, {self.ONES+80}")
            p(f"v_cmp_gt_u32 vcc, 8, v{T+6}")
            p(f"v_cndmask_b32 v{T+7}, v{T+7}, v{T+8}, vcc")
            p(f"v_and_b32 v{T+6}, 27, v{T+4}")
            p(f"v_subrev_u32 v{T+8}, 16, v{T+7}")
            p(f"v_cmp_eq_u32 vcc, 16, v{T+6}")
            p(f"v_cndmask_b32 v{T+7}, v{T+7}, v{T+8}, vcc")
            p(f"v_cmp_gt_u32 vcc, 16, v{T+4}")
            p(f"v_cndmask_b32 v{self.avV}, v{T+7}, v{T+5}, vcc")
            p(f"v_mov_b32 v{T+7}, 0")
            p(f"v_mov_b32 v{T+8}, 4096")
            p(f"v_cndmask_b32 v{self.avVinc}, v{T+7}, v{T+8}, vcc")
        self.P3COORD = True
        p(f"s_mov_b32 s{sTYPC}, s{sTYP}")
        p(f"s_lshl_b32 s{sRT64}, s{sXCD}, 2")
        p(f"s_and_b32 s{sA0}, s{sSLOT}, 3")
        p(f"s_add_u32 s{sRT64}, s{sRT64}, s{sA0}")
        p(f"s_lshr_b32 s{sCB}, s{sSLOT}, 2")
        p(f"s_lshr_b32 s{sKQ}, s{sW}, 1")
        p(f"s_and_b32 s{sTR}, s{sW}, 1")
        p(f"s_lshl_b32 s{sT32}, s{sRT64}, 1")
        p(f"s_add_u32 s{sT32}, s{sT32}, s{sTR}")
        q.wait(p, ["st16", "st17", "st20", "aq"])
        p("s_barrier")
        self.stamp("kv")
        p(f"ds_read_b128 {V4(self.aK[0])}, v{self.avK}")
        p(f"ds_read_b128 {V4(self.aK[1])}, v{self.avK} offset:1024")
        N = self.nrmT()
        for sh in (1, 2, 4, 8):
            p(f"v_max_f32_dpp v{N+1}, v{N+1}, v{N+1} row_shr:{sh} row_mask:0xf bank_mask:0xf")
        p(f"v_max_f32_dpp v{N+1}, v{N+1}, v{N+1} row_bcast:15 row_mask:0xa bank_mask:0xf")
        p(f"v_max_f32_dpp v{N+1}, v{N+1}, v{N+1} row_bcast:31 row_mask:0xc bank_mask:0xf")
        p(f"v_readlane_b32 s{sA0}, v{N+1}, 63")
        p(f"v_mul_f32 v{N+2}, s{sA0}, v{N+2}")
        p(f"v_mov_b32 v{N+3}, {f2u(3600.0):#x}")
        p(f"v_cmp_le_f32 vcc, v{N+2}, v{N+3}")
        p(f"s_cmp_eq_u64 vcc, exec")
        p(f"s_cselect_b32 s{sMODE}, 0, 1")
        if self.o.get("force_slow"):
            p(f"s_mov_b32 s{sMODE}, 1")

    def att_tile(self, t, side):
        p = self.p
        tb = t & 3
        Sc, Sn = self.aS[t & 1], self.aS[(t + 1) & 1]
        Kn, Kl = self.aK[(t + 1) & 1], self.aK[t & 1]
        Vc, Vp = self.aV[t & 1], self.aV[(t + 1) & 1]
        Pc, Pp = self.aP[t & 1], self.aP[(t + 1) & 1]
        O, Q = self.aO, self.aQ
        ex = lambda i: p(f"v_exp_f32 v{Sc+i}, v{Sc+i}")
        cv = lambda i: p(f"v_cvt_pk_bf16_f32 v{Pc+i}, v{Sc+2*i}, v{Sc+2*i+1}")
        p("s_waitcnt lgkmcnt(0)")
        if t < 63:
            mfma(p, Sn, Kn, Q, None)
        if t < 62:
            p(f"ds_read_b128 {V4(Kl)}, v{self.avK} offset:{1024*(t+2)}")
        if self.o.get("vmask", 1):
            p(f"s_mov_b64 exec, s[{sVM}:{sVM+1}]")
            p(f"ds_read_b128 {V4(Vc)}, v{self.avV} offset:{1024*t}")
            p(f"ds_read_b128 {V4(Vc+4)}, v{self.avV} offset:{1024*t+512}")
            p("s_mov_b64 exec, -1")
        else:
            p(f"ds_read_b128 {V4(Vc)}, v{self.avV} offset:{1024*tb}")
            p(f"ds_read_b128 {V4(Vc+4)}, v{self.avV} offset:{1024*tb+512}")
        ex(0); ex(1); ex(2); cv(0); ex(3)
        if t > 0:
            mfma(p, O, Vp, Pp, None if t == 1 else O)
        if side:
            side[0]()
        ex(4); cv(1); ex(5); ex(6); cv(2); ex(7); ex(8); cv(3); ex(9)
        if t > 0:
            mfma(p, O, Vp + 4, Pp + 4, O)
        for f in side[1:]:
            f()
        ex(10); cv(4); ex(11); ex(12); cv(5); ex(13); ex(14); ex(15); cv(6)
        if tb == 3 and t < 63 and not self.o.get("vmask", 1):
            p(f"v_add_u32 v{self.avV}, v{self.avVinc}, v{self.avV}")
        cv(7)

    def side_hstore(self, i):
        p = self.p
        def f():
            if i < 2:
                p(f"s_add_u32 s{sT1}, s{sQB}, {WS_HF + 1024*i:#x}")
                self.store_ws(128 + 4*i, self.avL16, sT1, "hst")
            else:
                n = uid()
                p(f"s_cmp_eq_u32 s{sTYPC}, 0")
                p(f"s_cbranch_scc1 L_noh_{n}")
                p(f"s_add_u32 s{sT1}, s{sHB1}, {WS_HF + 1024*(i-2):#x}")
                qa = self.q.fork()
                self.store_ws(136 + 4*(i-2), self.avL16, sT1, "hst")
                p(f"L_noh_{n}:")
                self.q = VMQ.join([qa, self.q])
                self.q.dedup()
        return f

    def side_kv(self, g, e):
        return lambda: self.p1_piece(g, e)

    def side_warm(self):
        p = self.p
        L, T = self.vLANE, self.avT
        def f():
            srd(p, SRD_T, sWD, 1792 * 1024)
            p(f"s_mul_i32 s{sA0}, s{sSLOT}, 57344")
            p(f"s_mul_i32 s{sA1}, s{sW}, 7168")
            p(f"s_add_u32 s{sA0}, s{sA0}, s{sA1}")
            p(f"v_lshlrev_b32 v{T}, 6, v{L}")
            p(f"buffer_load_dword v{T+3}, v{T}, {S4(SRD_T)}, s{sA0} offen")
            p(f"s_add_u32 s{sA0}, s{sA0}, 3072")
            p(f"buffer_load_dword v{T+4}, v{T}, {S4(SRD_T)}, s{sA0} offen")
            srd(p, SRD_T, sWO, 512 * 1024)
            p(f"s_lshl_b32 s{sA0}, s{sSLOT}, 14")
            p(f"s_lshl_b32 s{sA1}, s{sW}, 11")
            p(f"s_add_u32 s{sA0}, s{sA0}, s{sA1}")
            p(f"v_and_b32 v{T+6}, 31, v{L}")
            p(f"v_lshlrev_b32 v{T+6}, 6, v{T+6}")
            p(f"buffer_load_dword v{T+5}, v{T+6}, {S4(SRD_T)}, s{sA0} offen")
            self.q.push("warm", 3)
        return f

    def side_f2load(self):
        p, T = self.p, self.avT
        def f():
            p(f"s_lshr_b32 s{sA0}, s{sRT64}, 1")
            p(f"s_add_u32 s{sA0}, s{sA0}, {F2}")
            p(f"s_lshl_b32 s{sA0}, s{sA0}, 8")
            p(f"v_mov_b32 v{T}, s{sA0}")
            p(f"buffer_load_dword v{T+1}, v{T}, {S4(SRD_WS)}, 0 offen sc1")
            self.q.push("f2ld")
        return f

    def side_hload(self, j):
        p = self.p
        def f():
            if j == 0:
                p(f"s_mul_i32 s{sHLD}, s{sT32}, 112")
                p(f"s_mul_i32 s{sA1}, s{sKQ}, 28")
                p(f"s_add_u32 s{sHLD}, s{sHLD}, s{sA1}")
                p(f"s_lshl_b32 s{sHLD}, s{sHLD}, 10")
                p(f"s_add_u32 s{sHLD}, s{sHLD}, {WS_HF:#x}")
            o = f" offset:{1024*(j&3)}" if j & 3 else ""
            p(f"buffer_load_dwordx4 {V4(self.HFR + 4*j)}, v{self.avL16}, {S4(SRD_WS)}, s{sHLD} offen{o} sc1")
            self.q.push("hld")
            if (j & 3) == 3:
                p(f"s_add_u32 s{sHLD}, s{sHLD}, 4096")
        return f

    def side_lgload(self, i):
        p, L, T = self.p, self.vLANE, self.avT
        def f():
            if i == 0:
                p(f"v_lshrrev_b32 v{T+7}, 5, v{L}")
                p(f"v_lshlrev_b32 v{T+7}, 16, v{T+7}")
                p(f"v_and_b32 v{T+6}, 31, v{L}")
                p(f"v_lshl_add_u32 v{T+7}, v{T+6}, 2, v{T+7}")
                p(f"s_lshl_b32 s{sLGL}, s{sT32}, 7")
                p(f"s_add_u32 s{sLGL}, s{sLGL}, {WS_LG:#x}")
            p(f"buffer_load_dword v{self.LGR+i}, v{T+7}, {S4(SRD_WS)}, s{sLGL} offen sc1")
            self.q.push("lgl")
            if i < 7:
                p(f"s_add_u32 s{sLGL}, s{sLGL}, 8192")
        return f

    def att_b1(self):
        p, T = self.p, self.avT
        self.q.wait(p, ["hst", "st21", "st18", "lgst"])
        p("s_barrier")
        p(f"s_add_u32 s{sA0}, s{sRB}, {F2}")
        p(f"s_lshl_b32 s{sA0}, s{sA0}, 8")
        p(f"v_mov_b32 v{T+4}, {OOB:#x}")
        p(f"v_mov_b32 v{T+5}, s{sA0}")
        p(f"v_cmp_eq_u32 vcc, 0, v0")
        p(f"v_cndmask_b32 v{T+4}, v{T+4}, v{T+5}, vcc")
        p(f"v_mov_b32 v{T+5}, 1")
        p(f"buffer_atomic_add v{T+5}, v{T+4}, {S4(SRD_WS)}, 0 offen sc1")
        self.q.push("f2add")

    def att_b2(self):
        p, T = self.p, self.avT
        self.q.wait(p, ["st19", "st22", "st23", "f2ld"])
        poll(p, self.q, T + 1, T, SRD_WS, 16, "F2")
        p("s_waitcnt lgkmcnt(0)")
        p("s_barrier")
        self.p3_setup_dma()

    def npre3(self):
        return self.o.get("pre3", 3) if self.o.get("vmask", 1) else 2

    def att_sides(self):
        sd = {t: [] for t in range(64)}
        for i in range(5):
            sd[i].append(self.side_hstore(i))
        order = [(18, 0), (18, 1), (22, 0), (22, 1), (19, 0), (19, 1), (23, 0), (23, 1)]
        for k, (g, e) in enumerate(order):
            sd[5 + k].append(self.side_kv(g, e))
        if self.o.get("warm", 1):
            sd[18].append(self.side_warm())
        if self.o.get("wb"):
            def wb():
                n = uid()
                p = self.p
                p(f"s_add_u32 s{sA0}, s{sSLOT}, s{sW}")
                p(f"s_cmp_eq_u32 s{sA0}, 0")
                p(f"s_cbranch_scc0 L_nowb{n}")
                qa = self.q.fork()
                p("buffer_wbl2 sc1")
                self.q.push("wb")
                p(f"L_nowb{n}:")
                self.q = VMQ.join([qa, self.q]); self.q.dedup()
            sd[self.o["wb"]].append(wb)
        sd[28].append(self.side_f2load())
        ops = [(lambda g=g, e=e: self.p3_piece(g, e)) for g in range(self.npre3()) for e in range(4)]
        ops2 = [self.side_hload(j) for j in range(28)] + [self.side_lgload(i) for i in range(8)]
        seq = []
        while ops or ops2:
            if ops:
                seq.append(ops.pop(0))
            if ops2:
                seq.append(ops2.pop(0))
        t = 32
        n2 = len(seq) - 31
        k = 0
        while k < len(seq):
            sd[t].append(seq[k]); k += 1
            if n2 > 0 and k < len(seq):
                sd[t].append(seq[k]); k += 1; n2 -= 1
            t += 1
        assert t <= 63, t
        return sd

    def att_slow_tile(self):
        p = self.p
        S, P, O, K, V, Q = self.aS[0], self.aP[0], self.aO, self.aK[0], self.aV[0], self.aQ
        T = self.avT
        m_old, m_new, al = T + 8, T + 9, T + 10
        p(f"ds_read_b128 {V4(K)}, v{self.avK}")
        if self.o.get("vmask", 1):
            p(f"s_mov_b64 exec, s[{sVM}:{sVM+1}]")
        p(f"ds_read_b128 {V4(V)}, v{self.avV}")
        p(f"ds_read_b128 {V4(V+4)}, v{self.avV} offset:512")
        if self.o.get("vmask", 1):
            p("s_mov_b64 exec, -1")
        p("s_waitcnt lgkmcnt(0)")
        mfma(p, S, K, Q, None)
        p(f"v_max3_f32 v{m_new}, v{S}, v{S+1}, v{S+2}")
        for r in range(3, 15, 2):
            p(f"v_max3_f32 v{m_new}, v{m_new}, v{S+r}, v{S+r+1}")
        p(f"v_max_f32 v{m_new}, v{m_new}, v{S+15}")
        p(f"v_mov_b32 v{al}, v{m_new}")
        p(f"v_permlane32_swap_b32 v{m_new}, v{al}")
        p(f"v_max3_f32 v{m_new}, v{m_new}, v{al}, v{m_old}")
        p(f"v_sub_f32 v{al}, v{m_old}, v{m_new}")
        p(f"v_exp_f32 v{al}, v{al}")
        p(f"v_mov_b32 v{m_old}, v{m_new}")
        for r in range(16):
            p(f"v_sub_f32 v{S+r}, v{S+r}, v{m_new}")
        for r in range(16):
            p(f"v_exp_f32 v{S+r}, v{S+r}")
        for r in range(16):
            p(f"v_mul_f32 v{O+r}, v{al}, v{O+r}")
        for i in range(8):
            p(f"v_cvt_pk_bf16_f32 v{P+i}, v{S+2*i}, v{S+2*i+1}")
        mfma(p, O, V, P, O)
        mfma(p, O, V + 4, P + 4, O)
        p(f"v_add_u32 v{self.avK}, 1024, v{self.avK}")
        if self.o.get("vmask", 1):
            p(f"v_add_u32 v{self.avV}, 1024, v{self.avV}")
        else:
            p(f"v_lshrrev_b32 v{al}, 2, v{self.avVinc}")
            p(f"v_add_u32 v{self.avV}, v{al}, v{self.avV}")

    def attention(self):
        p, q = self.p, self.q
        self.att_setup()
        p(f"s_cmp_eq_u32 s{sMODE}, 0")
        p("s_cbranch_scc0 L_att_slow0")
        self.q_slow = self.q.fork()
        p("s_waitcnt lgkmcnt(1)")
        mfma(p, self.aS[0], self.aK[0], self.aQ, None)
        prio = self.o.get("prio", 2)
        def ladder(t):
            if prio == 1:
                return 3 - t // 16
            return 3 - (t % 16) // 4 if t < 32 else 3 - (t - 32) // 8
        sd = self.att_sides()
        for t in range(64):
            if prio and (t == 0 or ladder(t) != ladder(t - 1)) and t not in (16, 32):
                p(f"s_setprio {ladder(t)}")
            if t in (16, 32, 48):
                self.stamp(f"seg{t//16}")
                if prio and t in (16, 32):
                    p(f"s_setprio {ladder(t)}")
                if t == 16:
                    self.att_b1()
                if t == 32:
                    self.att_b2()
                self.stamp(f"seg{t//16}e")
            self.att_tile(t, [] if self.o.get("noseg") else sd[t])
        p("s_waitcnt lgkmcnt(0)")
        mfma(p, self.aO, self.aV[1], self.aP[1], self.aO)
        mfma(p, self.aO, self.aV[1] + 4, self.aP[1] + 4, self.aO)
        p("L_att_fin:")
        self.stamp("att")
        O, T = self.aO, self.avT
        p(f"v_rcp_f32 v{T}, v{O+8}")
        for r in range(8):
            p(f"v_mul_f32 v{O+r}, v{T}, v{O+r}")
        for i in range(4):
            p(f"v_cvt_pk_bf16_f32 v{T+4+i}, v{O+2*i}, v{O+2*i+1}")
        p(f"s_lshl_b32 s{sA0}, s{sQC}, 3")
        p(f"s_add_u32 s{sA0}, s{sA0}, s{sW}")
        p(f"s_lshl_b32 s{sA0}, s{sA0}, 5")
        p(f"s_add_u32 s{sA0}, s{sA0}, s{sH}")
        p(f"s_lshl_b32 s{sA0}, s{sA0}, 10")
        p(f"s_add_u32 s{sA0}, s{sA0}, {WS_OF:#x}")
        p(f"buffer_store_dwordx4 {V4(T+4)}, v{self.avL16}, {S4(SRD_WS)}, s{sA0} offen sc1")
        self.q = VMQ()
        self.q.push("ost")

    def att_slow_code(self):
        p = self.p
        T = self.avT
        self.q = self.q_slow
        p("L_att_slow0:")
        p("s_waitcnt lgkmcnt(0)")
        p(f"v_mov_b32 v{T+8}, 0xff800000")
        for r in range(self.aO, self.aO + 16):
            p(f"v_mov_b32 v{r}, 0")
        sd = self.att_sides()
        def run(n):
            k = uid()
            p(f"s_mov_b32 s{sA3}, 0")
            p(f"L_att_slow_loop{k}:")
            self.att_slow_tile()
            p(f"s_add_u32 s{sA3}, s{sA3}, 1")
            p(f"s_cmp_lt_u32 s{sA3}, {n}")
            p(f"s_cbranch_scc1 L_att_slow_loop{k}")
        for t in range(0, 16):
            for f in sd[t]: f()
        run(16)
        self.att_b1()
        for t in range(16, 32):
            for f in sd[t]: f()
        run(16)
        self.att_b2()
        for t in range(32, 64):
            for f in sd[t]: f()
        run(32)
        p("s_branch L_att_fin")

    pWB = (16, 24)
    pB, pA = 32, 64
    pvD = 112
    pvR = (6, 7, 8, 9)
    pG = 10
    pOF = 128
    pT = 100

    P3SLOT = (1, 3, 0, 2, 4, 1, 3, 0, 2)

    def p3_slot(self, g):
        return 32768 * self.P3SLOT[g]

    def p3_setup_dma(self):
        p = self.p
        L, T = self.vLANE, self.avT
        srd(p, SRD_W2, sWD, 1792 * 1024)
        srd(p, SRD_X, sWO, 512 * 1024)
        p(f"v_bfe_u32 v{T}, v{L}, 4, 1")
        p(f"v_lshlrev_b32 v{T}, 2, v{T}")
        p(f"v_and_b32 v{T+1}, 7, v{L}")
        p(f"v_xor_b32 v{T}, v{T}, v{T+1}")
        p(f"v_lshlrev_b32 v{T}, 4, v{T}")
        p(f"s_lshl_b32 s{sA0}, s{sCB}, 7")
        p(f"v_add_u32 v{T}, s{sA0}, v{T}")
        p(f"v_lshrrev_b32 v{T+1}, 3, v{L}")
        p(f"s_lshl_b32 s{sA1}, s{sTR}, 5")
        p(f"v_add_u32 v{T+1}, s{sA1}, v{T+1}          ; 32*(w&1) + (l>>3)")
        p(f"s_mul_i32 s{sA0}, s{sKQ}, 448")
        p(f"v_add_u32 v{T+2}, s{sA0}, v{T+1}")
        p(f"v_lshl_add_u32 v{self.pvD}, v{T+2}, 10, v{T}")
        p(f"s_lshl_b32 s{sA0}, s{sKQ}, 7")
        p(f"v_add_u32 v{T+2}, s{sA0}, v{T+1}")
        p(f"v_lshl_add_u32 v{self.pvD+1}, v{T+2}, 10, v{T}")

    def p3_piece(self, g, e):
        p, q = self.p, self.q
        sl = self.p3_slot(g)
        if g < 7:
            srd_r, v, row0 = SRD_W2, self.pvD, 64 * g
        else:
            srd_r, v, row0 = SRD_X, self.pvD + 1, 64 * (g - 7)
        p(f"s_add_u32 m0, s{sM0K}, {sl + 1024*e}")
        p(f"s_mov_b32 s{sA1}, {(row0 + 8*e) * 1024}")
        p(f"buffer_load_dwordx4 v{v}, {S4(srd_r)}, s{sA1} offen lds")
        q.push(f"p3s{g}")

    def p3_emit(self, t, maxn):
        n = 0
        while self.pending3 and n < maxn:
            g, e = self.pending3[0]
            if g >= 5 and t < 4 * (g - 4) + 2:
                break
            self.pending3.pop(0)
            self.p3_piece(g, e)
            n += 1

    def p3_reads(self, t, cts=(0, 1)):
        p = self.p
        g, sp = t >> 2, t & 3
        sl = self.p3_slot(g)
        hi = 1 if sl >= 65536 else 0
        off = sl - 65536 * hi
        if sl >= 131072:
            hi, off = 2, sl - 131072
        wb = self.pWB[t & 1]
        for ct in cts:
            base = self.pvR[ct] if hi == 0 else self.pvR[2 + ct] if hi == 1 else self.pT + 8 + ct
            for j in range(2):
                p(f"ds_read_b64_tr_b16 {V2(wb + 4*ct + 2*j)}, v{base} offset:{off + (16*sp + 4*j) * 128}")
        return 2 * len(cts)

    def p3(self):
        p, q = self.p, self.q
        L, T = self.vLANE, self.pT
        p("s_waitcnt vmcnt(1)")
        p("s_barrier")
        self.pending3 = [(g, e) for g in range(self.npre3(), 9) for e in range(4)]
        self.p3_emit(0, 4)
        p(f"v_lshrrev_b32 v{T}, 5, v{L}")
        p(f"v_lshlrev_b32 v{T}, 3, v{T}")
        p(f"v_bfe_u32 v{T+1}, v{L}, 2, 2")
        p(f"v_add_u32 v{T}, v{T}, v{T+1}             ; row")
        p(f"v_lshlrev_b32 v{T}, 7, v{T}              ; *128")
        p(f"v_and_b32 v{T+1}, 1, v{L}")
        p(f"v_lshlrev_b32 v{T+1}, 2, v{T+1}")
        p(f"v_bfe_u32 v{T+2}, v{L}, 4, 1")
        p(f"v_lshl_add_u32 v{T+1}, v{T+2}, 1, v{T+1}")
        p(f"v_bfe_u32 v{T+2}, v{L}, 1, 1")
        p(f"v_add_u32 v{T+1}, v{T+1}, v{T+2}          ; cg")
        p(f"v_lshl_add_u32 v{T}, v{T+1}, 3, v{T}")
        p(f"s_lshl_b32 s{sA0}, s{sKQ}, 13")
        p(f"v_add_u32 v{T}, s{sA0}, v{T}")
        p(f"v_bfe_u32 v{T+2}, v{L}, 3, 1")
        p(f"v_lshlrev_b32 v{T+2}, 6, v{T+2}           ; 64*b")
        p(f"v_add_u32 v{self.pvR[0]}, v{T}, v{T+2}     ; ct0: 64*b")
        p(f"v_xor_b32 v{T+2}, 64, v{T+2}")
        p(f"v_add_u32 v{self.pvR[1]}, v{T}, v{T+2}     ; ct1: 64*(1-b)")
        for ct in range(2):
            p(f"v_add_u32 v{self.pvR[2+ct]}, 0x10000, v{self.pvR[ct]}")
            p(f"v_add_u32 v{T+8+ct}, 0x20000, v{self.pvR[ct]}")
        self.stamp("p3st0")
        self.lgq = []
        for ct in range(2):
            self.lg_issue((0, ct), self.p3_reads(0, (ct,)))
        G = self.pG
        wA, rA0, rA1, oA = 114, 115, 116, 117
        B, A = self.pB, self.pA

        def gate():
            lg = self.LGR
            for i in range(1, 8):
                p(f"v_add_f32 v{lg}, v{lg}, v{lg+i}")
            p(f"v_mov_b32 v{lg+1}, v{lg}")
            p(f"v_permlane32_swap_b32 v{lg}, v{lg+1}")
            p(f"v_add_f32 v{lg}, v{lg}, v{lg+1}")
            p(f"v_mul_f32 v{lg}, {f2u(-1.4426950408889634):#x}, v{lg}")
            p(f"v_exp_f32 v{lg}, v{lg}")
            p(f"v_add_f32 v{lg}, 1.0, v{lg}")
            p(f"v_rcp_f32 v{G}, v{lg}")
            p(f"v_sub_f32 v{G+1}, 1.0, v{G}")

        def addr1():
            p(f"v_and_b32 v{T}, 31, v{L}                 ; n")
            p(f"v_and_b32 v{T+1}, 15, v{L}")
            p(f"v_lshrrev_b32 v{T+2}, 5, v{L}")
            p(f"v_lshlrev_b32 v{T+2}, 2, v{T+2}           ; 4hi")
            p(f"v_xor_b32 v{T+1}, v{T+1}, v{T+2}          ; (n&15) ^ 4hi")
            p(f"v_lshlrev_b32 v{T+1}, 4, v{T+1}")
            p(f"v_lshl_add_u32 v{T}, v{T}, 8, v{T+1}")
            p(f"s_lshl_b32 s{sA0}, s{sW}, 13")
            p(f"v_add_u32 v{wA}, s{sA0}, v{T}")

        def addr2():
            p(f"v_lshrrev_b32 v{T}, 3, v{L}")
            p(f"s_lshl_b32 s{sA0}, s{sKQ}, 3")
            p(f"v_add_u32 v{T}, s{sA0}, v{T}             ; rho")
            p(f"v_and_b32 v{T+1}, 7, v{L}")
            p(f"v_lshlrev_b32 v{T+1}, 1, v{T+1}           ; 2*(l&7)")
            p(f"v_and_b32 v{T+2}, 15, v{T}")
            p(f"v_xor_b32 v{T+1}, v{T+1}, v{T+2}")
            p(f"v_lshlrev_b32 v{T+1}, 4, v{T+1}")
            p(f"v_lshl_add_u32 v{T+1}, v{T}, 8, v{T+1}")
            p(f"s_lshl_b32 s{sA0}, s{sTR}, 13")
            p(f"v_add_u32 v{rA0}, s{sA0}, v{T+1}")
            p(f"v_xor_b32 v{rA1}, 16, v{rA0}              ; e=1")
            p(f"s_lshl_b32 s{sA0}, s{sT32}, 5")
            p(f"v_add_u32 v{T}, s{sA0}, v{T}")
            p(f"v_and_b32 v{T+3}, 7, v{L}")
            p(f"v_lshlrev_b32 v{T+3}, 4, v{T+3}")
            p(f"v_lshl_add_u32 v{T}, v{T}, 10, v{T+3}")
            p(f"s_lshl_b32 s{sA0}, s{sCB}, 7")
            p(f"v_add_u32 v{oA}, s{sA0}, v{T}")
            srd(p, SRD_T, sOUT, 2048 * 1024)

        def f3addr():
            p(f"s_add_u32 s{sA0}, s{sXCD}, {F3}")
            p(f"s_lshl_b32 s{sA0}, s{sA0}, 8")
            p(f"v_mov_b32 v{T+7}, s{sA0}")

        extra = {4: gate, 8: addr1, 9: f3addr, 12: addr2}
        for t in range(36):
            g = t >> 2
            if (t & 3) == 2:
                tags = [f"p3s{g+1}"] if self.npre3() - 1 <= g < 8 else []
                if g == self.o.get("f3g", 0):
                    tags.append("ost")
                if g == 5:
                    tags.append("f3ld")
                self.stamp(f"qpre{g}")
                if tags:
                    q.wait(p, tags)
                if g == 5:
                    poll(p, q, T + 6, T + 7, SRD_WS, 32, "F3")
                self.stamp(f"qwait{g}")
                p("s_barrier")
                self.stamp(f"qbar{g}")
                if g == self.o.get("f3g", 0):
                    p(f"s_add_u32 s{sA0}, s{sQC}, {F3}")
                    p(f"s_lshl_b32 s{sA0}, s{sA0}, 8")
                    p(f"v_mov_b32 v{T}, {OOB:#x}")
                    p(f"v_mov_b32 v{T+1}, s{sA0}")
                    p(f"v_cmp_eq_u32 vcc, 0, v0")
                    p(f"v_cndmask_b32 v{T}, v{T}, v{T+1}, vcc")
                    p(f"v_mov_b32 v{T+1}, 1")
                    p(f"buffer_atomic_add v{T+1}, v{T}, {S4(SRD_WS)}, 0 offen sc1")
                    q.push("f3add")
                    self.stamp("f3")
                if g == 4:
                    p(f"buffer_load_dword v{T+6}, v{T+7}, {S4(SRD_WS)}, 0 offen sc1")
                    q.push("f3ld")
                if g == 5:
                    p(f"s_lshl_b32 s{sA2}, s{sT32}, 5")
                    p(f"s_lshl_b32 s{sA1}, s{sKQ}, 3")
                    p(f"s_add_u32 s{sA2}, s{sA2}, s{sA1}")
                    p(f"s_lshl_b32 s{sA2}, s{sA2}, 10")
                    p(f"s_add_u32 s{sA2}, s{sA2}, {WS_OF:#x}")
                    for j in range(8):
                        o = f" offset:{1024*(j&3)}" if j & 3 else ""
                        p(f"buffer_load_dwordx4 {V4(self.pOF + 4*j)}, v{self.avL16}, {S4(SRD_WS)}, s{sA2} offen{o} sc1")
                        q.push("ofr")
                        if j == 3:
                            p(f"s_add_u32 s{sA2}, s{sA2}, 4096")
            wb = self.pWB[t & 1]
            if t < 28:
                acc, bfr, first = self.pB, self.HFR + 4*t, t == 0
            else:
                acc, bfr, first = self.pA, self.pOF + 4*(t - 28), t == 28
            if t == 28:
                q.wait(p, "ofr")
            for ct in range(2):
                self.lg_wait((t, ct))
                mfma(p, acc + 16*ct, wb + 4*ct, bfr, None if first else acc + 16*ct)
                if t < 35:
                    self.lg_issue((t + 1, ct), self.p3_reads(t + 1, (ct,)))
                if ct == 0:
                    self.p3_emit(t, 2 if t < 4 else 1)
                    if t in extra:
                        extra[t]()
                if t >= 30 and t < 34:
                    k = 2*(t - 30) + ct
                    for r in range(4*k, 4*k + 4):
                        p(f"v_mul_f32 v{B+r}, v{G+1}, v{B+r}")
            if t == 27:
                self.stamp("p3a")
        self.stamp("p3b")
        for ct in range(2):
            for qq in range(4):
                r0 = 16*ct + 4*qq
                for r in range(r0, r0 + 4):
                    p(f"v_fmac_f32 v{B+r}, v{G}, v{A+r}")
                c = 8*ct + qq
                p(f"v_xor_b32 v{T+1+(qq&1)}, {16*c}, v{wA}")
                p(f"ds_write_b128 v{T+1+(qq&1)}, {V4(B + r0)}")
        p("s_waitcnt lgkmcnt(0)")
        p("s_barrier")
        R = 16
        for k in range(4):
            p(f"ds_read_b128 {V4(R + 8*k)}, v{rA0} offset:{16384*k}")
            p(f"ds_read_b128 {V4(R + 8*k + 4)}, v{rA1} offset:{16384*k}")
        p("s_waitcnt lgkmcnt(4)")
        for r in range(8):
            p(f"v_add_f32 v{R+r}, v{R+r}, v{R+8+r}")
        p("s_waitcnt lgkmcnt(0)")
        for r in range(8):
            p(f"v_add_f32 v{R+16+r}, v{R+16+r}, v{R+24+r}")
        for r in range(8):
            p(f"v_add_f32 v{R+r}, v{R+r}, v{R+16+r}")
        for i in range(4):
            p(f"v_cvt_pk_bf16_f32 v{R+8+i}, v{R+2*i}, v{R+2*i+1}")
        p(f"buffer_store_dwordx4 {V4(R+8)}, v{oA}, {S4(SRD_T)}, 0 offen" + (" sc1" if self.o.get("outsc1") else "") + (" nt" if self.o.get("outnt") else ""))

    def finish(self):
        p = self.p
        if self.o.get("twice"):
            p("s_waitcnt vmcnt(0) lgkmcnt(0)")
            p("s_barrier")
            p("s_cmp_eq_u32 s0, 0")
            p("s_mov_b32 s0, 1")
            p("s_cbranch_scc1 L_restart")
        if self.o.get("stamps"):
            p("s_waitcnt vmcnt(0)")
            self.stamp("end")
            self.dump_stamps()
        p("L_end:")
        p("s_endpgm")

    def build(self):
        self.prologue()
        self.p1()
        if self.stop_after != "p1":
            self.attention()
            if self.stop_after != "att":
                self.p3()
        self.finish()
        if self.stop_after != "p1":
            self.att_slow_code()
        self.p("L_codeend:")
        n = self.p.fix_hazards()
        return self.p.text(), n


HEADER = """; Kernarg layout (88 bytes): A_x, A_wqkv, A_wo, B_x, B_W_gate, B_W_up, B_W_down, gate_w, out, debug, ws
; @launch grid=(256,1,1) block=(512,1,1) lds=163840
.amdgcn_target "amdgcn-amd-amdhsa--gfx950"
.text
.globl {name}_kernel
.p2align 8
.type {name}_kernel,@function
{name}_kernel:
"""
FOOTER = """.section .rodata,"a"
.p2align 6
.amdhsa_kernel {name}_kernel
  .amdhsa_next_free_vgpr 256
  .amdhsa_next_free_sgpr 102
  .amdhsa_accum_offset 256
  .amdhsa_group_segment_fixed_size 0
  .amdhsa_kernarg_size 88
  .amdhsa_user_sgpr_count 2
  .amdhsa_user_sgpr_kernarg_segment_ptr 1
  .amdhsa_system_sgpr_workgroup_id_x 1
  .amdhsa_float_denorm_mode_32 3
.end_amdhsa_kernel
"""

def generate(stop_after=None, opts=None):
    opts = opts or {}
    POLLOPT["w0"] = opts.get("pollw0", 1)
    POLLOPT["sleep"] = opts.get("pollsleep", 0)
    g = Gen(stop_after, opts)
    body, n = g.build()
    return HEADER.format(name=NAME) + body + FOOTER.format(name=NAME), n, g.p.count()

if __name__ == "__main__":
    import argparse
    ap = argparse.ArgumentParser()
    ap.add_argument("--stop", default=None)
    ap.add_argument("-o", default="cdna_kernels/" + NAME + ".s")
    ap.add_argument("--opt", action="append", default=[])
    ap.add_argument("--stamps", default="")
    a = ap.parse_args()
    opts = {}
    for o in a.opt:
        k, _, v = o.partition("=")
        opts[k] = int(v) if v else 1
    names = a.stamps.split(",") if a.stamps else []
    if names:
        opts["stamps"] = 1
        opts["stampmap"] = {"start": 0, "end": 11}
        for i, nm in enumerate(names):
            opts["stampmap"][nm] = i + 1
    txt, n, cnt = generate(a.stop, opts)
    open(a.o, "w").write(txt)
    print(f"wrote {a.o}: {cnt} instructions, {n} nop pads")
```

```python
import sys, os
sys.path.insert(0, os.path.dirname(os.path.abspath(__file__)))
from asmlib import Prog, VMQ

NAME = "gated_mix__mha_block__glu_gated_reglu__prompt"

WS_CNT = 0x0
WS_NRMQ = 0x4000
WS_NRMK = 0x6000
WS_LG = 0x10000
WS_QF = 0x200000
WS_KF = 0x400000
WS_VF = 0x600000
WS_OF = 0x800000
WS_HF = 0xA00000
WS_SIZE = 0x1100000
OOB = 0x7FFF0000
F1, F2, F3 = 0, 16, 32

CSCALE = 0.25 * 1.4426950408889634
import struct
def f2u(x): return struct.unpack("<I", struct.pack("<f", x))[0]

sX, sWQKV, sWO, sWG, sWU, sWD, sGW, sOUT, sDBG, sWS = 4, 6, 8, 12, 14, 16, 18, 20, 22, 24
SRD_X, SRD_WS, SRD_G, SRD_DBG, SRD_T, SRD_W1, SRD_U = 28, 32, 36, 40, 44, 96, 4
SRD_W2 = SRD_G
sD1, sD2, sM0K, sM0X, sD0, sM0P, sCB2 = 0, 1, 3, 10, 11, 26, 27
sM0X2 = 26
sW, sRB, sAB, sRT, sCH, sTILE, sXCD, sSLOT = 48, 49, 50, 51, 52, 53, 54, 55
sT0, sT1, sT2, sT3, sT4, sT5 = 56, 57, 58, 59, 60, 61
sADV = 62
sH, sQC = 63, 64
sCS = 65
sPOLL = 66
sTYP = 67
sHFB = 68
sW1OFF, sKVB = 100, 101
sQB, sLGO, sHB1 = 18, 19, 22
sVM = 14
sNB, sCS2 = 13, 14
sEXP, sLOC = 23, 12
sTYPC, sHLD, sLGL = 23, 24, 25
sA0, sA1, sA2, sA3 = 56, 57, 58, 59
sI, sMODE, sT32, sRT64, sCB, sKQ, sTR = 60, 61, 62, 67, 68, 10, 11

def srd(p, dst, ptr, size):
    p(f"s_mov_b32 s{dst}, s{ptr}")
    p(f"s_mov_b32 s{dst+1}, s{ptr+1}")
    p(f"s_mov_b32 s{dst+2}, {size:#x}")
    p(f"s_mov_b32 s{dst+3}, 0x20000")

def S4(r): return f"s[{r}:{r+3}]"
def V4(r): return f"v[{r}:{r+3}]"
def V2(r): return f"v[{r}:{r+1}]"
def V16(r): return f"v[{r}:{r+15}]"

def mfma(p, d, a, b, c):
    cs = "0" if c is None else V16(c)
    p(f"v_mfma_f32_32x32x16_bf16 {V16(d)}, {V4(a)}, {V4(b)}, {cs}")

_uid = [0]
def uid():
    _uid[0] += 1
    return _uid[0]

POLLOPT = {"w0": 1, "sleep": 1}
def poll(p, q, vflag, vaddr, srd_reg, target, what):
    n = uid()
    if POLLOPT["w0"]:
        p(f"s_cmp_eq_u32 s{sW}, 0")
        p(f"s_cbranch_scc0 L_ok{n}")
    p(f"v_readfirstlane_b32 s{sT0}, v{vflag}")
    p(f"s_cmp_ge_u32 s{sT0}, {target}")
    p(f"s_cbranch_scc1 L_ok{n}")
    p(f"s_mov_b32 s{sPOLL}, 0")
    p(f"L_poll{n}:")
    if POLLOPT["sleep"]:
        p(f"s_sleep {POLLOPT['sleep']}")
    p(f"buffer_load_dword v{vflag}, v{vaddr}, {S4(srd_reg)}, 0 offen sc1")
    p("s_waitcnt vmcnt(0)")
    p(f"v_readfirstlane_b32 s{sT0}, v{vflag}")
    p(f"s_add_u32 s{sPOLL}, s{sPOLL}, 1")
    p(f"s_cmp_ge_u32 s{sPOLL}, 0x80000")
    p(f"s_cbranch_scc1 L_ok{n}")
    p(f"s_cmp_lt_u32 s{sT0}, {target}")
    p(f"s_cbranch_scc1 L_poll{n}")
    p(f"L_ok{n}:")


class Gen:
    def __init__(self, stop_after=None, opts=None):
        self.p = Prog()
        self.q = VMQ()
        self.stop_after = stop_after
        self.o = opts or {}

    def stamp(self, name):
        if self.o.get("stamps"):
            i = self.o["stampmap"].get(name)
            if i is not None:
                ins = "s_memrealtime" if self.o.get("rt") else "s_memtime"
                self.p(f"{ins} s[{72+2*i}:{73+2*i}] ; stamp {name}")

    def dump_stamps(self):
        if not self.o.get("stamps"):
            return
        p = self.p
        p("s_memrealtime s[70:71]")
        p("s_waitcnt lgkmcnt(0)")
        p(f"s_lshl_b32 s{sT0}, s2, 3")
        p(f"s_add_u32 s{sT0}, s{sT0}, s{sW}")
        p(f"s_lshl_b32 s{sT0}, s{sT0}, 6")
        p(f"s_add_u32 s{sT0}, s{sT0}, 0x80000")
        for i in range(12):
            p(f"v_mov_b32 v{16+i}, s{72+2*i}")
        p("v_mov_b32 v28, s69")
        p("v_mov_b32 v29, s70")
        p("v_mov_b32 v30, 0")
        p("v_mov_b32 v31, 0")
        p("v_mov_b32 v32, 0")
        p("s_mov_b64 exec, 1")
        for i in range(4):
            p(f"buffer_store_dwordx4 {V4(16+4*i)}, v32, {S4(SRD_WS)}, s{sT0} offen offset:{16*i}")
        p("s_mov_b64 exec, -1")

    def prologue(self):
        p = self.p
        p("s_cmp_ge_u32 s2, 256")
        p("s_cbranch_scc1 L_end")
        if self.o.get("perm"):
            p("s_lshl_b32 s3, s2, 3")
            p("s_lshr_b32 s2, s2, 5")
            p("s_or_b32 s2, s2, s3")
            p("s_and_b32 s2, s2, 255")
        if self.o.get("stamps"):
            p("s_memrealtime s[70:71]")
        p(f"s_load_dwordx4 s[4:7], s[0:1], 0")
        p(f"s_load_dwordx2 s[8:9], s[0:1], 16")
        p(f"s_load_dwordx4 s[12:15], s[0:1], 32")
        p(f"s_load_dwordx4 s[16:19], s[0:1], 48")
        p(f"s_load_dwordx4 s[20:23], s[0:1], 64")
        p(f"s_load_dwordx2 s[24:25], s[0:1], 80")
        if self.o.get("pf", 1):
            p("s_getpc_b64 s[26:27]")
            p("L_pfbase:")
            p("s_lshr_b32 s3, s2, 3")
            p("v_lshrrev_b32 v1, 6, v0")
            p("v_lshl_add_u32 v1, s3, 3, v1")
            p("v_and_b32 v2, 3, v0")
            p("v_lshl_add_u32 v1, v1, 2, v2")
            p("v_min_u32 v1, (L_codeend-L_pfbase)/64-1, v1")
            p("v_lshlrev_b32 v1, 6, v1")
            p("global_load_dword v127, v1, s[26:27]")
            self.q.push("pf")
        for i in range(self.o.get("padk", 0) * 128):
            p("s_mov_b32 s69, 0x12345678")
        p("v_lshrrev_b32 v1, 6, v0")
        p("v_and_b32 v2, 63, v0            ; v2 = lane")
        p(f"v_readfirstlane_b32 s{sW}, v1")
        p(f"s_and_b32 s{sXCD}, s2, 7")
        p(f"s_lshr_b32 s{sSLOT}, s2, 3")
        if self.o.get("local", 1):
            p(f"s_and_b32 s{sRB}, s{sSLOT}, 15")
            p(f"s_lshr_b32 s{sTYP}, s{sSLOT}, 4")
            p(f"s_mov_b32 s{sAB}, s{sXCD}")
        else:
            p(f"s_and_b32 s{sT0}, s{sXCD}, 1")
            p(f"s_lshl_b32 s{sT0}, s{sT0}, 3")
            p(f"s_and_b32 s{sT1}, s{sSLOT}, 7")
            p(f"s_add_u32 s{sRB}, s{sT0}, s{sT1}")
            p(f"s_lshr_b32 s{sTYP}, s{sSLOT}, 4")
            p(f"s_and_b32 s{sT0}, s{sXCD}, 6              ; 2*(xcd>>1)")
            p(f"s_bfe_u32 s{sT1}, s{sSLOT}, 0x10003       ; (slot>>3)&1")
            p(f"s_add_u32 s{sAB}, s{sT0}, s{sT1}          ; a / b = 0..7")
        p(f"s_and_b32 s{sRT}, s{sW}, 3")
        p(f"s_lshr_b32 s{sCH}, s{sW}, 2")
        p(f"s_lshl_b32 s{sT0}, s{sRB}, 2")
        p(f"s_add_u32 s{sTILE}, s{sT0}, s{sRT}")
        p(f"s_lshl_b32 s{sT0}, s{sXCD}, 2")
        p(f"s_and_b32 s{sT1}, s{sSLOT}, 3")
        p(f"s_add_u32 s{sH}, s{sT0}, s{sT1}           ; attention head")
        p(f"s_lshr_b32 s{sQC}, s{sSLOT}, 2           ; attention q chunk")
        p(f"s_mov_b32 s{sCS}, {f2u(CSCALE):#x}")
        if self.o.get("twice"):
            p("s_waitcnt lgkmcnt(0)")
            p("s_mov_b32 s0, 0")
            p("s_waitcnt lgkmcnt(0)")
            p("L_restart:")
        self.p1_setup_early()
        p("s_waitcnt lgkmcnt(0)")
        if self.o.get("stamps"):
            p("s_mov_b32 s69, s70")
            for i in range(12):
                p(f"s_mov_b32 s{72+2*i}, 0")
        self.stamp("start")
        srd(p, SRD_X, sX, 2048 * 1024)
        self.p1_setup_srd()

    vLANE = 2
    vXD = (3, 4)
    vW1 = (5, 6, 7)
    vW2 = (8, 9)
    vB = (10, 11, 12)
    vL16 = 13
    vP = (14, 15)
    WB = (16, 28)
    vXR = (40, 41, 42, 43)
    vFLAG, vFADDR, vONE, vDBGA = 44, 45, 46, 47
    TMP = 48
    ACC = 64
    TMP2 = 112
    X = 128
    SLOT1 = 40960
    AREA2 = {8: 0, 9: 16384, 10: 40960, 11: 57344, 12: 98304, 13: 81920, 14: 131072, 15: 147456}
    KVAREA = {16+j: 32768 + 16384*j for j in range(4)}
    KVAREA.update({20+j: 98304 + 16384*j for j in range(4)})
    ONES = 0
    F1G = 14

    def area(self, g):
        if g < 8:
            return self.SLOT1 * (g % 4)
        if g < 16:
            return self.AREA2[g]
        return self.KVAREA[g]

    def ovl(self):
        return self.o.get("ovl", 0)

    def acc2(self):
        return 96 if self.ovl() else self.ACC

    def window(self, g):
        if g < 8:
            return 81920 if (g % 4) >= 2 else 0
        return 131072 if self.AREA2[g] >= 131072 else 81920 if self.AREA2[g] >= 81920 else 0

    def p1_setup_early(self):
        p = self.p
        L = self.vLANE
        t0, t1, t2, t3 = 48, 49, 50, 51
        p(f"v_lshlrev_b32 v{self.vL16}, 4, v{L}")
        p(f"s_lshl_b32 s{sT0}, s{sRB}, 7")
        p(f"s_lshl_b32 s{sT1}, s{sW}, 4")
        p(f"s_add_u32 s{sT0}, s{sT0}, s{sT1}")
        p(f"v_lshrrev_b32 v{t1}, 3, v{L}             ; l>>3")
        p(f"v_add_u32 v{t2}, s{sT0}, v{t1}           ; row (e=0)")
        p(f"v_lshrrev_b32 v{t0}, 4, v{L}")
        p(f"v_and_b32 v{t3}, 7, v{L}                 ; l&7")
        p(f"v_xor_b32 v{t0}, v{t0}, v{t3}            ; piece (e=0)")
        p(f"v_lshlrev_b32 v{t0}, 4, v{t0}")
        p(f"v_lshl_add_u32 v{self.vXD[0]}, v{t2}, 10, v{t0}")
        p(f"v_xor_b32 v{t0}, 64, v{self.vXD[0]}        ; piece ^ 4")
        p(f"v_add_u32 v{self.vXD[1]}, 8192, v{t0}      ; +8 rows")
        p(f"v_bfe_u32 v{t0}, v{L}, 4, 1")
        p(f"v_lshlrev_b32 v{t0}, 2, v{t0}")
        p(f"v_xor_b32 v{t3}, v{t3}, v{t0}")
        p(f"v_lshlrev_b32 v{t3}, 4, v{t3}")
        p(f"s_lshl_b32 s{sT0}, s{sW}, 3")
        p(f"v_add_u32 v{t1}, s{sT0}, v{t1}           ; 8w + (l>>3)")
        p(f"s_mul_i32 s{sT0}, s{sAB}, 320")
        p(f"s_add_u32 s{sT0}, s{sT0}, 1024")
        p(f"s_and_b32 s{sT1}, s{sAB}, 1")
        p(f"s_mul_i32 s{sT2}, s{sT1}, 192")
        p(f"s_add_u32 s{sCB2}, s{sT0}, s{sT2}")
        p(f"s_xor_b32 s{sT1}, s{sT1}, 1")
        p(f"s_lshl_b32 s{sT1}, s{sT1}, 7")
        p(f"s_add_u32 s{sT4}, s{sT0}, s{sT1}")
        p(f"s_lshl_b32 s{sT0}, s{sAB}, 7")
        p(f"s_cmp_eq_u32 s{sTYP}, 0")
        p(f"s_cselect_b32 s{sCB2}, s{sT0}, s{sCB2}")
        p(f"v_mul_u32_u24 v{t0}, 3584, v{t1}")
        p(f"v_add3_u32 v{self.vW2[0]}, v{t0}, v{t3}, s{sCB2}")
        p(f"v_xor_b32 v{t2}, 32, v{t3}")
        p(f"v_add3_u32 v{self.vW2[1]}, v{t0}, v{t2}, s{sCB2}")
        p(f"s_cbranch_scc0 L_setupB")
        p(f"v_mul_u32_u24 v{t0}, 3072, v{t1}")
        p(f"v_add3_u32 v{self.vW1[0]}, v{t0}, v{t3}, s{sT0}")
        p(f"v_add3_u32 v{t2}, v{t0}, v{t2}, s{sT0}")
        p(f"v_add_u32 v{self.vW1[1]}, 1024, v{t2}")
        p(f"v_add_u32 v{self.vW1[2]}, 2048, v{self.vW1[0]}")
        p(f"s_lshl_b32 s{sD0}, s{sW}, 10")
        p(f"s_add_u32 s{sD0}, s{sD0}, 16384")
        p(f"s_movk_i32 s{sT5}, 8192")
        p(f"s_mov_b32 s{sADV}, {64*3072}")
        p("s_branch L_setupJ")
        p("L_setupB:")
        p(f"s_and_b32 s{sT0}, s{sW}, 3")
        p(f"s_lshl_b32 s{sT1}, s{sT0}, 4             ; 16*wq")
        p(f"s_mov_b32 s{sT2}, 43691")
        p(f"s_lshl_b32 s{sT3}, s{sCH}, 1")
        for e in range(3):
            r = self.vW1[e]
            p(f"v_add_u32 v{t0}, {64*e}, v{L}           ; j")
            p(f"v_mul_u32_u24 v{t1}, s{sT2}, v{t0}")
            p(f"v_lshrrev_b32 v{t1}, 19, v{t1}          ; j/12")
            p(f"v_mul_u32_u24 v{t2}, 12, v{t1}")
            p(f"v_sub_u32 v{t2}, v{t0}, v{t2}           ; j%12")
            p(f"v_xor_b32 v{t2}, s{sT3}, v{t2}")
            p(f"v_add_u32 v{t1}, s{sT1}, v{t1}")
            p(f"v_mul_u32_u24 v{t1}, 3584, v{t1}")
            p(f"v_lshl_add_u32 v{t1}, v{t2}, 4, v{t1}")
            p(f"v_add_u32 v{r}, s{sT4}, v{t1}")
        p(f"s_mul_i32 s{sD0}, s{sT0}, 3072")
        p(f"s_mul_i32 s{sT1}, s{sCH}, 12288")
        p(f"s_add_u32 s{sD0}, s{sD0}, s{sT1}")
        p(f"s_add_u32 s{sD0}, s{sD0}, 16384")
        p(f"s_movk_i32 s{sT5}, 1024")
        p(f"s_mov_b32 s{sADV}, {64*3584}")
        p(f"s_lshr_b32 s{sHFB}, s{sT4}, 5")
        p("L_setupJ:")
        p(f"s_lshl_b32 s{sM0X}, s{sW}, 11")
        p(f"s_lshl_b32 s{sM0K}, s{sW}, 12")
        p(f"s_lshl_b32 s{sM0P}, s{sW}, 10")
        p(f"s_mov_b32 s{sW1OFF}, 0")

    def p1_setup_srd(self):
        p = self.p
        p(f"s_add_u32 s{sD1}, s{sD0}, s{sT5}")
        p(f"s_add_u32 s{sD2}, s{sD1}, s{sT5}")
        p(f"s_cmp_eq_u32 s{sCH}, 0")
        p(f"s_cselect_b32 s{SRD_W1}, s{sWG}, s{sWU}")
        p(f"s_cselect_b32 s{SRD_W1+1}, s{sWG+1}, s{sWU+1}")
        p(f"s_mov_b32 s{SRD_W1+2}, {512*3584:#x}")
        p(f"s_cmp_eq_u32 s{sTYP}, 0")
        p(f"s_cselect_b32 s{SRD_W1}, s{sWQKV}, s{SRD_W1}")
        p(f"s_cselect_b32 s{SRD_W1+1}, s{sWQKV+1}, s{SRD_W1+1}")
        p(f"s_cselect_b32 s{SRD_W1+2}, {512*3072:#x}, s{SRD_W1+2}")
        p(f"s_mov_b32 s{SRD_W1+3}, 0x20000")

    def p1_setup_late(self):
        p, q = self.p, self.q
        L = self.vLANE
        t0, t1, t2, t3 = 48, 49, 50, 51
        srd(p, SRD_G, sWG, 512 * 3584)
        srd(p, SRD_U, sWU, 512 * 3584)
        srd(p, SRD_T, sGW, 1024)
        p(f"s_lshl_b32 s{sT0}, s{sTYP}, 3")
        p(f"s_add_u32 s{sT0}, s{sT0}, s{sAB}")
        p(f"s_lshl_b32 s{sT1}, s{sT0}, 6            ; *64 bytes")
        p(f"v_lshrrev_b32 v{t0}, 5, v{L}             ; hh")
        p(f"v_lshlrev_b32 v{t0}, 4, v{t0}            ; hh*16")
        p(f"v_add_u32 v{t0}, s{sT1}, v{t0}")
        p(f"buffer_load_dwordx4 {V4(112)}, v{t0}, {S4(SRD_T)}, 0 offen")
        p(f"buffer_load_dwordx4 {V4(116)}, v{t0}, {S4(SRD_T)}, 0 offen offset:32")
        q.push("lgld", 2)
        rowl, sig, grp = 52, 53, 54
        p(f"v_lshrrev_b32 v{t0}, 5, v{L}")
        p(f"v_lshlrev_b32 v{t0}, 3, v{t0}")
        p(f"v_bfe_u32 v{t1}, v{L}, 2, 2")
        p(f"v_add_u32 v{rowl}, v{t0}, v{t1}")
        p(f"v_and_b32 v{t0}, 1, v{L}")
        p(f"v_lshlrev_b32 v{t0}, 4, v{t0}            ; (g&1)*16")
        p(f"v_bfe_u32 v{t1}, v{L}, 1, 1")
        p(f"v_lshl_add_u32 v{sig}, v{t1}, 3, v{t0}    ; 8*sigma")
        p(f"v_bfe_u32 v{grp}, v{L}, 4, 1")
        p(f"v_bfe_u32 v{t0}, v{L}, 3, 1")
        p(f"v_xor_b32 v{t0}, s{sCH}, v{t0}")
        p(f"v_lshlrev_b32 v{t0}, 6, v{t0}")
        p(f"v_lshl_add_u32 v{t0}, v{rowl}, 7, v{t0}")
        p(f"v_add_u32 v{t0}, v{t0}, v{sig}            ; c128")
        p(f"v_mul_u32_u24 v{t1}, {8192+32}, v{grp}")
        p(f"v_add_u32 v{self.vP[0]}, v{t0}, v{t1}")
        p(f"v_xor_b32 v{self.vP[1]}, 32, v{self.vP[0]}")
        p(f"s_cmp_eq_u32 s{sTYP}, 0")
        p(f"s_cbranch_scc0 L_lateB")
        p(f"v_add_u32 v{self.vB[0]}, 16384, v{self.vP[0]}")
        p(f"v_add_u32 v{self.vB[1]}, 16384, v{self.vP[1]}")
        p(f"v_lshl_add_u32 v{t1}, v{grp}, 5, v{t0}")
        p(f"v_add_u32 v{self.vB[2]}, 32768, v{t1}")
        p("s_branch L_lateJ")
        p("L_lateB:")
        p(f"s_mul_i32 s{sT0}, s{sCH}, 96")
        p(f"s_add_u32 s{sT0}, s{sT0}, 16384")
        p(f"v_mul_u32_u24 v{t1}, 192, v{rowl}")
        p(f"v_add3_u32 v{t1}, v{t1}, v{sig}, s{sT0}")
        p(f"s_lshl_b32 s{sT1}, s{sCH}, 6")
        p(f"s_sub_u32 s{sT1}, {12288+32}, s{sT1}")
        p(f"s_sub_u32 s{sT2}, {2*12288}, s{sT1}")
        p(f"v_mul_u32_u24 v{t2}, s{sT1}, v{grp}")
        p(f"v_add_u32 v{self.vB[0]}, v{t1}, v{t2}")
        p(f"v_mul_u32_u24 v{t2}, s{sT2}, v{grp}")
        p(f"v_add_u32 v{self.vB[1]}, v{t1}, v{t2}")
        p(f"v_mov_b32 v{self.vB[2]}, v{self.vB[0]}")
        p("L_lateJ:")
        p(f"v_and_b32 v{t0}, 31, v{L}")
        p(f"s_lshl_b32 s{sT0}, s{sRT}, 5")
        p(f"v_add_u32 v{t1}, s{sT0}, v{t0}")
        p(f"v_lshlrev_b32 v{t1}, 7, v{t1}            ; row*128")
        p(f"v_bfe_u32 v{t0}, v{L}, 1, 3")
        p(f"v_lshrrev_b32 v{t2}, 5, v{L}")
        p(f"v_xor_b32 v{t0}, v{t0}, v{t2}            ; hh ^ f")
        p(f"v_lshl_add_u32 v{t1}, v{t0}, 4, v{t1}")
        for k in range(4):
            p(f"v_xor_b32 v{self.vXR[k]}, {32*k}, v{t1}")
        p(f"v_mov_b32 v{self.vONE}, 1")
        p(f"v_mov_b32 v{self.vDBGA}, 0")
        self.win1 = 0
        self.win2 = 0

    def counter_zero(self):
        p = self.p
        L = self.vLANE
        t0, t1 = 48, 49
        p("s_add_u32 s%d, s2, s%d" % (sT0, sW))
        p(f"s_cmp_eq_u32 s{sT0}, 0")
        p(f"s_cselect_b32 s{sT0}, 0, {OOB:#x}")
        p(f"v_lshlrev_b32 v{t0}, 8, v{L}")
        p(f"v_add_u32 v{t0}, s{sT0}, v{t0}")
        p(f"v_mov_b32 v{t1}, 0")
        p(f"buffer_store_dword v{t1}, v{t0}, {S4(SRD_WS)}, 0 offen sc1")
        self.q.push("cz")

    def census_add(self):
        p = self.p
        t0, t1 = 48, 49
        p(f"v_readfirstlane_b32 s{sT3}, v{self.vFLAG}")
        p(f"s_getreg_b32 s{sT0}, hwreg(HW_REG_XCC_ID, 0, 4)")
        p(f"s_mul_i32 s{sT1}, s{sT0}, s{sT0}")
        p(f"s_lshl_b32 s{sT1}, s{sT1}, 16")
        p(f"s_lshl_b32 s{sT2}, s{sT0}, 8")
        p(f"s_add_u32 s{sT1}, s{sT1}, s{sT2}")
        p(f"s_add_u32 s{sT1}, s{sT1}, 1")
        p(f"s_lshl_b32 s{sEXP}, s{sT1}, 5")
        p(f"s_add_u32 s{sT2}, s{sXCD}, 48")
        p(f"s_lshl_b32 s{sT2}, s{sT2}, 8")
        p(f"s_cmp_ge_u32 s{sT3}, 1")
        p(f"s_cselect_b32 s{sT2}, s{sT2}, {OOB:#x}")
        p(f"s_cselect_b32 s{sLOC}, 1, 0")
        p(f"v_mov_b32 v{t0}, {OOB:#x}")
        p(f"v_mov_b32 v{t1}, s{sT2}")
        p(f"v_cmp_eq_u32 vcc, 0, v0")
        p(f"v_cndmask_b32 v{t0}, v{t0}, v{t1}, vcc")
        p(f"v_mov_b32 v{t1}, s{sT1}")
        p(f"buffer_atomic_add v{t1}, v{t0}, {S4(SRD_WS)}, 0 offen sc1")
        self.q.push("cadd")

    def census_load(self):
        p = self.p
        p(f"s_add_u32 s{sT2}, s{sXCD}, 48")
        p(f"s_lshl_b32 s{sT2}, s{sT2}, 8")
        p(f"v_mov_b32 v{self.vFADDR}, s{sT2}")
        p(f"buffer_load_dword v{self.vFLAG}, v{self.vFADDR}, {S4(SRD_WS)}, 0 offen sc1")
        self.q.push("cld")

    def census_check(self):
        p = self.p
        self.q.wait(p, "cld")
        p(f"v_readfirstlane_b32 s{sT0}, v{self.vFLAG}")
        p(f"s_cmp_eq_u32 s{sT0}, s{sEXP}")
        p(f"s_cselect_b32 s{sLOC}, s{sLOC}, 0")
        if self.o.get("nolocal"):
            p(f"s_mov_b32 s{sLOC}, 0")

    def counter_flag(self):
        p = self.p
        t0, t1 = 48, 49
        p(f"s_cmp_eq_u32 s2, 0")
        p(f"s_cselect_b32 s{sT0}, 0, {OOB:#x}")
        p(f"v_mov_b32 v{t0}, {OOB:#x}")
        p(f"v_mov_b32 v{t1}, s{sT0}")
        p(f"v_cmp_eq_u32 vcc, 0, v0")
        p(f"v_cndmask_b32 v{t0}, v{t0}, v{t1}, vcc")
        p(f"v_mov_b32 v{t1}, 1")
        p(f"buffer_store_dword v{t1}, v{t0}, {S4(SRD_DBG)}, 0 offen sc1")
        self.q.push("cf")

    def p1_piece(self, g, e):
        p, q = self.p, self.q
        ar = self.area(g)
        if g < 8:
            if e < 2:
                p(f"s_add_u32 m0, s{sM0X}, {ar + 1024*e}")
                p(f"s_movk_i32 s{sT1}, {128*g}")
                p(f"buffer_load_dwordx4 v{self.vXD[e]}, {S4(SRD_X)}, s{sT1} offen lds")
            else:
                d = (sD0, sD1, sD2)[e - 2]
                p(f"s_add_u32 m0, s{d}, {ar}")
                if e == 2 and g > 0:
                    p(f"s_add_u32 s{sW1OFF}, s{sW1OFF}, s{sADV}")
                else:
                    p("s_nop 0")
                p(f"buffer_load_dwordx4 v{self.vW1[e-2]}, {S4(SRD_W1)}, s{sW1OFF} offen lds")
        elif g < 16:
            p(f"s_add_u32 m0, s{sM0P}, {ar + 8192*e}")
            p(f"s_mov_b32 s{sT1}, {229376*(g-8)}")
            p(f"buffer_load_dwordx4 v{self.vW2[e]}, {S4(SRD_G if e == 0 else SRD_U)}, s{sT1} offen lds")
        else:
            j = (g - 16) & 3
            src = (WS_KF if g < 20 else WS_VF) + 16384 * j + 1024 * e
            p(f"s_add_u32 m0, s{sM0X2}, {ar + 1024*e}")
            p(f"s_add_u32 s{sT1}, s{sKVB}, {src:#x}")
            p(f"buffer_load_dwordx4 v{self.avL16}, {S4(SRD_WS)}, s{sT1} offen sc1 lds")
        q.push(f"st{g}")

    def earliest(self, g):
        if g >= 8:
            return {8: 22, 9: 22, 10: 26, 11: 26, 12: 30, 13: 30, 14: 36, 15: 36}[g]
        return 4 * (g - 3) + 2

    def npieces(self, g):
        return 5 if g < 8 else 2

    def emit_pieces(self, step, maxn):
        n = 0
        while self.pending and n < maxn:
            g, e = self.pending[0]
            if g == "aq":
                if step < 4 * self.F1G + 2:
                    break
                self.pending.pop(0)
                if self.stop_after != "p1":
                    self.att_loads()
                n += 1
                continue
            if 4 <= g < 16 and step < self.earliest(g):
                break
            if g >= 16 and step < 4 * self.F1G + 2:
                break
            if g >= 16 and self.stop_after == "p1":
                self.pending.pop(0)
                continue
            self.pending.pop(0)
            self.p1_piece(g, e)
            n += 1

    def rebase(self, regs, cur, want):
        if want != cur:
            d = want - cur
            for r in regs:
                if d > 0:
                    self.p(f"v_add_u32 v{r}, {d:#x}, v{r}")
                else:
                    self.p(f"v_subrev_u32 v{r}, {-d:#x}, v{r}")
        return want

    def p1_reads(self, ps, s, typ, part=None):
        p = self.p
        g = (s >> 2) + (0 if ps == 1 else 8)
        sp = s & 3
        wb = self.WB[s & 1]
        n = 0
        nt = 3 if ps == 1 else 2
        parts = range(nt) if part is None else [part]
        for t in parts:
            if t >= nt:
                continue
            if ps == 1:
                if t == 0:
                    self.win1 = self.rebase(list(self.vXR) + list(self.vB), self.win1, self.window(g))
                off = self.area(g) - self.win1
                if t == 0:
                    p(f"ds_read_b128 {V4(self.X + 4*s)}, v{self.vXR[sp]} offset:{off}")
                    n += 1
                for j in range(2):
                    if typ == 0:
                        p(f"ds_read_b64_tr_b16 {V2(wb + 4*t + 2*j)}, v{self.vB[t]} offset:{off + (16*sp + 4*j)*128}")
                    else:
                        p(f"ds_read_b64_tr_b16 {V2(wb + 4*t + 2*j)}, v{self.vB[t]} offset:{off + (16*sp + 4*j)*192 + 32*t}")
                    n += 1
            else:
                if t == 0:
                    self.win2 = self.rebase(list(self.vP), self.win2, self.window(g))
                off = self.area(g) - self.win2
                for j in range(2):
                    p(f"ds_read_b64_tr_b16 {V2(wb + 4*t + 2*j)}, v{self.vP[t]} offset:{off + (16*sp + 4*j)*128}")
                    n += 1
        return n

    def p1_midstage(self, g):
        p, q = self.p, self.q
        T = 116 if (g < 8 or not self.ovl()) else 44 + 16
        garr = (11 if self.o.get("ovlper", 2) == 1 else 10) if self.ovl() else 10
        tags = [f"st{g+1}"] if g + 1 < 16 else []
        if g == 1 and not self.o.get("earlyinit", 1):
            tags += ["cz"]
        if g == 4 and self.o.get("local", 1):
            tags += ["dbg0"]
        if g == garr:
            tags += ["e1st", "dbg"]
        if g == self.F1G:
            tags += ["f1"]
        self.stamp(f"pre{g}")
        if tags:
            q.wait(p, tags)
        if g == self.F1G:
            poll(p, q, self.vFLAG, self.vFADDR, SRD_WS, 16, "F1")
        self.stamp(f"wait{g}")
        p("s_barrier")
        self.stamp(f"bar{g}")
        if g == 1 and not self.o.get("earlyinit", 1):
            self.counter_flag()
        if g == garr:
            poll(p, q, self.vFLAG, self.vDBGA, SRD_DBG, 1, "init")
            if self.cur_typ == 0:
                p(f"s_lshl_b32 s{sT0}, s{sAB}, 8")
                p(f"v_mov_b32 v{self.vFADDR}, {OOB:#x}")
                p(f"v_mov_b32 v{T}, s{sT0}")
                p(f"v_cmp_eq_u32 vcc, 0, v0")
                p(f"v_cndmask_b32 v{self.vFADDR}, v{self.vFADDR}, v{T}, vcc")
                self.stamp("f1iss")
                p(f"buffer_atomic_add v{self.vONE}, v{self.vFADDR}, {S4(SRD_WS)}, 0 offen sc1")
                q.push("f1add")
                if self.o.get("diagf1"):
                    p("s_waitcnt vmcnt(0)")
                    self.stamp("f1done")
        if self.o.get("local", 1):
            if g == 2:
                p(f"buffer_load_dword v{self.vFLAG}, v{self.vDBGA}, {S4(SRD_DBG)}, 0 offen sc1")
                q.push("dbg0")
            if g == 4:
                self.census_add()
            if g == 7 and self.cur_typ == 0:
                self.census_load()
        if g == 8:
            p(f"buffer_load_dword v{self.vFLAG}, v{self.vDBGA}, {S4(SRD_DBG)}, 0 offen sc1")
            q.push("dbg")
        if g == 13 and not self.o.get("vmask", 1):
            p(f"v_bfe_u32 v{T+2}, v0, 1, 4")
            p(f"v_and_b32 v{T+2}, 11, v{T+2}")
            p(f"v_cmp_eq_u32 vcc, 0, v{T+2}")
            p(f"v_mov_b32 v{T+1}, 0x3f803f80")
            p(f"v_cndmask_b32 v{T}, 0, v{T+1}, vcc")
            if self.o.get("allones"):
                p(f"v_mov_b32 v{T}, v{T+1}")
            p(f"v_lshlrev_b32 v{T+2}, 3, v0")
            p(f"v_mov_b32 v{T+1}, v{T}")
            p(f"ds_write_b64 v{T+2}, {V2(T)} offset:{self.ONES}")
            self.lg_issue("ones", 1)
        if g == self.F1G - 1:
            p(f"s_lshr_b32 s{sT0}, s{sH}, 2")
            p(f"s_lshl_b32 s{sT0}, s{sT0}, 8")
            p(f"v_mov_b32 v{self.vFADDR}, s{sT0}")
            p(f"buffer_load_dword v{self.vFLAG}, v{self.vFADDR}, {S4(SRD_WS)}, 0 offen sc1")
            q.push("f1")
            p(f"v_lshlrev_b32 v{self.avL16}, 4, v{self.vLANE}")
            p(f"s_lshl_b32 s{sM0X2}, s{sW}, 11")
            p(f"s_lshl_b32 s{sKVB}, s{sH}, 16")
            p(f"s_add_u32 s{sKVB}, s{sKVB}, s{sM0X2}")
        if g == 14 and self.F1G == 14 and not self.o.get("nodma"):
            self.emit_pieces(58, 6)

    def lg_issue(self, tag, n):
        self.lgq += [tag] * n

    def lg_wait(self, tag):
        last = max((i for i, t in enumerate(self.lgq) if t == tag), default=-1)
        if last < 0:
            return
        n = len(self.lgq) - 1 - last
        self.p(f"s_waitcnt lgkmcnt({min(n, 15)})")
        self.lgq = self.lgq[last + 1:]

    def p1_pass(self, ps, typ):
        p, q = self.p, self.q
        nt = 3 if ps == 1 else 2
        acc = [self.ACC + 16*t for t in range(nt)] if ps == 1 else [self.acc2() + 16*t for t in range(nt)]
        comp = not self.o.get("nocompute")
        for s in range(32):
            gs = s + (0 if ps == 1 else 32)
            g = gs >> 2
            if (s & 3) == 2:
                self.p1_midstage(g)
            nxt = None
            if s < 31:
                nxt = (ps, s + 1)
            elif ps == 1:
                nxt = (2, 0)
            wb = self.WB[s & 1]
            xs = self.X + 4*s
            for t in range(nt):
                c = None if s == 0 else acc[t]
                if comp:
                    self.lg_wait((ps, s, t))
                    if self.o.get("nomfma"):
                        pass
                    elif ps == 1 and t == 2 and typ == 0:
                        mfma(p, acc[t], xs, wb + 4*t, c)
                    else:
                        mfma(p, acc[t], wb + 4*t, xs, c)
                    if nxt and not self.o.get("nolds"):
                        n = self.p1_reads(nxt[0], nxt[1], typ, t)
                        self.lg_issue((nxt[0], nxt[1], t), n)
                if not self.o.get("nodma"):
                    if t == 0:
                        self.emit_pieces(gs, 1)
                    elif t == 1 and (ps == 1 or gs < 46):
                        self.emit_pieces(gs, 1)
                if ps == 2 and (s, t) in self.deferred:
                    self.deferred.pop((s, t))()

    def p1_first_reads(self, typ):
        self.lgq = []
        for t in range(3):
            n = self.p1_reads(1, 0, typ, t)
            self.lg_issue((1, 0, t), n)

    def store_ws(self, vdata, voff, soff_reg, tag, offset=0):
        o = f" offset:{offset}" if offset else ""
        self.p(f"buffer_store_dwordx4 {V4(vdata)}, v{voff}, {S4(SRD_WS)}, s{soff_reg} offen{o} sc1")
        self.q.push(tag)

    def relu_mul_store(self, a, tmp, unit, tag):
        p = self.p
        for r in range(8):
            p(f"v_max_f32 v{a+r}, 0, v{a+r}")
        for r in range(8):
            p(f"v_mul_f32 v{a+r}, v{a+r}, v{a+8+r}")
        for i in range(4):
            p(f"v_cvt_pk_bf16_f32 v{tmp+i}, v{a+2*i}, v{a+2*i+1}")
        p(f"s_add_u32 s{sT1}, s{sHFB}, {unit * 1024}")
        self.store_ws(tmp, self.vL16, sT1, tag)

    def hf_base(self, unit_reg_expr_lines):
        p = self.p
        for l in unit_reg_expr_lines:
            p(l)
        p(f"s_mul_i32 s{sT1}, s{sTILE}, 112")
        p(f"s_add_u32 s{sHFB}, s{sT0}, s{sT1}")
        p(f"s_lshl_b32 s{sHFB}, s{sHFB}, 10")
        p(f"s_add_u32 s{sHFB}, s{sHFB}, {WS_HF:#x}")

    def p1_logit(self, step):
        p, q = self.p, self.q
        L = self.vLANE
        p(f"s_lshl_b32 s{sT0}, s{sTYP}, 3")
        p(f"s_add_u32 s{sT0}, s{sT0}, s{sAB}          ; j")
        p(f"s_lshl_b32 s{sT1}, s{sT0}, 3")
        p(f"s_set_gpr_idx_on s{sT1}, 0x1")
        for i in range(8):
            p(f"v_mov_b32 v{120+i}, v{self.X+i}")
        p("s_set_gpr_idx_off")
        q.wait(p, "lgld")
        mfma(p, 48, 112, 120, None)
        mfma(p, 48, 116, 124, 48)
        p(f"s_lshl_b32 s{sT1}, s{sT0}, 13")
        p(f"s_add_u32 s{sT1}, s{sT1}, {WS_LG:#x}")
        p(f"s_lshl_b32 s{sT2}, s{sTILE}, 7")
        p(f"s_add_u32 s{sLGO}, s{sT1}, s{sT2}")
        p(f"s_cmp_eq_u32 s{sCH}, 0")
        p(f"s_cselect_b32 s{sT1}, 32, 0")
        p(f"v_lshlrev_b32 v43, 2, v{L}")
        p(f"v_mov_b32 v42, {OOB:#x}")
        p(f"v_cmp_gt_u32 vcc, s{sT1}, v{L}")
        p(f"v_cndmask_b32 v43, v42, v43, vcc")
        def fin():
            p(f"v_mov_b32 v42, v48")
        def f():
            p(f"buffer_store_dword v42, v43, {S4(SRD_WS)}, s{sLGO} offen sc1")
            self.q.push("lgst")
        self.deferred[step] = f
        return fin

    def p1_epi1(self, typ):
        p, q = self.p, self.q
        L = self.vLANE
        self.deferred = {}
        local = self.o.get("local", 1) and typ == 0
        if local:
            self.census_check()
        def two_flavours(emit):
            if not local:
                emit(" sc1")
                return
            n = uid()
            p(f"s_cmp_eq_u32 s{sLOC}, 0")
            p(f"s_cbranch_scc1 L_wt{n}")
            emit("")
            p(f"s_branch L_st{n}")
            p(f"L_wt{n}:")
            emit(" sc1")
            p(f"L_st{n}:")
        self.two_flavours = two_flavours
        def dstore(step, vdata, voff, const, tag, base, offset=0):
            def f():
                p(f"s_add_u32 s{sT1}, s{base}, {const:#x}")
                o = f" offset:{offset}" if offset else ""
                two_flavours(lambda fl: p(f"buffer_store_dwordx4 {V4(vdata)}, v{voff}, {S4(SRD_WS)}, s{sT1} offen{o}{fl}"))
                self.q.push(tag)
            if step is None:
                self.late_stores.append(f)
            else:
                self.deferred[step] = f
        self.late_stores = []
        lg_fin = self.p1_logit((12, 1))
        if typ == 0:
            A = (self.ACC, self.ACC + 16)
            B = self.ACC + 32
            T = self.TMP
            V = 120
            p(f"s_lshl_b32 s{sT0}, s{sAB}, 2")
            p(f"s_lshl_b32 s{sT1}, s{sCH}, 1")
            p(f"s_add_u32 s{sT0}, s{sT0}, s{sT1}          ; head")
            p(f"s_lshl_b32 s{sT1}, s{sT0}, 6")
            p(f"s_add_u32 s{sT1}, s{sT1}, s{sTILE}        ; h*64+tile")
            p(f"s_lshl_b32 s{sQB}, s{sT1}, 10")
            p(f"s_lshl_b32 s{sT5}, s{sAB}, 4")
            p(f"s_add_u32 s{sT5}, s{sT5}, s{sRB}")
            p(f"s_lshl_b32 s{sT5}, s{sT5}, 7          ; (a*16+rb)*128")
            p(f"s_lshl_b32 s{sT0}, s{sCH}, 6")
            p(f"s_add_u32 s{sT5}, s{sT5}, s{sT0}")
            p(f"s_lshl_b32 s{sT0}, s{sRT}, 3")
            p(f"s_add_u32 s{sT5}, s{sT5}, s{sT0}")
            p(f"s_mov_b32 s{sT0}, s{sCS}")
            p(f"s_mov_b32 s{sT1}, s{sCS}")
            for t in range(2):
                for i in range(4):
                    p(f"v_pk_mul_f32 {V2(A[t]+2*i)}, {V2(A[t]+2*i)}, s[{sT0}:{sT1}]")
            lg_fin()
            for t in range(2):
                for i in range(4):
                    p(f"v_cvt_pk_bf16_f32 v{T+8*t+4+i}, v{A[t]+8+2*i}, v{A[t]+8+2*i+1}")
            for i in range(8):
                p(f"v_cvt_pk_bf16_f32 v{V+i}, v{B+2*i}, v{B+2*i+1}")
            for t in range(2):
                for i in range(4):
                    p(f"v_cvt_pk_bf16_f32 v{T+8*t+i}, v{A[t]+2*i}, v{A[t]+2*i+1}")
            a = 40
            p(f"v_bfe_u32 v{a}, v{L}, 4, 1")
            p(f"v_lshlrev_b32 v{a}, 16, v{a}")
            p(f"v_lshrrev_b32 v{a+1}, 5, v{L}")
            p(f"v_lshl_add_u32 v{a}, v{a+1}, 8, v{a}")
            p(f"v_and_b32 v{a+1}, 15, v{L}")
            p(f"v_lshl_add_u32 v{a}, v{a+1}, 4, v{a}")
            dstore((0, 0), T + 4, self.vL16, WS_KF, "e1st", sQB)
            dstore((0, 1), T + 12, self.vL16, WS_KF + 65536, "e1st", sQB)
            dstore((1, 0), V, a, WS_VF, "e1st", sQB)
            dstore((1, 1), V + 4, a, WS_VF, "e1st", sQB, 512)
            dstore((2, 0), T, self.vL16, WS_QF, "e1st", sQB)
            dstore((2, 1), T + 8, self.vL16, WS_QF + 65536, "e1st", sQB)
            N = B
            for t in range(2):
                for h in range(2):
                    r = N + 4*t + 2*h
                    src = A[t] + 8*h
                    p(f"v_pk_mul_f32 {V2(r)}, {V2(src)}, {V2(src)}")
            for i in range(1, 4):
                for t in range(2):
                    for h in range(2):
                        r = N + 4*t + 2*h
                        src = A[t] + 8*h + 2*i
                        p(f"v_pk_fma_f32 {V2(r)}, {V2(src)}, {V2(src)}, {V2(r)}")
            for t in range(2):
                for h in range(2):
                    r = N + 4*t + 2*h
                    p(f"v_add_f32 v{r}, v{r}, v{r+1}")
            for t in range(2):
                p(f"v_permlane32_swap_b32 v{N+4*t}, v{N+4*t+2}")
            for t in range(2):
                p(f"v_add_f32 v{N+4*t}, v{N+4*t}, v{N+4*t+2}")
            na = 104
            p(f"s_add_u32 s{sT0}, s{sT5}, {WS_NRMQ:#x}")
            p(f"s_add_u32 s{sT1}, s{sT5}, {WS_NRMQ + 4:#x}")
            p(f"v_mov_b32 v{na}, {OOB:#x}")
            p(f"v_mov_b32 v{na+1}, s{sT0}")
            p(f"v_cmp_eq_u32 vcc, 31, v{L}")
            for sh in (1, 2):
                for t in range(2):
                    p(f"v_max_f32_dpp v{N+4*t}, v{N+4*t}, v{N+4*t} row_shr:{sh} row_mask:0xf bank_mask:0xf")
                if sh == 1:
                    p(f"v_cndmask_b32 v{na}, v{na}, v{na+1}, vcc")
                    p(f"v_mov_b32 v{na+1}, s{sT1}")
                else:
                    p(f"v_cmp_eq_u32 vcc, 63, v{L}")
            for sh in (4, 8):
                for t in range(2):
                    p(f"v_max_f32_dpp v{N+4*t}, v{N+4*t}, v{N+4*t} row_shr:{sh} row_mask:0xf bank_mask:0xf")
                if sh == 4:
                    p(f"v_cndmask_b32 v{na}, v{na}, v{na+1}, vcc")
            for t in range(2):
                p(f"v_max_f32_dpp v{N+4*t}, v{N+4*t}, v{N+4*t} row_bcast:15 row_mask:0xa bank_mask:0xf")
            def nstore(t):
                def f():
                    o = " offset:32" if t else ""
                    two_flavours(lambda fl: p(f"buffer_store_dword v{N+4*t}, v{na}, {S4(SRD_WS)}, 0 offen{o}{fl}"))
                    q = self.q
                    q.push("e1st")
                return f
            self.deferred[(3, 0)] = nstore(0)
            self.deferred[(3, 1)] = nstore(1)
        else:
            p(f"s_mul_i32 s{sT0}, s{sCH}, 3")
            p(f"s_add_u32 s{sT0}, s{sT0}, s{sHFB}")
            p(f"s_mul_i32 s{sT1}, s{sTILE}, 112")
            p(f"s_add_u32 s{sHB1}, s{sT0}, s{sT1}")
            p(f"s_lshl_b32 s{sHB1}, s{sHB1}, 10")
            for t in range(3):
                a0 = self.ACC + 16*t
                for r in range(8):
                    p(f"v_max_f32 v{a0+r}, 0, v{a0+r}")
                for r in range(8):
                    p(f"v_mul_f32 v{a0+r}, v{a0+r}, v{a0+8+r}")
                if t == 0:
                    lg_fin()
                for i in range(4):
                    p(f"v_cvt_pk_bf16_f32 v{self.TMP+4*t+i}, v{a0+2*i}, v{a0+2*i+1}")
        self.stamp("e1b")

    def p1_epi1_ovl(self, typ):
        p, q = self.p, self.q
        L = self.vLANE
        self.deferred = {}
        local = self.o.get("local", 1) and typ == 0
        if local:
            self.census_check()
        def two_flavours(emit):
            if not local:
                emit(" sc1")
                return
            n = uid()
            p(f"s_cmp_eq_u32 s{sLOC}, 0")
            p(f"s_cbranch_scc1 L_wt{n}")
            emit("")
            p(f"s_branch L_st{n}")
            p(f"L_wt{n}:")
            emit(" sc1")
            p(f"L_st{n}:")
        def store4(vdata, voff, const, offset=0):
            p(f"s_add_u32 s{sT1}, s{sQB}, {const:#x}")
            o = f" offset:{offset}" if offset else ""
            two_flavours(lambda fl: p(f"buffer_store_dwordx4 {V4(vdata)}, v{voff}, {S4(SRD_WS)}, s{sT1} offen{o}{fl}"))
            self.q.push("e1st")
        T = self.TMP
        xc = 96 if typ == 0 else 120
        if typ == 0:
            B = self.ACC + 32
            Vq = (24, 36)
            for i in range(8):
                p(f"v_cvt_pk_bf16_f32 v{Vq[i >> 2] + (i & 3)}, v{B+2*i}, v{B+2*i+1}")
        p(f"s_lshl_b32 s{sT0}, s{sTYP}, 3")
        p(f"s_add_u32 s{sT0}, s{sT0}, s{sAB}          ; j")
        p(f"s_lshl_b32 s{sT1}, s{sT0}, 3")
        p(f"s_set_gpr_idx_on s{sT1}, 0x1")
        for i in range(8):
            p(f"v_mov_b32 v{xc+i}, v{self.X+i}")
        p("s_set_gpr_idx_off")
        q.wait(p, "lgld")
        mfma(p, 48, 112, xc, None)
        mfma(p, 48, 116, xc + 4, 48)
        p(f"s_lshl_b32 s{sT1}, s{sT0}, 13")
        p(f"s_add_u32 s{sT1}, s{sT1}, {WS_LG:#x}")
        p(f"s_lshl_b32 s{sT2}, s{sTILE}, 7")
        p(f"s_add_u32 s{sLGO}, s{sT1}, s{sT2}")
        p(f"s_cmp_eq_u32 s{sCH}, 0")
        p(f"s_cselect_b32 s{sT1}, 32, 0")
        p(f"v_lshlrev_b32 v43, 2, v{L}")
        p(f"v_mov_b32 v42, {OOB:#x}")
        p(f"v_cmp_gt_u32 vcc, s{sT1}, v{L}")
        p(f"v_cndmask_b32 v43, v42, v43, vcc")
        def lgstore():
            p(f"buffer_store_dword v42, v43, {S4(SRD_WS)}, s{sLGO} offen sc1")
            self.q.push("lgst")
        side = []
        if typ == 0:
            A = (self.ACC, self.ACC + 16)
            p(f"s_lshl_b32 s{sT0}, s{sAB}, 2")
            p(f"s_lshl_b32 s{sT1}, s{sCH}, 1")
            p(f"s_add_u32 s{sT0}, s{sT0}, s{sT1}          ; head")
            p(f"s_lshl_b32 s{sT1}, s{sT0}, 6")
            p(f"s_add_u32 s{sT1}, s{sT1}, s{sTILE}        ; h*64+tile")
            p(f"s_lshl_b32 s{sQB}, s{sT1}, 10")
            p(f"s_lshl_b32 s{sNB}, s{sAB}, 4")
            p(f"s_add_u32 s{sNB}, s{sNB}, s{sRB}")
            p(f"s_lshl_b32 s{sNB}, s{sNB}, 7          ; (a*16+rb)*128")
            p(f"s_lshl_b32 s{sT0}, s{sCH}, 6")
            p(f"s_add_u32 s{sNB}, s{sNB}, s{sT0}")
            p(f"s_lshl_b32 s{sT0}, s{sRT}, 3")
            p(f"s_add_u32 s{sNB}, s{sNB}, s{sT0}")
            p(f"s_add_u32 s{sNB}, s{sNB}, {WS_NRMQ:#x}")
            p(f"s_mov_b32 s{sCS2}, s{sCS}")
            p(f"s_mov_b32 s{sCS2+1}, s{sCS}")
            a = 40
            def vaddr():
                p(f"v_bfe_u32 v{a}, v{L}, 4, 1")
                p(f"v_lshlrev_b32 v{a}, 16, v{a}")
                p(f"v_lshrrev_b32 v{a+1}, 5, v{L}")
                p(f"v_lshl_add_u32 v{a}, v{a+1}, 8, v{a}")
                p(f"v_and_b32 v{a+1}, 15, v{L}")
                p(f"v_lshl_add_u32 v{a}, v{a+1}, 4, v{a}")
            def cvt4(dst, src):
                for i in range(4):
                    p(f"v_cvt_pk_bf16_f32 v{dst+i}, v{src+2*i}, v{src+2*i+1}")
            def scale(t):
                for i in range(4):
                    p(f"v_pk_mul_f32 {V2(A[t]+2*i)}, {V2(A[t]+2*i)}, s[{sCS2}:{sCS2+1}]")
            R = [A[0], A[0] + 8, A[1], A[1] + 8]
            def nrm(i):
                for r in R:
                    if i == 0:
                        p(f"v_pk_mul_f32 {V2(r)}, {V2(r)}, {V2(r)}")
                    else:
                        p(f"v_pk_fma_f32 {V2(r)}, {V2(r+2*i)}, {V2(r+2*i)}, {V2(r)}")
            def nrm_fold():
                for r in R:
                    p(f"v_add_f32 v{r}, v{r}, v{r+1}")
            def nrm_swap():
                p(f"v_permlane32_swap_b32 v{R[0]}, v{R[1]}")
                p(f"v_permlane32_swap_b32 v{R[2]}, v{R[3]}")
                p(f"v_add_f32 v{R[0]}, v{R[0]}, v{R[1]}")
                p(f"v_add_f32 v{R[2]}, v{R[2]}, v{R[3]}")
            na = A[0] + 2
            def naddr():
                p(f"s_add_u32 s{sT1}, s{sNB}, 4")
                p(f"v_mov_b32 v{na}, {OOB:#x}")
                p(f"v_mov_b32 v{na+1}, s{sNB}")
                p(f"v_cmp_eq_u32 vcc, 31, v{L}")
                p(f"v_mov_b32 v{na+2}, s{sT1}")
                p(f"v_cndmask_b32 v{na}, v{na}, v{na+1}, vcc")
                p(f"v_cmp_eq_u32 vcc, 63, v{L}")
            def dpp(shs):
                def f():
                    for sh in shs:
                        for r in (R[0], R[2]):
                            if sh == 16:
                                p(f"v_max_f32_dpp v{r}, v{r}, v{r} row_bcast:15 row_mask:0xa bank_mask:0xf")
                            else:
                                p(f"v_max_f32_dpp v{r}, v{r}, v{r} row_shr:{sh} row_mask:0xf bank_mask:0xf")
                return f
            def nstores():
                p(f"v_cndmask_b32 v{na}, v{na}, v{na+2}, vcc")
                for t in range(2):
                    o = " offset:32" if t else ""
                    two_flavours(lambda fl: p(f"buffer_store_dword v{R[2*t]}, v{na}, {S4(SRD_WS)}, 0 offen{o}{fl}"))
                    self.q.push("e1st")
            side = [
                lambda: (vaddr(),),
                lambda: (p("v_mov_b32 v42, v48"), cvt4(T + 4, A[0] + 8), store4(Vq[0], a, WS_VF)),
                lambda: (cvt4(T + 12, A[1] + 8), store4(Vq[1], a, WS_VF, 512)),
                lambda: (scale(0), store4(T + 4, self.vL16, WS_KF)),
                lambda: (scale(1), store4(T + 12, self.vL16, WS_KF + 65536)),
                lambda: (cvt4(T, A[0]),),
                lambda: (cvt4(T + 8, A[1]), store4(T, self.vL16, WS_QF)),
                lambda: (nrm(0), store4(T + 8, self.vL16, WS_QF + 65536)),
                lambda: (nrm(1),), lambda: (nrm(2),), lambda: (nrm(3),),
                lambda: (nrm_fold(),), lambda: (nrm_swap(),),
                lambda: (dpp((1,))(), naddr()),
                dpp((2,)), dpp((4,)), dpp((8,)), dpp((16,)),
                nstores,
                lgstore,
            ]
        else:
            p(f"s_mul_i32 s{sT0}, s{sCH}, 3")
            p(f"s_add_u32 s{sT0}, s{sT0}, s{sHFB}")
            p(f"s_mul_i32 s{sT1}, s{sTILE}, 112")
            p(f"s_add_u32 s{sHB1}, s{sT0}, s{sT1}")
            p(f"s_lshl_b32 s{sHB1}, s{sHB1}, 10")
            def relu(a0, lo, hi):
                for r in range(lo, hi):
                    p(f"v_max_f32 v{a0+r}, 0, v{a0+r}")
            def mul(a0, lo, hi):
                for r in range(lo, hi):
                    p(f"v_mul_f32 v{a0+r}, v{a0+r}, v{a0+8+r}")
            def cvt(a0, dst):
                for i in range(4):
                    p(f"v_cvt_pk_bf16_f32 v{dst+i}, v{a0+2*i}, v{a0+2*i+1}")
            a2 = self.ACC + 32
            relu(a2, 0, 8); mul(a2, 0, 8)
            p("v_mov_b32 v42, v48")
            cvt(a2, T + 8)
            for t in range(2):
                a0 = self.ACC + 16*t
                side += [lambda a0=a0: relu(a0, 0, 5), lambda a0=a0: (relu(a0, 5, 8), mul(a0, 0, 2)), lambda a0=a0: mul(a0, 2, 8),
                         lambda a0=a0, t=t: cvt(a0, T + 4*t)]
            side += [lgstore]
        per = self.o.get("ovlper", 2) if typ == 0 else 1
        groups = [side[i:i + per] for i in range(0, len(side), per)]
        for k, fs in enumerate(groups):
            self.deferred[(k >> 1, k & 1)] = (lambda fs=fs: [f() for f in fs])
        self.stamp("e1b")

    def p1_epi2(self, typ):
        p = self.p
        p(f"s_lshr_b32 s{sT2}, s{sCB2}, 5")
        p(f"s_lshl_b32 s{sT0}, s{sCH}, 1")
        p(f"s_add_u32 s{sT0}, s{sT0}, s{sT2}")
        p(f"s_mul_i32 s{sT1}, s{sTILE}, 112")
        p(f"s_add_u32 s{sHFB}, s{sT0}, s{sT1}")
        p(f"s_lshl_b32 s{sQB}, s{sHFB}, 10")
        for t in range(2):
            a0 = self.acc2() + 16*t
            for r in range(8):
                p(f"v_max_f32 v{a0+r}, 0, v{a0+r}")
            for r in range(8):
                p(f"v_mul_f32 v{a0+r}, v{a0+r}, v{a0+8+r}")
            for i in range(4):
                p(f"v_cvt_pk_bf16_f32 v{128+4*t+i}, v{a0+2*i}, v{a0+2*i+1}")
        if typ == 1:
            for i in range(12):
                p(f"v_mov_b32 v{136+i}, v{self.TMP+i}")

    def late_h_stores(self):
        p = self.p
        for t in range(2):
            p(f"s_add_u32 s{sT1}, s{sQB}, {WS_HF + 1024*t:#x}")
            self.store_ws(128 + 4*t, self.avL16, sT1, "hst")
        n = uid()
        p(f"s_cmp_eq_u32 s{sA3}, 0")
        p(f"s_cbranch_scc1 L_noh_{n}")
        for t in range(3):
            p(f"s_add_u32 s{sT1}, s{sHB1}, {WS_HF + 1024*t:#x}")
            self.store_ws(136 + 4*t, self.avL16, sT1, "hst")
        p(f"L_noh_{n}:")

    def p1(self):
        p, q = self.p, self.q
        early = self.o.get("earlyinit", 1)
        if early:
            srd(p, SRD_WS, sWS, WS_SIZE)
            self.counter_zero()
        self.stamp("predma")
        for g in range(2):
            for e in range(5):
                self.p1_piece(g, e)
        self.stamp("dma0")
        self.pending = [(g, e) for g in list(range(2, 16)) for e in range(self.npieces(g))]
        self.pending += [(16, 0), (16, 1), (20, 0), (20, 1), ("aq", 0), (17, 0), (17, 1), (21, 0), (21, 1)]
        if not early:
            srd(p, SRD_WS, sWS, WS_SIZE)
        srd(p, SRD_DBG, sDBG, 256)
        self.p1_setup_late()
        if not early:
            self.counter_zero()
        if not self.o.get("nodma"):
            self.emit_pieces(0, self.o.get("upfront", 0))
        self.stamp("setup")
        q.wait(p, ["st0", "cz"] if early else ["st0"])
        p("s_barrier")
        if early:
            self.counter_flag()
        self.stamp("st0")
        if self.o.get("p1prio"):
            p(f"s_cmp_ge_u32 s{sW}, 4")
            p("s_cbranch_scc0 L_noprio1")
            p(f"s_setprio {self.o['p1prio']}")
            p("L_noprio1:")
        p(f"s_cmp_eq_u32 s{sTYP}, 0")
        p("s_cbranch_scc0 L_p1_B")
        q0, w0, pend0 = q.fork(), (self.win1, self.win2), list(self.pending)
        ends = []
        for typ in range(2):
            if typ == 1:
                p("L_p1_B:")
                self.q = q0
                self.win1, self.win2 = w0
                self.pending = pend0
            self.cur_typ = typ
            self.p1_first_reads(typ)
            self.p1_pass(1, typ)
            self.stamp("pass1")
            if self.ovl():
                self.p1_epi1_ovl(typ)
            else:
                self.p1_epi1(typ)
            self.stamp("epi1")
            self.p1_pass(2, typ)
            assert not self.deferred
            self.stamp("pass2")
            if not self.o.get("nodma"):
                self.emit_pieces(99, 99)
            self.p1_epi2(typ)
            self.stamp("epi2")
            ends.append(self.q)
            if typ == 0:
                p("s_branch L_p1_join")
        p("L_p1_join:")
        self.q = VMQ.join(ends)

    aQ, aK, aV, aS, aP, aO = 4, (8, 12), (16, 24), (32, 48), (64, 72), 80
    avK, avV, avVinc, avL16 = 96, 97, 98, 3
    avT = 100
    HFR = 128
    LGR = 240

    def nrmT(self):
        return 64 if self.ovl() else self.avT

    def att_loads(self):
        p, q = self.p, self.q
        L, T = self.vLANE, self.nrmT()
        p(f"s_lshl_b32 s{sA0}, s{sQC}, 3")
        p(f"s_add_u32 s{sA0}, s{sA0}, s{sW}          ; q tile")
        p(f"s_lshl_b32 s{sA1}, s{sH}, 6")
        p(f"s_add_u32 s{sA1}, s{sA1}, s{sA0}         ; h*64+tile")
        p(f"s_lshl_b32 s{sA2}, s{sA1}, 10")
        p(f"s_add_u32 s{sA2}, s{sA2}, {WS_QF:#x}")
        p(f"buffer_load_dwordx4 {V4(self.aQ)}, v{self.vL16}, {S4(SRD_WS)}, s{sA2} offen sc1")
        p(f"s_lshr_b32 s{sA2}, s{sH}, 2")
        p(f"s_lshl_b32 s{sA2}, s{sA2}, 11")
        p(f"s_and_b32 s{sA1}, s{sH}, 3")
        p(f"s_lshl_b32 s{sA1}, s{sA1}, 5")
        p(f"s_add_u32 s{sA2}, s{sA2}, s{sA1}")
        p(f"s_add_u32 s{sA2}, s{sA2}, {WS_NRMQ:#x}")
        p(f"v_lshrrev_b32 v{T}, 2, v{L}")
        p(f"v_lshlrev_b32 v{T}, 7, v{T}")
        p(f"v_and_b32 v{T+3}, 3, v{L}")
        p(f"v_lshl_add_u32 v{T}, v{T+3}, 3, v{T}")
        p(f"buffer_load_dword v{T+1}, v{T}, {S4(SRD_WS)}, s{sA2} offen offset:4 sc1")
        p(f"s_lshr_b32 s{sA1}, s{sA0}, 2")
        p(f"s_lshl_b32 s{sA1}, s{sA1}, 7")
        p(f"s_and_b32 s{sA0}, s{sA0}, 3")
        p(f"s_lshl_b32 s{sA0}, s{sA0}, 3")
        p(f"s_add_u32 s{sA2}, s{sA2}, s{sA1}")
        p(f"s_add_u32 s{sA2}, s{sA2}, s{sA0}")
        p(f"v_mov_b32 v{T+3}, 0")
        p(f"buffer_load_dword v{T+2}, v{T+3}, {S4(SRD_WS)}, s{sA2} offen sc1")
        q.push("aq", 3)

    def att_setup(self):
        p, q = self.p, self.q
        L, T = self.vLANE, self.avT
        p(f"v_lshlrev_b32 v{self.avL16}, 4, v{L}")
        p(f"v_add_u32 v{self.avK}, 32768, v{self.avL16}")
        if self.o.get("vmask", 1):
            p(f"v_lshrrev_b32 v{T+5}, 5, v{L}")
            p(f"v_lshlrev_b32 v{T+5}, 8, v{T+5}")
            p(f"v_and_b32 v{T+6}, 15, v{L}")
            p(f"v_lshl_add_u32 v{T+5}, v{T+6}, 4, v{T+5}")
            p(f"v_add_u32 v{self.avV}, 98304, v{T+5}")
            p(f"v_and_b32 v{T+6}, 27, v{L}")
            p(f"v_cmp_eq_u32 vcc, 16, v{T+6}")
            p(f"v_mov_b32 v{T+7}, 0x3f803f80")
            p(f"v_cndmask_b32 v{T+7}, 0, v{T+7}, vcc")
            for r in range(self.aV[0], self.aV[0] + 16):
                p(f"v_mov_b32 v{r}, v{T+7}")
            p(f"s_mov_b32 s{sVM}, 0xffff")
            p(f"s_mov_b32 s{sVM+1}, 0xffff")
        else:
            p(f"v_and_b32 v{T+4}, 31, v{L}               ; m")
            p(f"v_lshrrev_b32 v{T+5}, 5, v{L}")
            p(f"v_lshlrev_b32 v{T+5}, 8, v{T+5}")
            p(f"v_and_b32 v{T+6}, 15, v{L}")
            p(f"v_lshl_add_u32 v{T+5}, v{T+6}, 4, v{T+5}")
            p(f"v_add_u32 v{T+5}, 98304, v{T+5}")
            p(f"v_subrev_u32 v{T+6}, 20, v{T+4}")
            p(f"v_mov_b32 v{T+7}, {self.ONES+16}")
            p(f"v_mov_b32 v{T+8}, {self.ONES+80}")
            p(f"v_cmp_gt_u32 vcc, 8, v{T+6}")
            p(f"v_cndmask_b32 v{T+7}, v{T+7}, v{T+8}, vcc")
            p(f"v_and_b32 v{T+6}, 27, v{T+4}")
            p(f"v_subrev_u32 v{T+8}, 16, v{T+7}")
            p(f"v_cmp_eq_u32 vcc, 16, v{T+6}")
            p(f"v_cndmask_b32 v{T+7}, v{T+7}, v{T+8}, vcc")
            p(f"v_cmp_gt_u32 vcc, 16, v{T+4}")
            p(f"v_cndmask_b32 v{self.avV}, v{T+7}, v{T+5}, vcc")
            p(f"v_mov_b32 v{T+7}, 0")
            p(f"v_mov_b32 v{T+8}, 4096")
            p(f"v_cndmask_b32 v{self.avVinc}, v{T+7}, v{T+8}, vcc")
        self.P3COORD = True
        p(f"s_mov_b32 s{sTYPC}, s{sTYP}")
        p(f"s_lshl_b32 s{sRT64}, s{sXCD}, 2")
        p(f"s_and_b32 s{sA0}, s{sSLOT}, 3")
        p(f"s_add_u32 s{sRT64}, s{sRT64}, s{sA0}")
        p(f"s_lshr_b32 s{sCB}, s{sSLOT}, 2")
        p(f"s_lshr_b32 s{sKQ}, s{sW}, 1")
        p(f"s_and_b32 s{sTR}, s{sW}, 1")
        p(f"s_lshl_b32 s{sT32}, s{sRT64}, 1")
        p(f"s_add_u32 s{sT32}, s{sT32}, s{sTR}")
        q.wait(p, ["st16", "st17", "st20", "aq"])
        p("s_barrier")
        self.stamp("kv")
        p(f"ds_read_b128 {V4(self.aK[0])}, v{self.avK}")
        p(f"ds_read_b128 {V4(self.aK[1])}, v{self.avK} offset:1024")
        N = self.nrmT()
        for sh in (1, 2, 4, 8):
            p(f"v_max_f32_dpp v{N+1}, v{N+1}, v{N+1} row_shr:{sh} row_mask:0xf bank_mask:0xf")
        p(f"v_max_f32_dpp v{N+1}, v{N+1}, v{N+1} row_bcast:15 row_mask:0xa bank_mask:0xf")
        p(f"v_max_f32_dpp v{N+1}, v{N+1}, v{N+1} row_bcast:31 row_mask:0xc bank_mask:0xf")
        p(f"v_readlane_b32 s{sA0}, v{N+1}, 63")
        p(f"v_mul_f32 v{N+2}, s{sA0}, v{N+2}")
        p(f"v_mov_b32 v{N+3}, {f2u(3600.0):#x}")
        p(f"v_cmp_le_f32 vcc, v{N+2}, v{N+3}")
        p(f"s_cmp_eq_u64 vcc, exec")
        p(f"s_cselect_b32 s{sMODE}, 0, 1")
        if self.o.get("force_slow"):
            p(f"s_mov_b32 s{sMODE}, 1")

    def att_tile(self, t, side):
        p = self.p
        tb = t & 3
        Sc, Sn = self.aS[t & 1], self.aS[(t + 1) & 1]
        Kn, Kl = self.aK[(t + 1) & 1], self.aK[t & 1]
        Vc, Vp = self.aV[t & 1], self.aV[(t + 1) & 1]
        Pc, Pp = self.aP[t & 1], self.aP[(t + 1) & 1]
        O, Q = self.aO, self.aQ
        ex = lambda i: p(f"v_exp_f32 v{Sc+i}, v{Sc+i}")
        cv = lambda i: p(f"v_cvt_pk_bf16_f32 v{Pc+i}, v{Sc+2*i}, v{Sc+2*i+1}")
        p("s_waitcnt lgkmcnt(0)")
        if t < 63:
            mfma(p, Sn, Kn, Q, None)
        if t < 62:
            p(f"ds_read_b128 {V4(Kl)}, v{self.avK} offset:{1024*(t+2)}")
        if self.o.get("vmask", 1):
            p(f"s_mov_b64 exec, s[{sVM}:{sVM+1}]")
            p(f"ds_read_b128 {V4(Vc)}, v{self.avV} offset:{1024*t}")
            p(f"ds_read_b128 {V4(Vc+4)}, v{self.avV} offset:{1024*t+512}")
            p("s_mov_b64 exec, -1")
        else:
            p(f"ds_read_b128 {V4(Vc)}, v{self.avV} offset:{1024*tb}")
            p(f"ds_read_b128 {V4(Vc+4)}, v{self.avV} offset:{1024*tb+512}")
        ex(0); ex(1); ex(2); cv(0); ex(3)
        if t > 0:
            mfma(p, O, Vp, Pp, None if t == 1 else O)
        if side:
            side[0]()
        ex(4); cv(1); ex(5); ex(6); cv(2); ex(7); ex(8); cv(3); ex(9)
        if t > 0:
            mfma(p, O, Vp + 4, Pp + 4, O)
        for f in side[1:]:
            f()
        ex(10); cv(4); ex(11); ex(12); cv(5); ex(13); ex(14); ex(15); cv(6)
        if tb == 3 and t < 63 and not self.o.get("vmask", 1):
            p(f"v_add_u32 v{self.avV}, v{self.avVinc}, v{self.avV}")
        cv(7)

    def side_hstore(self, i):
        p = self.p
        def f():
            if i < 2:
                p(f"s_add_u32 s{sT1}, s{sQB}, {WS_HF + 1024*i:#x}")
                self.store_ws(128 + 4*i, self.avL16, sT1, "hst")
            else:
                n = uid()
                p(f"s_cmp_eq_u32 s{sTYPC}, 0")
                p(f"s_cbranch_scc1 L_noh_{n}")
                p(f"s_add_u32 s{sT1}, s{sHB1}, {WS_HF + 1024*(i-2):#x}")
                qa = self.q.fork()
                self.store_ws(136 + 4*(i-2), self.avL16, sT1, "hst")
                p(f"L_noh_{n}:")
                self.q = VMQ.join([qa, self.q])
                self.q.dedup()
        return f

    def side_kv(self, g, e):
        return lambda: self.p1_piece(g, e)

    def side_warm(self):
        p = self.p
        L, T = self.vLANE, self.avT
        def f():
            srd(p, SRD_T, sWD, 1792 * 1024)
            p(f"s_mul_i32 s{sA0}, s{sSLOT}, 57344")
            p(f"s_mul_i32 s{sA1}, s{sW}, 7168")
            p(f"s_add_u32 s{sA0}, s{sA0}, s{sA1}")
            p(f"v_lshlrev_b32 v{T}, 6, v{L}")
            p(f"buffer_load_dword v{T+3}, v{T}, {S4(SRD_T)}, s{sA0} offen")
            p(f"s_add_u32 s{sA0}, s{sA0}, 3072")
            p(f"buffer_load_dword v{T+4}, v{T}, {S4(SRD_T)}, s{sA0} offen")
            srd(p, SRD_T, sWO, 512 * 1024)
            p(f"s_lshl_b32 s{sA0}, s{sSLOT}, 14")
            p(f"s_lshl_b32 s{sA1}, s{sW}, 11")
            p(f"s_add_u32 s{sA0}, s{sA0}, s{sA1}")
            p(f"v_and_b32 v{T+6}, 31, v{L}")
            p(f"v_lshlrev_b32 v{T+6}, 6, v{T+6}")
            p(f"buffer_load_dword v{T+5}, v{T+6}, {S4(SRD_T)}, s{sA0} offen")
            self.q.push("warm", 3)
        return f

    def side_f2load(self):
        p, T = self.p, self.avT
        def f():
            p(f"s_lshr_b32 s{sA0}, s{sRT64}, 1")
            p(f"s_add_u32 s{sA0}, s{sA0}, {F2}")
            p(f"s_lshl_b32 s{sA0}, s{sA0}, 8")
            p(f"v_mov_b32 v{T}, s{sA0}")
            p(f"buffer_load_dword v{T+1}, v{T}, {S4(SRD_WS)}, 0 offen sc1")
            self.q.push("f2ld")
        return f

    def side_hload(self, j):
        p = self.p
        def f():
            if j == 0:
                p(f"s_mul_i32 s{sHLD}, s{sT32}, 112")
                p(f"s_mul_i32 s{sA1}, s{sKQ}, 28")
                p(f"s_add_u32 s{sHLD}, s{sHLD}, s{sA1}")
                p(f"s_lshl_b32 s{sHLD}, s{sHLD}, 10")
                p(f"s_add_u32 s{sHLD}, s{sHLD}, {WS_HF:#x}")
            o = f" offset:{1024*(j&3)}" if j & 3 else ""
            p(f"buffer_load_dwordx4 {V4(self.HFR + 4*j)}, v{self.avL16}, {S4(SRD_WS)}, s{sHLD} offen{o} sc1")
            self.q.push("hld")
            if (j & 3) == 3:
                p(f"s_add_u32 s{sHLD}, s{sHLD}, 4096")
        return f

    def side_lgload(self, i):
        p, L, T = self.p, self.vLANE, self.avT
        def f():
            if i == 0:
                p(f"v_lshrrev_b32 v{T+7}, 5, v{L}")
                p(f"v_lshlrev_b32 v{T+7}, 16, v{T+7}")
                p(f"v_and_b32 v{T+6}, 31, v{L}")
                p(f"v_lshl_add_u32 v{T+7}, v{T+6}, 2, v{T+7}")
                p(f"s_lshl_b32 s{sLGL}, s{sT32}, 7")
                p(f"s_add_u32 s{sLGL}, s{sLGL}, {WS_LG:#x}")
            p(f"buffer_load_dword v{self.LGR+i}, v{T+7}, {S4(SRD_WS)}, s{sLGL} offen sc1")
            self.q.push("lgl")
            if i < 7:
                p(f"s_add_u32 s{sLGL}, s{sLGL}, 8192")
        return f

    def att_b1(self):
        p, T = self.p, self.avT
        self.q.wait(p, ["hst", "st21", "st18", "lgst"])
        p("s_barrier")
        p(f"s_add_u32 s{sA0}, s{sRB}, {F2}")
        p(f"s_lshl_b32 s{sA0}, s{sA0}, 8")
        p(f"v_mov_b32 v{T+4}, {OOB:#x}")
        p(f"v_mov_b32 v{T+5}, s{sA0}")
        p(f"v_cmp_eq_u32 vcc, 0, v0")
        p(f"v_cndmask_b32 v{T+4}, v{T+4}, v{T+5}, vcc")
        p(f"v_mov_b32 v{T+5}, 1")
        p(f"buffer_atomic_add v{T+5}, v{T+4}, {S4(SRD_WS)}, 0 offen sc1")
        self.q.push("f2add")

    def att_b2(self):
        p, T = self.p, self.avT
        self.q.wait(p, ["st19", "st22", "st23", "f2ld"])
        poll(p, self.q, T + 1, T, SRD_WS, 16, "F2")
        p("s_waitcnt lgkmcnt(0)")
        p("s_barrier")
        self.p3_setup_dma()

    def npre3(self):
        return self.o.get("pre3", 3) if self.o.get("vmask", 1) else 2

    def att_sides(self):
        sd = {t: [] for t in range(64)}
        for i in range(5):
            sd[i].append(self.side_hstore(i))
        order = [(18, 0), (18, 1), (22, 0), (22, 1), (19, 0), (19, 1), (23, 0), (23, 1)]
        for k, (g, e) in enumerate(order):
            sd[5 + k].append(self.side_kv(g, e))
        if self.o.get("warm", 1):
            sd[18].append(self.side_warm())
        if self.o.get("wb"):
            def wb():
                n = uid()
                p = self.p
                p(f"s_add_u32 s{sA0}, s{sSLOT}, s{sW}")
                p(f"s_cmp_eq_u32 s{sA0}, 0")
                p(f"s_cbranch_scc0 L_nowb{n}")
                qa = self.q.fork()
                p("buffer_wbl2 sc1")
                self.q.push("wb")
                p(f"L_nowb{n}:")
                self.q = VMQ.join([qa, self.q]); self.q.dedup()
            sd[self.o["wb"]].append(wb)
        sd[28].append(self.side_f2load())
        ops = [(lambda g=g, e=e: self.p3_piece(g, e)) for g in range(self.npre3()) for e in range(4)]
        ops2 = [self.side_hload(j) for j in range(28)] + [self.side_lgload(i) for i in range(8)]
        seq = []
        while ops or ops2:
            if ops:
                seq.append(ops.pop(0))
            if ops2:
                seq.append(ops2.pop(0))
        t = 32
        n2 = len(seq) - 31
        k = 0
        while k < len(seq):
            sd[t].append(seq[k]); k += 1
            if n2 > 0 and k < len(seq):
                sd[t].append(seq[k]); k += 1; n2 -= 1
            t += 1
        assert t <= 63, t
        return sd

    def att_slow_tile(self):
        p = self.p
        S, P, O, K, V, Q = self.aS[0], self.aP[0], self.aO, self.aK[0], self.aV[0], self.aQ
        T = self.avT
        m_old, m_new, al = T + 8, T + 9, T + 10
        p(f"ds_read_b128 {V4(K)}, v{self.avK}")
        if self.o.get("vmask", 1):
            p(f"s_mov_b64 exec, s[{sVM}:{sVM+1}]")
        p(f"ds_read_b128 {V4(V)}, v{self.avV}")
        p(f"ds_read_b128 {V4(V+4)}, v{self.avV} offset:512")
        if self.o.get("vmask", 1):
            p("s_mov_b64 exec, -1")
        p("s_waitcnt lgkmcnt(0)")
        mfma(p, S, K, Q, None)
        p(f"v_max3_f32 v{m_new}, v{S}, v{S+1}, v{S+2}")
        for r in range(3, 15, 2):
            p(f"v_max3_f32 v{m_new}, v{m_new}, v{S+r}, v{S+r+1}")
        p(f"v_max_f32 v{m_new}, v{m_new}, v{S+15}")
        p(f"v_mov_b32 v{al}, v{m_new}")
        p(f"v_permlane32_swap_b32 v{m_new}, v{al}")
        p(f"v_max3_f32 v{m_new}, v{m_new}, v{al}, v{m_old}")
        p(f"v_sub_f32 v{al}, v{m_old}, v{m_new}")
        p(f"v_exp_f32 v{al}, v{al}")
        p(f"v_mov_b32 v{m_old}, v{m_new}")
        for r in range(16):
            p(f"v_sub_f32 v{S+r}, v{S+r}, v{m_new}")
        for r in range(16):
            p(f"v_exp_f32 v{S+r}, v{S+r}")
        for r in range(16):
            p(f"v_mul_f32 v{O+r}, v{al}, v{O+r}")
        for i in range(8):
            p(f"v_cvt_pk_bf16_f32 v{P+i}, v{S+2*i}, v{S+2*i+1}")
        mfma(p, O, V, P, O)
        mfma(p, O, V + 4, P + 4, O)
        p(f"v_add_u32 v{self.avK}, 1024, v{self.avK}")
        if self.o.get("vmask", 1):
            p(f"v_add_u32 v{self.avV}, 1024, v{self.avV}")
        else:
            p(f"v_lshrrev_b32 v{al}, 2, v{self.avVinc}")
            p(f"v_add_u32 v{self.avV}, v{al}, v{self.avV}")

    def attention(self):
        p, q = self.p, self.q
        self.att_setup()
        p(f"s_cmp_eq_u32 s{sMODE}, 0")
        p("s_cbranch_scc0 L_att_slow0")
        self.q_slow = self.q.fork()
        p("s_waitcnt lgkmcnt(1)")
        mfma(p, self.aS[0], self.aK[0], self.aQ, None)
        prio = self.o.get("prio", 2)
        def ladder(t):
            if prio == 1:
                return 3 - t // 16
            return 3 - (t % 16) // 4 if t < 32 else 3 - (t - 32) // 8
        sd = self.att_sides()
        for t in range(64):
            if prio and (t == 0 or ladder(t) != ladder(t - 1)) and t not in (16, 32):
                p(f"s_setprio {ladder(t)}")
            if t in (16, 32, 48):
                self.stamp(f"seg{t//16}")
                if prio and t in (16, 32):
                    p(f"s_setprio {ladder(t)}")
                if t == 16:
                    self.att_b1()
                if t == 32:
                    self.att_b2()
                self.stamp(f"seg{t//16}e")
            self.att_tile(t, [] if self.o.get("noseg") else sd[t])
        p("s_waitcnt lgkmcnt(0)")
        mfma(p, self.aO, self.aV[1], self.aP[1], self.aO)
        mfma(p, self.aO, self.aV[1] + 4, self.aP[1] + 4, self.aO)
        p("L_att_fin:")
        self.stamp("att")
        O, T = self.aO, self.avT
        p(f"v_rcp_f32 v{T}, v{O+8}")
        for r in range(8):
            p(f"v_mul_f32 v{O+r}, v{T}, v{O+r}")
        for i in range(4):
            p(f"v_cvt_pk_bf16_f32 v{T+4+i}, v{O+2*i}, v{O+2*i+1}")
        p(f"s_lshl_b32 s{sA0}, s{sQC}, 3")
        p(f"s_add_u32 s{sA0}, s{sA0}, s{sW}")
        p(f"s_lshl_b32 s{sA0}, s{sA0}, 5")
        p(f"s_add_u32 s{sA0}, s{sA0}, s{sH}")
        p(f"s_lshl_b32 s{sA0}, s{sA0}, 10")
        p(f"s_add_u32 s{sA0}, s{sA0}, {WS_OF:#x}")
        p(f"buffer_store_dwordx4 {V4(T+4)}, v{self.avL16}, {S4(SRD_WS)}, s{sA0} offen sc1")
        self.q = VMQ()
        self.q.push("ost")

    def att_slow_code(self):
        p = self.p
        T = self.avT
        self.q = self.q_slow
        p("L_att_slow0:")
        p("s_waitcnt lgkmcnt(0)")
        p(f"v_mov_b32 v{T+8}, 0xff800000")
        for r in range(self.aO, self.aO + 16):
            p(f"v_mov_b32 v{r}, 0")
        sd = self.att_sides()
        def run(n):
            k = uid()
            p(f"s_mov_b32 s{sA3}, 0")
            p(f"L_att_slow_loop{k}:")
            self.att_slow_tile()
            p(f"s_add_u32 s{sA3}, s{sA3}, 1")
            p(f"s_cmp_lt_u32 s{sA3}, {n}")
            p(f"s_cbranch_scc1 L_att_slow_loop{k}")
        for t in range(0, 16):
            for f in sd[t]: f()
        run(16)
        self.att_b1()
        for t in range(16, 32):
            for f in sd[t]: f()
        run(16)
        self.att_b2()
        for t in range(32, 64):
            for f in sd[t]: f()
        run(32)
        p("s_branch L_att_fin")

    pWB = (16, 24)
    pB, pA = 32, 64
    pvD = 112
    pvR = (6, 7, 8, 9)
    pG = 10
    pOF = 128
    pT = 100

    P3SLOT = (1, 3, 0, 2, 4, 1, 3, 0, 2)

    def p3_slot(self, g):
        return 32768 * self.P3SLOT[g]

    def p3_setup_dma(self):
        p = self.p
        L, T = self.vLANE, self.avT
        srd(p, SRD_W2, sWD, 1792 * 1024)
        srd(p, SRD_X, sWO, 512 * 1024)
        p(f"v_bfe_u32 v{T}, v{L}, 4, 1")
        p(f"v_lshlrev_b32 v{T}, 2, v{T}")
        p(f"v_and_b32 v{T+1}, 7, v{L}")
        p(f"v_xor_b32 v{T}, v{T}, v{T+1}")
        p(f"v_lshlrev_b32 v{T}, 4, v{T}")
        p(f"s_lshl_b32 s{sA0}, s{sCB}, 7")
        p(f"v_add_u32 v{T}, s{sA0}, v{T}")
        p(f"v_lshrrev_b32 v{T+1}, 3, v{L}")
        p(f"s_lshl_b32 s{sA1}, s{sTR}, 5")
        p(f"v_add_u32 v{T+1}, s{sA1}, v{T+1}          ; 32*(w&1) + (l>>3)")
        p(f"s_mul_i32 s{sA0}, s{sKQ}, 448")
        p(f"v_add_u32 v{T+2}, s{sA0}, v{T+1}")
        p(f"v_lshl_add_u32 v{self.pvD}, v{T+2}, 10, v{T}")
        p(f"s_lshl_b32 s{sA0}, s{sKQ}, 7")
        p(f"v_add_u32 v{T+2}, s{sA0}, v{T+1}")
        p(f"v_lshl_add_u32 v{self.pvD+1}, v{T+2}, 10, v{T}")

    def p3_piece(self, g, e):
        p, q = self.p, self.q
        sl = self.p3_slot(g)
        if g < 7:
            srd_r, v, row0 = SRD_W2, self.pvD, 64 * g
        else:
            srd_r, v, row0 = SRD_X, self.pvD + 1, 64 * (g - 7)
        p(f"s_add_u32 m0, s{sM0K}, {sl + 1024*e}")
        p(f"s_mov_b32 s{sA1}, {(row0 + 8*e) * 1024}")
        p(f"buffer_load_dwordx4 v{v}, {S4(srd_r)}, s{sA1} offen lds")
        q.push(f"p3s{g}")

    def p3_emit(self, t, maxn):
        n = 0
        while self.pending3 and n < maxn:
            g, e = self.pending3[0]
            if g >= 5 and t < 4 * (g - 4) + 2:
                break
            self.pending3.pop(0)
            self.p3_piece(g, e)
            n += 1

    def p3_reads(self, t, cts=(0, 1)):
        p = self.p
        g, sp = t >> 2, t & 3
        sl = self.p3_slot(g)
        hi = 1 if sl >= 65536 else 0
        off = sl - 65536 * hi
        if sl >= 131072:
            hi, off = 2, sl - 131072
        wb = self.pWB[t & 1]
        for ct in cts:
            base = self.pvR[ct] if hi == 0 else self.pvR[2 + ct] if hi == 1 else self.pT + 8 + ct
            for j in range(2):
                p(f"ds_read_b64_tr_b16 {V2(wb + 4*ct + 2*j)}, v{base} offset:{off + (16*sp + 4*j) * 128}")
        return 2 * len(cts)

    def p3(self):
        p, q = self.p, self.q
        L, T = self.vLANE, self.pT
        p("s_waitcnt vmcnt(1)")
        p("s_barrier")
        self.pending3 = [(g, e) for g in range(self.npre3(), 9) for e in range(4)]
        self.p3_emit(0, 4)
        p(f"v_lshrrev_b32 v{T}, 5, v{L}")
        p(f"v_lshlrev_b32 v{T}, 3, v{T}")
        p(f"v_bfe_u32 v{T+1}, v{L}, 2, 2")
        p(f"v_add_u32 v{T}, v{T}, v{T+1}             ; row")
        p(f"v_lshlrev_b32 v{T}, 7, v{T}              ; *128")
        p(f"v_and_b32 v{T+1}, 1, v{L}")
        p(f"v_lshlrev_b32 v{T+1}, 2, v{T+1}")
        p(f"v_bfe_u32 v{T+2}, v{L}, 4, 1")
        p(f"v_lshl_add_u32 v{T+1}, v{T+2}, 1, v{T+1}")
        p(f"v_bfe_u32 v{T+2}, v{L}, 1, 1")
        p(f"v_add_u32 v{T+1}, v{T+1}, v{T+2}          ; cg")
        p(f"v_lshl_add_u32 v{T}, v{T+1}, 3, v{T}")
        p(f"s_lshl_b32 s{sA0}, s{sKQ}, 13")
        p(f"v_add_u32 v{T}, s{sA0}, v{T}")
        p(f"v_bfe_u32 v{T+2}, v{L}, 3, 1")
        p(f"v_lshlrev_b32 v{T+2}, 6, v{T+2}           ; 64*b")
        p(f"v_add_u32 v{self.pvR[0]}, v{T}, v{T+2}     ; ct0: 64*b")
        p(f"v_xor_b32 v{T+2}, 64, v{T+2}")
        p(f"v_add_u32 v{self.pvR[1]}, v{T}, v{T+2}     ; ct1: 64*(1-b)")
        for ct in range(2):
            p(f"v_add_u32 v{self.pvR[2+ct]}, 0x10000, v{self.pvR[ct]}")
            p(f"v_add_u32 v{T+8+ct}, 0x20000, v{self.pvR[ct]}")
        if self.o.get("p3prio"):
            p(f"s_cmp_ge_u32 s{sW}, 4")
            p("s_cbranch_scc0 L_noprio3")
            p(f"s_setprio {self.o['p3prio']}")
            p("L_noprio3:")
        self.stamp("p3st0")
        self.lgq = []
        for ct in range(2):
            self.lg_issue((0, ct), self.p3_reads(0, (ct,)))
        G = self.pG
        wA, rA0, rA1, oA = 114, 115, 116, 117
        B, A = self.pB, self.pA

        def gate():
            lg = self.LGR
            for i in range(1, 8):
                p(f"v_add_f32 v{lg}, v{lg}, v{lg+i}")
            p(f"v_mov_b32 v{lg+1}, v{lg}")
            p(f"v_permlane32_swap_b32 v{lg}, v{lg+1}")
            p(f"v_add_f32 v{lg}, v{lg}, v{lg+1}")
            p(f"v_mul_f32 v{lg}, {f2u(-1.4426950408889634):#x}, v{lg}")
            p(f"v_exp_f32 v{lg}, v{lg}")
            p(f"v_add_f32 v{lg}, 1.0, v{lg}")
            p(f"v_rcp_f32 v{G}, v{lg}")
            p(f"v_sub_f32 v{G+1}, 1.0, v{G}")

        def addr1():
            p(f"v_and_b32 v{T}, 31, v{L}                 ; n")
            p(f"v_and_b32 v{T+1}, 15, v{L}")
            p(f"v_lshrrev_b32 v{T+2}, 5, v{L}")
            p(f"v_lshlrev_b32 v{T+2}, 2, v{T+2}           ; 4hi")
            p(f"v_xor_b32 v{T+1}, v{T+1}, v{T+2}          ; (n&15) ^ 4hi")
            p(f"v_lshlrev_b32 v{T+1}, 4, v{T+1}")
            p(f"v_lshl_add_u32 v{T}, v{T}, 8, v{T+1}")
            p(f"s_lshl_b32 s{sA0}, s{sW}, 13")
            p(f"v_add_u32 v{wA}, s{sA0}, v{T}")

        def addr2():
            p(f"v_lshrrev_b32 v{T}, 3, v{L}")
            p(f"s_lshl_b32 s{sA0}, s{sKQ}, 3")
            p(f"v_add_u32 v{T}, s{sA0}, v{T}             ; rho")
            p(f"v_and_b32 v{T+1}, 7, v{L}")
            p(f"v_lshlrev_b32 v{T+1}, 1, v{T+1}           ; 2*(l&7)")
            p(f"v_and_b32 v{T+2}, 15, v{T}")
            p(f"v_xor_b32 v{T+1}, v{T+1}, v{T+2}")
            p(f"v_lshlrev_b32 v{T+1}, 4, v{T+1}")
            p(f"v_lshl_add_u32 v{T+1}, v{T}, 8, v{T+1}")
            p(f"s_lshl_b32 s{sA0}, s{sTR}, 13")
            p(f"v_add_u32 v{rA0}, s{sA0}, v{T+1}")
            p(f"v_xor_b32 v{rA1}, 16, v{rA0}              ; e=1")
            p(f"s_lshl_b32 s{sA0}, s{sT32}, 5")
            p(f"v_add_u32 v{T}, s{sA0}, v{T}")
            p(f"v_and_b32 v{T+3}, 7, v{L}")
            p(f"v_lshlrev_b32 v{T+3}, 4, v{T+3}")
            p(f"v_lshl_add_u32 v{T}, v{T}, 10, v{T+3}")
            p(f"s_lshl_b32 s{sA0}, s{sCB}, 7")
            p(f"v_add_u32 v{oA}, s{sA0}, v{T}")
            srd(p, SRD_T, sOUT, 2048 * 1024)

        def f3addr():
            p(f"s_add_u32 s{sA0}, s{sXCD}, {F3}")
            p(f"s_lshl_b32 s{sA0}, s{sA0}, 8")
            p(f"v_mov_b32 v{T+7}, s{sA0}")

        extra = {4: gate, 8: addr1, 9: f3addr, 12: addr2}
        for t in range(36):
            g = t >> 2
            if (t & 3) == 2:
                tags = [f"p3s{g+1}"] if self.npre3() - 1 <= g < 8 else []
                if g == self.o.get("f3g", 0):
                    tags.append("ost")
                if g == 5:
                    tags.append("f3ld")
                self.stamp(f"qpre{g}")
                if tags:
                    q.wait(p, tags)
                if g == 5:
                    poll(p, q, T + 6, T + 7, SRD_WS, 32, "F3")
                self.stamp(f"qwait{g}")
                p("s_barrier")
                self.stamp(f"qbar{g}")
                if g == self.o.get("f3g", 0):
                    p(f"s_add_u32 s{sA0}, s{sQC}, {F3}")
                    p(f"s_lshl_b32 s{sA0}, s{sA0}, 8")
                    p(f"v_mov_b32 v{T}, {OOB:#x}")
                    p(f"v_mov_b32 v{T+1}, s{sA0}")
                    p(f"v_cmp_eq_u32 vcc, 0, v0")
                    p(f"v_cndmask_b32 v{T}, v{T}, v{T+1}, vcc")
                    p(f"v_mov_b32 v{T+1}, 1")
                    p(f"buffer_atomic_add v{T+1}, v{T}, {S4(SRD_WS)}, 0 offen sc1")
                    q.push("f3add")
                    self.stamp("f3")
                if g == 4:
                    p(f"buffer_load_dword v{T+6}, v{T+7}, {S4(SRD_WS)}, 0 offen sc1")
                    q.push("f3ld")
                if g == 5:
                    p(f"s_lshl_b32 s{sA2}, s{sT32}, 5")
                    p(f"s_lshl_b32 s{sA1}, s{sKQ}, 3")
                    p(f"s_add_u32 s{sA2}, s{sA2}, s{sA1}")
                    p(f"s_lshl_b32 s{sA2}, s{sA2}, 10")
                    p(f"s_add_u32 s{sA2}, s{sA2}, {WS_OF:#x}")
                    for j in range(8):
                        o = f" offset:{1024*(j&3)}" if j & 3 else ""
                        p(f"buffer_load_dwordx4 {V4(self.pOF + 4*j)}, v{self.avL16}, {S4(SRD_WS)}, s{sA2} offen{o} sc1")
                        q.push("ofr")
                        if j == 3:
                            p(f"s_add_u32 s{sA2}, s{sA2}, 4096")
            wb = self.pWB[t & 1]
            if t < 28:
                acc, bfr, first = self.pB, self.HFR + 4*t, t == 0
            else:
                acc, bfr, first = self.pA, self.pOF + 4*(t - 28), t == 28
            if t == 28:
                q.wait(p, "ofr")
            for ct in range(2):
                self.lg_wait((t, ct))
                mfma(p, acc + 16*ct, wb + 4*ct, bfr, None if first else acc + 16*ct)
                if t < 35:
                    self.lg_issue((t + 1, ct), self.p3_reads(t + 1, (ct,)))
                if ct == 0:
                    self.p3_emit(t, 2 if t < 4 else 1)
                    if t in extra:
                        extra[t]()
                if t >= 30 and t < 34:
                    k = 2*(t - 30) + ct
                    for r in range(4*k, 4*k + 4):
                        p(f"v_mul_f32 v{B+r}, v{G+1}, v{B+r}")
            if t == 27:
                self.stamp("p3a")
        self.stamp("p3b")
        for ct in range(2):
            for qq in range(4):
                r0 = 16*ct + 4*qq
                for r in range(r0, r0 + 4):
                    p(f"v_fmac_f32 v{B+r}, v{G}, v{A+r}")
                c = 8*ct + qq
                p(f"v_xor_b32 v{T+1+(qq&1)}, {16*c}, v{wA}")
                p(f"ds_write_b128 v{T+1+(qq&1)}, {V4(B + r0)}")
        p("s_waitcnt lgkmcnt(0)")
        p("s_barrier")
        R = 16
        for k in range(4):
            p(f"ds_read_b128 {V4(R + 8*k)}, v{rA0} offset:{16384*k}")
            p(f"ds_read_b128 {V4(R + 8*k + 4)}, v{rA1} offset:{16384*k}")
        p("s_waitcnt lgkmcnt(4)")
        for r in range(8):
            p(f"v_add_f32 v{R+r}, v{R+r}, v{R+8+r}")
        p("s_waitcnt lgkmcnt(0)")
        for r in range(8):
            p(f"v_add_f32 v{R+16+r}, v{R+16+r}, v{R+24+r}")
        for r in range(8):
            p(f"v_add_f32 v{R+r}, v{R+r}, v{R+16+r}")
        for i in range(4):
            p(f"v_cvt_pk_bf16_f32 v{R+8+i}, v{R+2*i}, v{R+2*i+1}")
        p(f"buffer_store_dwordx4 {V4(R+8)}, v{oA}, {S4(SRD_T)}, 0 offen" + (" sc1" if self.o.get("outsc1") else "") + (" nt" if self.o.get("outnt") else ""))

    def finish(self):
        p = self.p
        if self.o.get("twice"):
            p("s_waitcnt vmcnt(0) lgkmcnt(0)")
            p("s_barrier")
            p("s_cmp_eq_u32 s0, 0")
            p("s_mov_b32 s0, 1")
            p("s_cbranch_scc1 L_restart")
        if self.o.get("stamps"):
            p("s_waitcnt vmcnt(0)")
            self.stamp("end")
            self.dump_stamps()
        p("L_end:")
        p("s_endpgm")

    def build(self):
        self.prologue()
        self.p1()
        if self.stop_after != "p1":
            self.attention()
            if self.stop_after != "att":
                self.p3()
        self.finish()
        if self.stop_after != "p1":
            self.att_slow_code()
        self.p("L_codeend:")
        n = self.p.fix_hazards()
        return self.p.text(), n


HEADER = """; Kernarg layout (88 bytes, pointers): A_x, A_wqkv, A_wo, B_x (unused by the reference), B_W_gate, B_W_up, B_W_down,
;
; out = g * (attn(x) @ wo) + (1 - g) * ((relu(x Wg) * (x Wu)) @ Wd),  g = sigmoid(x . gate_w)
; @launch grid=(256,1,1) block=(512,1,1) lds=163840
.amdgcn_target "amdgcn-amd-amdhsa--gfx950"
.text
.globl {name}_kernel
.p2align 8
.type {name}_kernel,@function
{name}_kernel:
"""
FOOTER = """.section .rodata,"a"
.p2align 6
.amdhsa_kernel {name}_kernel
  .amdhsa_next_free_vgpr 256
  .amdhsa_next_free_sgpr 102
  .amdhsa_accum_offset 256
  .amdhsa_group_segment_fixed_size 0
  .amdhsa_kernarg_size 88
  .amdhsa_user_sgpr_count 2
  .amdhsa_user_sgpr_kernarg_segment_ptr 1
  .amdhsa_system_sgpr_workgroup_id_x 1
  .amdhsa_float_denorm_mode_32 3
.end_amdhsa_kernel
"""

def generate(stop_after=None, opts=None):
    opts = opts or {}
    POLLOPT["w0"] = opts.get("pollw0", 1)
    POLLOPT["sleep"] = opts.get("pollsleep", 0)
    g = Gen(stop_after, opts)
    body, n = g.build()
    return HEADER.format(name=NAME) + body + FOOTER.format(name=NAME), n, g.p.count()

if __name__ == "__main__":
    import argparse
    ap = argparse.ArgumentParser()
    ap.add_argument("--stop", default=None)
    ap.add_argument("-o", default="cdna_kernels/" + NAME + ".s")
    ap.add_argument("--opt", action="append", default=[])
    ap.add_argument("--stamps", default="")
    a = ap.parse_args()
    opts = {}
    for o in a.opt:
        k, _, v = o.partition("=")
        opts[k] = int(v) if v else 1
    names = a.stamps.split(",") if a.stamps else []
    if names:
        opts["stamps"] = 1
        opts["stampmap"] = {"start": 0, "end": 11}
        for i, nm in enumerate(names):
            opts["stampmap"][nm] = i + 1
    txt, n, cnt = generate(a.stop, opts)
    open(a.o, "w").write(txt)
    print(f"wrote {a.o}: {cnt} instructions, {n} nop pads")
```
